```python
import torch

def _softmax(x, axis=-1):
    return torch.softmax(x, dim=axis)
def _gelu(x):
    return torch.nn.functional.gelu(x, approximate="tanh")
def _silu(x):
    return torch.nn.functional.silu(x)
def _sigmoid(x):
    return torch.sigmoid(x)
def _layernorm(x, axis=-1, eps=1e-5):
    m = x.mean(dim=axis, keepdim=True)
    v = x.var(dim=axis, keepdim=True, unbiased=False)
    return (x - m) / torch.sqrt(v + eps)
def _scatter_add(tgt, idx, src, axis=0):
    return tgt.clone().index_add_(axis, idx, src)
def _segment_sum(src, seg, n):
    out = torch.zeros((n,) + src.shape[1:], dtype=src.dtype)
    return out.index_add_(0, seg, src)
def _pad(x, pw):
    flat = tuple(v for pair in reversed(pw) for v in pair)
    return torch.nn.functional.pad(x, flat)

kernel_name = 'sequential_preLN__ssm_conv_h3__mixer_s_mlp__prompt'

def setup_inputs():

    _w = (lambda a: (lambda t: t.to(torch.bfloat16) if t.is_floating_point() else t)(torch.as_tensor(a)))
    def _A_setup():
        B, S, D = 1, 2048, 640
        ks = 4
        return {
            "q": _w((lambda *s: torch.randn(*s, dtype=torch.bfloat16) * 0.05)(B, S, D)),
            "k": _w((lambda *s: torch.randn(*s, dtype=torch.bfloat16) * 0.4)(B, S, D)),
            "v": _w((lambda *s: torch.randn(*s, dtype=torch.bfloat16) * 0.4)(B, S, D)),
            "shift_k": _w((lambda *s: torch.randn(*s, dtype=torch.bfloat16) * 0.4)(D, ks) * 0.5),
            "ssm_k": _w((lambda *s: torch.randn(*s, dtype=torch.bfloat16) * 0.4)(D, S) * (1.0 / S ** 0.5)),
            "ssm_D": _w((lambda *s: torch.randn(*s, dtype=torch.bfloat16) * 0.4)(D)),
        }
    _A_in = _A_setup()

    def _B_setup():
        B, S, D, F = 1, 2048, 640, 1728
        return {
            "x":  _w((lambda *s: torch.randn(*s, dtype=torch.bfloat16) * 0.05)(B, S, D)),
            "w1": _w((lambda *s: torch.randn(*s, dtype=torch.bfloat16) * 3.2)(D, D) * (D ** -0.5)),
            "w2": _w((lambda *s: torch.randn(*s, dtype=torch.bfloat16) * 3.2)(D, D) * (D ** -0.5)),
            "w3": _w((lambda *s: torch.randn(*s, dtype=torch.bfloat16) * 3.2)(D, F) * (D ** -0.5)),
            "w4": _w((lambda *s: torch.randn(*s, dtype=torch.bfloat16) * 3.2)(F, D) * (F ** -0.5)),
        }
    _B_in = _B_setup()

    return {
        "A_q": _A_in["q"],
        "A_k": _A_in["k"],
        "A_v": _A_in["v"],
        "A_shift_k": _A_in["shift_k"],
        "A_ssm_k": _A_in["ssm_k"],
        "A_ssm_D": _A_in["ssm_D"],
        "B_x": _B_in["x"],
        "B_w1": _B_in["w1"],
        "B_w2": _B_in["w2"],
        "B_w3": _B_in["w3"],
        "B_w4": _B_in["w4"],
    }

def reference(A_q, A_k, A_v, A_shift_k, A_ssm_k, A_ssm_D, B_x, B_w1, B_w2, B_w3, B_w4):
    def _A_ref(q, k, v, shift_k, ssm_k, ssm_D):
        B, S, D = q.shape
        ks = shift_k.shape[-1]
        k_pad = _pad(k, ((0, 0), (ks - 1, 0), (0, 0)))
        k_shift = torch.zeros_like(k)
        for t in range(ks):
            k_shift = k_shift + k_pad[:, t:t + S, :] * shift_k[:, ks - 1 - t][None, None, :]
        kv = k_shift * v
        L = 2 * S
        kv_pad = _pad(kv, ((0, 0), (0, S), (0, 0)))
        kf_pad = _pad(ssm_k, ((0, 0), (0, S)))
        kv_f = (lambda x, axes=(-2,-1): torch.fft.rfft2(x.float(), dim=axes))(kv_pad[:, None, :, :], axes=(1, 2))
        kf_f = (lambda x, axes=(-2,-1): torch.fft.rfft2(x.float(), dim=axes))(kf_pad[:, None, :], axes=(1, 2))
        kf_f = (lambda x, *d: x.permute(*d))(kf_f, 1, 2, 0)
        y_f = kv_f * kf_f[None, :, :, :]
        y = (lambda x, s, axes=(-2,-1): torch.fft.irfft2(x, s=s, dim=axes).to(torch.bfloat16))(y_f, (1, L), axes=(1, 2))[:, 0, :S, :]
        y = y + kv * ssm_D[None, None, :]
        return q * y

    def _B_ref(x, w1, w2, w3, w4):
        B, S, D = x.shape
        h = _gelu(_layernorm(x, axis=-1) @ w1)
        c = D // 4
        g0 = _pad(h[:, :, 0*c:1*c], ((0, 0), (1, 0), (0, 0)))[:, :S, :]
        g1 = _pad(h[:, :, 1*c:2*c], ((0, 0), (0, 1), (0, 0)))[:, 1:, :]
        g2 = _pad(h[:, :, 2*c:3*c], ((0, 0), (2, 0), (0, 0)))[:, :S, :]
        g3 = _pad(h[:, :, 3*c:   ], ((0, 0), (0, 2), (0, 0)))[:, 2:, :]
        hs = torch.concatenate([g0, g1, g2, g3], axis=-1) @ w2
        x1 = x + hs
        h2 = _gelu(_layernorm(x1, axis=-1) @ w3) @ w4
        return x1 + h2

    x = A_q
    h = x + _A_ref(_layernorm(x, axis=-1), A_k, A_v, A_shift_k, A_ssm_k, A_ssm_D)
    h2 = h + _B_ref(_layernorm(h, axis=-1), B_w1, B_w2, B_w3, B_w4)
    return h2
```

```python
import re

def v(a, n=1): return f"v{a}" if n == 1 else f"v[{a}:{a+n-1}]"
def a(x, n=1): return f"a{x}" if n == 1 else f"a[{x}:{x+n-1}]"
def s(a_, n=1): return f"s{a_}" if n == 1 else f"s[{a_}:{a_+n-1}]"

_REG = re.compile(r"(?<![\w.])([vas])(?:(\d+)\b|\[(\d+):(\d+)\])")

def regs_in(text):
    out = []
    for m in _REG.finditer(text):
        k = m.group(1)
        if m.group(2) is not None:
            out.append((k, int(m.group(2)), int(m.group(2))))
        else:
            out.append((k, int(m.group(3)), int(m.group(4))))
    return out

def expand(rs):
    o = set()
    for k, lo, hi in rs:
        for i in range(lo, hi + 1): o.add((k, i))
    return o

TRANS = ("v_exp_f32", "v_log_f32", "v_rcp_f32", "v_rsq_f32", "v_sqrt_f32", "v_sin_f32", "v_cos_f32", "v_rcp_iflag_f32")

class Ins:
    __slots__ = ("text", "op", "kind", "defs", "uses", "srcc", "sdefs", "raw", "dpp", "wide_store", "vccdef", "vccuse", "m0def", "m0use", "label", "target", "states", "execdef")
    def __init__(self, text):
        self.text = text
        t = text.split(";")[0].strip()
        self.raw = t
        self.label = None; self.target = None
        self.defs = set(); self.uses = set(); self.srcc = set(); self.sdefs = set()
        self.dpp = False; self.wide_store = False; self.vccdef = False; self.vccuse = False
        self.m0def = False; self.m0use = False; self.states = 1; self.execdef = False
        if t.endswith(":") and " " not in t:
            self.kind = "label"; self.label = t[:-1]; self.op = ""; self.states = 0; return
        if not t or t.startswith("."):
            self.kind = "dir"; self.op = ""; self.states = 0; return
        parts = t.split(None, 1)
        self.op = op = parts[0]
        rest = parts[1] if len(parts) > 1 else ""
        ops = [x.strip() for x in self._split(rest)]
        if op == "s_nop":
            self.kind = "nop"; self.states = int(ops[0], 0) + 1; return
        if op.startswith("s_cbranch") or op == "s_branch":
            self.kind = "branch"; self.target = ops[0]; return
        if op.startswith("v_mfma"):
            self.kind = "mfma"
            self.defs = expand(regs_in(ops[0]))
            self.uses = expand(regs_in(ops[1])) | expand(regs_in(ops[2]))
            self.srcc = expand(regs_in(ops[3]))
            return
        if op.startswith("v_"):
            self.kind = "trans" if op.replace("_e32", "").replace("_e64", "") in TRANS else "valu"
            self.dpp = ("dpp" in op) or ("row_" in rest) or ("quad_perm" in rest) or ("wave_" in rest) or ("row_bcast" in rest)
            if op.startswith("v_cmp"):
                d = ops[0]
                if d == "vcc": self.vccdef = True
                else: self.sdefs = expand(regs_in(d))
                for o in ops[1:]: self.uses |= expand(regs_in(o))
                if op.startswith("v_cmpx"): self.execdef = True
                return
            if op.startswith("v_readfirstlane") or op.startswith("v_readlane"):
                self.sdefs = expand(regs_in(ops[0]))
                for o in ops[1:]: self.uses |= expand(regs_in(o))
                self.kind = "readlane"
                return
            if op.startswith("v_permlane") and "swap" in op:
                self.defs = expand(regs_in(ops[0])) | expand(regs_in(ops[1]))
                self.uses = set(self.defs)
                self.kind = "permlane"
                return
            self.defs = expand(regs_in(ops[0]))
            k = 1
            if "_co_" in op or op.startswith("v_div_scale") or op.startswith("v_mad_u64") or op.startswith("v_mad_i64"):
                if ops[1] == "vcc": self.vccdef = True
                else: self.sdefs = expand(regs_in(ops[1]))
                k = 2
            for o in ops[k:]:
                self.uses |= expand(regs_in(o))
                if o == "vcc": self.vccuse = True
            if op.startswith("v_cndmask") and len(ops) == 3: self.vccuse = True
            if op.startswith("v_fmac") or op.startswith("v_mac") or op.startswith("v_pk_fmac") or op.startswith("v_dot2c") or op.startswith("v_writelane"):
                self.uses |= self.defs
            if "op_sel" in rest and "pk_" not in op: pass
            return
        if op.startswith("buffer_") or op.startswith("global_"):
            self.kind = "vmem"
            allr = expand(regs_in(rest))
            if "lds" in rest.split():
                self.m0use = True; self.uses = allr
            elif "_load" in op:
                self.defs = expand(regs_in(ops[0]))
                for o in ops[1:]: self.uses |= expand(regs_in(o))
            elif "atomic" in op:
                self.uses = allr
                if "sc0" in rest.split(): self.defs = expand(regs_in(ops[0]))
            else:
                self.uses = allr
                if "x4" in op or "x3" in op:
                    if op.startswith("buffer_"): self.wide_store = expand(regs_in(ops[0]))
                    else: self.wide_store = expand(regs_in(ops[1]))
            return
        if op.startswith("ds_"):
            self.kind = "ds"
            if op.startswith("ds_read") or op.startswith("ds_bpermute") or op.startswith("ds_permute") or op.startswith("ds_swizzle"):
                self.defs = expand(regs_in(ops[0]))
                for o in ops[1:]: self.uses |= expand(regs_in(o))
            else:
                self.uses = expand(regs_in(rest))
            return
        if op.startswith("s_"):
            self.kind = "salu"
            if op.startswith("s_cmp") or op in ("s_waitcnt", "s_barrier", "s_endpgm", "s_setprio", "s_sleep"):
                for o in ops: self.uses |= expand(regs_in(o))
                return
            if ops:
                d = ops[0]
                if d == "m0": self.m0def = True
                elif d == "exec": pass
                elif d == "vcc": pass
                else: self.sdefs = expand(regs_in(d))
                for o in ops[1:]: self.uses |= expand(regs_in(o))
            return
        self.kind = "other"
    @staticmethod
    def _split(rest):
        out = []; depth = 0; cur = ""
        for ch in rest:
            if ch == "[": depth += 1
            if ch == "]": depth -= 1
            if ch == "," and depth == 0:
                out.append(cur); cur = ""
            else: cur += ch
        if cur.strip(): out.append(cur)
        return out

VALUISH = ("valu", "trans", "readlane", "permlane")

def need(prev, cur):
    n = 0
    pv = prev.kind in VALUISH
    cv = cur.kind in VALUISH
    vec = lambda st: {r for r in st if r[0] in "va"}
    if pv and prev.kind != "readlane":
        d = vec(prev.defs)
        if cur.kind == "mfma" and d & (cur.uses | cur.srcc): n = max(n, 2)
        if cur.kind == "readlane" and d & cur.uses: n = max(n, 1)
        if cur.kind == "permlane" and d & cur.uses: n = max(n, 2)
        if cur.dpp and d & cur.uses: n = max(n, 2)
        if prev.kind == "trans" and cv and cur.kind != "trans" and d & cur.uses: n = max(n, 1)
        if prev.kind == "trans" and cur.kind == "trans" and d & cur.uses: n = max(n, 1)
    if pv:
        sd = prev.sdefs
        if sd:
            if cur.kind == "vmem" and sd & cur.uses: n = max(n, 5)
            if cv and sd & cur.uses: n = max(n, 4 if cur.kind == "readlane" else 2)
            if cur.kind in ("salu", "branch") and sd & cur.uses: n = max(n, 4)
            if cur.kind == "mfma" and sd & cur.uses: n = max(n, 2)
        if prev.vccdef and cv and cur.vccuse: n = max(n, 2)
        if prev.vccdef and cur.kind in ("salu", "branch") and ("vcc" in cur.raw): n = max(n, 5)
        if prev.execdef and (cv or cur.kind == "mfma"): n = max(n, 5)
    if prev.op.startswith("v_dot"):
        d = vec(prev.defs)
        if d & (cur.uses | cur.defs | cur.srcc):
            same_acc = cur.op == prev.op and cur.defs == prev.defs and cur.raw.split(",")[-1].strip() == prev.raw.split(None,1)[1].split(",")[0].strip() \
                       and not (d & (expand(regs_in(cur.raw.split(",")[1])) | expand(regs_in(cur.raw.split(",")[2]))))
            if not same_acc: n = max(n, 3)
    if prev.kind == "mfma":
        big = "32x32" in prev.op
        d = prev.defs
        if cur.kind == "mfma":
            if d & cur.uses: n = max(n, 12 if big else 8)
            if d & cur.srcc and d != cur.srcc: n = max(n, 10 if big else 6)
            if d & cur.defs and d != cur.srcc: n = max(n, 12 if big else 8)
        elif cv or cur.kind in ("vmem", "ds"):
            if d & (cur.uses | cur.defs): n = max(n, 12 if big else 8)
        if cv and prev.srcc & vec(cur.defs): n = max(n, 7 if big else 3)
    if prev.m0def and cur.m0use: n = max(n, 1)
    if prev.wide_store and (cv or cur.kind in ("ds", "vmem", "mfma")) and prev.wide_store & vec(cur.defs):
        n = max(n, 2)
    return n

MAXD = 13

def pad_hazards(lines, verbose=False):
    ins = [Ins(l) for l in lines]
    labels = {x.label: i for i, x in enumerate(ins) if x.kind == "label"}
    inserted = 0
    out = []
    def required(hist, cur):
        dist = 0; worst = 0
        for p in reversed(hist):
            if p.states == 0: continue
            r = need(p, cur) - dist
            if r > worst: worst = r
            dist += p.states
            if dist >= MAXD: break
        return worst
    def mk_nop(k):
        res = []
        while k > 0:
            t = min(k, 16); res.append(Ins(f"  s_nop {t-1}")); k -= t
        return res
    for i, x in enumerate(ins):
        if x.states:
            r = required(out, x)
            if r > 0:
                if verbose: print(f"pad {r} before: {x.raw}")
                out += mk_nop(r); inserted += r
        if x.kind == "branch" and x.target in labels:
            j = labels[x.target]; dist_pad = 0
            fake = out + [x]
            worst = 0; k = j; walked = []
            cnt = 0
            while k < len(ins) and cnt < MAXD:
                y = ins[k]
                if y.states:
                    r = required(fake + walked, y)
                    worst = max(worst, r)
                    walked.append(y); cnt += y.states
                    if y.kind == "branch" and y.op == "s_branch": break
                    if y.op == "s_endpgm": break
                k += 1
            if worst > 0:
                if verbose: print(f"pad {worst} before branch: {x.raw}")
                out += mk_nop(worst); inserted += worst
        out.append(x)
    return [o.text for o in out], inserted

class Kern:
    def __init__(self, name, vgpr=256, agpr=0, sgpr=102):
        self.name = name; self.L = []; self.vgpr = vgpr; self.agpr = agpr; self.sgpr = sgpr
        self._n = 0
    def __call__(self, t):
        for ln in t.split("\n"):
            ln = ln.strip()
            if not ln: continue
            self.L.append(ln if (ln.endswith(":") and " " not in ln) else "  " + ln)
    def lab(self, n): return f"{self.name}_{n}"
    def label(self, n): self.L.append(self.lab(n) + ":")
    def uniq(self, base):
        self._n += 1; return f"{base}{self._n}"
    def srd(self, sreg, ptr_lo, nbytes, add=0):
        if add:
            self(f"s_add_u32 s{sreg}, s{ptr_lo}, {add}")
            self(f"s_addc_u32 s{sreg+1}, s{ptr_lo+1}, 0")
        else:
            self(f"s_mov_b32 s{sreg}, s{ptr_lo}")
            self(f"s_mov_b32 s{sreg+1}, s{ptr_lo+1}")
        self(f"s_mov_b32 s{sreg+2}, {nbytes}")
        self(f"s_mov_b32 s{sreg+3}, 0x20000")
    def text(self, verbose=False):
        body, n = pad_hazards(self.L, verbose)
        hdr = f".globl {self.name}\n.p2align 8\n.type {self.name},@function\n{self.name}:\n"
        return hdr + "\n".join(body) + "\n", n
    def desc(self):
        tot = self.vgpr + self.agpr if self.agpr else self.vgpr
        acc = (self.vgpr + 3) // 4 * 4
        return f""".amdhsa_kernel {self.name}
  .amdhsa_next_free_vgpr {tot}
  .amdhsa_next_free_sgpr {self.sgpr}
  .amdhsa_accum_offset {acc}
  .amdhsa_group_segment_fixed_size 0
  .amdhsa_kernarg_size 112
  .amdhsa_user_sgpr_count 2
  .amdhsa_user_sgpr_kernarg_segment_ptr 1
  .amdhsa_system_sgpr_workgroup_id_x 1
  .amdhsa_float_denorm_mode_32 3
.end_amdhsa_kernel
"""

def build_file(kernels, launches, header_comments=""):
    t = ""
    for n, g, b, l in launches:
        t += f"; @launch kernel={n} grid=({g},1,1) block=({b},1,1) lds={l}\n"
    t += header_comments
    t += '.amdgcn_target "amdgcn-amd-amdhsa--gfx950"\n.text\n'
    for k in kernels:
        body, n = k.text()
        t += body
    t += '.section .rodata,"a"\n'
    for k in kernels:
        t += ".p2align 6\n" + k.desc()
    return t
```

```python
from asmlib import *
import struct
def f2u(x): return "0x%08x" % struct.unpack("<I", struct.pack("<f", x))[0]
import math
GELU_C0 = -2.0 * math.log2(math.e) * math.sqrt(2.0 / math.pi)
GELU_C1 = GELU_C0 * 0.044715

def gelu_consts(k, sC1, vC0, sONE):
    k(f"s_mov_b32 s{sC1}, {f2u(GELU_C1)}"); k(f"s_mov_b32 s{sC1+1}, {f2u(GELU_C1)}")
    k(f"v_mov_b32 v{vC0}, {f2u(GELU_C0)}"); k(f"v_mov_b32 v{vC0+1}, {f2u(GELU_C0)}")
    k(f"s_mov_b32 s{sONE}, 1.0"); k(f"s_mov_b32 s{sONE+1}, 1.0")

def gelu_pk(z, t, dst, sC1, vC0, sONE):
    return [
        f"v_pk_mul_f32 {v(t,2)}, {v(z,2)}, {v(z,2)}",
        f"v_pk_fma_f32 {v(t,2)}, {v(t,2)}, {s(sC1,2)}, {v(vC0,2)}",
        f"v_pk_mul_f32 {v(t,2)}, {v(t,2)}, {v(z,2)}",
        f"v_exp_f32 v{t}, v{t}",
        f"v_exp_f32 v{t+1}, v{t+1}",
        f"v_pk_add_f32 {v(t,2)}, {v(t,2)}, {s(sONE,2)}",
        f"v_rcp_f32 v{t}, v{t}",
        f"v_rcp_f32 v{t+1}, v{t+1}",
        f"v_pk_mul_f32 {v(t,2)}, {v(t,2)}, {v(z,2)}",
        f"v_cvt_pk_bf16_f32 v{dst}, v{t}, v{t+1}",
    ]

def interleave(*streams):
    out = []; idx = [0] * len(streams)
    while any(idx[i] < len(streams[i]) for i in range(len(streams))):
        for i, st in enumerate(streams):
            if idx[i] < len(st): out.append(st[idx[i]]); idx[i] += 1
    return out

def reduce_g(k, r, tmp):
    k(f"v_mov_b32 v{tmp}, v{r}")
    k(f"v_permlane32_swap_b32 v{r}, v{tmp}")
    k(f"v_add_f32 v{r}, v{r}, v{tmp}")
    k(f"v_mov_b32 v{tmp}, v{r}")
    k(f"v_permlane16_swap_b32 v{r}, v{tmp}")
    k(f"v_add_f32 v{r}, v{r}, v{tmp}")
```

```python
from asmlib import *
from layout import *

def k0():
    k = Kern("prep0_kernel", vgpr=64, sgpr=48)
    k("s_cmp_ge_u32 s2, 320")
    k(f"s_cbranch_scc1 {k.lab('done')}")
    k(f"s_load_dwordx4 s[4:7], s[0:1], {A_K}")
    k(f"s_load_dwordx2 s[8:9], s[0:1], {A_SK}")
    k(f"s_load_dwordx2 s[10:11], s[0:1], {WS}")
    k("s_mul_hi_u32 s12, s2, 0x1999999a")
    k("s_mul_i32 s13, s12, 10")
    k("s_sub_u32 s13, s2, s13")
    k("s_lshl_b32 s14, s12, 6")
    k("s_lshl_b32 s15, s13, 6")
    k("v_lshrrev_b32 v1, 3, v0")
    k("v_and_b32 v2, 7, v0")
    k("v_lshlrev_b32 v2, 4, v2")
    k("v_add_u32 v3, s14, v1")
    k("v_mul_u32_u24 v3, 1280, v3")
    k("s_lshl_b32 s16, s15, 1")
    k("v_add3_u32 v3, v3, v2, s16")
    k("v_subrev_u32 v4, 3840, v3")
    k("v_lshrrev_b32 v5, 6, v0")
    k("v_and_b32 v6, 63, v0")
    k("v_readfirstlane_b32 s17, v5")
    k("s_waitcnt lgkmcnt(0)")
    k.srd(20, 4, MB); k.srd(24, 6, MB); k.srd(28, 8, D * 8); k.srd(32, 10, MB, UR)
    k("s_lshl_b32 s18, s17, 10")
    k("s_mov_b32 m0, s18")
    k("s_mov_b32 s19, 40960")
    k("buffer_load_dwordx4 v4, s[20:23], 0 offen lds")
    k("s_add_u32 m0, s18, 4096")
    k("v_add_u32 v7, 40960, v4")
    k("buffer_load_dwordx4 v7, s[20:23], 0 offen lds")
    k("s_add_u32 m0, s18, 9216")
    k("v_add_u32 v8, 81920, v4")
    k("buffer_load_dwordx4 v3, s[24:27], 0 offen lds")
    k("s_add_u32 m0, s18, 13312")
    k("s_nop 0")
    k("buffer_load_dwordx4 v3, s[24:27], s19 offen lds")
    k("s_cmp_lg_u32 s17, 0")
    k(f"s_cbranch_scc1 {k.lab('skip')}")
    k("s_mov_b32 m0, 8192")
    k("s_nop 0")
    k("buffer_load_dwordx4 v8, s[20:23], 0 offen lds")
    k.label("skip")
    k("v_add_u32 v9, s15, v6")
    k("v_lshlrev_b32 v10, 3, v9")
    k("buffer_load_dwordx2 v[12:13], v10, s[28:31], 0 offen")
    k("v_and_b32 v10, 15, v6")
    k("v_lshrrev_b32 v11, 2, v10")
    k("s_lshl_b32 s18, s17, 4")
    k("v_add_u32 v11, s18, v11")
    k("v_lshlrev_b32 v11, 7, v11")
    k("v_and_b32 v10, 3, v10")
    k("v_lshlrev_b32 v10, 3, v10")
    k("v_lshrrev_b32 v14, 4, v6")
    k("v_lshlrev_b32 v14, 5, v14")
    k("v_add3_u32 v11, v11, v10, v14")
    k("s_add_u32 s18, s18, s14")
    k("s_sub_u32 s18, 2032, s18")
    k("s_lshl_b32 s18, s18, 1")
    k("v_lshlrev_b32 v9, 12, v9")
    k("v_add_u32 v9, s18, v9")
    k("s_waitcnt vmcnt(0)")
    k("s_barrier")
    KR = 16; VR = 26
    for i in range(5): k(f"ds_read_b64_tr_b16 {v(KR+2*i,2)}, v11 offset:{512*i}")
    for i in range(4): k(f"ds_read_b64_tr_b16 {v(VR+2*i,2)}, v11 offset:{9216+512*i}")
    k("v_lshlrev_b32 v34, 16, v12"); k("v_and_b32 v35, 0xffff0000, v12")
    k("v_lshlrev_b32 v36, 16, v13"); k("v_and_b32 v37, 0xffff0000, v13")
    k("s_waitcnt lgkmcnt(0)")
    KF = 38
    for i in range(10):
        k(f"v_lshlrev_b32 v{KF+2*i}, 16, v{KR+i}")
        k(f"v_and_b32 v{KF+2*i+1}, 0xffff0000, v{KR+i}")
    OUTR = 58
    for half in (1, 0):
        for pr in range(4):
            es = (8 * half + 7 - 2 * pr, 8 * half + 6 - 2 * pr)
            for j, e in enumerate(es):
                t = 16 + j
                k(f"v_mul_f32 v{t}, v34, v{KF+e+3}")
                k(f"v_fmac_f32 v{t}, v35, v{KF+e+2}")
                k(f"v_fmac_f32 v{t}, v36, v{KF+e+1}")
                k(f"v_fmac_f32 v{t}, v37, v{KF+e}")
                vr = VR + e // 2
                if e % 2 == 0: k(f"v_lshlrev_b32 v{18+j}, 16, v{vr}")
                else: k(f"v_and_b32 v{18+j}, 0xffff0000, v{vr}")
                k(f"v_mul_f32 v{t}, v{t}, v{18+j}")
            k(f"v_cvt_pk_bf16_f32 v{OUTR+pr}, v16, v17")
        k(f"buffer_store_dwordx4 {v(OUTR,4)}, v9, s[32:35], 0 offen offset:{16*(1-half)}")
        OUTR = 20 if half == 1 else OUTR
    k.label("done")
    k("s_endpgm")
    return k
```

```python
from asmlib import *
from layout import *

K1_LDS = 86016
WREG = 21248
CPY = 4160

def conv_part(k):
    k("v_lshrrev_b32 v1, 6, v0")
    k("v_and_b32 v2, 63, v0")
    k("v_readfirstlane_b32 s17, v1")
    k("s_lshl_b32 s16, s2, 2")
    k("s_add_u32 s16, s16, s17")
    k("s_lshl_b32 s18, s16, 12")
    k("s_mul_i32 s19, s17, %d" % WREG)
    k("v_lshlrev_b32 v3, 4, v2")
    k("v_subrev_u32 v4, 32, v3")
    k("s_lshl_b32 s38, s16, 1")
    k("v_mov_b32 v5, s38")
    k("s_mov_b32 m0, s19")
    k("s_waitcnt lgkmcnt(0)")
    k("s_add_u32 s20, s4, s18"); k("s_addc_u32 s21, s5, 0"); k("s_mov_b32 s22, 4096"); k("s_mov_b32 s23, 0x20000")
    k("s_add_u32 s36, s8, s18"); k("s_addc_u32 s37, s9, 0")
    k.srd(24, 36, 4096, UR); k.srd(28, 36, 4096, YT); k.srd(32, 6, D * 2)
    HB = 48
    for q in range(5):
        k(f"buffer_load_dwordx4 {v(HB+8*q,4)}, v4, s[20:23], 0 offen")
        k(f"buffer_load_dwordx4 {v(HB+8*q+4,4)}, v4, s[20:23], 0 offen offset:16")
        if q < 4: k("v_add_u32 v4, 1024, v4")
    k("buffer_load_ushort v6, v5, s[32:35], 0 offen")
    for j in range(4):
        k(f"buffer_load_dwordx4 v3, s[24:27], 0 offen offset:{1024*j} lds")
    k("v_mov_b32 v8, 0"); k("v_mov_b32 v9, 0")
    k("v_lshlrev_b32 v7, 3, v2")
    k("v_add_u32 v7, s19, v7")
    k("ds_write_b64 v7, v[8:9] offset:4096")
    k("v_and_b32 v10, 15, v2")
    k("v_lshrrev_b32 v11, 4, v2")
    k("v_add_u32 v13, 1, v10")
    k("v_and_b32 v14, 3, v13")
    k(f"v_mul_u32_u24 v12, {CPY}, v14")
    k("v_lshrrev_b32 v13, 2, v13")
    k("v_lshlrev_b32 v13, 3, v13")
    k("v_lshl_add_u32 v13, v11, 4, v13")
    k("s_add_u32 s38, s19, 4608")
    k("v_add3_u32 v12, v12, v13, s38")
    k("v_lshlrev_b32 v13, 5, v10")
    k("v_lshlrev_b32 v14, 4, v11")
    k("v_sub_u32 v13, v14, v13")
    k("s_add_u32 s39, s19, 480")
    k("v_add_u32 v13, s39, v13")
    k("v_add_u32 v15, s38, v3")
    E = 88
    for q in range(5):
        x = HB + 8 * q
        k(f"s_waitcnt vmcnt({13 - 2*q})")
        if q == 4: k("s_mov_b64 exec, 15")
        k(f"ds_write_b128 v15, {v(x,4)} offset:{1024*q}")
        for i in range(4): k(f"v_alignbit_b32 v{E+i}, v{x+i+1}, v{x+i}, 16")
        k(f"ds_write_b128 v15, {v(E,4)} offset:{1024*q + CPY}")
        for i in range(4): k(f"v_mov_b32 v{E+4+i}, v{x+1+i}")
        k(f"ds_write_b128 v15, {v(E+4,4)} offset:{1024*q + 2*CPY}")
        for i in range(4): k(f"v_alignbit_b32 v{E+8+i}, v{x+i+2}, v{x+i+1}, 16")
        k(f"ds_write_b128 v15, {v(E+8,4)} offset:{1024*q + 3*CPY}")
    k("s_mov_b64 exec, -1")
    AP = 100
    k("s_waitcnt vmcnt(4)")
    k("v_sub_u32 v16, 15, v10")
    k("v_lshrrev_b32 v17, 3, v16")
    k("v_and_b32 v16, 7, v16")
    k("v_and_b32 v18, 1, v16")
    k("v_lshlrev_b32 v18, 4, v18")
    k("v_lshlrev_b32 v18, v18, v6")
    k("v_cmp_eq_u32 vcc, v17, v11")
    k("v_cndmask_b32 v18, 0, v18, vcc")
    k("v_lshrrev_b32 v16, 1, v16")
    for r in range(4):
        k(f"v_cmp_eq_u32 vcc, {r}, v16")
        k(f"v_cndmask_b32 v{AP+r}, 0, v18, vcc")
    ACC = 16; A0 = 48; A1 = 112; B0 = 144; B1 = 176
    def loads(A, B, rho_off):
        L = []
        for d in range(8): L.append(f"ds_read_b128 {v(B+4*d,4)}, v13 offset:{rho_off + 512*(7-d)}")
        for m in range(8):
            L.append(f"ds_read_b64 {v(A+4*m,2)}, v12 offset:{rho_off + 512*m}")
            L.append(f"ds_read_b64 {v(A+4*m+2,2)}, v12 offset:{rho_off + 512*m + 8}")
        return L
    k("s_waitcnt vmcnt(0) lgkmcnt(0)")
    for ln in loads(A0, B0, 0): k(ln)
    k("s_waitcnt lgkmcnt(0)")
    for t in range(8):
        k(f"v_mfma_f32_16x16x32_bf16 {v(ACC+4*t,4)}, {v(AP,4)}, {v(B0+4*t,4)}, 0")
    pairs = [(m, d) for m in range(8) for d in range(8 - m)]
    def phase(A, B, nxt):
        for idx, (m, d) in enumerate(pairs):
            k(f"v_mfma_f32_16x16x32_bf16 {v(ACC+4*(m+d),4)}, {v(A+4*m,4)}, {v(B+4*d,4)}, {v(ACC+4*(m+d),4)}")
            if idx < len(nxt): k(nxt[idx])
        k("s_waitcnt lgkmcnt(0)")
    k("s_mov_b32 s40, 0")
    k(".p2align 3")
    k.label("cloop")
    phase(A0, B0, loads(A1, B1, 64))
    phase(A1, B1, loads(A0, B0, 128))
    k("v_add_u32 v12, 128, v12")
    k("v_add_u32 v13, 128, v13")
    k("s_add_u32 s40, s40, 1")
    k("s_cmp_lt_u32 s40, 4")
    k(f"s_cbranch_scc1 {k.lab('cloop')}")
    k("v_lshlrev_b32 v14, 5, v10")
    k("v_lshl_add_u32 v14, v11, 3, v14")
    k("v_add_u32 v14, s19, v14")
    for t in range(8):
        k(f"v_cvt_pk_bf16_f32 v{A0+2*t}, v{ACC+4*t}, v{ACC+4*t+1}")
        k(f"v_cvt_pk_bf16_f32 v{A0+2*t+1}, v{ACC+4*t+2}, v{ACC+4*t+3}")
        k(f"ds_write_b64 v14, {v(A0+2*t,2)} offset:{512*t}")
    k("v_add_u32 v15, s19, v3")
    k("s_waitcnt lgkmcnt(0)")
    for j in range(4): k(f"ds_read_b128 {v(B0+4*j,4)}, v15 offset:{1024*j}")
    for j in range(4):
        k(f"s_waitcnt lgkmcnt({3-j})")
        k(f"buffer_store_dwordx4 {v(B0+4*j,4)}, v3, s[28:31], 0 offen offset:{1024*j}")
    k("s_endpgm")

def wprep_part(k):
    k.label("wprep")
    k("s_mul_i32 s19, s17, 20480")
    k("v_lshrrev_b32 v3, 2, v2")
    k("v_and_b32 v4, 3, v2")
    k("v_lshlrev_b32 v4, 4, v4")
    k("s_lshl_b32 s47, s41, 5")
    k("v_add_u32 v3, s47, v3")
    k("v_mul_lo_u32 v3, v3, s40")
    k("s_lshl_b32 s47, s42, 6")
    k("v_add3_u32 v3, v3, v4, s47")
    k("s_lshl_b32 s48, s40, 4")
    k("s_mov_b32 s49, 0")
    k("s_mov_b32 s50, s19")
    k.label("wld")
    k("s_mov_b32 m0, s50")
    k("s_add_u32 s49, s49, 1")
    k("buffer_load_dwordx4 v3, s[20:23], 0 offen lds")
    k("s_add_u32 m0, s50, 1024")
    k("v_add_u32 v3, s48, v3")
    k("buffer_load_dwordx4 v3, s[20:23], 0 offen lds")
    k("v_add_u32 v3, s48, v3")
    k("s_add_u32 s50, s50, 2048")
    k("s_cmp_lt_u32 s49, s43")
    k(f"s_cbranch_scc1 {k.lab('wld')}")
    k("v_lshrrev_b32 v5, 4, v2")
    k("v_lshlrev_b32 v5, 9, v5")
    k("v_bfe_u32 v6, v2, 2, 2")
    k("v_lshl_add_u32 v5, v6, 6, v5")
    k("v_and_b32 v6, 3, v2")
    k("v_lshl_add_u32 v5, v6, 4, v5")
    k("v_add_u32 v5, s19, v5")
    k("s_lshl_b32 s47, s42, 1")
    k("s_mul_i32 s47, s47, s45")
    k("s_add_u32 s47, s47, s41")
    k("s_lshl_b32 s47, s47, 10")
    k("s_add_u32 s47, s47, s44")
    k("s_lshl_b32 s51, s45, 10")
    k("s_add_u32 s51, s51, s47")
    k("v_lshlrev_b32 v7, 4, v2")
    k("v_mov_b32 v20, 0"); k("v_mov_b32 v21, 0")
    k("s_mov_b32 s52, 0x3f803f80")
    k("s_mov_b32 s49, 0")
    k("s_waitcnt vmcnt(0)")
    k.label("wtr")
    k("ds_read_b64_tr_b16 v[8:9], v5")
    k("ds_read_b64_tr_b16 v[10:11], v5 offset:256")
    k("ds_read_b64_tr_b16 v[12:13], v5 offset:8")
    k("ds_read_b64_tr_b16 v[14:15], v5 offset:264")
    k("v_add_u32 v5, 2048, v5")
    k("s_add_u32 s49, s49, 1")
    k("s_waitcnt lgkmcnt(0)")
    k("buffer_store_dwordx4 v[8:11], v7, s[24:27], s47 offen")
    k("buffer_store_dwordx4 v[12:15], v7, s[24:27], s51 offen")
    for r in range(4):
        k(f"v_dot2_f32_bf16 v20, v{8+r}, s52, v20")
        k(f"v_dot2_f32_bf16 v21, v{12+r}, s52, v21")
    k("s_add_u32 s47, s47, 1024")
    k("s_add_u32 s51, s51, 1024")
    k("s_cmp_lt_u32 s49, s43")
    k(f"s_cbranch_scc1 {k.lab('wtr')}")
    k("s_cmp_eq_u32 s46, 2")
    k(f"s_cbranch_scc1 {k.lab('end')}")
    for r in (20, 21):
        k(f"v_mov_b32 v22, v{r}")
        k(f"v_permlane32_swap_b32 v{r}, v22")
        k(f"v_add_f32 v{r}, v{r}, v22")
        k(f"v_mov_b32 v22, v{r}")
        k(f"v_permlane16_swap_b32 v{r}, v22")
        k(f"v_add_f32 v{r}, v{r}, v22")
    k(f"s_mul_i32 s47, s46, {F*4}")
    k("s_lshl_b32 s48, s42, 7")
    k("s_add_u32 s47, s47, s48")
    k(f"s_add_u32 s47, s47, {CS3}")
    k("v_and_b32 v6, 15, v2")
    k("v_lshlrev_b32 v6, 2, v6")
    k("buffer_store_dword v20, v6, s[24:27], s47 offen")
    k("buffer_store_dword v21, v6, s[24:27], s47 offen offset:64")
    k("s_endpgm")

def qstat_part(k):
    k.label("qstat")
    k("v_lshrrev_b32 v3, 4, v2")
    k("v_add_u32 v3, s40, v3")
    k("v_and_b32 v4, 15, v2")
    k("v_lshlrev_b32 v5, 3, v3")
    k("v_mul_u32_u24 v3, 1280, v3")
    k("v_lshl_add_u32 v3, v4, 4, v3")
    k("s_mov_b32 s52, 0x3f803f80")
    k("s_mov_b32 s53, 0x3acccccd")
    k("s_mov_b32 s54, 0x3727c5ac")
    for t in range(8):
        for m in range(5):
            k(f"buffer_load_dwordx4 {v(32+20*t+4*m,4)}, v3, s[20:23], 0 offen offset:{256*m}")
        k("v_add_u32 v3, 5120, v3")
    for t in range(8):
        b = 32 + 20 * t
        k(f"s_waitcnt vmcnt({min(63, 5*(7-t) + t)})")
        k("v_mov_b32 v10, 0"); k("v_mov_b32 v11, 0")
        for r in range(20):
            k(f"v_dot2_f32_bf16 v10, v{b+r}, s52, v10")
            k(f"v_dot2_f32_bf16 v11, v{b+r}, v{b+r}, v11")
        for rot in (8, 4, 2, 1):
            k(f"v_add_f32_dpp v10, v10, v10 row_ror:{rot} row_mask:0xf bank_mask:0xf")
            k(f"v_add_f32_dpp v11, v11, v11 row_ror:{rot} row_mask:0xf bank_mask:0xf")
        k("v_mul_f32 v10, s53, v10")
        k("v_mul_f32 v11, s53, v11")
        k("v_fma_f32 v11, -v10, v10, v11")
        k("v_max_f32 v11, 0, v11")
        k("v_add_f32 v11, s54, v11")
        k("v_rsq_f32 v12, v11")
        k("v_mul_f32 v13, -v10, v12")
        k("buffer_store_dwordx2 v[12:13], v5, s[24:27], s55 offen")
        k("v_add_u32 v5, 32, v5")
    k.label("end")
    k("s_endpgm")

def k1():
    k = Kern("conv_kernel", vgpr=208, sgpr=64)
    k("s_cmp_ge_u32 s2, 256")
    k(f"s_cbranch_scc1 {k.lab('end')}")
    k("s_cmp_ge_u32 s2, 160")
    k(f"s_cbranch_scc1 {k.lab('prep')}")
    k(f"s_load_dwordx4 s[4:7], s[0:1], {A_H}")
    k(f"s_load_dwordx2 s[8:9], s[0:1], {WS}")
    conv_part(k)
    k.label("prep")
    k(f"s_load_dwordx8 s[4:11], s[0:1], {B_W1}")
    k(f"s_load_dwordx2 s[12:13], s[0:1], {WS}")
    k(f"s_load_dwordx2 s[14:15], s[0:1], {A_Q}")
    k("v_lshrrev_b32 v1, 6, v0")
    k("v_and_b32 v2, 63, v0")
    k("v_readfirstlane_b32 s17, v1")
    k("s_sub_u32 s16, s2, 160")
    k("s_lshl_b32 s16, s16, 2")
    k("s_add_u32 s16, s16, s17")
    k("s_waitcnt lgkmcnt(0)")
    k.srd(24, 12, WS_END)
    k("s_mov_b32 s23, 0x20000")
    k("s_mov_b32 s46, 2")
    k("s_cmp_ge_u32 s16, 80");  k(f"s_cbranch_scc1 {k.lab('p3')}")
    k("s_mov_b32 s20, s4"); k("s_mov_b32 s21, s5"); k(f"s_mov_b32 s44, {W1T}")
    k("s_cmp_lt_u32 s16, 40"); k(f"s_cbranch_scc1 {k.lab('p12')}")
    k("s_mov_b32 s20, s6"); k("s_mov_b32 s21, s7"); k(f"s_mov_b32 s44, {W2T}")
    k("s_sub_u32 s16, s16, 40")
    k.label("p12")
    k(f"s_mov_b32 s22, {D*D*2}"); k("s_mov_b32 s40, 1280")
    k("s_lshr_b32 s42, s16, 1"); k("s_and_b32 s41, s16, 1"); k("s_mul_i32 s41, s41, 10")
    k("s_mov_b32 s43, 10"); k("s_mov_b32 s45, 20")
    k(f"s_branch {k.lab('wprep')}")
    k.label("p3")
    k("s_cmp_ge_u32 s16, 188"); k(f"s_cbranch_scc1 {k.lab('p4')}")
    k("s_sub_u32 s16, s16, 80")
    k("s_mov_b32 s20, s8"); k("s_mov_b32 s21, s9"); k(f"s_mov_b32 s22, {D*F*2}"); k(f"s_mov_b32 s44, {W3T}")
    k(f"s_mov_b32 s40, {F*2}")
    k("s_lshr_b32 s42, s16, 1"); k("s_and_b32 s46, s16, 1"); k("s_mul_i32 s41, s46, 10")
    k("s_mov_b32 s43, 10"); k("s_mov_b32 s45, 20")
    k(f"s_branch {k.lab('wprep')}")
    k.label("p4")
    k("s_cmp_ge_u32 s16, 308"); k(f"s_cbranch_scc1 {k.lab('pq')}")
    k("s_sub_u32 s16, s16, 188")
    k("s_mov_b32 s20, s10"); k("s_mov_b32 s21, s11"); k(f"s_mov_b32 s22, {D*F*2}"); k(f"s_mov_b32 s44, {W4T}")
    k("s_mov_b32 s40, 1280")
    k("s_mul_hi_u32 s42, s16, 0x2aaaaaab")
    k("s_mul_i32 s41, s42, 6"); k("s_sub_u32 s41, s16, s41"); k("s_mul_i32 s41, s41, 9")
    k("s_mov_b32 s43, 9"); k("s_mov_b32 s45, 54")
    k(f"s_branch {k.lab('wprep')}")
    k.label("pq")
    k("s_cmp_ge_u32 s16, 372"); k(f"s_cbranch_scc1 {k.lab('end')}")
    k("s_sub_u32 s16, s16, 308")
    k("s_lshl_b32 s40, s16, 5")
    k("s_mov_b32 s20, s14"); k("s_mov_b32 s21, s15"); k(f"s_mov_b32 s22, {MB}")
    k(f"s_mov_b32 s55, {QS}")
    k(f"s_branch {k.lab('qstat')}")
    wprep_part(k)
    qstat_part(k)
    return k
```

```python
from asmlib import *
from layout import *
from common import *

K2_LDS = 82944
QL = 0; YL = 40960; STL = 81920; XL = 0

def k2():
    k = Kern("g1_kernel", vgpr=256, agpr=240, sgpr=80)
    k("s_cmp_ge_u32 s2, 256"); k(f"s_cbranch_scc1 {k.lab('end')}")
    k(f"s_load_dwordx2 s[4:5], s[0:1], {A_Q}")
    k(f"s_load_dwordx2 s[6:7], s[0:1], {WS}")
    k("s_and_b32 s10, s2, 63")
    k("s_lshr_b32 s11, s2, 6")
    k("v_lshrrev_b32 v1, 6, v0")
    k("v_and_b32 v2, 63, v0")
    k("v_readfirstlane_b32 s12, v1")
    k("v_and_b32 v3, 15, v2")
    k("v_lshrrev_b32 v4, 4, v2")
    k("v_lshlrev_b32 v5, 4, v2")
    k("s_mul_i32 s13, s12, 160")
    k("v_lshrrev_b32 v6, 2, v2")
    k("v_add_u32 v6, s13, v6")
    k("v_lshlrev_b32 v6, 12, v6")
    k("v_and_b32 v7, 3, v2")
    k("v_lshlrev_b32 v7, 4, v7")
    k("s_lshl_b32 s14, s10, 6")
    k("v_add3_u32 v6, v6, v7, s14")
    k("s_lshl_b32 s15, s12, 3")
    k("v_add_u32 v8, s15, v4")
    k("v_and_b32 v9, 15, v8")
    k("v_xor_b32 v9, v9, v3")
    k("s_lshl_b32 s16, s10, 5")
    k("v_add_u32 v10, s16, v8")
    k("v_mul_u32_u24 v10, 1280, v10")
    k("v_xor_b32 v11, 4, v9")
    k("v_lshl_add_u32 v8, v9, 4, v10")
    k("v_lshl_add_u32 v9, v11, 4, v10")
    k("v_add_u32 v9, 5120, v9")
    k("s_waitcnt lgkmcnt(0)")
    k.srd(20, 4, MB)
    k.srd(24, 6, MB, YT)
    k.srd(28, 6, WS_END)
    k.srd(32, 6, D * D * 2, W1T)
    k("s_mul_i32 s17, s12, 10240")
    k(f"s_add_u32 s17, s17, {YL}")
    k("s_mov_b32 s18, 0")
    for i in range(10):
        k(f"s_add_u32 m0, s17, {1024*i}")
        if i: k("s_add_u32 s18, s18, 65536")
        else: k("s_nop 0")
        k("buffer_load_dwordx4 v6, s[24:27], s18 offen lds")
    k("s_mul_i32 s17, s12, 10240")
    for a_ in range(2):
        for m in range(5):
            k(f"s_add_u32 m0, s17, {QL + a_*5120 + 768*m}")
            k("s_nop 0")
            k(f"buffer_load_dwordx4 v{8+a_}, s[20:23], 0 offen offset:{256*m} lds")
    k("v_add_u32 v10, s16, v3")
    k("v_lshlrev_b32 v10, 3, v10")
    k(f"s_mov_b32 s19, {QS}")
    k("buffer_load_dwordx2 v[12:13], v10, s[28:31], s19 offen")
    k("buffer_load_dwordx2 v[14:15], v10, s[28:31], s19 offen offset:128")
    k("s_mul_i32 s36, s11, 10"); k("s_lshl_b32 s37, s12, 1"); k("s_add_u32 s36, s36, s37"); k("s_mul_i32 s36, s36, 20480")
    k("s_mul_i32 s37, s11, 10"); k("s_lshr_b32 s38, s12, 1"); k("s_add_u32 s37, s37, s38"); k("s_add_u32 s37, s37, 8"); k("s_mul_i32 s37, s37, 20480")
    wl = []
    for kb in range(20):
        for t in range(3):
            off = kb * 1024 + (20480 if t == 1 else 0)
            wl.append((t, kb, off))
    def wload(t, kb, off):
        base = 37 if t == 2 else 36
        hi = off // 4096 * 4096
        L = []
        if hi: L.append(f"s_add_u32 s39, s{base}, {hi}")
        L.append(f"buffer_load_dwordx4 {a((t*20+kb)*4,4)}, v5, s[32:35], s{39 if hi else base} offen offset:{off-hi}")
        return L
    NFIRST = 15
    for (t, kb, off) in wl[:NFIRST]:
        for ln in wload(t, kb, off): k(ln)
    k("v_lshrrev_b32 v10, 2, v3"); k("v_mul_u32_u24 v10, 5120, v10")
    k("v_and_b32 v11, 3, v3"); k("v_lshl_add_u32 v10, v11, 8, v10")
    k("v_xor_b32 v11, v4, v3")
    k("s_mul_i32 s40, s12, 5")
    for i in range(5):
        k(f"s_add_u32 s41, s40, {i}")
        k("s_and_b32 s42, s41, 3"); k("s_lshl_b32 s42, s42, 2")
        k("s_lshr_b32 s41, s41, 2"); k("s_lshl_b32 s41, s41, 10")
        k(f"v_xor_b32 v{16+i}, s42, v11")
        k(f"v_lshlrev_b32 v{16+i}, 4, v{16+i}")
        k(f"v_add3_u32 v{16+i}, v{16+i}, v10, s41")
    k("v_bfe_u32 v10, v2, 2, 2"); k("v_lshl_add_u32 v10, v4, 3, v10"); k("v_lshlrev_b32 v10, 6, v10")
    k("v_and_b32 v11, 3, v2"); k("v_lshl_add_u32 v10, v11, 3, v10")
    k("s_mul_i32 s41, s12, 10240"); k(f"s_add_u32 s41, s41, {YL}")
    k("v_add_u32 v21, s41, v10")
    Q = 32; Y = 72; H = 112; T = 192
    k(f"s_waitcnt vmcnt({NFIRST})")
    k("s_barrier")
    def reads(tb, i):
        f = tb * 5 + i
        return [f"ds_read_b128 {v(Q+4*f,4)}, v{16+i} offset:{QL + tb*20480}",
                f"ds_read_b64_tr_b16 {v(Y+4*f,2)}, v21 offset:{2048*i + 32*tb}",
                f"ds_read_b64_tr_b16 {v(Y+4*f+2,2)}, v21 offset:{2048*i + 256 + 32*tb}"]
    frs = [(tb, i) for tb in range(2) for i in range(5)]
    for fr in frs[:4]:
        for ln in reads(*fr): k(ln)
    for r in range(22, 30): k(f"v_mov_b32 v{r}, 0")
    k("s_mov_b32 s44, 0xffff0000")
    wrest = wl[NFIRST:]; wi = 0
    for fi, (tb, i) in enumerate(frs):
        f = tb * 5 + i
        nxt = frs[fi + 4] if fi + 4 < len(frs) else None
        outstanding = 3 * (min(len(frs), fi + 4) - fi - 1)
        k(f"s_waitcnt lgkmcnt({outstanding})")
        if nxt:
            for ln in reads(*nxt): k(ln)
        ab = 12 + 2 * tb
        for r in range(4):
            h = H + 8 * f + 2 * r; qq = T + 4 * (r % 2); yy = qq + 2
            k(f"v_lshlrev_b32 v{qq}, 16, v{Q+4*f+r}")
            k(f"v_and_b32 v{qq+1}, s44, v{Q+4*f+r}")
            k(f"v_lshlrev_b32 v{yy}, 16, v{Y+4*f+r}")
            k(f"v_and_b32 v{yy+1}, s44, v{Y+4*f+r}")
            k(f"v_pk_fma_f32 {v(h,2)}, {v(qq,2)}, {v(ab,2)}, {v(ab,2)} op_sel:[0,0,1] op_sel_hi:[1,0,1]")
            k(f"v_pk_fma_f32 {v(h,2)}, {v(h,2)}, {v(yy,2)}, {v(qq,2)}")
            k(f"v_pk_add_f32 {v(22+4*tb,2)}, {v(22+4*tb,2)}, {v(h,2)}")
            k(f"v_pk_fma_f32 {v(24+4*tb,2)}, {v(h,2)}, {v(h,2)}, {v(24+4*tb,2)}")
            if wi < len(wrest):
                for ln in wload(*wrest[wi]): k(ln)
                wi += 1
    while wi < len(wrest):
        for ln in wload(*wrest[wi]): k(ln)
        wi += 1
    for tb in range(2):
        b = 22 + 4 * tb
        k(f"v_add_f32 v{b}, v{b}, v{b+1}")
        k(f"v_add_f32 v{b+1}, v{b+2}, v{b+3}")
    for tb in range(2):
        b = 22 + 4 * tb
        reduce_g(k, b, T); reduce_g(k, b + 1, T + 1)
    k("v_lshlrev_b32 v10, 3, v3")
    k("s_lshl_b32 s41, s12, 8"); k(f"s_add_u32 s41, s41, {STL}")
    k("v_add_u32 v11, s41, v10")
    k("ds_write_b64 v11, v[22:23]"); k("ds_write_b64 v11, v[26:27] offset:128")
    k("s_waitcnt lgkmcnt(0)")
    k("s_barrier")
    k(f"v_add_u32 v11, {STL}, v10")
    for tb in range(2):
        for w in range(4):
            k(f"ds_read_b64 {v(T+8*tb+2*w,2)}, v11 offset:{256*w + 128*tb}")
    k("s_waitcnt lgkmcnt(0)")
    k(f"s_mov_b32 s46, {f2u(1.0/640)}"); k(f"s_mov_b32 s47, {f2u(1e-5)}")
    for tb in range(2):
        t = T + 8 * tb; b = 22 + 4 * tb
        k(f"v_pk_add_f32 {v(t,2)}, {v(t,2)}, {v(t+2,2)}")
        k(f"v_pk_add_f32 {v(t+4,2)}, {v(t+4,2)}, {v(t+6,2)}")
        k(f"v_pk_add_f32 {v(t,2)}, {v(t,2)}, {v(t+4,2)}")
        k(f"v_mul_f32 v{t}, s46, v{t}")
        k(f"v_mul_f32 v{t+1}, s46, v{t+1}")
        k(f"v_fma_f32 v{t+1}, -v{t}, v{t}, v{t+1}")
        k(f"v_max_f32 v{t+1}, 0, v{t+1}")
        k(f"v_add_f32 v{t+2}, s47, v{t+1}")
        k(f"v_rsq_f32 v{b}, v{t+2}")
        k(f"v_mul_f32 v{b+1}, -v{t}, v{b}")
        k(f"v_mul_f32 v{t+3}, v{b}, v{b}")
        k(f"v_fma_f32 v{t+3}, v{t+3}, v{t+1}, s47")
        k(f"v_rsq_f32 v{b+2}, v{t+3}")
    k("s_mul_i32 s41, s12, 5120")
    k("v_add_u32 v11, s41, v5")
    for fi, (tb, i) in enumerate(frs):
        f = tb * 5 + i; b = 22 + 4 * tb
        for r in range(4):
            h = H + 8 * f + 2 * r; t = T + 2 * (r % 2)
            k(f"v_pk_fma_f32 {v(t,2)}, {v(h,2)}, {v(b,2)}, {v(b,2)} op_sel:[0,0,1] op_sel_hi:[1,0,1]")
            k(f"v_cvt_pk_bf16_f32 v{Q+4*f+r}, v{t}, v{t+1}")
        k(f"ds_write_b128 v11, {v(Q+4*f,4)} offset:{XL + tb*20480 + 1024*i}")
    k("s_lshl_b32 s41, s10, 1"); k("s_mul_i32 s41, s41, 20"); k("s_mul_i32 s42, s12, 5"); k("s_add_u32 s41, s41, s42")
    k("s_lshl_b32 s41, s41, 10")
    for q4 in range(4):
        tb = q4 & 1
        if q4 < 3:
            k(f"s_cmp_lg_u32 s11, {q4}"); k(f"s_cbranch_scc1 {k.lab('st%d' % (q4+1))}")
        k(f"s_add_u32 s42, s41, {(XB if q4 < 2 else HT) + tb*20480}")
        k(f"s_add_u32 s43, s42, 4096")
        for i in range(5):
            f = tb * 5 + i
            src = Q + 4 * f
            if q4 >= 2:
                src = Y + 4 * i
                for r in range(4):
                    k(f"v_cvt_pk_bf16_f32 v{src+r}, v{H+8*f+2*r}, v{H+8*f+2*r+1}")
            k(f"buffer_store_dwordx4 {v(src,4)}, v5, s[28:31], s{43 if i==4 else 42} offen offset:{1024*i if i<4 else 0}")
        if q4 < 3: k(f"s_branch {k.lab('stdone')}")
        if q4 < 3: k.label('st%d' % (q4+1))
    k.label("stdone")
    k("s_waitcnt lgkmcnt(0)")
    k("s_barrier")
    ACC = 112; BF = 192
    k("s_and_b32 s41, s12, 1"); k("s_mul_i32 s41, s41, 20480")
    k("v_add_u32 v10, s41, v5")
    def breads(kb):
        b = BF + 12 * (kb % 4)
        return [f"ds_read_b128 {v(b,4)}, v5 offset:{XL + 1024*kb}",
                f"ds_read_b128 {v(b+4,4)}, v5 offset:{XL + 20480 + 1024*kb}",
                f"ds_read_b128 {v(b+8,4)}, v10 offset:{XL + 1024*kb}"]
    for kb in range(3):
        for ln in breads(kb): k(ln)
    for kb in range(20):
        b = BF + 12 * (kb % 4)
        nb = min(20, kb + 3) - kb - 1
        k(f"s_waitcnt vmcnt({62 - 3*kb}) lgkmcnt({3*nb})")
        nx = breads(kb + 3) if kb + 3 < 20 else []
        def mf(tile, t, breg):
            c = v(ACC + 4 * tile, 4)
            k(f"v_mfma_f32_16x16x32_bf16 {c}, {a((t*20+kb)*4,4)}, {v(breg,4)}, {c if kb else 0}")
        mf(0, 0, b);
        if nx: k(nx[0])
        mf(1, 1, b)
        if nx: k(nx[1])
        mf(2, 0, b + 4)
        if nx: k(nx[2])
        mf(3, 1, b + 4)
        mf(4, 2, b + 8)
    C0 = 30
    gelu_consts(k, 48, C0, 50)
    k("s_bitcmp1_b32 s12, 0")
    k("s_cselect_b64 s[52:53], -1, 0")
    k("v_cndmask_b32 v32, v24, v28, s[52:53]")
    sc = [24, 24, 28, 28, 32]
    PK = 40
    streams = []
    for tile in range(5):
        L = []
        for hf in range(2):
            z = ACC + 4 * tile + 2 * hf; t = 64 + 4 * tile + 2 * hf
            sb = sc[tile] & ~1; sel = sc[tile] & 1
            L.append(f"v_pk_mul_f32 {v(z,2)}, {v(z,2)}, {v(sb,2)} op_sel:[0,{sel}] op_sel_hi:[1,{sel}]")
            L += gelu_pk(z, t, PK + 2 * tile + hf, 48, C0, 50)
        streams.append(L)
    for ln in interleave(*streams): k(ln)
    k("s_and_b32 s41, s11, 1"); k("s_lshl_b32 s41, s41, 1"); k("s_sub_u32 s41, 1, s41")
    k("s_lshr_b32 s42, s11, 1"); k("s_lshl_b32 s41, s41, s42")
    k("s_add_u32 s41, s41, s16")
    k("s_mul_i32 s43, s11, 5")
    k("v_lshlrev_b32 v11, 8, v4")
    def slot_addr(dst, tbreg_imm, preg):
        k(f"v_add_u32 v60, s41, v3")
        if isinstance(tbreg_imm, int):
            if tbreg_imm: k(f"v_add_u32 v60, {tbreg_imm}, v60")
        else:
            k(f"v_add_u32 v60, {tbreg_imm}, v60")
        k("v_cmp_le_u32 vcc, 0x800, v60")
        k("v_and_b32 v60, 0x7ff, v60")
        k("v_lshrrev_b32 v61, 4, v60")
        k("v_mul_u32_u24 v61, 20480, v61")
        k("v_and_b32 v60, 15, v60")
        k("v_lshl_add_u32 v60, v60, 4, v11")
        k(f"v_add3_u32 v{dst}, v60, v61, {preg}")
    k("s_add_u32 s44, s43, s12"); k("s_lshl_b32 s44, s44, 10"); k(f"s_add_u32 s44, s44, {HS}")
    k("s_add_u32 s45, s43, 4"); k("s_lshl_b32 s45, s45, 10"); k(f"s_add_u32 s45, s45, {HS}")
    k("s_lshr_b32 s46, s12, 1"); k("s_lshl_b32 s46, s46, 3"); k("s_add_u32 s45, s45, s46")
    k("s_and_b32 s46, s12, 1"); k("s_lshl_b32 s46, s46, 4")
    for tb in range(2):
        slot_addr(62, 16 * tb, "s44")
        t0 = PK + 4 * tb
        for r in range(4): k(f"v_cndmask_b32 v{t0+r}, v{t0+r}, 0, vcc") if False else k(f"v_cndmask_b32_e64 v{t0+r}, v{t0+r}, 0, vcc")
        k(f"buffer_store_dwordx4 {v(t0,4)}, v62, s[28:31], 0 offen")
    slot_addr(63, "s46", "s45")
    for r in range(2): k(f"v_cndmask_b32_e64 v{PK+8+r}, v{PK+8+r}, 0, vcc")
    k(f"buffer_store_dwordx2 {v(PK+8,2)}, v63, s[28:31], 0 offen")
    k.label("end")
    k("s_endpgm")
    return k
```

```python
from asmlib import *
from layout import *
from common import *

K3_LDS = 102400

def col5(k, sfc, sodd, sb, n=5):
    k(f"s_and_b32 s{sodd}, s{sfc}, 1")
    k(f"s_mul_i32 s{sb+5}, s{sfc}, 5")
    for l in range(4):
        k(f"s_add_u32 s{sb+l}, s{sb+5}, s{sodd}")
        if l: k(f"s_add_u32 s{sb+l}, s{sb+l}, {l}")
    k(f"s_cmp_eq_u32 s{sodd}, 0")
    k(f"s_cselect_b32 s{sb+4}, 4, 0")
    k(f"s_add_u32 s{sb+4}, s{sb+4}, s{sb+5}")

def k3():
    k = Kern("g2_kernel", vgpr=160, agpr=0, sgpr=80)
    k("s_cmp_ge_u32 s2, 256"); k(f"s_cbranch_scc1 {k.lab('end')}")
    k(f"s_load_dwordx2 s[6:7], s[0:1], {WS}")
    k("s_and_b32 s10, s2, 31")
    k("s_lshr_b32 s11, s2, 5")
    k("v_lshrrev_b32 v1, 6, v0")
    k("v_and_b32 v2, 63, v0")
    k("v_readfirstlane_b32 s12, v1")
    k("v_and_b32 v3, 15, v2")
    k("v_lshrrev_b32 v4, 4, v2")
    k("v_lshlrev_b32 v5, 4, v2")
    col5(k, 11, 13, 40)
    k("s_lshl_b32 s14, s10, 2"); k("s_add_u32 s14, s14, s12")
    k("s_mul_i32 s15, s14, 20480")
    k("s_lshl_b32 s16, s12, 10")
    for l in range(5):
        k(f"s_mul_i32 s{50+l}, s{40+l}, 20480"); k(f"s_add_u32 s{50+l}, s{50+l}, s16")
    k("s_mul_i32 s17, s12, 5120")
    k("s_waitcnt lgkmcnt(0)")
    k.srd(20, 6, D * D * 2, W2T)
    k.srd(24, 6, MB, HS)
    k.srd(28, 6, WS_END)
    X = 32
    k("s_add_u32 s18, s15, 4096")
    k("s_mov_b32 s19, s15")
    for c in range(5):
        for l in range(5):
            k(f"s_add_u32 m0, s17, {c*20480 + l*1024}")
            if c: k(f"s_add_u32 s{50+l}, s{50+l}, 4096")
            else: k("s_nop 0")
            k(f"buffer_load_dwordx4 v5, s[20:23], s{50+l} offen lds")
        for j in range(4):
            kb = 4 * c + j
            k(f"buffer_load_dwordx4 {v(X+4*kb,4)}, v5, s[24:27], s19 offen offset:{1024*j}")
        if c < 4: k("s_add_u32 s19, s19, 4096")
    R = 112
    k("s_lshr_b32 s56, s40, 1"); k("s_lshl_b32 s56, s56, 10"); k("s_add_u32 s56, s56, s15")
    k("s_lshr_b32 s57, s44, 1"); k("s_lshl_b32 s57, s57, 10"); k("s_add_u32 s57, s57, s15")
    k("s_lshl_b32 s58, s13, 3"); k("s_add_u32 s57, s57, s58")
    k(f"s_add_u32 s58, s56, {XB}"); k(f"s_add_u32 s59, s57, {XB}")
    k(f"buffer_load_dwordx4 {v(R,4)}, v5, s[28:31], s58 offen")
    k(f"buffer_load_dwordx4 {v(R+4,4)}, v5, s[28:31], s58 offen offset:1024")
    k(f"buffer_load_dwordx2 {v(R+8,2)}, v5, s[28:31], s59 offen")
    ACC = 8; AF = 124
    k("v_add_u32 v6, 0x10000, v5")
    def aread(slot, dst):
        off = slot * 1024
        if off >= 65536: return f"ds_read_b128 {v(dst,4)}, v6 offset:{off-65536}"
        return f"ds_read_b128 {v(dst,4)}, v5 offset:{off}"
    NR = 9
    for c in range(5):
        k(f"s_waitcnt vmcnt({(4-c)*9 + 3})")
        k("s_barrier")
        seq = [(kb, l) for kb in range(4*c, 4*c+4) for l in range(5)]
        PRE = 6
        for i in range(PRE): k(aread(seq[i][0]*5 + seq[i][1], AF + 4*(i % NR)))
        for i, (kb, l) in enumerate(seq):
            left = min(len(seq), i + PRE) - i - 1
            k(f"s_waitcnt lgkmcnt({left})")
            cacc = v(ACC + 4*l, 4)
            k(f"v_mfma_f32_16x16x32_bf16 {cacc}, {v(AF + 4*(i % NR),4)}, {v(X+4*kb,4)}, {cacc if kb else 0}")
            if i + PRE < len(seq):
                j = i + PRE
                k(aread(seq[j][0]*5 + seq[j][1], AF + 4*(j % NR)))
    k("s_waitcnt vmcnt(0)")
    k("s_mov_b32 s60, 0xffff0000")
    U = 32
    for l in range(5):
        for hf in range(2):
            src = (R + 4*(l//2) + 2*(l % 2) + hf) if l < 4 else (R + 8 + hf)
            u = U + 4*l + 2*hf
            k(f"v_lshlrev_b32 v{u}, 16, v{src}")
            k(f"v_and_b32 v{u+1}, s60, v{src}")
    for l in range(5):
        for hf in range(2):
            z = ACC + 4*l + 2*hf; u = U + 4*l + 2*hf
            k(f"v_pk_add_f32 {v(z,2)}, {v(z,2)}, {v(u,2)}")
    PK = 60
    for l in range(5):
        for hf in range(2):
            z = ACC + 4*l + 2*hf
            k(f"v_cvt_pk_bf16_f32 v{PK+2*l+hf}, v{z}, v{z+1}")
    k(f"s_add_u32 s58, s56, {X1}"); k(f"s_add_u32 s59, s57, {X1}")
    k(f"buffer_store_dwordx4 {v(PK,4)}, v5, s[28:31], s58 offen")
    k(f"buffer_store_dwordx4 {v(PK+4,4)}, v5, s[28:31], s58 offen offset:1024")
    k(f"buffer_store_dwordx2 {v(PK+8,2)}, v5, s[28:31], s59 offen")
    k(f"v_pk_mul_f32 v[72:73], {v(ACC,2)}, {v(ACC,2)}")
    k(f"v_pk_add_f32 v[70:71], {v(ACC,2)}, {v(ACC+2,2)}")
    k(f"v_pk_fma_f32 v[72:73], {v(ACC+2,2)}, {v(ACC+2,2)}, v[72:73]")
    for i in range(2, 10):
        z = ACC + 2*i
        k(f"v_pk_add_f32 v[70:71], v[70:71], {v(z,2)}")
        k(f"v_pk_fma_f32 v[72:73], {v(z,2)}, {v(z,2)}, v[72:73]")
    k("v_add_f32 v70, v70, v71"); k("v_add_f32 v71, v72, v73")
    reduce_g(k, 70, 74); reduce_g(k, 71, 75)
    k("s_lshl_b32 s61, s14, 4")
    k("v_add_u32 v6, s61, v3")
    k("v_lshlrev_b32 v6, 6, v6")
    k("s_lshl_b32 s61, s11, 3"); k(f"s_add_u32 s61, s61, {ST2}")
    k("buffer_store_dwordx2 v[70:71], v6, s[28:31], s61 offen")
    k.label("end")
    k("s_endpgm")
    return k
```

```python
from asmlib import *
from layout import *
from common import *

CSL = 143360
K4_LDS = CSL + 512

def k4():
    k = Kern("g3_kernel", vgpr=128, agpr=160, sgpr=80)
    k("s_cmp_ge_u32 s2, 256"); k(f"s_cbranch_scc1 {k.lab('end')}")
    k(f"s_load_dwordx2 s[6:7], s[0:1], {WS}")
    k("s_and_b32 s10, s2, 7"); k("s_lshr_b32 s11, s2, 3")
    k("s_and_b32 s13, s10, 3"); k("s_and_b32 s14, s11, 3"); k("s_lshl_b32 s14, s14, 2"); k("s_add_u32 s13, s13, s14")
    k("s_lshr_b32 s14, s10, 2"); k("s_lshl_b32 s14, s14, 3"); k("s_lshr_b32 s15, s11, 2"); k("s_add_u32 s14, s14, s15")
    k("v_lshrrev_b32 v1, 6, v0")
    k("v_and_b32 v2, 63, v0")
    k("v_readfirstlane_b32 s12, v1")
    k("v_and_b32 v3, 15, v2"); k("v_lshrrev_b32 v4, 4, v2"); k("v_lshlrev_b32 v5, 4, v2")
    k("s_mul_i32 s15, s14, 7")
    k("s_cmp_eq_u32 s14, 15"); k("s_cselect_b32 s15, 103, s15")
    k("s_cmp_ge_u32 s14, 14"); k("s_cselect_b32 s16, 2, 3")
    k("s_and_b32 s17, s14, 1")
    k("s_add_u32 s18, s15, s17")
    k("s_lshl_b32 s19, s16, 1"); k("s_add_u32 s19, s19, s15")
    k("s_cmp_eq_u32 s17, 1"); k("s_cselect_b32 s19, s15, s19")
    k("s_lshl_b32 s36, s13, 3"); k("s_lshl_b32 s37, s12, 1"); k("s_add_u32 s36, s36, s37")
    k("s_mul_i32 s37, s36, 20480")
    k("s_waitcnt lgkmcnt(0)")
    k.srd(20, 6, D * F * 2, W3T)
    k.srd(24, 6, MB, X1)
    k.srd(28, 6, WS_END)
    k("s_mul_i32 s38, s18, 20480"); k("s_mul_i32 s39, s12, 10240"); k("s_add_u32 s38, s38, s39")
    def wpair(j):
        for grp in range(3):
            k(f"s_add_u32 m0, s39, {j*40960 + grp*4096}")
            k(f"s_add_u32 s40, s38, {j*40960 + grp*4096}")
            for i in range(4 if grp < 2 else 2):
                k(f"buffer_load_dwordx4 v5, s[20:23], s40 offen offset:{1024*i} lds")
    wpair(0)
    k("s_mov_b32 s41, s37"); k("s_add_u32 s42, s37, 20480")
    for kb in range(20):
        if kb and kb % 4 == 0:
            k("s_add_u32 s41, s41, 4096"); k("s_add_u32 s42, s42, 4096")
        for tb in range(2):
            k(f"buffer_load_dwordx4 {a((kb*2+tb)*4,4)}, v5, s[24:27], s{41+tb} offen offset:{1024*(kb%4)}")
    k("s_lshl_b32 s43, s36, 4")
    k("v_add_u32 v6, s43, v3"); k("v_lshlrev_b32 v6, 6, v6"); k("v_lshl_add_u32 v6, v4, 4, v6")
    k(f"s_mov_b32 s44, {ST2}")
    k("buffer_load_dwordx4 v[8:11], v6, s[28:31], s44 offen")
    k("buffer_load_dwordx4 v[12:15], v6, s[28:31], s44 offen offset:1024")
    k("v_lshrrev_b32 v7, 4, v0")
    k("v_add_u32 v16, s18, v7")
    k("v_cmp_eq_u32 vcc, 6, v7")
    k("v_mov_b32 v17, s19")
    k("v_cndmask_b32 v16, v16, v17, vcc")
    k("v_lshlrev_b32 v16, 6, v16"); k("v_lshl_add_u32 v16, v3, 2, v16")
    k(f"s_mov_b32 s45, {CS3}"); k(f"s_mov_b32 s46, {CS3 + F*4}")
    k("buffer_load_dword v18, v16, s[28:31], s45 offen")
    k("buffer_load_dword v19, v16, s[28:31], s46 offen")
    wpair(1); wpair(2)
    k("s_mul_i32 s40, s19, 20480"); k("s_mul_i32 s47, s12, 5120"); k("s_add_u32 s40, s40, s47")
    k(f"s_add_u32 m0, s47, {3*40960}")
    k("s_nop 0")
    for i in range(4): k(f"buffer_load_dwordx4 v5, s[20:23], s40 offen offset:{1024*i} lds")
    k(f"s_add_u32 m0, s47, {3*40960 + 4096}"); k("s_add_u32 s40, s40, 4096")
    k("buffer_load_dwordx4 v5, s[20:23], s40 offen lds")
    C0 = 20
    gelu_consts(k, 48, C0, 50)
    k(f"s_mov_b32 s52, {f2u(1.0/640)}"); k(f"s_mov_b32 s53, {f2u(1e-5)}")
    k("s_waitcnt vmcnt(25)")
    k("v_add_f32 v18, v18, v19")
    k("v_lshlrev_b32 v19, 2, v0"); k(f"v_add_u32 v19, {CSL}, v19")
    k("v_cmp_gt_u32 vcc, 112, v0")
    k("s_and_saveexec_b64 s[54:55], vcc")
    k(f"s_cbranch_execz {k.lab('nocs')}")
    k("ds_write_b32 v19, v18")
    k.label("nocs")
    k("s_mov_b64 exec, s[54:55]")
    for tb in range(2):
        b = 8 + 4*tb; o = 22 + 2*tb
        k(f"v_add_f32 v{o}, v{b}, v{b+2}"); k(f"v_add_f32 v{o+1}, v{b+1}, v{b+3}")
    for tb in range(2):
        o = 22 + 2*tb
        reduce_g(k, o, 26); reduce_g(k, o+1, 27)
    for tb in range(2):
        o = 22 + 2*tb
        k(f"v_mul_f32 v{o}, s52, v{o}"); k(f"v_mul_f32 v{o+1}, s52, v{o+1}")
        k(f"v_fma_f32 v{o+1}, -v{o}, v{o}, v{o+1}")
        k(f"v_max_f32 v{o+1}, 0, v{o+1}")
        k(f"v_add_f32 v{o+1}, s53, v{o+1}")
        k(f"v_rsq_f32 v{o+1}, v{o+1}")
    k("s_waitcnt lgkmcnt(0)")
    k("s_barrier")
    ACC = 32; AF = 48; CS = 80; T = 88; PK = 104
    k("v_mov_b32 v6, v5")
    k("v_lshlrev_b32 v7, 4, v4"); k(f"v_add_u32 v7, {CSL}, v7")
    k("s_mul_i32 s56, s36, 55296"); k("s_lshr_b32 s57, s18, 1"); k("s_lshl_b32 s57, s57, 10")
    k("s_add_u32 s56, s56, s57"); k(f"s_add_u32 s56, s56, {GG}")
    def gemm(ntile):
        seq = [(kb, s_) for kb in range(20) for s_ in range(ntile)]
        PRE = 6; NR = 8
        rd = lambda i: f"ds_read_b128 {v(AF + 4*(i % NR),4)}, v6 offset:{seq[i][1]*20480 + seq[i][0]*1024}"
        for s_ in range(ntile): k(f"ds_read_b128 {v(CS+4*s_,4)}, v7 offset:{64*s_}")
        for i in range(PRE): k(rd(i))
        for i, (kb, s_) in enumerate(seq):
            left = min(len(seq), i + PRE) - i - 1
            k(f"s_waitcnt lgkmcnt({left})")
            for tb in range(2):
                c = v(ACC + 8*tb + 4*s_, 4)
                k(f"v_mfma_f32_16x16x32_bf16 {c}, {v(AF + 4*(i % NR),4)}, {a((kb*2+tb)*4,4)}, {c if kb else 0}")
                if tb == 0 and i + PRE < len(seq): k(rd(i + PRE))
    def epi(ntile):
        streams = []
        for tb in range(2):
            for s_ in range(ntile):
                L = []
                for hf in range(2):
                    z = ACC + 8*tb + 4*s_ + 2*hf; t = T + 2*(len(streams)); cs = CS + 4*s_ + 2*hf; st = 22 + 2*tb
                    L.append(f"v_pk_fma_f32 {v(z,2)}, {v(cs,2)}, {v(st,2)}, {v(z,2)} op_sel:[0,0,0] op_sel_hi:[1,0,1] neg_lo:[1,0,0] neg_hi:[1,0,0]")
                    L.append(f"v_pk_mul_f32 {v(z,2)}, {v(z,2)}, {v(st,2)} op_sel:[0,1] op_sel_hi:[1,1]")
                    L += gelu_pk(z, t, PK + 4*tb + 2*s_ + hf, 48, C0, 50)
                streams.append(L)
        for ln in interleave(*streams): k(ln)
    k("s_mov_b32 s58, 0")
    k(".p2align 3")
    k.label("ploop")
    gemm(2)
    epi(2)
    k("s_add_u32 s57, s56, 55296")
    k(f"buffer_store_dwordx4 {v(PK,4)}, v5, s[28:31], s56 offen")
    k(f"buffer_store_dwordx4 {v(PK+4,4)}, v5, s[28:31], s57 offen")
    k("v_add_u32 v6, 40960, v6"); k("v_add_u32 v7, 128, v7")
    k("s_add_u32 s56, s56, 1024")
    k("s_add_u32 s58, s58, 1")
    k("s_waitcnt vmcnt(2)")
    k("s_barrier")
    k("s_cmp_lt_u32 s58, s16")
    k(f"s_cbranch_scc1 {k.lab('ploop')}")
    k(f"v_add_u32 v6, {3*40960}, v5")
    k("v_lshlrev_b32 v7, 4, v4"); k(f"v_add_u32 v7, {CSL + 6*64}, v7")
    gemm(1)
    epi(1)
    k("s_mul_i32 s56, s36, 55296"); k("s_lshr_b32 s57, s19, 1"); k("s_lshl_b32 s57, s57, 10")
    k("s_add_u32 s56, s56, s57"); k("s_lshl_b32 s57, s17, 3"); k("s_add_u32 s56, s56, s57"); k(f"s_add_u32 s56, s56, {GG}")
    k("s_add_u32 s57, s56, 55296")
    k(f"buffer_store_dwordx2 {v(PK,2)}, v5, s[28:31], s56 offen")
    k(f"buffer_store_dwordx2 {v(PK+4,2)}, v5, s[28:31], s57 offen")
    k.label("end")
    k("s_endpgm")
    return k
```

```python
from asmlib import *
from layout import *
from common import *
from k3 import col5

K5_LDS = 61440

def k5():
    k = Kern("g4_kernel", vgpr=160, agpr=252, sgpr=80)
    k("s_cmp_ge_u32 s2, 256"); k(f"s_cbranch_scc1 {k.lab('end')}")
    k(f"s_load_dwordx2 s[6:7], s[0:1], {WS}")
    k(f"s_load_dwordx2 s[8:9], s[0:1], {OUT}")
    k("s_and_b32 s10, s2, 31"); k("s_lshr_b32 s11, s2, 5")
    k("v_lshrrev_b32 v1, 6, v0"); k("v_and_b32 v2, 63, v0")
    k("v_readfirstlane_b32 s12, v1")
    k("v_and_b32 v3, 15, v2"); k("v_lshrrev_b32 v4, 4, v2"); k("v_lshlrev_b32 v5, 4, v2")
    col5(k, 11, 13, 40)
    k("s_mul_i32 s16, s12, 14336")
    for l in range(5):
        k(f"s_mul_i32 s{50+l}, s{40+l}, 55296"); k(f"s_add_u32 s{50+l}, s{50+l}, s16")
    for j in range(4):
        k(f"s_add_u32 s17, s12, {j}"); k("s_and_b32 s17, s17, 3")
        k("s_lshl_b32 s18, s10, 2"); k("s_add_u32 s17, s17, s18")
        k(f"s_mul_i32 s{56+j}, s17, 55296"); k(f"s_add_u32 s{56+j}, s{56+j}, s16")
    k("s_lshl_b32 s14, s10, 2"); k("s_add_u32 s14, s14, s12")
    k("s_mul_i32 s15, s14, 20480")
    k("s_lshr_b32 s60, s40, 1"); k("s_lshl_b32 s60, s60, 10"); k("s_add_u32 s60, s60, s15")
    k("s_lshr_b32 s61, s44, 1"); k("s_lshl_b32 s61, s61, 10"); k("s_add_u32 s61, s61, s15")
    k("s_lshl_b32 s62, s13, 3"); k("s_add_u32 s61, s61, s62")
    k("s_waitcnt lgkmcnt(0)")
    k.srd(20, 6, D * F * 2, W4T)
    k.srd(24, 6, S * F * 2, GG)
    k.srd(28, 6, WS_END)
    k.srd(32, 8, MB)
    R = 100
    for base, reg in ((HT, R), (X1, R + 10)):
        k(f"s_add_u32 s62, s60, {base}"); k(f"s_add_u32 s63, s61, {base}")
        k(f"buffer_load_dwordx4 {v(reg,4)}, v5, s[28:31], s62 offen")
        k(f"buffer_load_dwordx4 {v(reg+4,4)}, v5, s[28:31], s62 offen offset:1024")
        k(f"buffer_load_dwordx2 {v(reg+8,2)}, v5, s[28:31], s63 offen")
    k("s_cmp_eq_u32 s12, 3"); k("s_cselect_b32 s64, 0x40000000, 4096")
    NS = 7
    def loads(i):
        st = 36 * (i % NS)
        if i and i % 4 == 0:
            for r in list(range(50, 55)) + list(range(56, 60)):
                k(f"s_add_u32 s{r}, s{r}, {'s64' if i == 12 else 4096}")
        for j in range(4):
            k(f"buffer_load_dwordx4 {a(st+4*j,4)}, v5, s[24:27], s{56+j} offen offset:{1024*(i%4)}")
        for l in range(5):
            k(f"buffer_load_dwordx4 {a(st+16+4*l,4)}, v5, s[20:23], s{50+l} offen offset:{1024*(i%4)}")
    for i in range(NS): loads(i)
    ACC = 16
    for i in range(14):
        st = 36 * (i % NS)
        issued = min(14, i + NS)
        k(f"s_waitcnt vmcnt({9*(issued - i - 1)})")
        for j in range(4):
            for l in range(5):
                c = v(ACC + 20*j + 4*l, 4)
                k(f"v_mfma_f32_16x16x32_bf16 {c}, {a(st+16+4*l,4)}, {a(st+4*j,4)}, {c if i else 0}")
        if i + NS < 14: loads(i + NS)
    for j in range(1, 4):
        k(f"s_add_u32 s17, s12, {j}"); k("s_and_b32 s17, s17, 3"); k("s_mul_i32 s17, s17, 15360")
        k(f"s_add_u32 s17, s17, {(j-1)*5120}")
        k(f"v_add_u32 v{5+j}, s17, v5")
    for j in range(1, 4):
        for l in range(5):
            k(f"ds_write_b128 v{5+j}, {v(ACC + 20*j + 4*l,4)} offset:{1024*l}")
    k("s_mul_i32 s17, s12, 15360")
    k("v_add_u32 v9, s17, v5")
    k("s_waitcnt lgkmcnt(0)")
    k("s_barrier")
    P = 36
    for j in range(3):
        for l in range(5):
            k(f"ds_read_b128 {v(P + 20*j + 4*l,4)}, v9 offset:{j*5120 + 1024*l}")
    k("s_mov_b32 s17, 0xffff0000")
    U = 120
    def unp(reg, dst):
        for l in range(5):
            for hf in range(2):
                src = (reg + 4*(l//2) + 2*(l % 2) + hf) if l < 4 else (reg + 8 + hf)
                u = dst + 4*l + 2*hf
                k(f"v_lshlrev_b32 v{u}, 16, v{src}"); k(f"v_and_b32 v{u+1}, s17, v{src}")
    unp(R, U)
    for i in range(10): k(f"v_pk_add_f32 {v(ACC+2*i,2)}, {v(ACC+2*i,2)}, {v(U+2*i,2)}")
    unp(R + 10, U)
    for i in range(10): k(f"v_pk_add_f32 {v(ACC+2*i,2)}, {v(ACC+2*i,2)}, {v(U+2*i,2)}")
    k("s_waitcnt lgkmcnt(0)")
    for j in range(3):
        for i in range(10): k(f"v_pk_add_f32 {v(ACC+2*i,2)}, {v(ACC+2*i,2)}, {v(P+20*j+2*i,2)}")
    PK = 100
    for i in range(10): k(f"v_cvt_pk_bf16_f32 v{PK+i}, v{ACC+2*i}, v{ACC+2*i+1}")
    k("s_lshl_b32 s17, s14, 4")
    k("v_add_u32 v6, s17, v3"); k("v_mul_u32_u24 v6, 1280, v6"); k("v_lshl_add_u32 v6, v4, 4, v6")
    k("s_lshr_b32 s17, s40, 1"); k("s_lshl_b32 s17, s17, 6")
    k("s_lshr_b32 s18, s44, 1"); k("s_lshl_b32 s18, s18, 6"); k("s_lshl_b32 s19, s13, 3"); k("s_add_u32 s18, s18, s19")
    k(f"buffer_store_dwordx4 {v(PK,4)}, v6, s[32:35], s17 offen")
    k(f"buffer_store_dwordx4 {v(PK+4,4)}, v6, s[32:35], s17 offen offset:64")
    k(f"buffer_store_dwordx2 {v(PK+8,2)}, v6, s[32:35], s18 offen")
    k.label("end")
    k("s_endpgm")
    return k
```

```python
S = 2048; D = 640; F = 1728
MB = S * D * 2
_off = 0
def _r(n):
    global _off
    o = _off
    _off += (n + 4095) // 4096 * 4096
    return o
UR   = _r(MB)
YT   = _r(MB)
QS   = _r(S * 8)
W1T  = _r(D * D * 2)
W2T  = _r(D * D * 2)
W3T  = _r(D * F * 2)
W4T  = _r(D * F * 2)
CS3  = _r(5 * F * 4)
HT   = _r(MB)
XB   = _r(MB)
HS   = _r(MB)
X1   = _r(MB)
ST2  = _r(S * 8 * 8)
GG   = _r(S * F * 2)
CNT  = _r(288 * 128)
WS_END = _off
STAMP = 64 << 20
A_Q, A_K, A_V, A_SK, A_H, A_D, B_X, B_W1, B_W2, B_W3, B_W4, OUT, DBG, WS = [8 * i for i in range(14)]
```

```python
import sys
from asmlib import *
from layout import *
from k0 import k0
from k1 import k1, K1_LDS
from k2 import k2, K2_LDS
from k3 import k3, K3_LDS
from k4 import k4, K4_LDS
from k5 import k5, K5_LDS
HEADER = """; Fused H3 (shift conv, gated long conv) + S-MLP mixer block, six dependent launches.
"""
def build(extra_empty=0):
    ks = [k0(), k1(), k2(), k3(), k4(), k5()]
    launches = [("prep0_kernel", 320, 256, 17408), ("conv_kernel", 256, 256, K1_LDS), ("g1_kernel", 256, 256, K2_LDS),
                ("g2_kernel", 256, 256, K3_LDS), ("g3_kernel", 256, 256, K4_LDS), ("g4_kernel", 256, 256, K5_LDS)]
    if extra_empty:
        e = Kern("noop_kernel", vgpr=8, sgpr=16); e("s_endpgm"); ks.append(e)
        launches += [("noop_kernel", 256, 256, 0)] * extra_empty
    return build_file(ks, launches, HEADER)
if __name__ == "__main__":
    out = sys.argv[1] if len(sys.argv) > 1 else "pipe.s"
    open(out, "w").write(build(int(sys.argv[2]) if len(sys.argv) > 2 else 0))
```

```python
import re

def v(a, n=1): return f"v{a}" if n == 1 else f"v[{a}:{a+n-1}]"
def a(x, n=1): return f"a{x}" if n == 1 else f"a[{x}:{x+n-1}]"
def s(a_, n=1): return f"s{a_}" if n == 1 else f"s[{a_}:{a_+n-1}]"

_REG = re.compile(r"(?<![\w.])([vas])(?:(\d+)\b|\[(\d+):(\d+)\])")

def regs_in(text):
    out = []
    for m in _REG.finditer(text):
        k = m.group(1)
        if m.group(2) is not None:
            out.append((k, int(m.group(2)), int(m.group(2))))
        else:
            out.append((k, int(m.group(3)), int(m.group(4))))
    return out

def expand(rs):
    o = set()
    for k, lo, hi in rs:
        for i in range(lo, hi + 1): o.add((k, i))
    return o

TRANS = ("v_exp_f32", "v_log_f32", "v_rcp_f32", "v_rsq_f32", "v_sqrt_f32", "v_sin_f32", "v_cos_f32", "v_rcp_iflag_f32")

class Ins:
    __slots__ = ("text", "op", "kind", "defs", "uses", "srcc", "sdefs", "raw", "dpp", "wide_store", "vccdef", "vccuse", "m0def", "m0use", "label", "target", "states", "execdef")
    def __init__(self, text):
        self.text = text
        t = text.split(";")[0].strip()
        self.raw = t
        self.label = None; self.target = None
        self.defs = set(); self.uses = set(); self.srcc = set(); self.sdefs = set()
        self.dpp = False; self.wide_store = False; self.vccdef = False; self.vccuse = False
        self.m0def = False; self.m0use = False; self.states = 1; self.execdef = False
        if t.endswith(":") and " " not in t:
            self.kind = "label"; self.label = t[:-1]; self.op = ""; self.states = 0; return
        if not t or t.startswith("."):
            self.kind = "dir"; self.op = ""; self.states = 0; return
        parts = t.split(None, 1)
        self.op = op = parts[0]
        rest = parts[1] if len(parts) > 1 else ""
        ops = [x.strip() for x in self._split(rest)]
        if op == "s_nop":
            self.kind = "nop"; self.states = int(ops[0], 0) + 1; return
        if op.startswith("s_cbranch") or op == "s_branch":
            self.kind = "branch"; self.target = ops[0]; return
        if op.startswith("v_mfma"):
            self.kind = "mfma"
            self.defs = expand(regs_in(ops[0]))
            self.uses = expand(regs_in(ops[1])) | expand(regs_in(ops[2]))
            self.srcc = expand(regs_in(ops[3]))
            return
        if op.startswith("v_"):
            self.kind = "trans" if op.replace("_e32", "").replace("_e64", "") in TRANS else "valu"
            self.dpp = ("dpp" in op) or ("row_" in rest) or ("quad_perm" in rest) or ("wave_" in rest) or ("row_bcast" in rest)
            if op.startswith("v_cmp"):
                d = ops[0]
                if d == "vcc": self.vccdef = True
                else: self.sdefs = expand(regs_in(d))
                for o in ops[1:]: self.uses |= expand(regs_in(o))
                if op.startswith("v_cmpx"): self.execdef = True
                return
            if op.startswith("v_readfirstlane") or op.startswith("v_readlane"):
                self.sdefs = expand(regs_in(ops[0]))
                for o in ops[1:]: self.uses |= expand(regs_in(o))
                self.kind = "readlane"
                return
            if op.startswith("v_permlane") and "swap" in op:
                self.defs = expand(regs_in(ops[0])) | expand(regs_in(ops[1]))
                self.uses = set(self.defs)
                self.kind = "permlane"
                return
            self.defs = expand(regs_in(ops[0]))
            k = 1
            if "_co_" in op or op.startswith("v_div_scale") or op.startswith("v_mad_u64") or op.startswith("v_mad_i64"):
                if ops[1] == "vcc": self.vccdef = True
                else: self.sdefs = expand(regs_in(ops[1]))
                k = 2
            for o in ops[k:]:
                self.uses |= expand(regs_in(o))
                if o == "vcc": self.vccuse = True
            if op.startswith("v_cndmask") and len(ops) == 3: self.vccuse = True
            if op.startswith("v_fmac") or op.startswith("v_mac") or op.startswith("v_pk_fmac") or op.startswith("v_dot2c") or op.startswith("v_writelane"):
                self.uses |= self.defs
            if "op_sel" in rest and "pk_" not in op: pass
            return
        if op.startswith("buffer_") or op.startswith("global_"):
            self.kind = "vmem"
            allr = expand(regs_in(rest))
            if "lds" in rest.split():
                self.m0use = True; self.uses = allr
            elif "_load" in op:
                self.defs = expand(regs_in(ops[0]))
                for o in ops[1:]: self.uses |= expand(regs_in(o))
            elif "atomic" in op:
                self.uses = allr
                if "sc0" in rest.split(): self.defs = expand(regs_in(ops[0]))
            else:
                self.uses = allr
                if "x4" in op or "x3" in op:
                    if op.startswith("buffer_"): self.wide_store = expand(regs_in(ops[0]))
                    else: self.wide_store = expand(regs_in(ops[1]))
            return
        if op.startswith("ds_"):
            self.kind = "ds"
            if op.startswith("ds_read") or op.startswith("ds_bpermute") or op.startswith("ds_permute") or op.startswith("ds_swizzle"):
                self.defs = expand(regs_in(ops[0]))
                for o in ops[1:]: self.uses |= expand(regs_in(o))
            else:
                self.uses = expand(regs_in(rest))
            return
        if op.startswith("s_"):
            self.kind = "salu"
            if op.startswith("s_cmp") or op in ("s_waitcnt", "s_barrier", "s_endpgm", "s_setprio", "s_sleep"):
                for o in ops: self.uses |= expand(regs_in(o))
                return
            if ops:
                d = ops[0]
                if d == "m0": self.m0def = True
                elif d == "exec": pass
                elif d == "vcc": pass
                else: self.sdefs = expand(regs_in(d))
                for o in ops[1:]: self.uses |= expand(regs_in(o))
            return
        self.kind = "other"
    @staticmethod
    def _split(rest):
        out = []; depth = 0; cur = ""
        for ch in rest:
            if ch == "[": depth += 1
            if ch == "]": depth -= 1
            if ch == "," and depth == 0:
                out.append(cur); cur = ""
            else: cur += ch
        if cur.strip(): out.append(cur)
        return out

VALUISH = ("valu", "trans", "readlane", "permlane")

def need(prev, cur):
    n = 0
    pv = prev.kind in VALUISH
    cv = cur.kind in VALUISH
    vec = lambda st: {r for r in st if r[0] in "va"}
    if pv and prev.kind != "readlane":
        d = vec(prev.defs)
        if cur.kind == "mfma" and d & (cur.uses | cur.srcc): n = max(n, 2)
        if cur.kind == "readlane" and d & cur.uses: n = max(n, 1)
        if cur.kind == "permlane" and d & cur.uses: n = max(n, 2)
        if cur.dpp and d & cur.uses: n = max(n, 2)
        if prev.kind == "trans" and cv and cur.kind != "trans" and d & cur.uses: n = max(n, 1)
        if prev.kind == "trans" and cur.kind == "trans" and d & cur.uses: n = max(n, 1)
    if pv:
        sd = prev.sdefs
        if sd:
            if cur.kind == "vmem" and sd & cur.uses: n = max(n, 5)
            if cv and sd & cur.uses: n = max(n, 4 if cur.kind == "readlane" else 2)
            if cur.kind in ("salu", "branch") and sd & cur.uses: n = max(n, 4)
            if cur.kind == "mfma" and sd & cur.uses: n = max(n, 2)
        if prev.vccdef and cv and cur.vccuse: n = max(n, 2)
        if prev.vccdef and cur.kind in ("salu", "branch") and ("vcc" in cur.raw): n = max(n, 5)
        if prev.execdef and (cv or cur.kind == "mfma"): n = max(n, 5)
    if prev.op.startswith("v_dot"):
        d = vec(prev.defs)
        if d & (cur.uses | cur.defs | cur.srcc):
            same_acc = cur.op == prev.op and cur.defs == prev.defs and cur.raw.split(",")[-1].strip() == prev.raw.split(None,1)[1].split(",")[0].strip() \
                       and not (d & (expand(regs_in(cur.raw.split(",")[1])) | expand(regs_in(cur.raw.split(",")[2]))))
            if not same_acc: n = max(n, 3)
    if prev.kind == "mfma":
        big = "32x32" in prev.op
        d = prev.defs
        if cur.kind == "mfma":
            if d & cur.uses: n = max(n, 12 if big else 8)
            if d & cur.srcc and d != cur.srcc: n = max(n, 10 if big else 6)
            if d & cur.defs and d != cur.srcc: n = max(n, 12 if big else 8)
        elif cv or cur.kind in ("vmem", "ds"):
            if d & (cur.uses | cur.defs): n = max(n, 12 if big else 8)
        if cv and prev.srcc & vec(cur.defs): n = max(n, 7 if big else 3)
    if prev.m0def and cur.m0use: n = max(n, 1)
    if prev.wide_store and (cv or cur.kind in ("ds", "vmem", "mfma")) and prev.wide_store & vec(cur.defs):
        n = max(n, 2)
    return n

MAXD = 13

def pad_hazards(lines, verbose=False):
    ins = [Ins(l) for l in lines]
    labels = {x.label: i for i, x in enumerate(ins) if x.kind == "label"}
    inserted = 0
    out = []
    def required(hist, cur):
        dist = 0; worst = 0
        for p in reversed(hist):
            if p.states == 0: continue
            r = need(p, cur) - dist
            if r > worst: worst = r
            dist += p.states
            if dist >= MAXD: break
        return worst
    def mk_nop(k):
        res = []
        while k > 0:
            t = min(k, 16); res.append(Ins(f"  s_nop {t-1}")); k -= t
        return res
    for i, x in enumerate(ins):
        if x.states:
            r = required(out, x)
            if r > 0:
                if verbose: print(f"pad {r} before: {x.raw}")
                out += mk_nop(r); inserted += r
        if x.kind == "branch" and x.target in labels:
            j = labels[x.target]; dist_pad = 0
            fake = out + [x]
            worst = 0; k = j; walked = []
            cnt = 0
            while k < len(ins) and cnt < MAXD:
                y = ins[k]
                if y.states:
                    r = required(fake + walked, y)
                    worst = max(worst, r)
                    walked.append(y); cnt += y.states
                    if y.kind == "branch" and y.op == "s_branch": break
                    if y.op == "s_endpgm": break
                k += 1
            if worst > 0:
                if verbose: print(f"pad {worst} before branch: {x.raw}")
                out += mk_nop(worst); inserted += worst
        out.append(x)
    return [o.text for o in out], inserted

DIAG = {}
DBGT = {}
class Kern:
    def __init__(self, name, vgpr=256, agpr=0, sgpr=102):
        self.name = name; self.L = []; self.vgpr = vgpr; self.agpr = agpr; self.sgpr = sgpr
        if name in DBGT:
            self.dbgidx = DBGT[name]; self.sgpr = 102
        if name in DIAG:
            self.diag = DIAG[name]; self.sgpr = 102
        self._n = 0
    def __call__(self, t):
        for ln in t.split("\n"):
            ln = ln.strip()
            if not ln: continue
            self.L.append(ln if (ln.endswith(":") and " " not in ln) else "  " + ln)
    def lab(self, n): return f"{self.name}_{n}"
    def label(self, n): self.L.append(self.lab(n) + ":")
    def uniq(self, base):
        self._n += 1; return f"{base}{self._n}"
    diag = None
    nst = 0
    def stamp(self, name=""):
        if self.diag is None: return
        r = 82 + 2 * (self.nst % 9)
        self(f"s_memtime s[{r}:{r+1}]")
        self("s_waitcnt lgkmcnt(0)")
        self.names = getattr(self, "names", []) + [name]
        self.nst += 1
    def stamp_begin(self):
        self.dbg_begin()
        if self.diag is None: return
        self("s_memrealtime s[100:101]")
        self.stamp("begin")
    def stamp_flush(self, ws_lo, base):
        self.dbg_end()
        if self.diag is None: return
        self.stamp("end")
        self("s_memrealtime s[80:81]")
        self("s_waitcnt vmcnt(0) lgkmcnt(0)")
        self(f"s_load_dwordx2 s[76:77], s[0:1], 104")
        self("s_waitcnt lgkmcnt(0)")
        self(f"s_add_u32 s76, s76, {base}"); self("s_addc_u32 s77, s77, 0"); self("s_mov_b32 s78, 0x100000"); self("s_mov_b32 s79, 0x20000")
        self(f"s_add_u32 s75, s2, {self.diag*512}"); self("s_lshl_b32 s75, s75, 2")
        self("v_lshrrev_b32 v1, 6, v0"); self("s_nop 1"); self("v_readfirstlane_b32 s74, v1"); self("s_nop 4"); self("s_add_u32 s75, s75, s74"); self("s_lshl_b32 s75, s75, 6")
        self("v_mov_b32 v1, 0")
        for i in range(self.nst):
            self(f"v_mov_b32 v2, s{82+2*i}")
            self(f"buffer_store_dword v2, v1, s[76:79], s75 offen offset:{4*i}")
            self("s_nop 1")
        self("v_mov_b32 v2, s100"); self("buffer_store_dword v2, v1, s[76:79], s75 offen offset:56"); self("s_nop 1")
        self("v_mov_b32 v2, s80"); self("buffer_store_dword v2, v1, s[76:79], s75 offen offset:60")
    dbgidx = None
    def dbg_begin(self):
        if self.dbgidx is None: return
        self("s_memrealtime s[100:101]")
    def dbg_end(self):
        if self.dbgidx is None: return
        i = self.dbgidx
        self("s_waitcnt vmcnt(0) lgkmcnt(0)")
        self("s_memrealtime s[98:99]")
        self("s_load_dwordx2 s[76:77], s[0:1], 96")
        self("s_waitcnt lgkmcnt(0)")
        self(f"s_add_u32 s76, s76, {512*(5-i)}"); self("s_addc_u32 s77, s77, 0"); self("s_mov_b32 s78, 256"); self("s_mov_b32 s79, 0x20000")
        self("v_mov_b32 v1, 0"); self("v_mov_b32 v2, s98"); self("v_not_b32 v3, s100")
        lab = self.lab(self.uniq("nodbg"))
        self("s_and_b32 s75, s2, 15"); self("s_cmp_lg_u32 s75, 0"); self(f"s_cbranch_scc1 {lab}")
        self("v_cmp_eq_u32 vcc, 0, v0")
        self("s_and_saveexec_b64 s[72:73], vcc")
        self(f"s_cbranch_execz {lab}")
        self(f"buffer_atomic_umax v2, v1, s[76:79], 0 offen offset:{8*i+4}")
        self(f"buffer_atomic_umax v3, v1, s[76:79], 0 offen offset:{8*i}")
        self("s_waitcnt vmcnt(0)")
        self.L.append(lab + ":")
    def srd(self, sreg, ptr_lo, nbytes, add=0):
        if add:
            self(f"s_add_u32 s{sreg}, s{ptr_lo}, {add}")
            self(f"s_addc_u32 s{sreg+1}, s{ptr_lo+1}, 0")
        else:
            self(f"s_mov_b32 s{sreg}, s{ptr_lo}")
            self(f"s_mov_b32 s{sreg+1}, s{ptr_lo+1}")
        self(f"s_mov_b32 s{sreg+2}, {nbytes}")
        self(f"s_mov_b32 s{sreg+3}, 0x20000")
    def text(self, verbose=False):
        body, n = pad_hazards(self.L, verbose)
        hdr = f".globl {self.name}\n.p2align 8\n.type {self.name},@function\n{self.name}:\n"
        return hdr + "\n".join(body) + "\n", n
    def desc(self):
        tot = self.vgpr + self.agpr if self.agpr else self.vgpr
        acc = (self.vgpr + 3) // 4 * 4
        return f""".amdhsa_kernel {self.name}
  .amdhsa_next_free_vgpr {tot}
  .amdhsa_next_free_sgpr {self.sgpr}
  .amdhsa_accum_offset {acc}
  .amdhsa_group_segment_fixed_size 0
  .amdhsa_kernarg_size 112
  .amdhsa_user_sgpr_count 2
  .amdhsa_user_sgpr_kernarg_segment_ptr 1
  .amdhsa_system_sgpr_workgroup_id_x 1
  .amdhsa_float_denorm_mode_32 3
.end_amdhsa_kernel
"""

def build_file(kernels, launches, header_comments=""):
    t = ""
    for n, g, b, l in launches:
        t += f"; @launch kernel={n} grid=({g},1,1) block=({b},1,1) lds={l}\n"
    t += header_comments
    t += '.amdgcn_target "amdgcn-amd-amdhsa--gfx950"\n.text\n'
    for k in kernels:
        body, n = k.text()
        t += body
    t += "text_end:\n"
    t += '.section .rodata,"a"\n'
    for k in kernels:
        t += ".p2align 6\n" + k.desc()
    return t
```

```python
from asmlib import *
from layout import *

def k0():
    k = Kern("prep0_kernel", vgpr=64, sgpr=48)
    k("s_cmp_ge_u32 s2, 320")
    k(f"s_cbranch_scc1 {k.lab('done')}")
    k.stamp_begin()
    k(f"s_load_dwordx4 s[4:7], s[0:1], {A_K}")
    k(f"s_load_dwordx2 s[8:9], s[0:1], {A_SK}")
    k(f"s_load_dwordx2 s[10:11], s[0:1], {WS}")
    k("s_mul_hi_u32 s12, s2, 0x1999999a")
    k("s_mul_i32 s13, s12, 10")
    k("s_sub_u32 s13, s2, s13")
    k("s_lshl_b32 s14, s12, 6")
    k("s_lshl_b32 s15, s13, 6")
    k("v_lshrrev_b32 v1, 3, v0")
    k("v_and_b32 v2, 7, v0")
    k("v_lshlrev_b32 v2, 4, v2")
    k("v_add_u32 v3, s14, v1")
    k("v_mul_u32_u24 v3, 1280, v3")
    k("s_lshl_b32 s16, s15, 1")
    k("v_add3_u32 v3, v3, v2, s16")
    k("v_subrev_u32 v4, 3840, v3")
    k("v_lshrrev_b32 v5, 6, v0")
    k("v_and_b32 v6, 63, v0")
    k("v_readfirstlane_b32 s17, v5")
    k("s_waitcnt lgkmcnt(0)")
    k.srd(20, 4, MB); k.srd(24, 6, MB); k.srd(28, 8, D * 8); k.srd(32, 10, MB, UR)
    k("s_lshl_b32 s18, s17, 10")
    k("s_mov_b32 m0, s18")
    k("s_mov_b32 s19, 40960")
    k("buffer_load_dwordx4 v4, s[20:23], 0 offen lds")
    k("s_add_u32 m0, s18, 4096")
    k("v_add_u32 v7, 40960, v4")
    k("buffer_load_dwordx4 v7, s[20:23], 0 offen lds")
    k("s_add_u32 m0, s18, 9216")
    k("v_add_u32 v8, 81920, v4")
    k("buffer_load_dwordx4 v3, s[24:27], 0 offen lds")
    k("s_add_u32 m0, s18, 13312")
    k("s_nop 0")
    k("buffer_load_dwordx4 v3, s[24:27], s19 offen lds")
    k("s_cmp_lg_u32 s17, 0")
    k(f"s_cbranch_scc1 {k.lab('skip')}")
    k("s_mov_b32 m0, 8192")
    k("s_nop 0")
    k("buffer_load_dwordx4 v8, s[20:23], 0 offen lds")
    k.label("skip")
    k("v_add_u32 v9, s15, v6")
    k("v_lshlrev_b32 v10, 3, v9")
    k("buffer_load_dwordx2 v[12:13], v10, s[28:31], 0 offen")
    k("v_and_b32 v10, 15, v6")
    k("v_lshrrev_b32 v11, 2, v10")
    k("s_lshl_b32 s18, s17, 4")
    k("v_add_u32 v11, s18, v11")
    k("v_lshlrev_b32 v11, 7, v11")
    k("v_and_b32 v10, 3, v10")
    k("v_lshlrev_b32 v10, 3, v10")
    k("v_lshrrev_b32 v14, 4, v6")
    k("v_lshlrev_b32 v14, 5, v14")
    k("v_add3_u32 v11, v11, v10, v14")
    k("s_add_u32 s18, s18, s14")
    k("s_sub_u32 s18, 2032, s18")
    k("s_lshl_b32 s18, s18, 1")
    k("v_lshlrev_b32 v9, 12, v9")
    k("v_add_u32 v9, s18, v9")
    k.stamp("issued")
    k("s_waitcnt vmcnt(0)")
    k("s_barrier")
    k.stamp("loaded")
    KR = 16; VR = 26
    for i in range(5): k(f"ds_read_b64_tr_b16 {v(KR+2*i,2)}, v11 offset:{512*i}")
    for i in range(4): k(f"ds_read_b64_tr_b16 {v(VR+2*i,2)}, v11 offset:{9216+512*i}")
    k("v_lshlrev_b32 v34, 16, v12"); k("v_and_b32 v35, 0xffff0000, v12")
    k("v_lshlrev_b32 v36, 16, v13"); k("v_and_b32 v37, 0xffff0000, v13")
    k("s_waitcnt lgkmcnt(0)")
    KF = 38
    for i in range(10):
        k(f"v_lshlrev_b32 v{KF+2*i}, 16, v{KR+i}")
        k(f"v_and_b32 v{KF+2*i+1}, 0xffff0000, v{KR+i}")
    OUTR = 58
    for half in (1, 0):
        for pr in range(4):
            es = (8 * half + 7 - 2 * pr, 8 * half + 6 - 2 * pr)
            for j, e in enumerate(es):
                t = 16 + j
                k(f"v_mul_f32 v{t}, v34, v{KF+e+3}")
                k(f"v_fmac_f32 v{t}, v35, v{KF+e+2}")
                k(f"v_fmac_f32 v{t}, v36, v{KF+e+1}")
                k(f"v_fmac_f32 v{t}, v37, v{KF+e}")
                vr = VR + e // 2
                if e % 2 == 0: k(f"v_lshlrev_b32 v{18+j}, 16, v{vr}")
                else: k(f"v_and_b32 v{18+j}, 0xffff0000, v{vr}")
                k(f"v_mul_f32 v{t}, v{t}, v{18+j}")
            k(f"v_cvt_pk_bf16_f32 v{OUTR+pr}, v16, v17")
        k(f"buffer_store_dwordx4 {v(OUTR,4)}, v9, s[32:35], 0 offen offset:{16*(1-half)}")
        OUTR = 20 if half == 1 else OUTR
    k.stamp_flush(10, STAMP)
    k.label("done")
    k("s_endpgm")
    return k
```

```python
from asmlib import *
from layout import *

K1_LDS = 86016
WREG = 21248
CPY = 4160

def conv_part(k):
    k.stamp_begin()
    k("v_lshrrev_b32 v1, 6, v0")
    k("v_and_b32 v2, 63, v0")
    k("v_readfirstlane_b32 s17, v1")
    k("s_lshl_b32 s16, s2, 2")
    k("s_add_u32 s16, s16, s17")
    k("s_lshl_b32 s18, s16, 12")
    k("s_mul_i32 s19, s17, %d" % WREG)
    k("v_lshlrev_b32 v3, 4, v2")
    k("v_subrev_u32 v4, 32, v3")
    k("s_lshl_b32 s38, s16, 1")
    k("v_mov_b32 v5, s38")
    k("s_mov_b32 m0, s19")
    k("s_waitcnt lgkmcnt(0)")
    k("s_add_u32 s20, s4, s18"); k("s_addc_u32 s21, s5, 0"); k("s_mov_b32 s22, 4096"); k("s_mov_b32 s23, 0x20000")
    k("s_add_u32 s36, s8, s18"); k("s_addc_u32 s37, s9, 0")
    k.srd(24, 36, 4096, UR); k.srd(28, 36, 4096, YT); k.srd(32, 6, D * 2)
    HB = 48
    for q in range(5):
        k(f"buffer_load_dwordx4 {v(HB+8*q,4)}, v4, s[20:23], 0 offen")
        k(f"buffer_load_dwordx4 {v(HB+8*q+4,4)}, v4, s[20:23], 0 offen offset:16")
        if q < 4: k("v_add_u32 v4, 1024, v4")
    k("buffer_load_ushort v6, v5, s[32:35], 0 offen")
    for j in range(4):
        k(f"buffer_load_dwordx4 v3, s[24:27], 0 offen offset:{1024*j} lds")
    k("v_mov_b32 v8, 0"); k("v_mov_b32 v9, 0")
    k("v_lshlrev_b32 v7, 3, v2")
    k("v_add_u32 v7, s19, v7")
    k("ds_write_b64 v7, v[8:9] offset:4096")
    k("v_and_b32 v10, 15, v2")
    k("v_lshrrev_b32 v11, 4, v2")
    k("v_add_u32 v13, 1, v10")
    k("v_and_b32 v14, 3, v13")
    k(f"v_mul_u32_u24 v12, {CPY}, v14")
    k("v_lshrrev_b32 v13, 2, v13")
    k("v_lshlrev_b32 v13, 3, v13")
    k("v_lshl_add_u32 v13, v11, 4, v13")
    k("s_add_u32 s38, s19, 4608")
    k("v_add3_u32 v12, v12, v13, s38")
    k("v_lshlrev_b32 v13, 5, v10")
    k("v_lshlrev_b32 v14, 4, v11")
    k("v_sub_u32 v13, v14, v13")
    k("s_add_u32 s39, s19, 480")
    k("v_add_u32 v13, s39, v13")
    k("v_add_u32 v15, s38, v3")
    E = 88
    k.stamp("issued")
    for q in range(5):
        x = HB + 8 * q
        k(f"s_waitcnt vmcnt({13 - 2*q})")
        if q == 4: k("s_mov_b64 exec, 15")
        k(f"ds_write_b128 v15, {v(x,4)} offset:{1024*q}")
        for i in range(4): k(f"v_alignbit_b32 v{E+i}, v{x+i+1}, v{x+i}, 16")
        k(f"ds_write_b128 v15, {v(E,4)} offset:{1024*q + CPY}")
        for i in range(4): k(f"v_mov_b32 v{E+4+i}, v{x+1+i}")
        k(f"ds_write_b128 v15, {v(E+4,4)} offset:{1024*q + 2*CPY}")
        for i in range(4): k(f"v_alignbit_b32 v{E+8+i}, v{x+i+2}, v{x+i+1}, 16")
        k(f"ds_write_b128 v15, {v(E+8,4)} offset:{1024*q + 3*CPY}")
    k("s_mov_b64 exec, -1")
    AP = 100
    k("s_waitcnt vmcnt(4)")
    k("v_sub_u32 v16, 15, v10")
    k("v_lshrrev_b32 v17, 3, v16")
    k("v_and_b32 v16, 7, v16")
    k("v_and_b32 v18, 1, v16")
    k("v_lshlrev_b32 v18, 4, v18")
    k("v_lshlrev_b32 v18, v18, v6")
    k("v_cmp_eq_u32 vcc, v17, v11")
    k("v_cndmask_b32 v18, 0, v18, vcc")
    k("v_lshrrev_b32 v16, 1, v16")
    for r in range(4):
        k(f"v_cmp_eq_u32 vcc, {r}, v16")
        k(f"v_cndmask_b32 v{AP+r}, 0, v18, vcc")
    ACC = 16; A0 = 48; A1 = 112; B0 = 144; B1 = 176
    def loads(A, B, rho_off):
        L = []
        for d in range(8): L.append(f"ds_read_b128 {v(B+4*d,4)}, v13 offset:{rho_off + 512*(7-d)}")
        for m in range(8):
            L.append(f"ds_read_b64 {v(A+4*m,2)}, v12 offset:{rho_off + 512*m}")
            L.append(f"ds_read_b64 {v(A+4*m+2,2)}, v12 offset:{rho_off + 512*m + 8}")
        return L
    k.stamp("copies")
    k("s_waitcnt vmcnt(0) lgkmcnt(0)")
    k.stamp("ur")
    for ln in loads(A0, B0, 0): k(ln)
    k("s_waitcnt lgkmcnt(0)")
    for t in range(8):
        k(f"v_mfma_f32_16x16x32_bf16 {v(ACC+4*t,4)}, {v(AP,4)}, {v(B0+4*t,4)}, 0")
    pairs = [(m, d) for m in range(8) for d in range(8 - m)]
    def phase(A, B, nxt):
        for idx, (m, d) in enumerate(pairs):
            k(f"v_mfma_f32_16x16x32_bf16 {v(ACC+4*(m+d),4)}, {v(A+4*m,4)}, {v(B+4*d,4)}, {v(ACC+4*(m+d),4)}")
            if idx < len(nxt): k(nxt[idx])
        k("s_waitcnt lgkmcnt(0)")
    k("s_mov_b32 s40, 0")
    k(".p2align 3")
    k.label("cloop")
    phase(A0, B0, loads(A1, B1, 64))
    phase(A1, B1, loads(A0, B0, 128))
    k("v_add_u32 v12, 128, v12")
    k("v_add_u32 v13, 128, v13")
    k("s_add_u32 s40, s40, 1")
    k("s_cmp_lt_u32 s40, 4")
    k(f"s_cbranch_scc1 {k.lab('cloop')}")
    k.stamp("loop")
    k("v_lshlrev_b32 v14, 5, v10")
    k("v_lshl_add_u32 v14, v11, 3, v14")
    k("v_add_u32 v14, s19, v14")
    for t in range(8):
        k(f"v_cvt_pk_bf16_f32 v{A0+2*t}, v{ACC+4*t}, v{ACC+4*t+1}")
        k(f"v_cvt_pk_bf16_f32 v{A0+2*t+1}, v{ACC+4*t+2}, v{ACC+4*t+3}")
        k(f"ds_write_b64 v14, {v(A0+2*t,2)} offset:{512*t}")
    k("v_add_u32 v15, s19, v3")
    k("s_waitcnt lgkmcnt(0)")
    for j in range(4): k(f"ds_read_b128 {v(B0+4*j,4)}, v15 offset:{1024*j}")
    for j in range(4):
        k(f"s_waitcnt lgkmcnt({3-j})")
        k(f"buffer_store_dwordx4 {v(B0+4*j,4)}, v3, s[28:31], 0 offen offset:{1024*j}")
    k.stamp_flush(8, STAMP)
    k("s_endpgm")

def wprep_part(k):
    k.label("wprep")
    k("s_mul_i32 s19, s17, 20480")
    k("v_lshrrev_b32 v3, 2, v2")
    k("v_and_b32 v4, 3, v2")
    k("v_lshlrev_b32 v4, 4, v4")
    k("s_lshl_b32 s47, s41, 5")
    k("v_add_u32 v3, s47, v3")
    k("v_mul_lo_u32 v3, v3, s40")
    k("s_lshl_b32 s47, s42, 6")
    k("v_add3_u32 v3, v3, v4, s47")
    k("s_lshl_b32 s48, s40, 4")
    k("s_mov_b32 s49, 0")
    k("s_mov_b32 s50, s19")
    k.label("wld")
    k("s_mov_b32 m0, s50")
    k("s_add_u32 s49, s49, 1")
    k("buffer_load_dwordx4 v3, s[20:23], 0 offen lds")
    k("s_add_u32 m0, s50, 1024")
    k("v_add_u32 v3, s48, v3")
    k("buffer_load_dwordx4 v3, s[20:23], 0 offen lds")
    k("v_add_u32 v3, s48, v3")
    k("s_add_u32 s50, s50, 2048")
    k("s_cmp_lt_u32 s49, s43")
    k(f"s_cbranch_scc1 {k.lab('wld')}")
    k("v_lshrrev_b32 v5, 4, v2")
    k("v_lshlrev_b32 v5, 9, v5")
    k("v_bfe_u32 v6, v2, 2, 2")
    k("v_lshl_add_u32 v5, v6, 6, v5")
    k("v_and_b32 v6, 3, v2")
    k("v_lshl_add_u32 v5, v6, 4, v5")
    k("v_add_u32 v5, s19, v5")
    k("s_lshl_b32 s47, s42, 1")
    k("s_mul_i32 s47, s47, s45")
    k("s_add_u32 s47, s47, s41")
    k("s_lshl_b32 s47, s47, 10")
    k("s_add_u32 s47, s47, s44")
    k("s_lshl_b32 s51, s45, 10")
    k("s_add_u32 s51, s51, s47")
    k("v_lshlrev_b32 v7, 4, v2")
    k("v_mov_b32 v20, 0"); k("v_mov_b32 v21, 0")
    k("s_mov_b32 s52, 0x3f803f80")
    k("s_mov_b32 s49, 0")
    k("s_waitcnt vmcnt(0)")
    k.label("wtr")
    k("ds_read_b64_tr_b16 v[8:9], v5")
    k("ds_read_b64_tr_b16 v[10:11], v5 offset:256")
    k("ds_read_b64_tr_b16 v[12:13], v5 offset:8")
    k("ds_read_b64_tr_b16 v[14:15], v5 offset:264")
    k("v_add_u32 v5, 2048, v5")
    k("s_add_u32 s49, s49, 1")
    k("s_waitcnt lgkmcnt(0)")
    k("buffer_store_dwordx4 v[8:11], v7, s[24:27], s47 offen")
    k("buffer_store_dwordx4 v[12:15], v7, s[24:27], s51 offen")
    for r in range(4):
        k(f"v_dot2_f32_bf16 v20, v{8+r}, s52, v20")
        k(f"v_dot2_f32_bf16 v21, v{12+r}, s52, v21")
    k("s_add_u32 s47, s47, 1024")
    k("s_add_u32 s51, s51, 1024")
    k("s_cmp_lt_u32 s49, s43")
    k(f"s_cbranch_scc1 {k.lab('wtr')}")
    k("s_cmp_eq_u32 s46, 2")
    k(f"s_cbranch_scc1 {k.lab('end')}")
    for r in (20, 21):
        k(f"v_mov_b32 v22, v{r}")
        k(f"v_permlane32_swap_b32 v{r}, v22")
        k(f"v_add_f32 v{r}, v{r}, v22")
        k(f"v_mov_b32 v22, v{r}")
        k(f"v_permlane16_swap_b32 v{r}, v22")
        k(f"v_add_f32 v{r}, v{r}, v22")
    k(f"s_mul_i32 s47, s46, {F*4}")
    k("s_lshl_b32 s48, s42, 7")
    k("s_add_u32 s47, s47, s48")
    k(f"s_add_u32 s47, s47, {CS3}")
    k("v_and_b32 v6, 15, v2")
    k("v_lshlrev_b32 v6, 2, v6")
    k("buffer_store_dword v20, v6, s[24:27], s47 offen")
    k("buffer_store_dword v21, v6, s[24:27], s47 offen offset:64")
    k("s_endpgm")

def qstat_part(k):
    k.label("qstat")
    k("v_lshrrev_b32 v3, 4, v2")
    k("v_add_u32 v3, s40, v3")
    k("v_and_b32 v4, 15, v2")
    k("v_lshlrev_b32 v5, 3, v3")
    k("v_mul_u32_u24 v3, 1280, v3")
    k("v_lshl_add_u32 v3, v4, 4, v3")
    k("s_mov_b32 s52, 0x3f803f80")
    k("s_mov_b32 s53, 0x3acccccd")
    k("s_mov_b32 s54, 0x3727c5ac")
    for t in range(8):
        for m in range(5):
            k(f"buffer_load_dwordx4 {v(32+20*t+4*m,4)}, v3, s[20:23], 0 offen offset:{256*m}")
        k("v_add_u32 v3, 5120, v3")
    for t in range(8):
        b = 32 + 20 * t
        k(f"s_waitcnt vmcnt({min(63, 5*(7-t) + t)})")
        k("v_mov_b32 v10, 0"); k("v_mov_b32 v11, 0")
        for r in range(20):
            k(f"v_dot2_f32_bf16 v10, v{b+r}, s52, v10")
            k(f"v_dot2_f32_bf16 v11, v{b+r}, v{b+r}, v11")
        for rot in (8, 4, 2, 1):
            k(f"v_add_f32_dpp v10, v10, v10 row_ror:{rot} row_mask:0xf bank_mask:0xf")
            k(f"v_add_f32_dpp v11, v11, v11 row_ror:{rot} row_mask:0xf bank_mask:0xf")
        k("v_mul_f32 v10, s53, v10")
        k("v_mul_f32 v11, s53, v11")
        k("v_fma_f32 v11, -v10, v10, v11")
        k("v_max_f32 v11, 0, v11")
        k("v_add_f32 v11, s54, v11")
        k("v_rsq_f32 v12, v11")
        k("v_mul_f32 v13, -v10, v12")
        k("buffer_store_dwordx2 v[12:13], v5, s[24:27], s55 offen")
        k("v_add_u32 v5, 32, v5")
    k.label("end")
    k("s_endpgm")

def k1():
    k = Kern("conv_kernel", vgpr=208, sgpr=64)
    k("s_cmp_ge_u32 s2, 256")
    k(f"s_cbranch_scc1 {k.lab('end')}")
    k("s_cmp_ge_u32 s2, 160")
    k(f"s_cbranch_scc1 {k.lab('prep')}")
    k(f"s_load_dwordx4 s[4:7], s[0:1], {A_H}")
    k(f"s_load_dwordx2 s[8:9], s[0:1], {WS}")
    conv_part(k)
    k.label("prep")
    k(f"s_load_dwordx8 s[4:11], s[0:1], {B_W1}")
    k(f"s_load_dwordx2 s[12:13], s[0:1], {WS}")
    k(f"s_load_dwordx2 s[14:15], s[0:1], {A_Q}")
    k("v_lshrrev_b32 v1, 6, v0")
    k("v_and_b32 v2, 63, v0")
    k("v_readfirstlane_b32 s17, v1")
    k("s_sub_u32 s16, s2, 160")
    k("s_lshl_b32 s16, s16, 2")
    k("s_add_u32 s16, s16, s17")
    k("s_waitcnt lgkmcnt(0)")
    k.srd(24, 12, WS_END)
    k("s_mov_b32 s23, 0x20000")
    k("s_mov_b32 s46, 2")
    k("s_cmp_ge_u32 s16, 80");  k(f"s_cbranch_scc1 {k.lab('p3')}")
    k("s_mov_b32 s20, s4"); k("s_mov_b32 s21, s5"); k(f"s_mov_b32 s44, {W1T}")
    k("s_cmp_lt_u32 s16, 40"); k(f"s_cbranch_scc1 {k.lab('p12')}")
    k("s_mov_b32 s20, s6"); k("s_mov_b32 s21, s7"); k(f"s_mov_b32 s44, {W2T}")
    k("s_sub_u32 s16, s16, 40")
    k.label("p12")
    k(f"s_mov_b32 s22, {D*D*2}"); k("s_mov_b32 s40, 1280")
    k("s_lshr_b32 s42, s16, 1"); k("s_and_b32 s41, s16, 1"); k("s_mul_i32 s41, s41, 10")
    k("s_mov_b32 s43, 10"); k("s_mov_b32 s45, 20")
    k(f"s_branch {k.lab('wprep')}")
    k.label("p3")
    k("s_cmp_ge_u32 s16, 188"); k(f"s_cbranch_scc1 {k.lab('p4')}")
    k("s_sub_u32 s16, s16, 80")
    k("s_mov_b32 s20, s8"); k("s_mov_b32 s21, s9"); k(f"s_mov_b32 s22, {D*F*2}"); k(f"s_mov_b32 s44, {W3T}")
    k(f"s_mov_b32 s40, {F*2}")
    k("s_lshr_b32 s42, s16, 1"); k("s_and_b32 s46, s16, 1"); k("s_mul_i32 s41, s46, 10")
    k("s_mov_b32 s43, 10"); k("s_mov_b32 s45, 20")
    k(f"s_branch {k.lab('wprep')}")
    k.label("p4")
    k("s_cmp_ge_u32 s16, 308"); k(f"s_cbranch_scc1 {k.lab('pq')}")
    k("s_sub_u32 s16, s16, 188")
    k("s_mov_b32 s20, s10"); k("s_mov_b32 s21, s11"); k(f"s_mov_b32 s22, {D*F*2}"); k(f"s_mov_b32 s44, {W4T}")
    k("s_mov_b32 s40, 1280")
    k("s_mul_hi_u32 s42, s16, 0x2aaaaaab")
    k("s_mul_i32 s41, s42, 6"); k("s_sub_u32 s41, s16, s41"); k("s_mul_i32 s41, s41, 9")
    k("s_mov_b32 s43, 9"); k("s_mov_b32 s45, 54")
    k(f"s_branch {k.lab('wprep')}")
    k.label("pq")
    k("s_cmp_ge_u32 s16, 372"); k(f"s_cbranch_scc1 {k.lab('end')}")
    k("s_sub_u32 s16, s16, 308")
    k("s_lshl_b32 s40, s16, 5")
    k("s_mov_b32 s20, s14"); k("s_mov_b32 s21, s15"); k(f"s_mov_b32 s22, {MB}")
    k(f"s_mov_b32 s55, {QS}")
    k(f"s_branch {k.lab('qstat')}")
    wprep_part(k)
    qstat_part(k)
    return k
```

```python
from asmlib import *
from layout import *
from common import *

K2_LDS = 82944
QL = 0; YL = 40960; STL = 81920; XL = 0

def k2():
    k = Kern("g1_kernel", vgpr=256, agpr=240, sgpr=80)
    k("s_cmp_ge_u32 s2, 256"); k(f"s_cbranch_scc1 {k.lab('end')}")
    k.stamp_begin()
    k(f"s_load_dwordx2 s[4:5], s[0:1], {A_Q}")
    k(f"s_load_dwordx2 s[6:7], s[0:1], {WS}")
    k("s_and_b32 s10, s2, 63")
    k("s_lshr_b32 s11, s2, 6")
    k("v_lshrrev_b32 v1, 6, v0")
    k("v_and_b32 v2, 63, v0")
    k("v_readfirstlane_b32 s12, v1")
    k("v_and_b32 v3, 15, v2")
    k("v_lshrrev_b32 v4, 4, v2")
    k("v_lshlrev_b32 v5, 4, v2")
    k("s_mul_i32 s13, s12, 160")
    k("v_lshrrev_b32 v6, 2, v2")
    k("v_add_u32 v6, s13, v6")
    k("v_lshlrev_b32 v6, 12, v6")
    k("v_and_b32 v7, 3, v2")
    k("v_lshlrev_b32 v7, 4, v7")
    k("s_lshl_b32 s14, s10, 6")
    k("v_add3_u32 v6, v6, v7, s14")
    k("s_lshl_b32 s15, s12, 3")
    k("v_add_u32 v8, s15, v4")
    k("v_and_b32 v9, 15, v8")
    k("v_xor_b32 v9, v9, v3")
    k("s_lshl_b32 s16, s10, 5")
    k("v_add_u32 v10, s16, v8")
    k("v_mul_u32_u24 v10, 1280, v10")
    k("v_xor_b32 v11, 4, v9")
    k("v_lshl_add_u32 v8, v9, 4, v10")
    k("v_lshl_add_u32 v9, v11, 4, v10")
    k("v_add_u32 v9, 5120, v9")
    k("s_waitcnt lgkmcnt(0)")
    k.srd(20, 4, MB)
    k.srd(24, 6, MB, YT)
    k.srd(28, 6, WS_END)
    k.srd(32, 6, D * D * 2, W1T)
    k("s_mul_i32 s17, s12, 10240")
    k(f"s_add_u32 s17, s17, {YL}")
    k("s_mov_b32 s18, 0")
    for i in range(10):
        k(f"s_add_u32 m0, s17, {1024*i}")
        if i: k("s_add_u32 s18, s18, 65536")
        else: k("s_nop 0")
        k("buffer_load_dwordx4 v6, s[24:27], s18 offen lds")
    k("s_mul_i32 s17, s12, 10240")
    for a_ in range(2):
        for m in range(5):
            k(f"s_add_u32 m0, s17, {QL + a_*5120 + 768*m}")
            k("s_nop 0")
            k(f"buffer_load_dwordx4 v{8+a_}, s[20:23], 0 offen offset:{256*m} lds")
    k("v_add_u32 v10, s16, v3")
    k("v_lshlrev_b32 v10, 3, v10")
    k(f"s_mov_b32 s19, {QS}")
    k("buffer_load_dwordx2 v[12:13], v10, s[28:31], s19 offen")
    k("buffer_load_dwordx2 v[14:15], v10, s[28:31], s19 offen offset:128")
    k("s_mul_i32 s36, s11, 10"); k("s_lshl_b32 s37, s12, 1"); k("s_add_u32 s36, s36, s37"); k("s_mul_i32 s36, s36, 20480")
    k("s_mul_i32 s37, s11, 10"); k("s_lshr_b32 s38, s12, 1"); k("s_add_u32 s37, s37, s38"); k("s_add_u32 s37, s37, 8"); k("s_mul_i32 s37, s37, 20480")
    wl = []
    for kb in range(20):
        for t in range(3):
            off = kb * 1024 + (20480 if t == 1 else 0)
            wl.append((t, kb, off))
    def wload(t, kb, off):
        base = 37 if t == 2 else 36
        hi = off // 4096 * 4096
        L = []
        if hi: L.append(f"s_add_u32 s39, s{base}, {hi}")
        L.append(f"buffer_load_dwordx4 {a((t*20+kb)*4,4)}, v5, s[32:35], s{39 if hi else base} offen offset:{off-hi}")
        return L
    NFIRST = 15
    for (t, kb, off) in wl[:NFIRST]:
        for ln in wload(t, kb, off): k(ln)
    k("v_lshrrev_b32 v10, 2, v3"); k("v_mul_u32_u24 v10, 5120, v10")
    k("v_and_b32 v11, 3, v3"); k("v_lshl_add_u32 v10, v11, 8, v10")
    k("v_xor_b32 v11, v4, v3")
    k("s_mul_i32 s40, s12, 5")
    for i in range(5):
        k(f"s_add_u32 s41, s40, {i}")
        k("s_and_b32 s42, s41, 3"); k("s_lshl_b32 s42, s42, 2")
        k("s_lshr_b32 s41, s41, 2"); k("s_lshl_b32 s41, s41, 10")
        k(f"v_xor_b32 v{16+i}, s42, v11")
        k(f"v_lshlrev_b32 v{16+i}, 4, v{16+i}")
        k(f"v_add3_u32 v{16+i}, v{16+i}, v10, s41")
    k("v_bfe_u32 v10, v2, 2, 2"); k("v_lshl_add_u32 v10, v4, 3, v10"); k("v_lshlrev_b32 v10, 6, v10")
    k("v_and_b32 v11, 3, v2"); k("v_lshl_add_u32 v10, v11, 3, v10")
    k("s_mul_i32 s41, s12, 10240"); k(f"s_add_u32 s41, s41, {YL}")
    k("v_add_u32 v21, s41, v10")
    Q = 32; Y = 72; H = 112; T = 192
    k.stamp("issued")
    k(f"s_waitcnt vmcnt({NFIRST})")
    k("s_barrier")
    k.stamp("loaded")
    def reads(tb, i):
        f = tb * 5 + i
        return [f"ds_read_b128 {v(Q+4*f,4)}, v{16+i} offset:{QL + tb*20480}",
                f"ds_read_b64_tr_b16 {v(Y+4*f,2)}, v21 offset:{2048*i + 32*tb}",
                f"ds_read_b64_tr_b16 {v(Y+4*f+2,2)}, v21 offset:{2048*i + 256 + 32*tb}"]
    frs = [(tb, i) for tb in range(2) for i in range(5)]
    for fr in frs[:4]:
        for ln in reads(*fr): k(ln)
    for r in range(22, 30): k(f"v_mov_b32 v{r}, 0")
    k("s_mov_b32 s44, 0xffff0000")
    wrest = wl[NFIRST:]; wi = 0
    for fi, (tb, i) in enumerate(frs):
        f = tb * 5 + i
        nxt = frs[fi + 4] if fi + 4 < len(frs) else None
        outstanding = 3 * (min(len(frs), fi + 4) - fi - 1)
        k(f"s_waitcnt lgkmcnt({outstanding})")
        if nxt:
            for ln in reads(*nxt): k(ln)
        ab = 12 + 2 * tb
        for r in range(4):
            h = H + 8 * f + 2 * r; qq = T + 4 * (r % 2); yy = qq + 2
            k(f"v_lshlrev_b32 v{qq}, 16, v{Q+4*f+r}")
            k(f"v_and_b32 v{qq+1}, s44, v{Q+4*f+r}")
            k(f"v_lshlrev_b32 v{yy}, 16, v{Y+4*f+r}")
            k(f"v_and_b32 v{yy+1}, s44, v{Y+4*f+r}")
            k(f"v_pk_fma_f32 {v(h,2)}, {v(qq,2)}, {v(ab,2)}, {v(ab,2)} op_sel:[0,0,1] op_sel_hi:[1,0,1]")
            k(f"v_pk_fma_f32 {v(h,2)}, {v(h,2)}, {v(yy,2)}, {v(qq,2)}")
            k(f"v_pk_add_f32 {v(22+4*tb,2)}, {v(22+4*tb,2)}, {v(h,2)}")
            k(f"v_pk_fma_f32 {v(24+4*tb,2)}, {v(h,2)}, {v(h,2)}, {v(24+4*tb,2)}")
            if wi < len(wrest):
                for ln in wload(*wrest[wi]): k(ln)
                wi += 1
    while wi < len(wrest):
        for ln in wload(*wrest[wi]): k(ln)
        wi += 1
    k.stamp("p15")
    for tb in range(2):
        b = 22 + 4 * tb
        k(f"v_add_f32 v{b}, v{b}, v{b+1}")
        k(f"v_add_f32 v{b+1}, v{b+2}, v{b+3}")
    for tb in range(2):
        b = 22 + 4 * tb
        reduce_g(k, b, T); reduce_g(k, b + 1, T + 1)
    k("v_lshlrev_b32 v10, 3, v3")
    k("s_lshl_b32 s41, s12, 8"); k(f"s_add_u32 s41, s41, {STL}")
    k("v_add_u32 v11, s41, v10")
    k("ds_write_b64 v11, v[22:23]"); k("ds_write_b64 v11, v[26:27] offset:128")
    k("s_waitcnt lgkmcnt(0)")
    k("s_barrier")
    k(f"v_add_u32 v11, {STL}, v10")
    for tb in range(2):
        for w in range(4):
            k(f"ds_read_b64 {v(T+8*tb+2*w,2)}, v11 offset:{256*w + 128*tb}")
    k("s_waitcnt lgkmcnt(0)")
    k(f"s_mov_b32 s46, {f2u(1.0/640)}"); k(f"s_mov_b32 s47, {f2u(1e-5)}")
    for tb in range(2):
        t = T + 8 * tb; b = 22 + 4 * tb
        k(f"v_pk_add_f32 {v(t,2)}, {v(t,2)}, {v(t+2,2)}")
        k(f"v_pk_add_f32 {v(t+4,2)}, {v(t+4,2)}, {v(t+6,2)}")
        k(f"v_pk_add_f32 {v(t,2)}, {v(t,2)}, {v(t+4,2)}")
        k(f"v_mul_f32 v{t}, s46, v{t}")
        k(f"v_mul_f32 v{t+1}, s46, v{t+1}")
        k(f"v_fma_f32 v{t+1}, -v{t}, v{t}, v{t+1}")
        k(f"v_max_f32 v{t+1}, 0, v{t+1}")
        k(f"v_add_f32 v{t+2}, s47, v{t+1}")
        k(f"v_rsq_f32 v{b}, v{t+2}")
        k(f"v_mul_f32 v{b+1}, -v{t}, v{b}")
        k(f"v_mul_f32 v{t+3}, v{b}, v{b}")
        k(f"v_fma_f32 v{t+3}, v{t+3}, v{t+1}, s47")
        k(f"v_rsq_f32 v{b+2}, v{t+3}")
    k.stamp("stats")
    k("s_mul_i32 s41, s12, 5120")
    k("v_add_u32 v11, s41, v5")
    for fi, (tb, i) in enumerate(frs):
        f = tb * 5 + i; b = 22 + 4 * tb
        for r in range(4):
            h = H + 8 * f + 2 * r; t = T + 2 * (r % 2)
            k(f"v_pk_fma_f32 {v(t,2)}, {v(h,2)}, {v(b,2)}, {v(b,2)} op_sel:[0,0,1] op_sel_hi:[1,0,1]")
            k(f"v_cvt_pk_bf16_f32 v{Q+4*f+r}, v{t}, v{t+1}")
        k(f"ds_write_b128 v11, {v(Q+4*f,4)} offset:{XL + tb*20480 + 1024*i}")
    k("s_lshl_b32 s41, s10, 1"); k("s_mul_i32 s41, s41, 20"); k("s_mul_i32 s42, s12, 5"); k("s_add_u32 s41, s41, s42")
    k("s_lshl_b32 s41, s41, 10")
    for q4 in range(4):
        tb = q4 & 1
        if q4 < 3:
            k(f"s_cmp_lg_u32 s11, {q4}"); k(f"s_cbranch_scc1 {k.lab('st%d' % (q4+1))}")
        k(f"s_add_u32 s42, s41, {(XB if q4 < 2 else HT) + tb*20480}")
        k(f"s_add_u32 s43, s42, 4096")
        for i in range(5):
            f = tb * 5 + i
            src = Q + 4 * f
            if q4 >= 2:
                src = Y + 4 * i
                for r in range(4):
                    k(f"v_cvt_pk_bf16_f32 v{src+r}, v{H+8*f+2*r}, v{H+8*f+2*r+1}")
            k(f"buffer_store_dwordx4 {v(src,4)}, v5, s[28:31], s{43 if i==4 else 42} offen offset:{1024*i if i<4 else 0}")
        if q4 < 3: k(f"s_branch {k.lab('stdone')}")
        if q4 < 3: k.label('st%d' % (q4+1))
    k.label("stdone")
    k("s_waitcnt lgkmcnt(0)")
    k("s_barrier")
    k.stamp("xchg")
    ACC = 112; BF = 192
    k("s_and_b32 s41, s12, 1"); k("s_mul_i32 s41, s41, 20480")
    k("v_add_u32 v10, s41, v5")
    def breads(kb):
        b = BF + 12 * (kb % 4)
        return [f"ds_read_b128 {v(b,4)}, v5 offset:{XL + 1024*kb}",
                f"ds_read_b128 {v(b+4,4)}, v5 offset:{XL + 20480 + 1024*kb}",
                f"ds_read_b128 {v(b+8,4)}, v10 offset:{XL + 1024*kb}"]
    for kb in range(3):
        for ln in breads(kb): k(ln)
    for kb in range(20):
        b = BF + 12 * (kb % 4)
        nb = min(20, kb + 3) - kb - 1
        k(f"s_waitcnt vmcnt({62 - 3*kb}) lgkmcnt({3*nb})")
        nx = breads(kb + 3) if kb + 3 < 20 else []
        def mf(tile, t, breg):
            c = v(ACC + 4 * tile, 4)
            k(f"v_mfma_f32_16x16x32_bf16 {c}, {a((t*20+kb)*4,4)}, {v(breg,4)}, {c if kb else 0}")
        mf(0, 0, b);
        if nx: k(nx[0])
        mf(1, 1, b)
        if nx: k(nx[1])
        mf(2, 0, b + 4)
        if nx: k(nx[2])
        mf(3, 1, b + 4)
        mf(4, 2, b + 8)
    k.stamp("gemm")
    C0 = 30
    gelu_consts(k, 48, C0, 50)
    k("s_bitcmp1_b32 s12, 0")
    k("s_cselect_b64 s[52:53], -1, 0")
    k("v_cndmask_b32 v32, v24, v28, s[52:53]")
    sc = [24, 24, 28, 28, 32]
    PK = 40
    streams = []
    for tile in range(5):
        L = []
        for hf in range(2):
            z = ACC + 4 * tile + 2 * hf; t = 64 + 4 * tile + 2 * hf
            sb = sc[tile] & ~1; sel = sc[tile] & 1
            L.append(f"v_pk_mul_f32 {v(z,2)}, {v(z,2)}, {v(sb,2)} op_sel:[0,{sel}] op_sel_hi:[1,{sel}]")
            L += gelu_pk(z, t, PK + 2 * tile + hf, 48, C0, 50)
        streams.append(L)
    for ln in interleave(*streams): k(ln)
    k("s_and_b32 s41, s11, 1"); k("s_lshl_b32 s41, s41, 1"); k("s_sub_u32 s41, 1, s41")
    k("s_lshr_b32 s42, s11, 1"); k("s_lshl_b32 s41, s41, s42")
    k("s_add_u32 s41, s41, s16")
    k("s_mul_i32 s43, s11, 5")
    k("v_lshlrev_b32 v11, 8, v4")
    def slot_addr(dst, tbreg_imm, preg):
        k(f"v_add_u32 v60, s41, v3")
        if isinstance(tbreg_imm, int):
            if tbreg_imm: k(f"v_add_u32 v60, {tbreg_imm}, v60")
        else:
            k(f"v_add_u32 v60, {tbreg_imm}, v60")
        k("v_cmp_le_u32 vcc, 0x800, v60")
        k("v_and_b32 v60, 0x7ff, v60")
        k("v_lshrrev_b32 v61, 4, v60")
        k("v_mul_u32_u24 v61, 20480, v61")
        k("v_and_b32 v60, 15, v60")
        k("v_lshl_add_u32 v60, v60, 4, v11")
        k(f"v_add3_u32 v{dst}, v60, v61, {preg}")
    k("s_add_u32 s44, s43, s12"); k("s_lshl_b32 s44, s44, 10"); k(f"s_add_u32 s44, s44, {HS}")
    k("s_add_u32 s45, s43, 4"); k("s_lshl_b32 s45, s45, 10"); k(f"s_add_u32 s45, s45, {HS}")
    k("s_lshr_b32 s46, s12, 1"); k("s_lshl_b32 s46, s46, 3"); k("s_add_u32 s45, s45, s46")
    k("s_and_b32 s46, s12, 1"); k("s_lshl_b32 s46, s46, 4")
    for tb in range(2):
        slot_addr(62, 16 * tb, "s44")
        t0 = PK + 4 * tb
        for r in range(4): k(f"v_cndmask_b32 v{t0+r}, v{t0+r}, 0, vcc") if False else k(f"v_cndmask_b32_e64 v{t0+r}, v{t0+r}, 0, vcc")
        k(f"buffer_store_dwordx4 {v(t0,4)}, v62, s[28:31], 0 offen")
    slot_addr(63, "s46", "s45")
    for r in range(2): k(f"v_cndmask_b32_e64 v{PK+8+r}, v{PK+8+r}, 0, vcc")
    k(f"buffer_store_dwordx2 {v(PK+8,2)}, v63, s[28:31], 0 offen")
    k.stamp_flush(6, STAMP)
    k.label("end")
    k("s_endpgm")
    return k
```

```python
from asmlib import *
from layout import *
from common import *

K3_LDS = 102400

def col5(k, sfc, sodd, sb, n=5):
    k(f"s_and_b32 s{sodd}, s{sfc}, 1")
    k(f"s_mul_i32 s{sb+5}, s{sfc}, 5")
    for l in range(4):
        k(f"s_add_u32 s{sb+l}, s{sb+5}, s{sodd}")
        if l: k(f"s_add_u32 s{sb+l}, s{sb+l}, {l}")
    k(f"s_cmp_eq_u32 s{sodd}, 0")
    k(f"s_cselect_b32 s{sb+4}, 4, 0")
    k(f"s_add_u32 s{sb+4}, s{sb+4}, s{sb+5}")

def k3():
    k = Kern("g2_kernel", vgpr=160, agpr=0, sgpr=80)
    k("s_cmp_ge_u32 s2, 256"); k(f"s_cbranch_scc1 {k.lab('end')}")
    k.stamp_begin()
    k(f"s_load_dwordx2 s[6:7], s[0:1], {WS}")
    k("s_and_b32 s10, s2, 31")
    k("s_lshr_b32 s11, s2, 5")
    k("v_lshrrev_b32 v1, 6, v0")
    k("v_and_b32 v2, 63, v0")
    k("v_readfirstlane_b32 s12, v1")
    k("v_and_b32 v3, 15, v2")
    k("v_lshrrev_b32 v4, 4, v2")
    k("v_lshlrev_b32 v5, 4, v2")
    col5(k, 11, 13, 40)
    k("s_lshl_b32 s14, s10, 2"); k("s_add_u32 s14, s14, s12")
    k("s_mul_i32 s15, s14, 20480")
    k("s_lshl_b32 s16, s12, 10")
    for l in range(5):
        k(f"s_mul_i32 s{50+l}, s{40+l}, 20480"); k(f"s_add_u32 s{50+l}, s{50+l}, s16")
    k("s_mul_i32 s17, s12, 5120")
    k("s_waitcnt lgkmcnt(0)")
    k.srd(20, 6, D * D * 2, W2T)
    k.srd(24, 6, MB, HS)
    k.srd(28, 6, WS_END)
    X = 32
    k("s_add_u32 s18, s15, 4096")
    k("s_mov_b32 s19, s15")
    for c in range(5):
        for l in range(5):
            k(f"s_add_u32 m0, s17, {c*20480 + l*1024}")
            if c: k(f"s_add_u32 s{50+l}, s{50+l}, 4096")
            else: k("s_nop 0")
            k(f"buffer_load_dwordx4 v5, s[20:23], s{50+l} offen lds")
        for j in range(4):
            kb = 4 * c + j
            k(f"buffer_load_dwordx4 {v(X+4*kb,4)}, v5, s[24:27], s19 offen offset:{1024*j}")
        if c < 4: k("s_add_u32 s19, s19, 4096")
    R = 112
    k("s_lshr_b32 s56, s40, 1"); k("s_lshl_b32 s56, s56, 10"); k("s_add_u32 s56, s56, s15")
    k("s_lshr_b32 s57, s44, 1"); k("s_lshl_b32 s57, s57, 10"); k("s_add_u32 s57, s57, s15")
    k("s_lshl_b32 s58, s13, 3"); k("s_add_u32 s57, s57, s58")
    k(f"s_add_u32 s58, s56, {XB}"); k(f"s_add_u32 s59, s57, {XB}")
    k(f"buffer_load_dwordx4 {v(R,4)}, v5, s[28:31], s58 offen")
    k(f"buffer_load_dwordx4 {v(R+4,4)}, v5, s[28:31], s58 offen offset:1024")
    k(f"buffer_load_dwordx2 {v(R+8,2)}, v5, s[28:31], s59 offen")
    k.stamp("issued")
    ACC = 8; AF = 124
    k("v_add_u32 v6, 0x10000, v5")
    def aread(slot, dst):
        off = slot * 1024
        if off >= 65536: return f"ds_read_b128 {v(dst,4)}, v6 offset:{off-65536}"
        return f"ds_read_b128 {v(dst,4)}, v5 offset:{off}"
    NR = 9
    for c in range(5):
        k(f"s_waitcnt vmcnt({(4-c)*9 + 3})")
        k("s_barrier")
        if c in (0, 4): k.stamp("chunk%d" % c)
        seq = [(kb, l) for kb in range(4*c, 4*c+4) for l in range(5)]
        PRE = 6
        for i in range(PRE): k(aread(seq[i][0]*5 + seq[i][1], AF + 4*(i % NR)))
        for i, (kb, l) in enumerate(seq):
            left = min(len(seq), i + PRE) - i - 1
            k(f"s_waitcnt lgkmcnt({left})")
            cacc = v(ACC + 4*l, 4)
            k(f"v_mfma_f32_16x16x32_bf16 {cacc}, {v(AF + 4*(i % NR),4)}, {v(X+4*kb,4)}, {cacc if kb else 0}")
            if i + PRE < len(seq):
                j = i + PRE
                k(aread(seq[j][0]*5 + seq[j][1], AF + 4*(j % NR)))
    k.stamp("gemm")
    k("s_waitcnt vmcnt(0)")
    k("s_mov_b32 s60, 0xffff0000")
    U = 32
    for l in range(5):
        for hf in range(2):
            src = (R + 4*(l//2) + 2*(l % 2) + hf) if l < 4 else (R + 8 + hf)
            u = U + 4*l + 2*hf
            k(f"v_lshlrev_b32 v{u}, 16, v{src}")
            k(f"v_and_b32 v{u+1}, s60, v{src}")
    for l in range(5):
        for hf in range(2):
            z = ACC + 4*l + 2*hf; u = U + 4*l + 2*hf
            k(f"v_pk_add_f32 {v(z,2)}, {v(z,2)}, {v(u,2)}")
    PK = 60
    for l in range(5):
        for hf in range(2):
            z = ACC + 4*l + 2*hf
            k(f"v_cvt_pk_bf16_f32 v{PK+2*l+hf}, v{z}, v{z+1}")
    k(f"s_add_u32 s58, s56, {X1}"); k(f"s_add_u32 s59, s57, {X1}")
    k(f"buffer_store_dwordx4 {v(PK,4)}, v5, s[28:31], s58 offen")
    k(f"buffer_store_dwordx4 {v(PK+4,4)}, v5, s[28:31], s58 offen offset:1024")
    k(f"buffer_store_dwordx2 {v(PK+8,2)}, v5, s[28:31], s59 offen")
    k(f"v_pk_mul_f32 v[72:73], {v(ACC,2)}, {v(ACC,2)}")
    k(f"v_pk_add_f32 v[70:71], {v(ACC,2)}, {v(ACC+2,2)}")
    k(f"v_pk_fma_f32 v[72:73], {v(ACC+2,2)}, {v(ACC+2,2)}, v[72:73]")
    for i in range(2, 10):
        z = ACC + 2*i
        k(f"v_pk_add_f32 v[70:71], v[70:71], {v(z,2)}")
        k(f"v_pk_fma_f32 v[72:73], {v(z,2)}, {v(z,2)}, v[72:73]")
    k("v_add_f32 v70, v70, v71"); k("v_add_f32 v71, v72, v73")
    reduce_g(k, 70, 74); reduce_g(k, 71, 75)
    k("s_lshl_b32 s61, s14, 4")
    k("v_add_u32 v6, s61, v3")
    k("v_lshlrev_b32 v6, 6, v6")
    k("s_lshl_b32 s61, s11, 3"); k(f"s_add_u32 s61, s61, {ST2}")
    k("buffer_store_dwordx2 v[70:71], v6, s[28:31], s61 offen")
    k.stamp_flush(6, STAMP)
    k.label("end")
    k("s_endpgm")
    return k
```

```python
from asmlib import *
from layout import *
from common import *

CSL = 143360
K4_LDS = CSL + 512

def k4():
    k = Kern("g3_kernel", vgpr=128, agpr=160, sgpr=80)
    k("s_cmp_ge_u32 s2, 256"); k(f"s_cbranch_scc1 {k.lab('end')}")
    k.stamp_begin()
    k(f"s_load_dwordx2 s[6:7], s[0:1], {WS}")
    k("s_and_b32 s10, s2, 7"); k("s_lshr_b32 s11, s2, 3")
    k("s_and_b32 s13, s10, 3"); k("s_and_b32 s14, s11, 3"); k("s_lshl_b32 s14, s14, 2"); k("s_add_u32 s13, s13, s14")
    k("s_lshr_b32 s14, s10, 2"); k("s_lshl_b32 s14, s14, 3"); k("s_lshr_b32 s15, s11, 2"); k("s_add_u32 s14, s14, s15")
    k("v_lshrrev_b32 v1, 6, v0")
    k("v_and_b32 v2, 63, v0")
    k("v_readfirstlane_b32 s12, v1")
    k("v_and_b32 v3, 15, v2"); k("v_lshrrev_b32 v4, 4, v2"); k("v_lshlrev_b32 v5, 4, v2")
    k("s_mul_i32 s15, s14, 7")
    k("s_cmp_eq_u32 s14, 15"); k("s_cselect_b32 s15, 103, s15")
    k("s_cmp_ge_u32 s14, 14"); k("s_cselect_b32 s16, 2, 3")
    k("s_and_b32 s17, s14, 1")
    k("s_add_u32 s18, s15, s17")
    k("s_lshl_b32 s19, s16, 1"); k("s_add_u32 s19, s19, s15")
    k("s_cmp_eq_u32 s17, 1"); k("s_cselect_b32 s19, s15, s19")
    k("s_lshl_b32 s36, s13, 3"); k("s_lshl_b32 s37, s12, 1"); k("s_add_u32 s36, s36, s37")
    k("s_mul_i32 s37, s36, 20480")
    k("s_waitcnt lgkmcnt(0)")
    k.srd(20, 6, D * F * 2, W3T)
    k.srd(24, 6, MB, X1)
    k.srd(28, 6, WS_END)
    k("s_mul_i32 s38, s18, 20480"); k("s_mul_i32 s39, s12, 10240"); k("s_add_u32 s38, s38, s39")
    def wpair(j):
        for grp in range(3):
            k(f"s_add_u32 m0, s39, {j*40960 + grp*4096}")
            k(f"s_add_u32 s40, s38, {j*40960 + grp*4096}")
            for i in range(4 if grp < 2 else 2):
                k(f"buffer_load_dwordx4 v5, s[20:23], s40 offen offset:{1024*i} lds")
    wpair(0)
    k("s_mov_b32 s41, s37"); k("s_add_u32 s42, s37, 20480")
    for kb in range(20):
        if kb and kb % 4 == 0:
            k("s_add_u32 s41, s41, 4096"); k("s_add_u32 s42, s42, 4096")
        for tb in range(2):
            k(f"buffer_load_dwordx4 {a((kb*2+tb)*4,4)}, v5, s[24:27], s{41+tb} offen offset:{1024*(kb%4)}")
    k("s_lshl_b32 s43, s36, 4")
    k("v_add_u32 v6, s43, v3"); k("v_lshlrev_b32 v6, 6, v6"); k("v_lshl_add_u32 v6, v4, 4, v6")
    k(f"s_mov_b32 s44, {ST2}")
    k("buffer_load_dwordx4 v[8:11], v6, s[28:31], s44 offen")
    k("buffer_load_dwordx4 v[12:15], v6, s[28:31], s44 offen offset:1024")
    k("v_lshrrev_b32 v7, 4, v0")
    k("v_add_u32 v16, s18, v7")
    k("v_cmp_eq_u32 vcc, 6, v7")
    k("v_mov_b32 v17, s19")
    k("v_cndmask_b32 v16, v16, v17, vcc")
    k("v_lshlrev_b32 v16, 6, v16"); k("v_lshl_add_u32 v16, v3, 2, v16")
    k(f"s_mov_b32 s45, {CS3}"); k(f"s_mov_b32 s46, {CS3 + F*4}")
    k("buffer_load_dword v18, v16, s[28:31], s45 offen")
    k("buffer_load_dword v19, v16, s[28:31], s46 offen")
    wpair(1); wpair(2)
    k("s_mul_i32 s40, s19, 20480"); k("s_mul_i32 s47, s12, 5120"); k("s_add_u32 s40, s40, s47")
    k(f"s_add_u32 m0, s47, {3*40960}")
    k("s_nop 0")
    for i in range(4): k(f"buffer_load_dwordx4 v5, s[20:23], s40 offen offset:{1024*i} lds")
    k(f"s_add_u32 m0, s47, {3*40960 + 4096}"); k("s_add_u32 s40, s40, 4096")
    k("buffer_load_dwordx4 v5, s[20:23], s40 offen lds")
    C0 = 20
    gelu_consts(k, 48, C0, 50)
    k(f"s_mov_b32 s52, {f2u(1.0/640)}"); k(f"s_mov_b32 s53, {f2u(1e-5)}")
    k.stamp("issued")
    k("s_waitcnt vmcnt(25)")
    k.stamp("loaded")
    k("v_add_f32 v18, v18, v19")
    k("v_lshlrev_b32 v19, 2, v0"); k(f"v_add_u32 v19, {CSL}, v19")
    k("v_cmp_gt_u32 vcc, 112, v0")
    k("s_and_saveexec_b64 s[54:55], vcc")
    k(f"s_cbranch_execz {k.lab('nocs')}")
    k("ds_write_b32 v19, v18")
    k.label("nocs")
    k("s_mov_b64 exec, s[54:55]")
    for tb in range(2):
        b = 8 + 4*tb; o = 22 + 2*tb
        k(f"v_add_f32 v{o}, v{b}, v{b+2}"); k(f"v_add_f32 v{o+1}, v{b+1}, v{b+3}")
    for tb in range(2):
        o = 22 + 2*tb
        reduce_g(k, o, 26); reduce_g(k, o+1, 27)
    for tb in range(2):
        o = 22 + 2*tb
        k(f"v_mul_f32 v{o}, s52, v{o}"); k(f"v_mul_f32 v{o+1}, s52, v{o+1}")
        k(f"v_fma_f32 v{o+1}, -v{o}, v{o}, v{o+1}")
        k(f"v_max_f32 v{o+1}, 0, v{o+1}")
        k(f"v_add_f32 v{o+1}, s53, v{o+1}")
        k(f"v_rsq_f32 v{o+1}, v{o+1}")
    k("s_waitcnt lgkmcnt(0)")
    k("s_barrier")
    k.stamp("stats")
    ACC = 32; AF = 48; CS = 80; T = 88; PK = 104
    k("v_mov_b32 v6, v5")
    k("v_lshlrev_b32 v7, 4, v4"); k(f"v_add_u32 v7, {CSL}, v7")
    k("s_mul_i32 s56, s36, 55296"); k("s_lshr_b32 s57, s18, 1"); k("s_lshl_b32 s57, s57, 10")
    k("s_add_u32 s56, s56, s57"); k(f"s_add_u32 s56, s56, {GG}")
    def gemm(ntile):
        seq = [(kb, s_) for kb in range(20) for s_ in range(ntile)]
        PRE = 6; NR = 8
        rd = lambda i: f"ds_read_b128 {v(AF + 4*(i % NR),4)}, v6 offset:{seq[i][1]*20480 + seq[i][0]*1024}"
        for s_ in range(ntile): k(f"ds_read_b128 {v(CS+4*s_,4)}, v7 offset:{64*s_}")
        for i in range(PRE): k(rd(i))
        for i, (kb, s_) in enumerate(seq):
            left = min(len(seq), i + PRE) - i - 1
            k(f"s_waitcnt lgkmcnt({left})")
            for tb in range(2):
                c = v(ACC + 8*tb + 4*s_, 4)
                k(f"v_mfma_f32_16x16x32_bf16 {c}, {v(AF + 4*(i % NR),4)}, {a((kb*2+tb)*4,4)}, {c if kb else 0}")
                if tb == 0 and i + PRE < len(seq): k(rd(i + PRE))
    def epi(ntile):
        streams = []
        for tb in range(2):
            for s_ in range(ntile):
                L = []
                for hf in range(2):
                    z = ACC + 8*tb + 4*s_ + 2*hf; t = T + 2*(len(streams)); cs = CS + 4*s_ + 2*hf; st = 22 + 2*tb
                    L.append(f"v_pk_fma_f32 {v(z,2)}, {v(cs,2)}, {v(st,2)}, {v(z,2)} op_sel:[0,0,0] op_sel_hi:[1,0,1] neg_lo:[1,0,0] neg_hi:[1,0,0]")
                    L.append(f"v_pk_mul_f32 {v(z,2)}, {v(z,2)}, {v(st,2)} op_sel:[0,1] op_sel_hi:[1,1]")
                    L += gelu_pk(z, t, PK + 4*tb + 2*s_ + hf, 48, C0, 50)
                streams.append(L)
        for ln in interleave(*streams): k(ln)
    k("s_mov_b32 s58, 0")
    k(".p2align 3")
    k.label("ploop")
    gemm(2)
    epi(2)
    k("s_add_u32 s57, s56, 55296")
    k(f"buffer_store_dwordx4 {v(PK,4)}, v5, s[28:31], s56 offen")
    k(f"buffer_store_dwordx4 {v(PK+4,4)}, v5, s[28:31], s57 offen")
    k("v_add_u32 v6, 40960, v6"); k("v_add_u32 v7, 128, v7")
    k("s_add_u32 s56, s56, 1024")
    k("s_add_u32 s58, s58, 1")
    k("s_waitcnt vmcnt(2)")
    k("s_barrier")
    k("s_cmp_lt_u32 s58, s16")
    k(f"s_cbranch_scc1 {k.lab('ploop')}")
    k.stamp("loop")
    k(f"v_add_u32 v6, {3*40960}, v5")
    k("v_lshlrev_b32 v7, 4, v4"); k(f"v_add_u32 v7, {CSL + 6*64}, v7")
    gemm(1)
    epi(1)
    k("s_mul_i32 s56, s36, 55296"); k("s_lshr_b32 s57, s19, 1"); k("s_lshl_b32 s57, s57, 10")
    k("s_add_u32 s56, s56, s57"); k("s_lshl_b32 s57, s17, 3"); k("s_add_u32 s56, s56, s57"); k(f"s_add_u32 s56, s56, {GG}")
    k("s_add_u32 s57, s56, 55296")
    k(f"buffer_store_dwordx2 {v(PK,2)}, v5, s[28:31], s56 offen")
    k(f"buffer_store_dwordx2 {v(PK+4,2)}, v5, s[28:31], s57 offen")
    k.stamp_flush(6, STAMP)
    k.label("end")
    k("s_endpgm")
    return k
```

```python
from asmlib import *
from layout import *
from common import *
from k3 import col5

K5_LDS = 61440

def k5():
    k = Kern("g4_kernel", vgpr=160, agpr=252, sgpr=80)
    k("s_cmp_ge_u32 s2, 256"); k(f"s_cbranch_scc1 {k.lab('end')}")
    k.stamp_begin()
    k(f"s_load_dwordx2 s[6:7], s[0:1], {WS}")
    k(f"s_load_dwordx2 s[8:9], s[0:1], {OUT}")
    k("s_and_b32 s10, s2, 31"); k("s_lshr_b32 s11, s2, 5")
    k("v_lshrrev_b32 v1, 6, v0"); k("v_and_b32 v2, 63, v0")
    k("v_readfirstlane_b32 s12, v1")
    k("v_and_b32 v3, 15, v2"); k("v_lshrrev_b32 v4, 4, v2"); k("v_lshlrev_b32 v5, 4, v2")
    col5(k, 11, 13, 40)
    k("s_mul_i32 s16, s12, 14336")
    for l in range(5):
        k(f"s_mul_i32 s{50+l}, s{40+l}, 55296"); k(f"s_add_u32 s{50+l}, s{50+l}, s16")
    for j in range(4):
        k(f"s_add_u32 s17, s12, {j}"); k("s_and_b32 s17, s17, 3")
        k("s_lshl_b32 s18, s10, 2"); k("s_add_u32 s17, s17, s18")
        k(f"s_mul_i32 s{56+j}, s17, 55296"); k(f"s_add_u32 s{56+j}, s{56+j}, s16")
    k("s_lshl_b32 s14, s10, 2"); k("s_add_u32 s14, s14, s12")
    k("s_mul_i32 s15, s14, 20480")
    k("s_lshr_b32 s60, s40, 1"); k("s_lshl_b32 s60, s60, 10"); k("s_add_u32 s60, s60, s15")
    k("s_lshr_b32 s61, s44, 1"); k("s_lshl_b32 s61, s61, 10"); k("s_add_u32 s61, s61, s15")
    k("s_lshl_b32 s62, s13, 3"); k("s_add_u32 s61, s61, s62")
    k("s_waitcnt lgkmcnt(0)")
    k.srd(20, 6, D * F * 2, W4T)
    k.srd(24, 6, S * F * 2, GG)
    k.srd(28, 6, WS_END)
    k.srd(32, 8, MB)
    R = 100
    for base, reg in ((HT, R), (X1, R + 10)):
        k(f"s_add_u32 s62, s60, {base}"); k(f"s_add_u32 s63, s61, {base}")
        k(f"buffer_load_dwordx4 {v(reg,4)}, v5, s[28:31], s62 offen")
        k(f"buffer_load_dwordx4 {v(reg+4,4)}, v5, s[28:31], s62 offen offset:1024")
        k(f"buffer_load_dwordx2 {v(reg+8,2)}, v5, s[28:31], s63 offen")
    k("s_cmp_eq_u32 s12, 3"); k("s_cselect_b32 s64, 0x40000000, 4096")
    NS = 7
    def loads(i):
        st = 36 * (i % NS)
        if i and i % 4 == 0:
            for r in list(range(50, 55)) + list(range(56, 60)):
                k(f"s_add_u32 s{r}, s{r}, {'s64' if i == 12 else 4096}")
        for j in range(4):
            k(f"buffer_load_dwordx4 {a(st+4*j,4)}, v5, s[24:27], s{56+j} offen offset:{1024*(i%4)}")
        for l in range(5):
            k(f"buffer_load_dwordx4 {a(st+16+4*l,4)}, v5, s[20:23], s{50+l} offen offset:{1024*(i%4)}")
    for i in range(NS): loads(i)
    k.stamp("issued")
    ACC = 16
    for i in range(14):
        st = 36 * (i % NS)
        issued = min(14, i + NS)
        k(f"s_waitcnt vmcnt({9*(issued - i - 1)})")
        if i in (0, 7): k.stamp("step%d" % i)
        for j in range(4):
            for l in range(5):
                c = v(ACC + 20*j + 4*l, 4)
                k(f"v_mfma_f32_16x16x32_bf16 {c}, {a(st+16+4*l,4)}, {a(st+4*j,4)}, {c if i else 0}")
        if i + NS < 14: loads(i + NS)
    k.stamp("main")
    for j in range(1, 4):
        k(f"s_add_u32 s17, s12, {j}"); k("s_and_b32 s17, s17, 3"); k("s_mul_i32 s17, s17, 15360")
        k(f"s_add_u32 s17, s17, {(j-1)*5120}")
        k(f"v_add_u32 v{5+j}, s17, v5")
    for j in range(1, 4):
        for l in range(5):
            k(f"ds_write_b128 v{5+j}, {v(ACC + 20*j + 4*l,4)} offset:{1024*l}")
    k("s_mul_i32 s17, s12, 15360")
    k("v_add_u32 v9, s17, v5")
    k("s_waitcnt lgkmcnt(0)")
    k("s_barrier")
    k.stamp("redbar")
    P = 36
    for j in range(3):
        for l in range(5):
            k(f"ds_read_b128 {v(P + 20*j + 4*l,4)}, v9 offset:{j*5120 + 1024*l}")
    k("s_mov_b32 s17, 0xffff0000")
    U = 120
    def unp(reg, dst):
        for l in range(5):
            for hf in range(2):
                src = (reg + 4*(l//2) + 2*(l % 2) + hf) if l < 4 else (reg + 8 + hf)
                u = dst + 4*l + 2*hf
                k(f"v_lshlrev_b32 v{u}, 16, v{src}"); k(f"v_and_b32 v{u+1}, s17, v{src}")
    unp(R, U)
    for i in range(10): k(f"v_pk_add_f32 {v(ACC+2*i,2)}, {v(ACC+2*i,2)}, {v(U+2*i,2)}")
    unp(R + 10, U)
    for i in range(10): k(f"v_pk_add_f32 {v(ACC+2*i,2)}, {v(ACC+2*i,2)}, {v(U+2*i,2)}")
    k("s_waitcnt lgkmcnt(0)")
    for j in range(3):
        for i in range(10): k(f"v_pk_add_f32 {v(ACC+2*i,2)}, {v(ACC+2*i,2)}, {v(P+20*j+2*i,2)}")
    PK = 100
    for i in range(10): k(f"v_cvt_pk_bf16_f32 v{PK+i}, v{ACC+2*i}, v{ACC+2*i+1}")
    k("s_lshl_b32 s17, s14, 4")
    k("v_add_u32 v6, s17, v3"); k("v_mul_u32_u24 v6, 1280, v6"); k("v_lshl_add_u32 v6, v4, 4, v6")
    k("s_lshr_b32 s17, s40, 1"); k("s_lshl_b32 s17, s17, 6")
    k("s_lshr_b32 s18, s44, 1"); k("s_lshl_b32 s18, s18, 6"); k("s_lshl_b32 s19, s13, 3"); k("s_add_u32 s18, s18, s19")
    k(f"buffer_store_dwordx4 {v(PK,4)}, v6, s[32:35], s17 offen")
    k(f"buffer_store_dwordx4 {v(PK+4,4)}, v6, s[32:35], s17 offen offset:64")
    k(f"buffer_store_dwordx2 {v(PK+8,2)}, v6, s[32:35], s18 offen")
    k.stamp_flush(6, STAMP)
    k.label("end")
    k("s_endpgm")
    return k
```

```python
import sys
from asmlib import *
from layout import *
from k0 import k0
from k1 import k1, K1_LDS
from k2 import k2, K2_LDS
from k3 import k3, K3_LDS
from k4 import k4, K4_LDS
from k5 import k5, K5_LDS
HEADER = """; Fused H3 (shift conv, gated long conv) + S-MLP mixer block, six dependent launches.
"""
def build(extra_empty=0):
    ks = [k0(), k1(), k2(), k3(), k4(), k5()]
    launches = [("prep0_kernel", 320, 256, 17408), ("conv_kernel", 256, 256, K1_LDS), ("g1_kernel", 256, 256, K2_LDS),
                ("g2_kernel", 256, 256, K3_LDS), ("g3_kernel", 256, 256, K4_LDS), ("g4_kernel", 256, 256, K5_LDS)]
    if extra_empty:
        e = Kern("noop_kernel", vgpr=8, sgpr=16); e("s_endpgm"); ks.append(e)
        launches += [("noop_kernel", 256, 256, 0)] * extra_empty
    return build_file(ks, launches, HEADER)
def build_diag():
    import asmlib
    for i, n in enumerate(["prep0_kernel","conv_kernel","g1_kernel","g2_kernel","g3_kernel","g4_kernel"]): asmlib.DIAG[n] = i
    t = build()
    asmlib.DIAG.clear()
    return t
def build_dbgt():
    import asmlib
    for i, n in enumerate(["prep0_kernel","conv_kernel","g1_kernel","g2_kernel","g3_kernel","g4_kernel"]): asmlib.DBGT[n] = i
    t = build()
    asmlib.DBGT.clear()
    return t
if __name__ == "__main__":
    if len(sys.argv) > 2 and sys.argv[2] == "dbgt":
        open(sys.argv[1], "w").write(build_dbgt()); sys.exit(0)
    if len(sys.argv) > 2 and sys.argv[2] == "diag":
        open(sys.argv[1], "w").write(build_diag()); sys.exit(0)
    out = sys.argv[1] if len(sys.argv) > 1 else "pipe.s"
    open(out, "w").write(build(int(sys.argv[2]) if len(sys.argv) > 2 else 0))
```

```python
from asmlib import *
import struct
SSG = [""]
def f2u(x): return "0x%08x" % struct.unpack("<I", struct.pack("<f", x))[0]
import math
GELU_C0 = -2.0 * math.log2(math.e) * math.sqrt(2.0 / math.pi)
GELU_C1 = GELU_C0 * 0.044715

def gelu_consts(k, sC1, vC0, sONE):
    k(f"s_mov_b32 s{sC1}, {f2u(GELU_C1)}"); k(f"s_mov_b32 s{sC1+1}, {f2u(GELU_C1)}")
    k(f"v_mov_b32 v{vC0}, {f2u(GELU_C0)}"); k(f"v_mov_b32 v{vC0+1}, {f2u(GELU_C0)}")
    k(f"s_mov_b32 s{sONE}, 1.0"); k(f"s_mov_b32 s{sONE+1}, 1.0")

def gelu_pk(z, t, dst, sC1, vC0, sONE):
    return [
        f"v_pk_mul_f32 {v(t,2)}, {v(z,2)}, {v(z,2)}",
        f"v_pk_fma_f32 {v(t,2)}, {v(t,2)}, {s(sC1,2)}, {v(vC0,2)}",
        f"v_pk_mul_f32 {v(t,2)}, {v(t,2)}, {v(z,2)}",
        f"v_exp_f32 v{t}, v{t}",
        f"v_exp_f32 v{t+1}, v{t+1}",
        f"v_pk_add_f32 {v(t,2)}, {v(t,2)}, {s(sONE,2)}",
        f"v_rcp_f32 v{t}, v{t}",
        f"v_rcp_f32 v{t+1}, v{t+1}",
        f"v_pk_mul_f32 {v(t,2)}, {v(t,2)}, {v(z,2)}",
        f"v_cvt_pk_bf16_f32 v{dst}, v{t}, v{t+1}",
    ]

def interleave(*streams):
    out = []; idx = [0] * len(streams)
    while any(idx[i] < len(streams[i]) for i in range(len(streams))):
        for i, st in enumerate(streams):
            if idx[i] < len(st): out.append(st[idx[i]]); idx[i] += 1
    return out

def reduce_g(k, r, tmp):
    k(f"v_mov_b32 v{tmp}, v{r}")
    k(f"v_permlane32_swap_b32 v{r}, v{tmp}")
    k(f"v_add_f32 v{r}, v{r}, v{tmp}")
    k(f"v_mov_b32 v{tmp}, v{r}")
    k(f"v_permlane16_swap_b32 v{r}, v{tmp}")
    k(f"v_add_f32 v{r}, v{r}, v{tmp}")


def gelu_fold(t, u, dst, ab, ir, first=None):
    irp, sel = ir & ~1, ir & 1
    L = list(first or [])
    L += [
        f"v_pk_mul_f32 {v(u,2)}, {v(t,2)}, {v(t,2)}",
        f"v_pk_fma_f32 {v(u,2)}, {v(u,2)}, {v(ab,2)}, {v(ab,2)} op_sel:[0,0,1] op_sel_hi:[1,0,1]",
        f"v_pk_mul_f32 {v(u,2)}, {v(u,2)}, {v(t,2)}",
        f"v_exp_f32 v{u}, v{u}",
        f"v_exp_f32 v{u+1}, v{u+1}",
        f"v_pk_fma_f32 {v(u,2)}, {v(u,2)}, {v(irp,2)}, {v(irp,2)} op_sel:[0,{sel},{sel}] op_sel_hi:[1,{sel},{sel}]",
        f"v_rcp_f32 v{u}, v{u}",
        f"v_rcp_f32 v{u+1}, v{u+1}",
        f"v_pk_mul_f32 {v(u,2)}, {v(u,2)}, {v(t,2)}",
        f"v_cvt_pk_bf16_f32 v{dst}, v{u}, v{u+1}",
    ]
    return L

def gelu_scale_consts(r, ab, ir, sC0, sC1, var_eps=None):
    return [
        f"v_mul_f32 v{ab}, v{r}, v{r}",
        f"v_mul_f32 v{ab+1}, s{sC0}, v{r}",
        f"v_mul_f32 v{ab}, v{ab}, v{r}",
        f"v_rcp_f32 v{ir}, v{r}",
        f"v_mul_f32 v{ab}, s{sC1}, v{ab}",
    ]
```

```python
from asmlib import *
from layout import *
from k1 import wprep_part

def code_prefetch(k, first, last):
    lab = k.lab("nocode")
    k("s_cmp_ge_u32 s2, 128"); k(f"s_cbranch_scc1 {lab}")
    k("s_getpc_b64 s[40:41]")
    k.L.append(k.lab("pc") + ":")
    k(f"s_add_u32 s40, s40, {first} - {k.lab('pc')}"); k("s_addc_u32 s41, s41, 0")
    k("s_lshr_b32 s42, s2, 3"); k("s_lshl_b32 s42, s42, 12")
    k("v_lshlrev_b32 v40, 4, v0"); k("v_add_u32 v40, s42, v40")
    k(f"v_cmp_gt_u32 vcc, {last} - {first} - 16, v40")
    k("s_and_saveexec_b64 s[44:45], vcc")
    k(f"s_cbranch_execz {k.lab('nocode2')}")
    k("v_mov_b32 v43, s41"); k("v_add_co_u32 v42, vcc, s40, v40"); k("v_addc_co_u32 v43, vcc, 0, v43, vcc")
    k("global_load_dwordx4 v[44:47], v[42:43], off")
    k.L.append(k.lab("nocode2") + ":")
    k("s_mov_b64 exec, s[44:45]")
    k.L.append(lab + ":")

def data_prefetch(k, items):
    for n, (ka, nbytes) in enumerate(items):
        k(f"s_load_dwordx2 s[46:47], s[0:1], {ka}")
        k("s_waitcnt lgkmcnt(0)")
        k.srd(48, 46, nbytes)
        per = (nbytes // 320 + 4095) // 4096 * 4096
        k(f"s_mul_i32 s52, s2, {per}")
        k("v_lshlrev_b32 v40, 4, v0")
        for j in range(per // 4096):
            k(f"buffer_load_dwordx4 v[44:47], v40, s[48:51], s52 offen")
            k("s_add_u32 s52, s52, 4096")

PREF = {"code": True, "data": False}
def k0():
    k = Kern("prep0_kernel", vgpr=64, sgpr=64)
    k("s_cmp_ge_u32 s2, 340")
    k(f"s_cbranch_scc1 {k.lab('done')}")
    k("s_cmp_ge_u32 s2, 320")
    k(f"s_cbranch_scc1 {k.lab('wp')}")
    k.stamp_begin()
    k(f"s_load_dwordx4 s[4:7], s[0:1], {A_K}")
    k(f"s_load_dwordx2 s[8:9], s[0:1], {A_SK}")
    k(f"s_load_dwordx2 s[10:11], s[0:1], {WS}")
    k("s_mul_hi_u32 s12, s2, 0x1999999a")
    k("s_mul_i32 s13, s12, 10")
    k("s_sub_u32 s13, s2, s13")
    k("s_lshl_b32 s14, s12, 6")
    k("s_lshl_b32 s15, s13, 6")
    k("v_lshrrev_b32 v1, 3, v0")
    k("v_and_b32 v2, 7, v0")
    k("v_lshlrev_b32 v2, 4, v2")
    k("v_add_u32 v3, s14, v1")
    k("v_mul_u32_u24 v3, 1280, v3")
    k("s_lshl_b32 s16, s15, 1")
    k("v_add3_u32 v3, v3, v2, s16")
    k("v_subrev_u32 v4, 3840, v3")
    k("v_lshrrev_b32 v5, 6, v0")
    k("v_and_b32 v6, 63, v0")
    k("v_readfirstlane_b32 s17, v5")
    k("s_waitcnt lgkmcnt(0)")
    k.srd(20, 4, MB); k.srd(24, 6, MB); k.srd(28, 8, D * 8); k.srd(32, 10, MB, UR)
    k("s_lshl_b32 s18, s17, 10")
    k("s_mov_b32 m0, s18")
    k("s_mov_b32 s19, 40960")
    k("buffer_load_dwordx4 v4, s[20:23], 0 offen lds")
    k("s_add_u32 m0, s18, 4096")
    k("v_add_u32 v7, 40960, v4")
    k("buffer_load_dwordx4 v7, s[20:23], 0 offen lds")
    k("s_add_u32 m0, s18, 9216")
    k("v_add_u32 v8, 81920, v4")
    k("buffer_load_dwordx4 v3, s[24:27], 0 offen lds")
    k("s_add_u32 m0, s18, 13312")
    k("s_nop 0")
    k("buffer_load_dwordx4 v3, s[24:27], s19 offen lds")
    k("s_cmp_lg_u32 s17, 0")
    k(f"s_cbranch_scc1 {k.lab('skip')}")
    k("s_mov_b32 m0, 8192")
    k("s_nop 0")
    k("buffer_load_dwordx4 v8, s[20:23], 0 offen lds")
    k.label("skip")
    if PREF["code"]: code_prefetch(k, "conv_kernel", "text_end")
    k("v_add_u32 v9, s15, v6")
    k("v_lshlrev_b32 v10, 3, v9")
    k("buffer_load_dwordx2 v[12:13], v10, s[28:31], 0 offen")
    k("v_and_b32 v10, 15, v6")
    k("v_lshrrev_b32 v11, 2, v10")
    k("s_lshl_b32 s18, s17, 4")
    k("v_add_u32 v11, s18, v11")
    k("v_lshlrev_b32 v11, 7, v11")
    k("v_and_b32 v10, 3, v10")
    k("v_lshlrev_b32 v10, 3, v10")
    k("v_lshrrev_b32 v14, 4, v6")
    k("v_lshlrev_b32 v14, 5, v14")
    k("v_add3_u32 v11, v11, v10, v14")
    k("s_add_u32 s18, s18, s14")
    k("s_sub_u32 s18, 2032, s18")
    k("s_lshl_b32 s18, s18, 1")
    k("v_lshlrev_b32 v9, 12, v9")
    k("v_add_u32 v9, s18, v9")
    k.stamp("issued")
    k("s_waitcnt vmcnt(0)")
    k("s_barrier")
    k.stamp("loaded")
    KR = 16; VR = 26
    for i in range(5): k(f"ds_read_b64_tr_b16 {v(KR+2*i,2)}, v11 offset:{512*i}")
    for i in range(4): k(f"ds_read_b64_tr_b16 {v(VR+2*i,2)}, v11 offset:{9216+512*i}")
    k("v_lshlrev_b32 v34, 16, v12"); k("v_and_b32 v35, 0xffff0000, v12")
    k("v_lshlrev_b32 v36, 16, v13"); k("v_and_b32 v37, 0xffff0000, v13")
    k("s_waitcnt lgkmcnt(0)")
    KF = 38
    for i in range(10):
        k(f"v_lshlrev_b32 v{KF+2*i}, 16, v{KR+i}")
        k(f"v_and_b32 v{KF+2*i+1}, 0xffff0000, v{KR+i}")
    OUTR = 58
    for half in (1, 0):
        for pr in range(4):
            es = (8 * half + 7 - 2 * pr, 8 * half + 6 - 2 * pr)
            for j, e in enumerate(es):
                t = 16 + j
                k(f"v_mul_f32 v{t}, v34, v{KF+e+3}")
                k(f"v_fmac_f32 v{t}, v35, v{KF+e+2}")
                k(f"v_fmac_f32 v{t}, v36, v{KF+e+1}")
                k(f"v_fmac_f32 v{t}, v37, v{KF+e}")
                vr = VR + e // 2
                if e % 2 == 0: k(f"v_lshlrev_b32 v{18+j}, 16, v{vr}")
                else: k(f"v_and_b32 v{18+j}, 0xffff0000, v{vr}")
                k(f"v_mul_f32 v{t}, v{t}, v{18+j}")
            k(f"v_cvt_pk_bf16_f32 v{OUTR+pr}, v16, v17")
        k(f"buffer_store_dwordx4 {v(OUTR,4)}, v9, s[32:35], 0 offen offset:{16*(1-half)}")
        OUTR = 20 if half == 1 else OUTR
    if PREF["data"]:
        data_prefetch(k, [(A_H, MB), (B_W1, D*D*2), (A_Q, MB), (B_W2, D*D*2), (B_W3, D*F*2), (B_W4, D*F*2)])
    k.stamp_flush(10, STAMP)
    k.label("done")
    k("s_endpgm")
    k.label("wp")
    k(f"s_load_dwordx4 s[8:11], s[0:1], {B_W1}")
    k(f"s_load_dwordx2 s[12:13], s[0:1], {WS}")
    k("v_lshrrev_b32 v1, 6, v0"); k("v_and_b32 v2, 63, v0"); k("v_readfirstlane_b32 s17, v1")
    k("s_sub_u32 s16, s2, 320"); k("s_lshl_b32 s16, s16, 2"); k("s_add_u32 s16, s16, s17")
    k("s_waitcnt lgkmcnt(0)")
    k.srd(24, 12, WS_END)
    k("s_mov_b32 s20, s8"); k("s_mov_b32 s21, s9"); k(f"s_mov_b32 s44, {W1T}")
    k("s_cmp_lt_u32 s16, 40"); k(f"s_cbranch_scc1 {k.lab('p12')}")
    k("s_mov_b32 s20, s10"); k("s_mov_b32 s21, s11"); k(f"s_mov_b32 s44, {W2T}"); k("s_sub_u32 s16, s16, 40")
    k.label("p12")
    k(f"s_mov_b32 s22, {D*D*2}"); k("s_mov_b32 s23, 0x20000"); k("s_mov_b32 s40, 1280")
    k("s_lshr_b32 s42, s16, 1"); k("s_and_b32 s41, s16, 1"); k("s_mul_i32 s41, s41, 10")
    k("s_mov_b32 s43, 10"); k("s_mov_b32 s45, 20")
    wprep_part(k, False)
    return k
```

```python
from asmlib import *
from layout import *
from common import *

CPY = 4160
WREG = 4608 + 2 * CPY
K1_LDS = 82944
K0_LDS = 81920

def conv_part(k):
    k.stamp_begin()
    k("v_lshrrev_b32 v1, 6, v0")
    k("v_and_b32 v2, 63, v0")
    k("v_readfirstlane_b32 s17, v1")
    k("s_lshl_b32 s16, s2, 2")
    k("s_add_u32 s16, s16, s17")
    k("s_lshl_b32 s18, s16, 12")
    k("s_mul_i32 s19, s17, %d" % WREG)
    k("v_lshlrev_b32 v3, 4, v2")
    k("v_subrev_u32 v4, 32, v3")
    k("s_lshl_b32 s38, s16, 1")
    k("v_mov_b32 v5, s38")
    k("s_waitcnt lgkmcnt(0)")
    k("s_add_u32 s20, s4, s18"); k("s_addc_u32 s21, s5, 0"); k("s_mov_b32 s22, 4096"); k("s_mov_b32 s23, 0x20000")
    k("s_add_u32 s36, s8, s18"); k("s_addc_u32 s37, s9, 0")
    k.srd(24, 36, 4096, UR); k.srd(28, 36, 4096, YT); k.srd(32, 6, D * 2)
    k.srd(40, 8, WS_END); k.srd(44, 10, MB)
    HB = 48
    k("v_add_u32 v19, 16, v4")
    for q in range(5):
        k(f"buffer_load_dwordx4 {v(HB+8*q,4)}, v4, s[20:23], 0 offen")
        k(f"buffer_load_dword v{HB+8*q+4}, v19, s[20:23], 0 offen")
        if q < 4: k("v_add_u32 v4, 1024, v4"); k("v_add_u32 v19, 1024, v19")
    k("v_subrev_u32 v4, 32, v3")
    k("s_add_u32 m0, s19, 4608")
    k("s_nop 0")
    k("buffer_load_dwordx4 v4, s[20:23], 0 offen lds")
    k("s_add_u32 m0, s19, %d" % (4608 + 1024))
    k("v_add_u32 v4, 1024, v4")
    for q in range(3): k(f"buffer_load_dwordx4 v4, s[20:23], 0 offen offset:{1024*q} lds")
    k("s_add_u32 m0, s19, %d" % (4608 + 4096))
    k("v_add_u32 v4, 3072, v4")
    k("s_mov_b64 exec, 15")
    k("buffer_load_dwordx4 v4, s[20:23], 0 offen lds")
    k("s_mov_b64 exec, -1")
    k("s_mov_b32 m0, s19")
    k("buffer_load_ushort v6, v5, s[32:35], 0 offen")
    for j in range(4): k(f"buffer_load_dwordx4 v3, s[24:27], 0 offen offset:{1024*j} lds")
    k("v_mov_b32 v8, 0"); k("v_mov_b32 v9, 0")
    k("v_lshlrev_b32 v7, 3, v2"); k("v_add_u32 v7, s19, v7")
    k("ds_write_b64 v7, v[8:9] offset:4096")
    k("v_and_b32 v10, 15, v2")
    k("v_lshrrev_b32 v11, 4, v2")
    k("v_add_u32 v13, 1, v10"); k("v_and_b32 v14, 1, v13")
    k(f"v_mul_u32_u24 v12, {CPY}, v14")
    k("v_sub_u32 v13, v13, v14"); k("v_lshlrev_b32 v13, 1, v13"); k("v_lshl_add_u32 v13, v11, 4, v13")
    k("s_add_u32 s38, s19, 4608")
    k("v_add3_u32 v12, v12, v13, s38")
    for j in range(1, 4): k(f"v_add_u32 v{103+j}, {1024*j}, v12")
    k("v_lshlrev_b32 v13, 5, v10"); k("v_lshlrev_b32 v14, 4, v11"); k("v_sub_u32 v13, v14, v13")
    k("s_add_u32 s39, s19, 480"); k("v_add_u32 v13, s39, v13")
    k("s_add_u32 s39, s38, %d" % CPY); k("v_add_u32 v15, s39, v3")
    k("v_sub_u32 v16, 15, v10"); k("v_lshrrev_b32 v17, 3, v16"); k("v_and_b32 v16, 7, v16")
    k("v_and_b32 v18, 1, v16"); k("v_lshlrev_b32 v18, 4, v18")
    k("s_lshr_b32 s48, s2, 3"); k("s_lshl_b32 s48, s48, 2"); k("s_add_u32 s48, s48, s17")
    k("s_mul_i32 s49, s48, 10496"); k(f"s_add_u32 s49, s49, {W1T}")
    k("s_and_b32 s50, s2, 7"); k("s_mul_i32 s51, s48, 4096")
    k.stamp("issued")
    E = 88
    for q in range(5):
        x = HB + 8*q
        k(f"s_waitcnt vmcnt({(8 - 2*q) + 10})")
        if q == 4: k("s_mov_b64 exec, 15")
        for i in range(4): k(f"v_alignbit_b32 v{E+4*(q%2)+i}, v{x+i+1}, v{x+i}, 16")
        k(f"ds_write_b128 v15, {v(E+4*(q%2),4)} offset:{1024*q}")
    k("s_mov_b64 exec, -1")
    AP = 100
    k("s_waitcnt vmcnt(4)")
    k("v_lshlrev_b32 v18, v18, v6")
    k("v_cmp_eq_u32 vcc, v17, v11"); k("v_cndmask_b32 v18, 0, v18, vcc"); k("v_lshrrev_b32 v16, 1, v16")
    for r in range(4):
        k(f"v_cmp_eq_u32 vcc, {r}, v16"); k(f"v_cndmask_b32 v{AP+r}, 0, v18, vcc")
    ACC = 16; A0 = 48; A1 = 112; B0 = 144; B1 = 176
    AR = (12, 104, 105, 106)
    def loads(A, B, rho):
        L = []
        for d in range(8): L.append(f"ds_read_b128 {v(B+4*d,4)}, v13 offset:{64*rho + 512*(7-d)}")
        for m in range(8):
            o = 128*(m % 2) + 16*rho
            L.append(f"ds_read2_b32 {v(A+4*m,2)}, v{AR[m//2]} offset0:{o} offset1:{o+1}")
            L.append(f"ds_read2_b32 {v(A+4*m+2,2)}, v{AR[m//2]} offset0:{o+2} offset1:{o+3}")
        return L
    k.stamp("copies")
    k("s_waitcnt vmcnt(0) lgkmcnt(0)")
    k.stamp("ur")
    for ln in loads(A0, B0, 0): k(ln)
    k("s_waitcnt lgkmcnt(0)")
    for t in range(8):
        k(f"v_mfma_f32_16x16x32_bf16 {v(ACC+4*t,4)}, {v(AP,4)}, {v(B0+4*t,4)}, 0")
    pairs = [(m, d) for m in range(8) for d in range(8 - m)]
    def phase(A, B, nxt, extra):
        for idx, (m, d) in enumerate(pairs):
            k(f"v_mfma_f32_16x16x32_bf16 {v(ACC+4*(m+d),4)}, {v(A+4*m,4)}, {v(B+4*d,4)}, {v(ACC+4*(m+d),4)}")
            if idx < len(nxt): k(nxt[idx])
            elif extra and idx % 3 == 0: k(extra.pop(0))
        k("s_waitcnt lgkmcnt(0)")
    k("s_mov_b32 s52, 0")
    k("s_mul_hi_u32 s53, s48, 0x1999999a"); k("s_mul_i32 s54, s53, 10"); k("s_sub_u32 s54, s48, s54")
    k("s_lshl_b32 s53, s53, 3"); k("s_add_u32 s53, s53, s50"); k("s_mul_i32 s53, s53, 40960"); k("s_lshl_b32 s54, s54, 12"); k("s_add_u32 s53, s53, s54")
    k(".p2align 3")
    k.label("cloop")
    pf = lambda: [f"buffer_load_dwordx4 v[208:211], v3, s[40:43], s49 offen", "s_add_u32 s49, s49, 1024"]
    phase(A0, B0, loads(A1, B1, 1), pf() + ["buffer_load_dwordx4 v[208:211], v3, s[44:47], s53 offen"])
    phase(A1, B1, loads(A0, B0, 2), pf() + pf()[:1] + ["s_add_u32 s49, s49, 1024"])
    for r in AR: k(f"v_add_u32 v{r}, 128, v{r}")
    k("v_add_u32 v13, 128, v13")
    k("s_add_u32 s53, s53, 1024")
    k("s_add_u32 s52, s52, 1")
    k("s_cmp_lt_u32 s52, 4")
    k(f"s_cbranch_scc1 {k.lab('cloop')}")
    k.stamp("loop")
    k("v_lshlrev_b32 v14, 5, v10"); k("v_lshl_add_u32 v14, v11, 3, v14"); k("v_add_u32 v14, s19, v14")
    for t in range(8):
        k(f"v_cvt_pk_bf16_f32 v{A0+2*t}, v{ACC+4*t}, v{ACC+4*t+1}")
        k(f"v_cvt_pk_bf16_f32 v{A0+2*t+1}, v{ACC+4*t+2}, v{ACC+4*t+3}")
        k(f"ds_write_b64 v14, {v(A0+2*t,2)} offset:{512*t}")
    k("v_add_u32 v15, s19, v3")
    k("s_waitcnt lgkmcnt(0)")
    for j in range(4): k(f"ds_read_b128 {v(B0+4*j,4)}, v15 offset:{1024*j}")
    for j in range(4):
        k(f"s_waitcnt lgkmcnt({3-j})")
        k(f"buffer_store_dwordx4 {v(B0+4*j,4)}, v3, s[28:31], 0 offen offset:{1024*j}")
    k.stamp_flush(8, STAMP)
    k("s_endpgm")

def wprep_part(k, with_colsum):
    k.label("wprep")
    k("s_mul_i32 s19, s17, 20480")
    k("v_lshrrev_b32 v3, 2, v2"); k("v_and_b32 v4, 3, v2"); k("v_lshlrev_b32 v4, 4, v4")
    k("s_lshl_b32 s47, s41, 5"); k("v_add_u32 v3, s47, v3"); k("v_mul_lo_u32 v3, v3, s40")
    k("s_lshl_b32 s47, s42, 6"); k("v_add3_u32 v3, v3, v4, s47")
    k("s_lshl_b32 s48, s40, 4"); k("s_mov_b32 s49, 0"); k("s_mov_b32 s50, s19")
    k.label("wld")
    k("s_mov_b32 m0, s50"); k("s_add_u32 s49, s49, 1")
    k("buffer_load_dwordx4 v3, s[20:23], 0 offen lds")
    k("s_add_u32 m0, s50, 1024"); k("v_add_u32 v3, s48, v3")
    k("buffer_load_dwordx4 v3, s[20:23], 0 offen lds")
    k("v_add_u32 v3, s48, v3"); k("s_add_u32 s50, s50, 2048")
    k("s_cmp_lt_u32 s49, s43"); k(f"s_cbranch_scc1 {k.lab('wld')}")
    k("v_lshrrev_b32 v5, 4, v2"); k("v_lshlrev_b32 v5, 9, v5"); k("v_bfe_u32 v6, v2, 2, 2"); k("v_lshl_add_u32 v5, v6, 6, v5")
    k("v_and_b32 v6, 3, v2"); k("v_lshl_add_u32 v5, v6, 4, v5"); k("v_add_u32 v5, s19, v5")
    k("s_lshl_b32 s47, s42, 1"); k("s_mul_i32 s47, s47, s45"); k("s_add_u32 s47, s47, s41"); k("s_lshl_b32 s47, s47, 10")
    k("s_add_u32 s47, s47, s44"); k("s_lshl_b32 s51, s45, 10"); k("s_add_u32 s51, s51, s47")
    k("v_lshlrev_b32 v7, 4, v2")
    k("v_mov_b32 v20, 0"); k("v_mov_b32 v21, 0")
    k("s_mov_b32 s52, 0x3f803f80"); k("s_mov_b32 s49, 0")
    k("s_waitcnt vmcnt(0)")
    k.label("wtr")
    k("ds_read_b64_tr_b16 v[8:9], v5"); k("ds_read_b64_tr_b16 v[10:11], v5 offset:256")
    k("ds_read_b64_tr_b16 v[12:13], v5 offset:8"); k("ds_read_b64_tr_b16 v[14:15], v5 offset:264")
    k("v_add_u32 v5, 2048, v5"); k("s_add_u32 s49, s49, 1")
    k("s_waitcnt lgkmcnt(0)")
    k("buffer_store_dwordx4 v[8:11], v7, s[24:27], s47 offen")
    k("buffer_store_dwordx4 v[12:15], v7, s[24:27], s51 offen")
    if with_colsum:
        for r in range(4):
            k(f"v_dot2_f32_bf16 v20, v{8+r}, s52, v20"); k(f"v_dot2_f32_bf16 v21, v{12+r}, s52, v21")
    k("s_add_u32 s47, s47, 1024"); k("s_add_u32 s51, s51, 1024")
    k("s_cmp_lt_u32 s49, s43"); k(f"s_cbranch_scc1 {k.lab('wtr')}")
    if with_colsum:
        k("s_cmp_eq_u32 s46, 2"); k(f"s_cbranch_scc1 {k.lab('end')}")
        reduce_g(k, 20, 22); reduce_g(k, 21, 23)
        k(f"s_mul_i32 s47, s46, {F*4}"); k("s_lshl_b32 s48, s42, 7"); k("s_add_u32 s47, s47, s48"); k(f"s_add_u32 s47, s47, {CS3}")
        k("v_and_b32 v6, 15, v2"); k("v_lshlrev_b32 v6, 2, v6")
        k("buffer_store_dword v20, v6, s[24:27], s47 offen")
        k("buffer_store_dword v21, v6, s[24:27], s47 offen offset:64")
    k("s_endpgm")

def qstat_part(k):
    k.label("qstat")
    k("v_lshrrev_b32 v3, 4, v2"); k("v_add_u32 v3, s40, v3"); k("v_and_b32 v4, 15, v2")
    k("v_lshlrev_b32 v5, 3, v3"); k("v_mul_u32_u24 v3, 1280, v3"); k("v_lshl_add_u32 v3, v4, 4, v3")
    k("s_mov_b32 s52, 0x3f803f80"); k(f"s_mov_b32 s53, {f2u(1.0/640)}"); k(f"s_mov_b32 s54, {f2u(1e-5)}")
    NT = 4
    for t in range(NT):
        for m in range(5): k(f"buffer_load_dwordx4 {v(32+20*t+4*m,4)}, v3, s[20:23], 0 offen offset:{256*m}")
        k("v_add_u32 v3, 5120, v3")
    for t in range(NT):
        b = 32 + 20*t
        k(f"s_waitcnt vmcnt({5*(NT-1-t) + t})")
        k("v_mov_b32 v10, 0"); k("v_mov_b32 v11, 0")
        for r in range(20):
            k(f"v_dot2_f32_bf16 v10, v{b+r}, s52, v10"); k(f"v_dot2_f32_bf16 v11, v{b+r}, v{b+r}, v11")
        for rot in (8, 4, 2, 1):
            k(f"v_add_f32_dpp v10, v10, v10 row_ror:{rot} row_mask:0xf bank_mask:0xf")
            k(f"v_add_f32_dpp v11, v11, v11 row_ror:{rot} row_mask:0xf bank_mask:0xf")
        k("v_mul_f32 v10, s53, v10"); k("v_mul_f32 v11, s53, v11"); k("v_fma_f32 v11, -v10, v10, v11")
        k("v_max_f32 v11, 0, v11"); k("v_add_f32 v11, s54, v11"); k("v_rsq_f32 v12, v11"); k("v_mul_f32 v13, -v10, v12")
        k("buffer_store_dwordx2 v[12:13], v5, s[24:27], s55 offen")
        k("v_add_u32 v5, 32, v5")
    k.label("end")
    k("s_endpgm")

def k1():
    k = Kern("conv_kernel", vgpr=216, sgpr=64)
    k("s_cmp_ge_u32 s2, 256"); k(f"s_cbranch_scc1 {k.lab('end')}")
    k("s_cmp_ge_u32 s2, 160"); k(f"s_cbranch_scc1 {k.lab('prep')}")
    k(f"s_load_dwordx4 s[4:7], s[0:1], {A_H}")
    k(f"s_load_dwordx2 s[8:9], s[0:1], {WS}")
    k(f"s_load_dwordx2 s[10:11], s[0:1], {A_Q}")
    conv_part(k)
    k.label("prep")
    k(f"s_load_dwordx4 s[8:11], s[0:1], {B_W3}")
    k(f"s_load_dwordx2 s[12:13], s[0:1], {WS}")
    k(f"s_load_dwordx2 s[14:15], s[0:1], {A_Q}")
    k("v_lshrrev_b32 v1, 6, v0"); k("v_and_b32 v2, 63, v0"); k("v_readfirstlane_b32 s17, v1")
    k("s_sub_u32 s16, s2, 160"); k("s_lshl_b32 s16, s16, 2"); k("s_add_u32 s16, s16, s17")
    k("s_waitcnt lgkmcnt(0)")
    k.srd(24, 12, WS_END)
    k("s_mov_b32 s23, 0x20000"); k("s_mov_b32 s46, 2")
    k("s_cmp_ge_u32 s16, 108"); k(f"s_cbranch_scc1 {k.lab('p4')}")
    k("s_mov_b32 s20, s8"); k("s_mov_b32 s21, s9"); k(f"s_mov_b32 s22, {D*F*2}"); k(f"s_mov_b32 s44, {W3T}")
    k(f"s_mov_b32 s40, {F*2}")
    k("s_lshr_b32 s42, s16, 1"); k("s_and_b32 s46, s16, 1"); k("s_mul_i32 s41, s46, 10")
    k("s_mov_b32 s43, 10"); k("s_mov_b32 s45, 20")
    k(f"s_branch {k.lab('wprep')}")
    k.label("p4")
    k("s_cmp_ge_u32 s16, 228"); k(f"s_cbranch_scc1 {k.lab('pq')}")
    k("s_sub_u32 s16, s16, 108")
    k("s_mov_b32 s20, s10"); k("s_mov_b32 s21, s11"); k(f"s_mov_b32 s22, {D*F*2}"); k(f"s_mov_b32 s44, {W4T}")
    k("s_mov_b32 s40, 1280")
    k("s_mul_hi_u32 s42, s16, 0x2aaaaaab"); k("s_mul_i32 s41, s42, 6"); k("s_sub_u32 s41, s16, s41"); k("s_mul_i32 s41, s41, 9")
    k("s_mov_b32 s43, 9"); k("s_mov_b32 s45, 54")
    k(f"s_branch {k.lab('wprep')}")
    k.label("pq")
    k("s_cmp_ge_u32 s16, 356"); k(f"s_cbranch_scc1 {k.lab('end')}")
    k("s_sub_u32 s16, s16, 228"); k("s_lshl_b32 s40, s16, 4")
    k("s_mov_b32 s20, s14"); k("s_mov_b32 s21, s15"); k(f"s_mov_b32 s22, {MB}"); k(f"s_mov_b32 s55, {QS}")
    k(f"s_branch {k.lab('qstat')}")
    wprep_part(k, True)
    qstat_part(k)
    return k
```

```python
from ph_common import *
import ph_common as pc

NFIRST = 8
QL = 0; YL = 40960; STL = 81920; XL = 0
P2_LDS = 82944
TT, FQ = 24, 25

def p2_setup(k):
    k(f"s_and_b32 s{TT}, s2, 63"); k(f"s_lshr_b32 s{FQ}, s2, 6")

def p2_w_items(k):
    k(f"s_mul_i32 s26, s{FQ}, 10"); k("s_lshl_b32 s27, s10, 1"); k("s_add_u32 s26, s26, s27"); k("s_mul_i32 s26, s26, 20480")
    k(f"s_add_u32 s26, s26, {W1T}")
    k(f"s_mul_i32 s27, s{FQ}, 10"); k("s_lshr_b32 s28, s10, 1"); k("s_add_u32 s27, s27, s28"); k("s_add_u32 s27, s27, 8")
    k("s_mul_i32 s27, s27, 20480"); k(f"s_add_u32 s27, s27, {W1T}")
    k("s_add_u32 s28, s26, 20480")
    items = []
    for kb in range(20):
        for t in range(3):
            base = (26, 28, 27)[t]
            pre = [f"s_add_u32 s{base}, s{base}, 4096"] if (kb and kb % 4 == 0) else []
            items.append((pre + [f"buffer_load_dwordx4 {a((t*20+kb)*4,4)}, v4, s[12:15], s{base} offen offset:{1024*(kb%4)}"], ("W", kb)))
    return items

def p2_main(k, witems, tail=None, ysc=""):
    sc = pc.SC
    vm = VM(k)
    k("s_mul_i32 s30, s10, 160")
    k("v_lshrrev_b32 v6, 2, v1"); k("v_add_u32 v6, s30, v6"); k("v_lshlrev_b32 v6, 12, v6")
    k("v_and_b32 v7, 3, v1"); k("v_lshlrev_b32 v7, 4, v7")
    k(f"s_lshl_b32 s31, s{TT}, 6"); k(f"s_add_u32 s31, s31, {YT}")
    k("v_add_u32 v6, v6, v7")
    k("s_mul_i32 s32, s10, 10240"); k(f"s_add_u32 s33, s32, {YL}")
    for i in range(10):
        vm.issue([f"s_add_u32 m0, s33, {1024*i}", "s_add_u32 s31, s31, 65536" if i else "s_nop 0",
                  f"buffer_load_dwordx4 v6, s[12:15], s31 offen lds{ysc}"], "y")
    k("s_lshl_b32 s34, s10, 3")
    k("v_add_u32 v8, s34, v3"); k("v_and_b32 v9, 15, v8"); k("v_xor_b32 v9, v9, v2")
    k(f"s_lshl_b32 s29, s{TT}, 5")
    k("v_add_u32 v10, s29, v8"); k("v_mul_u32_u24 v10, 1280, v10")
    k("v_xor_b32 v11, 4, v9")
    k("v_lshl_add_u32 v8, v9, 4, v10"); k("v_lshl_add_u32 v9, v11, 4, v10"); k("v_add_u32 v9, 5120, v9")
    for a_ in range(2):
        for m in range(5):
            vm.issue([f"s_add_u32 m0, s32, {QL + a_*5120 + 768*m}", "s_nop 0",
                      f"buffer_load_dwordx4 v{8+a_}, s[16:19], 0 offen offset:{256*m} lds"], "q")
    k("v_add_u32 v10, s29, v2"); k("v_lshlrev_b32 v10, 3, v10"); k(f"s_mov_b32 s35, {QS}")
    vm.issue(["buffer_load_dwordx2 v[12:13], v10, s[12:15], s35 offen"], "qs")
    vm.issue(["buffer_load_dwordx2 v[14:15], v10, s[12:15], s35 offen offset:128"], "qs")
    wq = TQ(vm, witems)
    k("v_lshrrev_b32 v10, 2, v2"); k("v_mul_u32_u24 v10, 5120, v10")
    k("v_and_b32 v11, 3, v2"); k("v_lshl_add_u32 v10, v11, 8, v10")
    k("v_xor_b32 v11, v3, v2")
    k("s_mul_i32 s36, s10, 5")
    for i in range(5):
        k(f"s_add_u32 s37, s36, {i}")
        k("s_and_b32 s38, s37, 3"); k("s_lshl_b32 s38, s38, 2")
        k("s_lshr_b32 s37, s37, 2"); k("s_lshl_b32 s37, s37, 10")
        k(f"v_xor_b32 v{16+i}, s38, v11"); k(f"v_lshlrev_b32 v{16+i}, 4, v{16+i}"); k(f"v_add3_u32 v{16+i}, v{16+i}, v10, s37")
    k("v_bfe_u32 v10, v1, 2, 2"); k("v_lshl_add_u32 v10, v3, 3, v10"); k("v_lshlrev_b32 v10, 6, v10")
    k("v_and_b32 v11, 3, v1"); k("v_lshl_add_u32 v10, v11, 3, v10")
    k("v_add_u32 v21, s33, v10")
    k(f"s_and_b32 s37, s{FQ}, 1"); k("s_lshl_b32 s37, s37, 1"); k("s_sub_u32 s37, 1, s37")
    k(f"s_lshr_b32 s38, s{FQ}, 1"); k("s_lshl_b32 s37, s37, s38"); k("s_add_u32 s37, s37, s29")
    k(f"s_mul_i32 s39, s{FQ}, 5")
    k("v_lshlrev_b32 v11, 8, v3")
    k("s_add_u32 s46, s39, s10"); k("s_lshl_b32 s46, s46, 10"); k(f"s_add_u32 s46, s46, {HS}")
    k("s_add_u32 s47, s39, 4"); k("s_lshl_b32 s47, s47, 10"); k(f"s_add_u32 s47, s47, {HS}")
    k("s_lshr_b32 s38, s10, 1"); k("s_lshl_b32 s38, s38, 3"); k("s_add_u32 s47, s47, s38")
    k("s_and_b32 s38, s10, 1"); k("s_lshl_b32 s38, s38, 4")
    for dst, add, base, mask in ((240, "0", "s46", 40), (241, "16", "s46", 42), (242, "s38", "s47", 44)):
        k("v_add_u32 v10, s37, v2")
        if add != "0": k(f"v_add_u32 v10, {add}, v10")
        k(f"v_cmp_le_u32 s[{mask}:{mask+1}], s48, v10") if False else None
        k("v_cmp_le_u32 vcc, 0x800, v10"); k(f"s_mov_b64 s[{mask}:{mask+1}], vcc")
        k("v_and_b32 v10, 0x7ff, v10"); k("v_lshrrev_b32 v22, 4, v10"); k("v_mul_u32_u24 v22, 20480, v22")
        k("v_and_b32 v10, 15, v10"); k("v_lshl_add_u32 v10, v10, 4, v11")
        k(f"v_add3_u32 v{dst}, v10, v22, {base}")
    k(f"s_mov_b32 s50, {f2u(GELU_C0)}"); k(f"s_mov_b32 s51, {f2u(GELU_C1)}")
    k(f"s_mov_b32 s52, {f2u(1.0/640)}"); k(f"s_mov_b32 s53, {f2u(1e-5)}"); k("s_mov_b32 s54, 0xffff0000")
    wq.pop(NFIRST)
    k.stamp("issued")
    vm.wait(lambda t: t in ("y", "q", "qs"))
    k("s_barrier")
    k.stamp("loaded")
    Q = 32; Y = 72; H = 112; T = 192
    def reads(tb, i):
        f = tb*5 + i
        return [f"ds_read_b128 {v(Q+4*f,4)}, v{16+i} offset:{QL + tb*20480}",
                f"ds_read_b64_tr_b16 {v(Y+4*f,2)}, v21 offset:{2048*i + 32*tb}",
                f"ds_read_b64_tr_b16 {v(Y+4*f+2,2)}, v21 offset:{2048*i + 256 + 32*tb}"]
    frs = [(tb, i) for tb in range(2) for i in range(5)]
    for fr in frs[:4]:
        for ln in reads(*fr): k(ln)
    for r in range(22, 30): k(f"v_mov_b32 v{r}, 0")
    step = 0
    for fi, (tb, i) in enumerate(frs):
        f = tb*5 + i
        k(f"s_waitcnt lgkmcnt({3*(min(len(frs), fi + 4) - fi - 1)})")
        if fi + 4 < len(frs):
            for ln in reads(*frs[fi + 4]): k(ln)
        ab = 12 + 2*tb
        for r in range(4):
            h = H + 8*f + 2*r; qq = T + 4*(r % 2); yy = qq + 2
            k(f"v_lshlrev_b32 v{qq}, 16, v{Q+4*f+r}"); k(f"v_and_b32 v{qq+1}, s54, v{Q+4*f+r}")
            k(f"v_lshlrev_b32 v{yy}, 16, v{Y+4*f+r}"); k(f"v_and_b32 v{yy+1}, s54, v{Y+4*f+r}")
            k(f"v_pk_fma_f32 {v(h,2)}, {v(qq,2)}, {v(ab,2)}, {v(ab,2)} op_sel:[0,0,1] op_sel_hi:[1,0,1]")
            k(f"v_pk_fma_f32 {v(h,2)}, {v(h,2)}, {v(yy,2)}, {v(qq,2)}")
            k(f"v_pk_add_f32 {v(22+4*tb,2)}, {v(22+4*tb,2)}, {v(h,2)}")
            k(f"v_pk_fma_f32 {v(24+4*tb,2)}, {v(h,2)}, {v(h,2)}, {v(24+4*tb,2)}")
            step += 1
            if step % 2 == 0: wq.pop()
    k.stamp("p15")
    for b in (22, 24, 26, 28): k(f"v_add_f32 v{b}, v{b}, v{b+1}")
    k("v_lshlrev_b32 v10, 4, v2"); k("v_lshl_add_u32 v11, v3, 2, v10"); k("s_lshl_b32 s37, s10, 8"); k(f"s_add_u32 s37, s37, {STL}")
    k("v_permlane32_swap_b32 v22, v26"); k("v_permlane32_swap_b32 v24, v28")
    k("v_add_u32 v11, s37, v11"); k(f"v_add_u32 v10, {STL}, v10")
    k("v_add_f32 v22, v22, v26"); k("v_add_f32 v24, v24, v28")
    wq.pop()
    k("v_permlane16_swap_b32 v22, v24")
    k("v_add_f32 v22, v22, v24")
    k("ds_write_b32 v11, v22")
    wq.pop()
    k("s_waitcnt lgkmcnt(0)")
    k("s_barrier")
    for w in range(4): k(f"ds_read_b128 {v(T+4*w,4)}, v10 offset:{256*w}")
    wq.pop(2)
    k("s_waitcnt lgkmcnt(0)")
    k(f"v_pk_add_f32 {v(T,2)}, {v(T,2)}, {v(T+4,2)}"); k(f"v_pk_add_f32 {v(T+2,2)}, {v(T+2,2)}, {v(T+6,2)}")
    k(f"v_pk_add_f32 {v(T+8,2)}, {v(T+8,2)}, {v(T+12,2)}"); k(f"v_pk_add_f32 {v(T+10,2)}, {v(T+10,2)}, {v(T+14,2)}")
    k(f"v_pk_add_f32 {v(T,2)}, {v(T,2)}, {v(T+8,2)}"); k(f"v_pk_add_f32 {v(T+2,2)}, {v(T+2,2)}, {v(T+10,2)}")
    L = [[], []]
    for tb in range(2):
        t = T + 2*tb; b = 22 + 4*tb; x = T + 8 + 4*tb
        L[tb] = [f"v_mul_f32 v{t}, s52, v{t}", f"v_mul_f32 v{t+1}, s52, v{t+1}", f"v_fma_f32 v{t+1}, -v{t}, v{t}, v{t+1}",
                 f"v_max_f32 v{t+1}, 0, v{t+1}", f"v_add_f32 v{x}, s53, v{t+1}", f"v_rsq_f32 v{b}, v{x}",
                 f"v_mul_f32 v{b+1}, -v{t}, v{b}", f"v_mul_f32 v{x}, v{b}, v{b}", f"v_fma_f32 v{x}, v{x}, v{t+1}, s53",
                 f"v_rsq_f32 v{b+2}, v{x}"] + gelu_scale_consts(b+2, 244 + 2*tb, 248 + tb, 50, 51)
    for ln in interleave(*L): k(ln)
    k.stamp("stats")
    k("s_mul_i32 s37, s10, 5120"); k("v_add_u32 v11, s37, v4")
    n = 0
    for fi, (tb, i) in enumerate(frs):
        f = tb*5 + i; b = 22 + 4*tb
        for r in range(4):
            h = H + 8*f + 2*r; t = T + 2*(r % 2)
            k(f"v_pk_fma_f32 {v(t,2)}, {v(h,2)}, {v(b,2)}, {v(b,2)} op_sel:[0,0,1] op_sel_hi:[1,0,1]")
            k(f"v_cvt_pk_bf16_f32 v{Q+4*f+r}, v{t}, v{t+1}")
        k(f"ds_write_b128 v11, {v(Q+4*f,4)} offset:{XL + tb*20480 + 1024*i}")
        wq.pop()
    k(f"s_lshl_b32 s37, s{TT}, 1"); k("s_mul_i32 s37, s37, 20"); k("s_mul_i32 s38, s10, 5"); k("s_add_u32 s37, s37, s38"); k("s_lshl_b32 s37, s37, 10")
    for q4 in range(4):
        tb = q4 & 1
        if q4 < 3: k(f"s_cmp_lg_u32 s{FQ}, {q4}"); k(f"s_cbranch_scc1 {k.lab('st%d' % (q4+1))}")
        k(f"s_add_u32 s38, s37, {(XB if q4 < 2 else HT) + tb*20480}"); k("s_add_u32 s39, s38, 4096")
        for i in range(5):
            f = tb*5 + i; src = Q + 4*f
            if q4 >= 2:
                src = Y + 4*i
                for r in range(4): k(f"v_cvt_pk_bf16_f32 v{src+r}, v{H+8*f+2*r}, v{H+8*f+2*r+1}")
            k(f"buffer_store_dwordx4 {v(src,4)}, v4, s[12:15], s{39 if i==4 else 38} offen offset:{1024*i if i<4 else 0}{sc}")
        if q4 < 3: k(f"s_branch {k.lab('stdone')}"); k.label('st%d' % (q4+1))
    k.label("stdone")
    vm.ops += ["st"] * 5
    k("s_waitcnt lgkmcnt(0)")
    k("s_barrier")
    k.stamp("xchg")
    ACC = 112; BF = 192
    k("s_and_b32 s37, s10, 1"); k("s_mul_i32 s37, s37, 20480"); k("v_add_u32 v10, s37, v4")
    def breads(kb):
        b = BF + 12*(kb % 4)
        return [f"ds_read_b128 {v(b,4)}, v4 offset:{XL + 1024*kb}", f"ds_read_b128 {v(b+4,4)}, v4 offset:{XL + 20480 + 1024*kb}",
                f"ds_read_b128 {v(b+8,4)}, v10 offset:{XL + 1024*kb}"]
    for kb in range(3):
        for ln in breads(kb): k(ln)
    tq = TQ(vm, tail or [])
    for kb in range(20):
        b = BF + 12*(kb % 4); nb = min(20, kb + 3) - kb - 1
        vm.wait(lambda t: t == ("W", kb), f" lgkmcnt({3*nb})")
        nx = breads(kb + 3) if kb + 3 < 20 else []
        def mf(tile, t, breg):
            c = v(ACC + 4*tile, 4)
            k(f"v_mfma_f32_16x16x32_bf16 {c}, {a((t*20+kb)*4,4)}, {v(breg,4)}, {c if kb else 0}")
        mf(0, 0, b)
        if nx: k(nx[0])
        mf(1, 1, b)
        if nx: k(nx[1])
        mf(2, 0, b + 4)
        if nx: k(nx[2])
        mf(3, 1, b + 4)
        if len(wq): wq.pop(2)
        else: tq.pop()
        mf(4, 2, b + 8)
    tq.flush()
    k.stamp("gemm")
    k("s_bitcmp1_b32 s10, 0"); k("s_cselect_b64 s[56:57], -1, 0")
    k("v_cndmask_b32 v250, v244, v246, s[56:57]"); k("v_cndmask_b32 v251, v245, v247, s[56:57]"); k("v_cndmask_b32 v252, v248, v249, s[56:57]")
    PK = 40
    streams = []
    for tile in range(5):
        ab = (244, 244, 246, 246, 250)[tile]; ir = (248, 248, 249, 249, 252)[tile]; L = []
        for hf in range(2):
            L += gelu_fold(ACC + 4*tile + 2*hf, 64 + 2*tile, PK + 2*tile + hf, ab, ir)
        streams.append(L)
    for ln in interleave(*streams): k(ln)
    for tb in range(2):
        t0 = PK + 4*tb
        for r in range(4): k(f"v_cndmask_b32_e64 v{t0+r}, v{t0+r}, 0, s[{40+2*tb}:{41+2*tb}]")
        k(f"buffer_store_dwordx4 {v(t0,4)}, v{240+tb}, s[12:15], 0 offen{sc}")
    for r in range(2): k(f"v_cndmask_b32_e64 v{PK+8+r}, v{PK+8+r}, 0, s[44:45]")
    k(f"buffer_store_dwordx2 {v(PK+8,2)}, v242, s[12:15], 0 offen{sc}")

def w2_prefetch_items(k, sbase=60):
    k(f"s_bfe_u32 s{sbase}, s2, 0x10002"); k(f"s_mul_i32 s{sbase}, s{sbase}, {20*20480}")
    k(f"s_lshr_b32 s{sbase+1}, s2, 3"); k(f"s_lshl_b32 s{sbase+1}, s{sbase+1}, 2"); k(f"s_add_u32 s{sbase+1}, s{sbase+1}, s10")
    k(f"s_lshl_b32 s{sbase+1}, s{sbase+1}, 12"); k(f"s_add_u32 s{sbase}, s{sbase}, s{sbase+1}"); k(f"s_add_u32 s{sbase}, s{sbase}, {W2T}")
    return [([f"buffer_load_dwordx4 v[132:135], v4, s[12:15], s{sbase} offen offset:{1024*i}"], "pf") for i in range(4)]

def k2():
    k = Kern("g1_kernel", vgpr=256, agpr=240, sgpr=80)
    k("s_cmp_ge_u32 s2, 256"); k(f"s_cbranch_scc1 {k.lab('end')}")
    k.stamp_begin()
    prologue(k); p2_setup(k)
    wi = p2_w_items(k)
    tail = w2_prefetch_items(k)
    prologue_srd(k)
    p2_main(k, wi, tail=[(code_prefetch_group(k, 'g2_kernel', 'g3_kernel', 'a', 136), "pf")] + tail)
    k.stamp_flush(4, STAMP)
    k.label("end"); k("s_endpgm")
    return k
K2_LDS = P2_LDS
```

```python
from ph_common import *
import ph_common as pc

P3_LDS = 102400
T64, FC, ODD, FB, TBG, SA, SH = 24, 25, 26, 28, 27, 34, 35

def p3_setup(k):
    map_t64_fc(k, T64, FC, 36, 37)
    col5(k, FC, ODD, FB)
    k(f"s_lshl_b32 s{TBG}, s{T64}, 2"); k(f"s_add_u32 s{TBG}, s{TBG}, s10")
    resid_offsets(k, TBG, FB, ODD, SA, SH, 36)

def p3_pre(k):
    k("s_lshl_b32 s36, s10, 10")
    for l in range(5):
        k(f"s_mul_i32 s{40+l}, s{FB+l}, 20480"); k(f"s_add_u32 s{40+l}, s{40+l}, s36"); k(f"s_add_u32 s{40+l}, s{40+l}, {W2T}")
    k("s_mul_i32 s37, s10, 5120")
    G = []
    for c in range(5):
        for l in range(5):
            g = [f"s_add_u32 m0, s37, {c*20480 + l*1024}"]
            g.append(f"s_add_u32 s{40+l}, s{40+l}, 4096" if c else "s_nop 0")
            g.append(f"buffer_load_dwordx4 v4, s[12:15], s{40+l} offen lds")
            G.append(g)
    return G

def p3_main(k, nW_after=0, tail=None):
    sc = pc.SC
    X = 32; R = 112; ACC = 8; AF = 124; NR = 14
    k(f"s_mul_i32 s38, s{TBG}, 20480"); k(f"s_add_u32 s38, s38, {HS}")
    xl = []
    for kb in range(20):
        pre = ["s_add_u32 s38, s38, 4096"] if (kb and kb % 4 == 0) else []
        xl.append(pre + [f"buffer_load_dwordx4 {v(X+4*kb,4)}, v4, s[12:15], s38 offen offset:{1024*(kb%4)}{sc}"])
    XPRE = 8
    q = Queue(k, xl); q.pop(XPRE)
    k.stamp("issued")
    k(f"s_waitcnt vmcnt({XPRE})")
    k("s_barrier")
    k.stamp("wready")
    k("v_add_u32 v6, 0x10000, v4")
    def aread(slot, dst):
        off = slot * 1024
        return f"ds_read_b128 {v(dst,4)}, {'v6' if off >= 65536 else 'v4'} offset:{off % 65536}"
    seq = [(kb, l) for kb in range(20) for l in range(5)]
    PRE = 11
    for i in range(PRE): k(aread(seq[i][0]*5 + seq[i][1], AF + 4*(i % NR)))
    res = [[f"s_add_u32 s38, s{SA}, {XB}", f"buffer_load_dwordx4 {v(R,4)}, v4, s[12:15], s38 offen{sc}"],
           [f"buffer_load_dwordx4 {v(R+4,4)}, v4, s[12:15], s38 offen offset:1024{sc}"],
           [f"s_add_u32 s39, s{SH}, {XB}", f"buffer_load_dwordx2 {v(R+8,2)}, v4, s[12:15], s39 offen{sc}"]]
    rq = Queue(k, res); tq = Queue(k, tail or [])
    for i, (kb, l) in enumerate(seq):
        if l == 0:
            issued = q.n + rq.n + tq.n
            k(f"s_waitcnt vmcnt({min(63, issued - kb - 1)})")
        left = min(len(seq), i + PRE) - i - 1
        k(f"s_waitcnt lgkmcnt({left})")
        c = v(ACC + 4*l, 4)
        k(f"v_mfma_f32_16x16x32_bf16 {c}, {v(AF + 4*(i % NR),4)}, {v(X+4*kb,4)}, {c if kb else 0}")
        if i + PRE < len(seq):
            j = i + PRE; k(aread(seq[j][0]*5 + seq[j][1], AF + 4*(j % NR)))
        if l == 2:
            if len(q): q.pop()
            elif len(rq): rq.pop()
            else: tq.pop(2)
    tq.flush()
    k.stamp("gemm")
    k(f"s_waitcnt vmcnt({tq.n})")
    k("s_mov_b32 s36, 0xffff0000")
    U = 32
    for l in range(5):
        for hf in range(2):
            src = resid_src(R, l, hf); u = U + 4*l + 2*hf; z = ACC + 4*l + 2*hf
            k(f"v_lshlrev_b32 v{u}, 16, v{src}"); k(f"v_and_b32 v{u+1}, s36, v{src}")
            k(f"v_pk_add_f32 {v(z,2)}, {v(z,2)}, {v(u,2)}")
    PK = 60
    for i in range(10): k(f"v_cvt_pk_bf16_f32 v{PK+i}, v{ACC+2*i}, v{ACC+2*i+1}")
    k(f"s_add_u32 s38, s{SA}, {X1}"); k(f"s_add_u32 s39, s{SH}, {X1}")
    k(f"buffer_store_dwordx4 {v(PK,4)}, v4, s[12:15], s38 offen{sc}")
    k(f"buffer_store_dwordx4 {v(PK+4,4)}, v4, s[12:15], s38 offen offset:1024{sc}")
    k(f"buffer_store_dwordx2 {v(PK+8,2)}, v4, s[12:15], s39 offen{sc}")
    k(f"v_pk_mul_f32 v[72:73], {v(ACC,2)}, {v(ACC,2)}")
    k(f"v_pk_add_f32 v[70:71], {v(ACC,2)}, {v(ACC+2,2)}")
    k(f"v_pk_fma_f32 v[72:73], {v(ACC+2,2)}, {v(ACC+2,2)}, v[72:73]")
    for i in range(2, 10):
        z = ACC + 2*i
        k(f"v_pk_add_f32 v[70:71], v[70:71], {v(z,2)}")
        k(f"v_pk_fma_f32 v[72:73], {v(z,2)}, {v(z,2)}, v[72:73]")
    k("v_add_f32 v70, v70, v71"); k("v_add_f32 v71, v72, v73")
    reduce_g(k, 70, 74); reduce_g(k, 71, 75)
    k(f"s_lshl_b32 s36, s{TBG}, 4")
    k("v_add_u32 v6, s36, v2"); k("v_lshlrev_b32 v6, 6, v6")
    k(f"s_lshl_b32 s36, s{FC}, 3"); k(f"s_add_u32 s36, s36, {ST2}")
    k(f"buffer_store_dwordx2 v[70:71], v6, s[12:15], s36 offen{sc}")

def w3_prefetch_groups(k, sbase=46):
    k(f"s_bfe_u32 s{sbase}, s2, 0x10002"); k(f"s_mul_i32 s{sbase}, s{sbase}, {56*20480}")
    k(f"s_lshr_b32 s{sbase+1}, s2, 3"); k(f"s_lshl_b32 s{sbase+1}, s{sbase+1}, 2"); k(f"s_add_u32 s{sbase+1}, s{sbase+1}, s10")
    k(f"s_mul_i32 s{sbase+1}, s{sbase+1}, 9216"); k(f"s_add_u32 s{sbase}, s{sbase}, s{sbase+1}"); k(f"s_add_u32 s{sbase}, s{sbase}, {W3T}")
    G = []
    for i in range(9):
        pre = [f"s_add_u32 s{sbase}, s{sbase}, 4096"] if (i and i % 4 == 0) else []
        G.append(pre + [f"buffer_load_dwordx4 v[28:31], v4, s[12:15], s{sbase} offen offset:{1024*(i%4)}"])
    return G

def k3():
    k = Kern("g2_kernel", vgpr=192, agpr=0, sgpr=80)
    k("s_cmp_ge_u32 s2, 256"); k(f"s_cbranch_scc1 {k.lab('end')}")
    k.stamp_begin()
    prologue(k); p3_setup(k); prologue_srd(k)
    for g in p3_pre(k):
        for ln in g: k(ln)
    p3_main(k, tail=[code_prefetch_group(k, 'g3_kernel', 'g4_kernel', 'a', 184)] + w3_prefetch_groups(k))
    k.stamp_flush(4, STAMP)
    k.label("end"); k("s_endpgm")
    return k
K3_LDS = P3_LDS
```

```python
from ph_common import *
import ph_common as pc

CSL = 143360
P4_LDS = CSL + 512
T128, COL, NP, ODD, P0, TH, TBG = 24, 25, 26, 27, 28, 29, 30

def p4_setup(k):
    k("s_and_b32 s36, s2, 7"); k("s_lshr_b32 s37, s2, 3")
    k(f"s_and_b32 s{T128}, s36, 3"); k("s_and_b32 s38, s37, 3"); k("s_lshl_b32 s38, s38, 2"); k(f"s_add_u32 s{T128}, s{T128}, s38")
    k(f"s_lshr_b32 s{COL}, s36, 2"); k(f"s_lshl_b32 s{COL}, s{COL}, 3"); k("s_lshr_b32 s38, s37, 2"); k(f"s_add_u32 s{COL}, s{COL}, s38")
    k(f"s_mul_i32 s38, s{COL}, 7")
    k(f"s_cmp_eq_u32 s{COL}, 15"); k("s_cselect_b32 s38, 103, s38")
    k(f"s_cmp_ge_u32 s{COL}, 14"); k(f"s_cselect_b32 s{NP}, 2, 3")
    k(f"s_and_b32 s{ODD}, s{COL}, 1")
    k(f"s_add_u32 s{P0}, s38, s{ODD}")
    k(f"s_lshl_b32 s{TH}, s{NP}, 1"); k(f"s_add_u32 s{TH}, s{TH}, s38")
    k(f"s_cmp_eq_u32 s{ODD}, 1"); k(f"s_cselect_b32 s{TH}, s38, s{TH}")
    k(f"s_lshl_b32 s{TBG}, s{T128}, 3"); k("s_lshl_b32 s38, s10, 1"); k(f"s_add_u32 s{TBG}, s{TBG}, s38")

def p4_pre(k):
    k(f"s_mul_i32 s40, s{P0}, 20480"); k("s_mul_i32 s41, s10, 10240"); k("s_add_u32 s40, s40, s41"); k(f"s_add_u32 s40, s40, {W3T}")
    k(f"s_mul_i32 s42, s{TH}, 20480"); k("s_mul_i32 s43, s10, 5120"); k("s_add_u32 s42, s42, s43"); k(f"s_add_u32 s42, s42, {W3T}")
    G = []
    for j in range(3):
        for grp in range(3):
            for i in range(4 if grp < 2 else 2):
                pre = [f"s_add_u32 m0, s41, {j*40960 + grp*4096}", f"s_add_u32 s44, s40, {j*40960 + grp*4096}"] if i == 0 else []
                G.append(pre + [f"buffer_load_dwordx4 v4, s[12:15], s44 offen offset:{1024*i} lds"])
    for i in range(5):
        pre = []
        if i == 0: pre = [f"s_add_u32 m0, s43, {3*40960}", "s_mov_b32 s44, s42"]
        if i == 4: pre = [f"s_add_u32 m0, s43, {3*40960 + 4096}", "s_add_u32 s44, s42, 4096"]
        G.append(pre + [f"buffer_load_dwordx4 v4, s[12:15], s44 offen offset:{1024*(i%4)} lds"])
    G.append(["v_lshrrev_b32 v7, 4, v0", f"v_add_u32 v16, s{P0}, v7", "v_cmp_eq_u32 vcc, 6, v7", f"v_mov_b32 v17, s{TH}",
              "v_cndmask_b32 v16, v16, v17, vcc", "v_lshlrev_b32 v16, 6, v16", "v_lshl_add_u32 v16, v2, 2, v16",
              f"s_mov_b32 s45, {CS3}", "buffer_load_dword v18, v16, s[12:15], s45 offen"])
    G.append([f"s_mov_b32 s46, {CS3 + F*4}", "buffer_load_dword v19, v16, s[12:15], s46 offen"])
    return G

def p4_main(k, tail=None):
    sc = pc.SC
    k(f"s_lshl_b32 s36, s{TBG}, 4")
    k("v_add_u32 v6, s36, v2"); k("v_lshlrev_b32 v6, 6, v6"); k("v_lshl_add_u32 v6, v3, 4, v6")
    k(f"s_mov_b32 s37, {ST2}")
    k(f"buffer_load_dwordx4 v[8:11], v6, s[12:15], s37 offen{sc}")
    k(f"buffer_load_dwordx4 v[12:15], v6, s[12:15], s37 offen offset:1024{sc}")
    k(f"s_mul_i32 s47, s{TBG}, 20480"); k(f"s_add_u32 s47, s47, {X1}"); k("s_add_u32 s48, s47, 20480")
    xl = []
    for kb in range(20):
        for tb in range(2):
            pre = ["s_add_u32 s47, s47, 4096", "s_add_u32 s48, s48, 4096"] if (tb == 0 and kb and kb % 4 == 0) else []
            xl.append(pre + [f"buffer_load_dwordx4 {a((kb*2+tb)*4,4)}, v4, s[12:15], s{47+tb} offen offset:{1024*(kb%4)}{sc}"])
    XPRE = 14
    q = Queue(k, xl); q.pop(XPRE)
    k.stamp("issued")
    k(f"s_mov_b32 s50, {f2u(GELU_C0)}"); k(f"s_mov_b32 s51, {f2u(GELU_C1)}")
    k(f"s_mov_b32 s54, {f2u(1.0/640)}"); k(f"s_mov_b32 s55, {f2u(1e-5)}")
    k(f"s_waitcnt vmcnt({XPRE + 2})")
    k("v_add_f32 v18, v18, v19")
    k("v_lshlrev_b32 v19, 2, v0"); k(f"v_add_u32 v19, {CSL}, v19")
    k("v_cmp_gt_u32 vcc, 112, v0")
    k("s_and_saveexec_b64 s[56:57], vcc")
    k(f"s_cbranch_execz {k.lab('nocs')}")
    k("ds_write_b32 v19, v18")
    k.label("nocs")
    k("s_mov_b64 exec, s[56:57]")
    k(f"s_waitcnt vmcnt({XPRE}) lgkmcnt(0)")
    k("s_barrier")
    k.stamp("wready")
    st = []
    for tb in range(2):
        b = 8 + 4*tb; o = 16 + 2*tb
        st += [f"v_add_f32 v{o}, v{b}, v{b+2}", f"v_add_f32 v{o+1}, v{b+1}, v{b+3}"]
    for tb in range(2):
        for o in (16 + 2*tb, 17 + 2*tb):
            t_ = 8 + (o - 16)
            st += [f"v_mov_b32 v{t_}, v{o}", f"v_permlane32_swap_b32 v{o}, v{t_}", f"v_add_f32 v{o}, v{o}, v{t_}",
                   f"v_mov_b32 v{t_}, v{o}", f"v_permlane16_swap_b32 v{o}, v{t_}", f"v_add_f32 v{o}, v{o}, v{t_}"]
    for tb in range(2):
        o = 16 + 2*tb
        st += [f"v_mul_f32 v{o}, s54, v{o}", f"v_mul_f32 v{o+1}, s54, v{o+1}", f"v_fma_f32 v{o+1}, -v{o}, v{o}, v{o+1}",
               f"v_max_f32 v{o+1}, 0, v{o+1}", f"v_add_f32 v{o+1}, s55, v{o+1}", f"v_rsq_f32 v{o+1}, v{o+1}"]
        st += gelu_scale_consts(o+1, 168 + 2*tb, 172 + tb, 50, 51)
    sq = Queue(k, [[x] for x in st])
    ACC = 32; AF = 176; CS = 120; T = 24; PK = 148; NR = 14
    k("v_lshlrev_b32 v5, 4, v3"); k(f"v_add_u32 v5, {CSL}, v5")
    for l in range(7): k(f"ds_read_b128 {v(CS+4*l,4)}, v5 offset:{64*l}")
    k("v_add_u32 v6, 0x10000, v4"); k("v_add_u32 v7, 0x20000, v4")
    def accr(l, tb): return ACC + 16*(l//2) + 8*tb + 4*(l % 2) if l < 6 else ACC + 48 + 4*tb
    tq = Queue(k, tail or [])
    def gemm(tiles):
        seq = [(kb, l) for kb in range(20) for l in tiles]
        PRE = 11
        def rd(i):
            kb, l = seq[i]; off = l*20480 + kb*1024
            reg = "v4" if off < 65536 else ("v6" if off < 131072 else "v7")
            return f"ds_read_b128 {v(AF + 4*(i % NR),4)}, {reg} offset:{off % 65536}"
        k("s_waitcnt lgkmcnt(0)")
        for i in range(PRE): k(rd(i))
        for i, (kb, l) in enumerate(seq):
            if l == tiles[0]:
                k(f"s_waitcnt vmcnt({min(63, q.n + tq.n - 2*(kb+1))})")
                if len(tiles) == 7 and kb in (5, 10, 15) and k.diag is not None:
                    r = 82 + 2*(k.nst % 9); k(f"s_memtime s[{r}:{r+1}]"); k.names.append("kb%d" % kb); k.nst += 1
            left = min(len(seq), i + PRE) - i - 1
            k(f"s_waitcnt lgkmcnt({left})")
            for tb in range(2):
                c = v(accr(l, tb), 4)
                k(f"v_mfma_f32_16x16x32_bf16 {c}, {v(AF + 4*(i % NR),4)}, {a((kb*2+tb)*4,4)}, {c if kb else 0}")
                if tb == 0 and i + PRE < len(seq): k(rd(i + PRE))
            if len(q):
                if l in (tiles[0], tiles[3]): q.pop()
            elif l == tiles[0]: tq.pop()
            if kb >= 1: sq.pop()
    k(f"s_cmp_eq_u32 s{NP}, 2"); k(f"s_cbranch_scc1 {k.lab('g5')}")
    qsave = (list(q.g), q.n, list(tq.g), tq.n); ssave = list(sq.g)
    gemm([0, 1, 2, 3, 4, 5, 6]); q.flush(); tq.flush(); sq.flush()
    nt = tq.n
    k(f"s_branch {k.lab('gdone')}")
    k.label("g5")
    q.g, q.n, tq.g, tq.n = qsave; sq.g = ssave
    gemm([0, 1, 2, 3, 6]); q.flush(); tq.flush(); sq.flush()
    k.label("gdone")
    k.stamp("gemm")
    k(f"s_mul_i32 s58, s{TBG}, 55296"); k(f"s_lshr_b32 s59, s{P0}, 1"); k("s_lshl_b32 s59, s59, 10")
    k("s_add_u32 s58, s58, s59"); k(f"s_add_u32 s58, s58, {GG}"); k("s_add_u32 s59, s58, 55296")
    def epi(j):
        streams = []
        for tb in range(2):
            for s_ in (range(2) if j < 3 else [0]):
                L = []; l = 2*j + s_
                for hf in range(2):
                    z = accr(l, tb) + 2*hf; t = T + 2*len(streams); st = 16 + 2*tb; cs = CS + 4*l + 2*hf
                    first = [f"v_pk_fma_f32 {v(z,2)}, {v(cs,2)}, {v(st,2)}, {v(z,2)} op_sel:[0,0,0] op_sel_hi:[1,0,1] neg_lo:[1,0,0] neg_hi:[1,0,0]"]
                    L += gelu_fold(z, t, PK + 8*(j % 2) + 4*tb + 2*s_ + hf if j < 3 else PK + 4*tb + hf, 168 + 2*tb, 172 + tb, first)
                streams.append(L)
        for ln in interleave(*streams): k(ln)
        if j < 3:
            p = PK + 8*(j % 2)
            k(f"buffer_store_dwordx4 {v(p,4)}, v4, s[12:15], s58 offen offset:{1024*j}{sc}")
            k(f"buffer_store_dwordx4 {v(p+4,4)}, v4, s[12:15], s59 offen offset:{1024*j}{sc}")
    epi(0); epi(1)
    k(f"s_cmp_eq_u32 s{NP}, 2"); k(f"s_cbranch_scc1 {k.lab('noe2')}")
    epi(2)
    k.label("noe2")
    epi(3)
    k(f"s_mul_i32 s58, s{TBG}, 55296"); k(f"s_lshr_b32 s59, s{TH}, 1"); k("s_lshl_b32 s59, s59, 10")
    k("s_add_u32 s58, s58, s59"); k(f"s_lshl_b32 s59, s{ODD}, 3"); k("s_add_u32 s58, s58, s59"); k(f"s_add_u32 s58, s58, {GG}")
    k("s_add_u32 s59, s58, 55296")
    k(f"buffer_store_dwordx2 {v(PK,2)}, v4, s[12:15], s58 offen{sc}")
    k(f"buffer_store_dwordx2 {v(PK+4,2)}, v4, s[12:15], s59 offen{sc}")

def w4_prefetch_groups(k, sbase=60):
    k(f"s_bfe_u32 s{sbase}, s2, 0x10002"); k(f"s_mul_i32 s{sbase}, s{sbase}, {20*55296}")
    k(f"s_lshr_b32 s{sbase+1}, s2, 3"); k(f"s_lshl_b32 s{sbase+1}, s{sbase+1}, 2"); k(f"s_add_u32 s{sbase+1}, s{sbase+1}, s10")
    k(f"s_mul_i32 s{sbase+1}, s{sbase+1}, 9216"); k(f"s_add_u32 s{sbase}, s{sbase}, s{sbase+1}"); k(f"s_add_u32 s{sbase}, s{sbase}, {W4T}")
    G = []
    for i in range(9):
        pre = [f"s_add_u32 s{sbase}, s{sbase}, 4096"] if (i and i % 4 == 0) else []
        G.append(pre + [f"buffer_load_dwordx4 v[164:167], v4, s[12:15], s{sbase} offen offset:{1024*(i%4)}"])
    return G

PF4 = True
def k4():
    k = Kern("g3_kernel", vgpr=240, agpr=160, sgpr=80)
    k("s_cmp_ge_u32 s2, 256"); k(f"s_cbranch_scc1 {k.lab('end')}")
    k.stamp_begin()
    prologue(k); p4_setup(k); prologue_srd(k)
    for g in p4_pre(k):
        for ln in g: k(ln)
    p4_main(k, tail=[code_prefetch_group(k, 'g4_kernel', 'text_end', 'a', 232)] + w4_prefetch_groups(k))
    k.stamp_flush(4, STAMP)
    k.label("end"); k("s_endpgm")
    return k
K4_LDS = P4_LDS
```

```python
from ph_common import *
import ph_common as pc

P5_LDS = 61440
T64, FC, ODD, FB, TBG, SA, SH = 24, 25, 26, 28, 27, 34, 35
NWA = 64
WV = 232

def wreg(i, l):
    f = i*5 + l
    return a(4*f, 4) if f < NWA else v(WV + 4*(f - NWA), 4)

def p5_setup(k):
    map_t64_fc(k, T64, FC, 36, 37)
    col5(k, FC, ODD, FB)
    k(f"s_lshl_b32 s{TBG}, s{T64}, 2"); k(f"s_add_u32 s{TBG}, s{TBG}, s10")
    resid_offsets(k, TBG, FB, ODD, SA, SH, 36)

def p5_pre(k):
    k("s_mul_i32 s36, s10, 14336")
    for l in range(5):
        k(f"s_mul_i32 s{40+l}, s{FB+l}, 55296"); k(f"s_add_u32 s{40+l}, s{40+l}, s36"); k(f"s_add_u32 s{40+l}, s{40+l}, {W4T}")
    k("s_cmp_eq_u32 s10, 3"); k("s_cselect_b32 s45, 0x40000000, 4096")
    G = []
    for i in range(14):
        for l in range(5):
            pre = [f"s_add_u32 s{40+l}, s{40+l}, {'s45' if i == 12 else 4096}"] if (i and i % 4 == 0) else []
            G.append(pre + [f"buffer_load_dwordx4 {wreg(i,l)}, v4, s[12:15], s{40+l} offen offset:{1024*(i%4)}"])
    return G

def p5_main(k):
    sc = pc.SC
    R = 100
    G = []
    for base, reg in ((HT, R), (X1, R + 10)):
        G.append([f"s_add_u32 s36, s{SA}, {base}", f"buffer_load_dwordx4 {v(reg,4)}, v4, s[12:15], s36 offen{sc}"])
        G.append([f"buffer_load_dwordx4 {v(reg+4,4)}, v4, s[12:15], s36 offen offset:1024{sc}"])
        G.append([f"s_add_u32 s37, s{SH}, {base}", f"buffer_load_dwordx2 {v(reg+8,2)}, v4, s[12:15], s37 offen{sc}"])
    for g in G:
        for ln in g: k(ln)
    k("s_mul_i32 s36, s10, 14336")
    for j in range(4):
        k(f"s_add_u32 s37, s10, {j}"); k("s_and_b32 s37, s37, 3")
        k(f"s_lshl_b32 s38, s{T64}, 2"); k("s_add_u32 s37, s37, s38")
        k(f"s_mul_i32 s{46+j}, s37, 55296"); k(f"s_add_u32 s{46+j}, s{46+j}, s36"); k(f"s_add_u32 s{46+j}, s{46+j}, {GG}")
    k("s_cmp_eq_u32 s10, 3"); k("s_cselect_b32 s45, 0x40000000, 4096")
    XR = 124; NS = 4
    xl = []
    for i in range(14):
        for j in range(4):
            pre = [f"s_add_u32 s{46+j}, s{46+j}, {'s45' if i == 12 else 4096}"] if (i and i % 4 == 0) else []
            xl.append(pre + [f"buffer_load_dwordx4 {v(XR + 16*(i % NS) + 4*j,4)}, v4, s[12:15], s{46+j} offen offset:{1024*(i%4)}{sc}"])
    q = Queue(k, xl); q.pop(12)
    k.stamp("issued")
    ACC = 16; U = 8
    k("s_waitcnt vmcnt(12)")
    k("s_mov_b32 s36, 0xffff0000")
    for l in range(5):
        for hf in range(2):
            z = ACC + 4*l + 2*hf
            k(f"v_lshlrev_b32 v{z}, 16, v{resid_src(R,l,hf)}"); k(f"v_and_b32 v{z+1}, s36, v{resid_src(R,l,hf)}")
            k(f"v_lshlrev_b32 v{U}, 16, v{resid_src(R+10,l,hf)}"); k(f"v_and_b32 v{U+1}, s36, v{resid_src(R+10,l,hf)}")
            k(f"v_pk_add_f32 {v(z,2)}, {v(z,2)}, {v(U,2)}")
    for i in range(14):
        k(f"s_waitcnt vmcnt({q.n - 4*(i+1)})")
        if i in (0, 7): k.stamp("step%d" % i)
        n = 0
        for j in range(4):
            for l in range(5):
                c = v(ACC + 20*j + 4*l, 4)
                k(f"v_mfma_f32_16x16x32_bf16 {c}, {wreg(i,l)}, {v(XR + 16*(i % NS) + 4*j,4)}, {c if (i or j == 0) else 0}")
                n += 1
                if n % 5 == 3 and q.n < 4*(i + NS): q.pop()
    k.stamp("main")
    for j in range(1, 4):
        k(f"s_add_u32 s37, s10, {j}"); k("s_and_b32 s37, s37, 3"); k("s_mul_i32 s37, s37, 15360")
        k(f"s_add_u32 s37, s37, {(j-1)*5120}")
        k(f"v_add_u32 v{5+j}, s37, v4")
    for j in range(1, 4):
        for l in range(5):
            k(f"ds_write_b128 v{5+j}, {v(ACC + 20*j + 4*l,4)} offset:{1024*l}")
    k("s_mul_i32 s37, s10, 15360")
    k("v_add_u32 v9, s37, v4")
    k(f"s_lshl_b32 s37, s{TBG}, 4")
    k("v_add_u32 v6, s37, v2"); k("v_mul_u32_u24 v6, 1280, v6"); k("v_lshl_add_u32 v6, v3, 4, v6")
    k(f"s_lshr_b32 s37, s{FB}, 1"); k("s_lshl_b32 s37, s37, 6")
    k(f"s_lshr_b32 s38, s{FB+4}, 1"); k("s_lshl_b32 s38, s38, 6"); k(f"s_lshl_b32 s39, s{ODD}, 3"); k("s_add_u32 s38, s38, s39")
    k("s_waitcnt lgkmcnt(0)")
    k("s_barrier")
    k.stamp("redbar")
    P = 36; PK = 100
    for j in range(3):
        for l in range(5):
            k(f"ds_read_b128 {v(P + 20*j + 4*l,4)}, v9 offset:{j*5120 + 1024*l}")
    for j in range(3):
        k(f"s_waitcnt lgkmcnt({10 - 5*j})")
        for i in range(10): k(f"v_pk_add_f32 {v(ACC+2*i,2)}, {v(ACC+2*i,2)}, {v(P+20*j+2*i,2)}")
    for i in range(10): k(f"v_cvt_pk_bf16_f32 v{PK+i}, v{ACC+2*i}, v{ACC+2*i+1}")
    k(f"buffer_store_dwordx4 {v(PK,4)}, v6, s[20:23], s37 offen")
    k(f"buffer_store_dwordx4 {v(PK+4,4)}, v6, s[20:23], s37 offen offset:64")
    k(f"buffer_store_dwordx2 {v(PK+8,2)}, v6, s[20:23], s38 offen")

def k5():
    k = Kern("g4_kernel", vgpr=256, agpr=256, sgpr=80)
    k("s_cmp_ge_u32 s2, 256"); k(f"s_cbranch_scc1 {k.lab('end')}")
    k.stamp_begin()
    prologue(k); p5_setup(k); prologue_srd(k)
    for g in p5_pre(k):
        for ln in g: k(ln)
    p5_main(k)
    k.stamp_flush(4, STAMP)
    k.label("end"); k("s_endpgm")
    return k
K5_LDS = P5_LDS
```

```python
from asmlib import *
from layout import *
from common import *

def prologue(k):
    k(f"s_load_dwordx2 s[4:5], s[0:1], {WS}")
    k(f"s_load_dwordx2 s[6:7], s[0:1], {OUT}")
    k(f"s_load_dwordx2 s[8:9], s[0:1], {A_Q}")
    k("v_lshrrev_b32 v5, 6, v0")
    k("v_and_b32 v1, 63, v0")
    k("v_readfirstlane_b32 s10, v5")
    k("v_and_b32 v2, 15, v1"); k("v_lshrrev_b32 v3, 4, v1"); k("v_lshlrev_b32 v4, 4, v1")

def prologue_srd(k):
    k("s_waitcnt lgkmcnt(0)")
    k.srd(12, 4, WS_END); k.srd(16, 8, MB); k.srd(20, 6, MB)

def map_t64_fc(k, st, sf, t0, t1):
    k(f"s_and_b32 s{t0}, s2, 3"); k(f"s_lshl_b32 s{t0}, s{t0}, 3"); k(f"s_lshr_b32 s{t1}, s2, 3")
    k(f"s_and_b32 s{st}, s{t1}, 7"); k(f"s_add_u32 s{st}, s{st}, s{t0}")
    k(f"s_bfe_u32 s{t0}, s2, 0x10002"); k(f"s_lshl_b32 s{t0}, s{t0}, 2"); k(f"s_lshr_b32 s{sf}, s{t1}, 3"); k(f"s_add_u32 s{sf}, s{sf}, s{t0}")

def col5(k, sfc, sodd, sb):
    k(f"s_and_b32 s{sodd}, s{sfc}, 1")
    k(f"s_mul_i32 s{sb+5}, s{sfc}, 5")
    for l in range(4):
        k(f"s_add_u32 s{sb+l}, s{sb+5}, s{sodd}")
        if l: k(f"s_add_u32 s{sb+l}, s{sb+l}, {l}")
    k(f"s_cmp_eq_u32 s{sodd}, 0")
    k(f"s_cselect_b32 s{sb+4}, 4, 0")
    k(f"s_add_u32 s{sb+4}, s{sb+4}, s{sb+5}")

def resid_offsets(k, stb, sfb, sodd, sA, sH, tmp):
    k(f"s_mul_i32 s{tmp}, s{stb}, 20480")
    k(f"s_lshr_b32 s{sA}, s{sfb}, 1"); k(f"s_lshl_b32 s{sA}, s{sA}, 10"); k(f"s_add_u32 s{sA}, s{sA}, s{tmp}")
    k(f"s_lshr_b32 s{sH}, s{sfb+4}, 1"); k(f"s_lshl_b32 s{sH}, s{sH}, 10"); k(f"s_add_u32 s{sH}, s{sH}, s{tmp}")
    k(f"s_lshl_b32 s{tmp}, s{sodd}, 3"); k(f"s_add_u32 s{sH}, s{sH}, s{tmp}")

def resid_src(R, l, hf):
    return (R + 4*(l//2) + 2*(l % 2) + hf) if l < 4 else (R + 8 + hf)

class Queue:
    def __init__(self, k, groups): self.k = k; self.g = list(groups); self.n = 0
    def pop(self, cnt=1):
        for _ in range(cnt):
            if not self.g: return
            grp = self.g.pop(0)
            u = self.k.uniq("u") if any("@U@" in ln for ln in grp) else ""
            for ln in grp: self.k(ln.replace("@U@", u))
            self.n += 1
    def flush(self): self.pop(len(self.g))
    def __len__(self): return len(self.g)

SC = ""
SS = ""


def code_prefetch_group(k, first, last, tag, dummy, sreg=56):
    lab = k.lab("pc" + tag + "@U@")
    if first is None: first = lab
    return [f"s_getpc_b64 s[{sreg}:{sreg+1}]", lab + ":",
            f"s_add_u32 s{sreg}, s{sreg}, {first} - {lab}", f"s_addc_u32 s{sreg+1}, s{sreg+1}, 0",
            f"s_lshr_b32 s{sreg+2}, s2, 3", f"s_lshl_b32 s{sreg+2}, s{sreg+2}, 12",
            f"v_lshlrev_b32 v{dummy}, 4, v0", f"v_add_u32 v{dummy}, s{sreg+2}, v{dummy}",
            f"v_min_u32 v{dummy}, {last} - {first} - 16, v{dummy}",
            f"v_mov_b32 v{dummy+1}, s{sreg+1}", f"v_add_co_u32 v{dummy}, vcc, s{sreg}, v{dummy}",
            f"v_addc_co_u32 v{dummy+1}, vcc, 0, v{dummy+1}, vcc",
            f"global_load_dwordx4 {v(dummy+2,4)}, {v(dummy,2)}, off"]

class VM:
    def __init__(self, k): self.k = k; self.ops = []
    def issue(self, group, tag):
        u = self.k.uniq("u") if any("@U@" in ln for ln in group) else ""
        for ln in group: self.k(ln.replace("@U@", u))
        self.ops.append(tag)
    def count_after(self, pred):
        last = max(i for i, t in enumerate(self.ops) if pred(t))
        return len(self.ops) - 1 - last
    def wait(self, pred, extra=""):
        self.k(f"s_waitcnt vmcnt({min(63, self.count_after(pred))}){extra}")

class TQ:
    def __init__(self, vm, items): self.vm = vm; self.items = list(items)
    def pop(self, n=1):
        for _ in range(n):
            if not self.items: return
            g, t = self.items.pop(0); self.vm.issue(g, t)
    def flush(self): self.pop(len(self.items))
    def __len__(self): return len(self.items)
```

```python
import sys
from asmlib import *
from layout import *
from k0 import k0
K0_GRID = 340
from k1 import k1, K1_LDS
from p2 import k2, K2_LDS
from p3 import k3, K3_LDS
from p4 import k4, K4_LDS
from p5 import k5, K5_LDS
HEADER = """; Fused H3 (shift conv, gated long conv) + S-MLP mixer block, six dependent launches.
"""
def build(extra_empty=0):
    ks = [k0(), k1(), k2(), k3(), k4(), k5()]
    launches = [("prep0_kernel", K0_GRID, 256, 81920), ("conv_kernel", 256, 256, K1_LDS), ("g1_kernel", 256, 256, K2_LDS),
                ("g2_kernel", 256, 256, K3_LDS), ("g3_kernel", 256, 256, K4_LDS), ("g4_kernel", 256, 256, K5_LDS)]
    if extra_empty:
        e = Kern("noop_kernel", vgpr=8, sgpr=16); e("s_endpgm"); ks.append(e)
        launches += [("noop_kernel", 256, 256, 0)] * extra_empty
    return build_file(ks, launches, HEADER)
def build_diag():
    import asmlib
    for i, n in enumerate(["prep0_kernel","conv_kernel","g1_kernel","g2_kernel","g3_kernel","g4_kernel"]): asmlib.DIAG[n] = i
    t = build()
    asmlib.DIAG.clear()
    return t
NAMES = ["prep0_kernel","conv_kernel","g1_kernel","g2_kernel","g3_kernel","g4_kernel"]
def write_meta(path):
    import json, asmlib
    for i, n in enumerate(NAMES): asmlib.DIAG[n] = i
    m = {}
    for f, n in ((k0, 320), (k1, 160), (k2, 256), (k3, 256), (k4, 256), (k5, 256)):
        k = f(); m[k.name] = {"names": k.names, "nwg": n}
    asmlib.DIAG.clear()
    json.dump(m, open(path, "w"))
    return m
def build_dbgt():
    import asmlib
    for i, n in enumerate(["prep0_kernel","conv_kernel","g1_kernel","g2_kernel","g3_kernel","g4_kernel"]): asmlib.DBGT[n] = i
    t = build()
    asmlib.DBGT.clear()
    return t
if __name__ == "__main__":
    if len(sys.argv) > 2 and sys.argv[2] == "dbgt":
        open(sys.argv[1], "w").write(build_dbgt()); sys.exit(0)
    if len(sys.argv) > 2 and sys.argv[2] == "diag":
        open(sys.argv[1], "w").write(build_diag()); sys.exit(0)
    out = sys.argv[1] if len(sys.argv) > 1 else "pipe.s"
    open(out, "w").write(build(int(sys.argv[2]) if len(sys.argv) > 2 else 0))
```

```python
import re

def v(a, n=1): return f"v{a}" if n == 1 else f"v[{a}:{a+n-1}]"
def a(x, n=1): return f"a{x}" if n == 1 else f"a[{x}:{x+n-1}]"
def s(a_, n=1): return f"s{a_}" if n == 1 else f"s[{a_}:{a_+n-1}]"

_REG = re.compile(r"(?<![\w.])([vas])(?:(\d+)\b|\[(\d+):(\d+)\])")

def regs_in(text):
    out = []
    for m in _REG.finditer(text):
        k = m.group(1)
        if m.group(2) is not None:
            out.append((k, int(m.group(2)), int(m.group(2))))
        else:
            out.append((k, int(m.group(3)), int(m.group(4))))
    return out

def expand(rs):
    o = set()
    for k, lo, hi in rs:
        for i in range(lo, hi + 1): o.add((k, i))
    return o

TRANS = ("v_exp_f32", "v_log_f32", "v_rcp_f32", "v_rsq_f32", "v_sqrt_f32", "v_sin_f32", "v_cos_f32", "v_rcp_iflag_f32")

class Ins:
    __slots__ = ("text", "op", "kind", "defs", "uses", "srcc", "sdefs", "raw", "dpp", "wide_store", "vccdef", "vccuse", "m0def", "m0use", "label", "target", "states", "execdef")
    def __init__(self, text):
        self.text = text
        t = text.split(";")[0].strip()
        self.raw = t
        self.label = None; self.target = None
        self.defs = set(); self.uses = set(); self.srcc = set(); self.sdefs = set()
        self.dpp = False; self.wide_store = False; self.vccdef = False; self.vccuse = False
        self.m0def = False; self.m0use = False; self.states = 1; self.execdef = False
        if t.endswith(":") and " " not in t:
            self.kind = "label"; self.label = t[:-1]; self.op = ""; self.states = 0; return
        if not t or t.startswith("."):
            self.kind = "dir"; self.op = ""; self.states = 0; return
        parts = t.split(None, 1)
        self.op = op = parts[0]
        rest = parts[1] if len(parts) > 1 else ""
        ops = [x.strip() for x in self._split(rest)]
        if op == "s_nop":
            self.kind = "nop"; self.states = int(ops[0], 0) + 1; return
        if op.startswith("s_cbranch") or op == "s_branch":
            self.kind = "branch"; self.target = ops[0]; return
        if op.startswith("v_mfma"):
            self.kind = "mfma"
            self.defs = expand(regs_in(ops[0]))
            self.uses = expand(regs_in(ops[1])) | expand(regs_in(ops[2]))
            self.srcc = expand(regs_in(ops[3]))
            return
        if op.startswith("v_"):
            self.kind = "trans" if op.replace("_e32", "").replace("_e64", "") in TRANS else "valu"
            self.dpp = ("dpp" in op) or ("row_" in rest) or ("quad_perm" in rest) or ("wave_" in rest) or ("row_bcast" in rest)
            if op.startswith("v_cmp"):
                d = ops[0]
                if d == "vcc": self.vccdef = True
                else: self.sdefs = expand(regs_in(d))
                for o in ops[1:]: self.uses |= expand(regs_in(o))
                if op.startswith("v_cmpx"): self.execdef = True
                return
            if op.startswith("v_readfirstlane") or op.startswith("v_readlane"):
                self.sdefs = expand(regs_in(ops[0]))
                for o in ops[1:]: self.uses |= expand(regs_in(o))
                self.kind = "readlane"
                return
            if op.startswith("v_permlane") and "swap" in op:
                self.defs = expand(regs_in(ops[0])) | expand(regs_in(ops[1]))
                self.uses = set(self.defs)
                self.kind = "permlane"
                return
            self.defs = expand(regs_in(ops[0]))
            k = 1
            if "_co_" in op or op.startswith("v_div_scale") or op.startswith("v_mad_u64") or op.startswith("v_mad_i64"):
                if ops[1] == "vcc": self.vccdef = True
                else: self.sdefs = expand(regs_in(ops[1]))
                k = 2
            for o in ops[k:]:
                self.uses |= expand(regs_in(o))
                if o == "vcc": self.vccuse = True
            if op.startswith("v_cndmask") and len(ops) == 3: self.vccuse = True
            if op.startswith("v_fmac") or op.startswith("v_mac") or op.startswith("v_pk_fmac") or op.startswith("v_dot2c") or op.startswith("v_writelane"):
                self.uses |= self.defs
            if "op_sel" in rest and "pk_" not in op: pass
            return
        if op.startswith("buffer_") or op.startswith("global_"):
            self.kind = "vmem"
            allr = expand(regs_in(rest))
            if "lds" in rest.split():
                self.m0use = True; self.uses = allr
            elif "_load" in op:
                self.defs = expand(regs_in(ops[0]))
                for o in ops[1:]: self.uses |= expand(regs_in(o))
            elif "atomic" in op:
                self.uses = allr
                if "sc0" in rest.split(): self.defs = expand(regs_in(ops[0]))
            else:
                self.uses = allr
                if "x4" in op or "x3" in op:
                    if op.startswith("buffer_"): self.wide_store = expand(regs_in(ops[0]))
                    else: self.wide_store = expand(regs_in(ops[1]))
            return
        if op.startswith("ds_"):
            self.kind = "ds"
            if op.startswith("ds_read") or op.startswith("ds_bpermute") or op.startswith("ds_permute") or op.startswith("ds_swizzle"):
                self.defs = expand(regs_in(ops[0]))
                for o in ops[1:]: self.uses |= expand(regs_in(o))
            else:
                self.uses = expand(regs_in(rest))
            return
        if op.startswith("s_"):
            self.kind = "salu"
            if op.startswith("s_cmp") or op in ("s_waitcnt", "s_barrier", "s_endpgm", "s_setprio", "s_sleep"):
                for o in ops: self.uses |= expand(regs_in(o))
                return
            if ops:
                d = ops[0]
                if d == "m0": self.m0def = True
                elif d == "exec": pass
                elif d == "vcc": pass
                else: self.sdefs = expand(regs_in(d))
                for o in ops[1:]: self.uses |= expand(regs_in(o))
            return
        self.kind = "other"
    @staticmethod
    def _split(rest):
        out = []; depth = 0; cur = ""
        for ch in rest:
            if ch == "[": depth += 1
            if ch == "]": depth -= 1
            if ch == "," and depth == 0:
                out.append(cur); cur = ""
            else: cur += ch
        if cur.strip(): out.append(cur)
        return out

VALUISH = ("valu", "trans", "readlane", "permlane")

def need(prev, cur):
    n = 0
    pv = prev.kind in VALUISH
    cv = cur.kind in VALUISH
    vec = lambda st: {r for r in st if r[0] in "va"}
    if pv and prev.kind != "readlane":
        d = vec(prev.defs)
        if cur.kind == "mfma" and d & (cur.uses | cur.srcc): n = max(n, 2)
        if cur.kind == "readlane" and d & cur.uses: n = max(n, 1)
        if cur.kind == "permlane" and d & cur.uses: n = max(n, 2)
        if cur.dpp and d & cur.uses: n = max(n, 2)
        if prev.kind == "trans" and cv and cur.kind != "trans" and d & cur.uses: n = max(n, 1)
        if prev.kind == "trans" and cur.kind == "trans" and d & cur.uses: n = max(n, 1)
    if pv:
        sd = prev.sdefs
        if sd:
            if cur.kind == "vmem" and sd & cur.uses: n = max(n, 5)
            if cv and sd & cur.uses: n = max(n, 4 if cur.kind == "readlane" else 2)
            if cur.kind in ("salu", "branch") and sd & cur.uses: n = max(n, 4)
            if cur.kind == "mfma" and sd & cur.uses: n = max(n, 2)
        if prev.vccdef and cv and cur.vccuse: n = max(n, 2)
        if prev.vccdef and cur.kind in ("salu", "branch") and ("vcc" in cur.raw): n = max(n, 5)
        if prev.execdef and (cv or cur.kind == "mfma"): n = max(n, 5)
    if prev.op.startswith("v_dot"):
        d = vec(prev.defs)
        if d & (cur.uses | cur.defs | cur.srcc):
            same_acc = cur.op == prev.op and cur.defs == prev.defs and cur.raw.split(",")[-1].strip() == prev.raw.split(None,1)[1].split(",")[0].strip() \
                       and not (d & (expand(regs_in(cur.raw.split(",")[1])) | expand(regs_in(cur.raw.split(",")[2]))))
            if not same_acc: n = max(n, 3)
    if prev.kind == "mfma":
        big = "32x32" in prev.op
        d = prev.defs
        if cur.kind == "mfma":
            if d & cur.uses: n = max(n, 12 if big else 8)
            if d & cur.srcc and d != cur.srcc: n = max(n, 10 if big else 6)
            if d & cur.defs and d != cur.srcc: n = max(n, 12 if big else 8)
        elif cv or cur.kind in ("vmem", "ds"):
            if d & (cur.uses | cur.defs): n = max(n, 12 if big else 8)
        if cv and prev.srcc & vec(cur.defs): n = max(n, 7 if big else 3)
    if prev.m0def and cur.m0use: n = max(n, 1)
    if prev.wide_store and (cv or cur.kind in ("ds", "vmem", "mfma")) and prev.wide_store & vec(cur.defs):
        n = max(n, 2)
    return n

MAXD = 13

def pad_hazards(lines, verbose=False):
    ins = [Ins(l) for l in lines]
    labels = {x.label: i for i, x in enumerate(ins) if x.kind == "label"}
    inserted = 0
    out = []
    def required(hist, cur):
        dist = 0; worst = 0
        for p in reversed(hist):
            if p.states == 0: continue
            r = need(p, cur) - dist
            if r > worst: worst = r
            dist += p.states
            if dist >= MAXD: break
        return worst
    def mk_nop(k):
        res = []
        while k > 0:
            t = min(k, 16); res.append(Ins(f"  s_nop {t-1}")); k -= t
        return res
    for i, x in enumerate(ins):
        if x.states:
            r = required(out, x)
            if r > 0:
                if verbose: print(f"pad {r} before: {x.raw}")
                out += mk_nop(r); inserted += r
        if x.kind == "branch" and x.target in labels:
            j = labels[x.target]; dist_pad = 0
            fake = out + [x]
            worst = 0; k = j; walked = []
            cnt = 0
            while k < len(ins) and cnt < MAXD:
                y = ins[k]
                if y.states:
                    r = required(fake + walked, y)
                    worst = max(worst, r)
                    walked.append(y); cnt += y.states
                    if y.kind == "branch" and y.op == "s_branch": break
                    if y.op == "s_endpgm": break
                k += 1
            if worst > 0:
                if verbose: print(f"pad {worst} before branch: {x.raw}")
                out += mk_nop(worst); inserted += worst
        out.append(x)
    return [o.text for o in out], inserted

DIAG = {}
DBGT = {}
class Kern:
    def __init__(self, name, vgpr=256, agpr=0, sgpr=102):
        self.name = name; self.L = []; self.vgpr = vgpr; self.agpr = agpr; self.sgpr = sgpr
        if name in DBGT:
            self.dbgidx = DBGT[name]; self.sgpr = 102
        if name in DIAG:
            self.diag = DIAG[name]; self.sgpr = 102
        self._n = 0
    def __call__(self, t):
        for ln in t.split("\n"):
            ln = ln.strip()
            if not ln: continue
            self.L.append(ln if (ln.endswith(":") and " " not in ln) else "  " + ln)
    def lab(self, n): return f"{self.name}_{n}"
    def label(self, n): self.L.append(self.lab(n) + ":")
    def uniq(self, base):
        self._n += 1; return f"{base}{self._n}"
    diag = None
    nst = 0
    only = None
    def stamp(self, name=""):
        if self.diag is None: return
        if self.only is not None and name not in self.only: return
        self("s_memtime s[98:99]")
        self("s_waitcnt lgkmcnt(0)")
        self(f"s_mov_b32 s{86 + self.nst}, s98")
        self.names = getattr(self, "names", []) + [name]
        self.nst += 1
        assert self.nst <= 12
    def stamp_begin(self):
        self.dbg_begin()
        if self.diag is None: return
        self("s_memrealtime s[100:101]")
        self.stamp("begin")
    def stamp_flush(self, ws_lo, base):
        self.dbg_end()
        if self.diag is None: return
        self.stamp("end")
        self("s_memrealtime s[98:99]")
        self("s_waitcnt vmcnt(0) lgkmcnt(0)")
        self(f"s_load_dwordx2 s[60:61], s[0:1], 104")
        self("s_waitcnt lgkmcnt(0)")
        self(f"s_add_u32 s60, s60, {base}"); self("s_addc_u32 s61, s61, 0"); self("s_mov_b32 s62, 0x1000000"); self("s_mov_b32 s63, 0x20000")
        self(f"s_add_u32 s64, s2, {self.diag*512}"); self("s_lshl_b32 s64, s64, 2")
        self("v_lshrrev_b32 v1, 6, v0"); self("s_nop 1"); self("v_readfirstlane_b32 s65, v1"); self("s_nop 4"); self("s_add_u32 s64, s64, s65"); self("s_lshl_b32 s64, s64, 7")
        self("v_mov_b32 v1, 0")
        for i in range(self.nst):
            self(f"v_mov_b32 v2, s{86+i}")
            self(f"buffer_store_dword v2, v1, s[60:63], s64 offen offset:{4*i}")
            self("s_nop 1")
        self("v_mov_b32 v2, s100"); self("buffer_store_dword v2, v1, s[60:63], s64 offen offset:120"); self("s_nop 1")
        self("v_mov_b32 v2, s98"); self("buffer_store_dword v2, v1, s[60:63], s64 offen offset:124")
    dbgidx = None
    def dbg_begin(self):
        if self.dbgidx is None: return
        self("s_memrealtime s[100:101]")
    def dbg_end(self):
        if self.dbgidx is None: return
        i = self.dbgidx
        self("s_waitcnt vmcnt(0) lgkmcnt(0)")
        self("s_memrealtime s[98:99]")
        self("s_load_dwordx2 s[76:77], s[0:1], 96")
        self("s_waitcnt lgkmcnt(0)")
        self(f"s_add_u32 s76, s76, {512*(5-i)}"); self("s_addc_u32 s77, s77, 0"); self("s_mov_b32 s78, 256"); self("s_mov_b32 s79, 0x20000")
        self("v_mov_b32 v1, 0"); self("v_mov_b32 v2, s98"); self("v_not_b32 v3, s100")
        lab = self.lab(self.uniq("nodbg"))
        self("s_and_b32 s75, s2, 15"); self("s_cmp_lg_u32 s75, 0"); self(f"s_cbranch_scc1 {lab}")
        self("v_cmp_eq_u32 vcc, 0, v0")
        self("s_and_saveexec_b64 s[72:73], vcc")
        self(f"s_cbranch_execz {lab}")
        self(f"buffer_atomic_umax v2, v1, s[76:79], 0 offen offset:{8*i+4}")
        self(f"buffer_atomic_umax v3, v1, s[76:79], 0 offen offset:{8*i}")
        self("s_waitcnt vmcnt(0)")
        self.L.append(lab + ":")
    def srd(self, sreg, ptr_lo, nbytes, add=0):
        if add:
            self(f"s_add_u32 s{sreg}, s{ptr_lo}, {add}")
            self(f"s_addc_u32 s{sreg+1}, s{ptr_lo+1}, 0")
        else:
            self(f"s_mov_b32 s{sreg}, s{ptr_lo}")
            self(f"s_mov_b32 s{sreg+1}, s{ptr_lo+1}")
        self(f"s_mov_b32 s{sreg+2}, {nbytes}")
        self(f"s_mov_b32 s{sreg+3}, 0x20000")
    def text(self, verbose=False):
        body, n = pad_hazards(self.L, verbose)
        hdr = f".globl {self.name}\n.p2align 8\n.type {self.name},@function\n{self.name}:\n"
        return hdr + "\n".join(body) + "\n", n
    def desc(self):
        tot = self.vgpr + self.agpr if self.agpr else self.vgpr
        acc = (self.vgpr + 3) // 4 * 4
        return f""".amdhsa_kernel {self.name}
  .amdhsa_next_free_vgpr {tot}
  .amdhsa_next_free_sgpr {self.sgpr}
  .amdhsa_accum_offset {acc}
  .amdhsa_group_segment_fixed_size 0
  .amdhsa_kernarg_size 112
  .amdhsa_user_sgpr_count 2
  .amdhsa_user_sgpr_kernarg_segment_ptr 1
  .amdhsa_system_sgpr_workgroup_id_x 1
  .amdhsa_float_denorm_mode_32 3
.end_amdhsa_kernel
"""

def build_file(kernels, launches, header_comments=""):
    t = ""
    for n, g, b, l in launches:
        t += f"; @launch kernel={n} grid=({g},1,1) block=({b},1,1) lds={l}\n"
    t += header_comments
    t += '.amdgcn_target "amdgcn-amd-amdhsa--gfx950"\n.text\n'
    for k in kernels:
        body, n = k.text()
        t += body
    t += "text_end:\n"
    t += '.section .rodata,"a"\n'
    for k in kernels:
        t += ".p2align 6\n" + k.desc()
    return t
```

```python
from asmlib import *
from layout import *
from common import *
from k1 import wprep_part

def code_prefetch(k, first, last):
    lab = k.lab("nocode")
    k("s_cmp_ge_u32 s2, 128"); k(f"s_cbranch_scc1 {lab}")
    k("s_getpc_b64 s[40:41]")
    k.L.append(k.lab("pc") + ":")
    k(f"s_add_u32 s40, s40, {first} - {k.lab('pc')}"); k("s_addc_u32 s41, s41, 0")
    k("s_lshr_b32 s42, s2, 3"); k("s_lshl_b32 s42, s42, 12")
    k("v_lshlrev_b32 v40, 4, v0"); k("v_add_u32 v40, s42, v40")
    k(f"v_cmp_gt_u32 vcc, {last} - {first} - 16, v40")
    k("s_and_saveexec_b64 s[44:45], vcc")
    k(f"s_cbranch_execz {k.lab('nocode2')}")
    k("v_mov_b32 v43, s41"); k("v_add_co_u32 v42, vcc, s40, v40"); k("v_addc_co_u32 v43, vcc, 0, v43, vcc")
    k("global_load_dwordx4 v[44:47], v[42:43], off")
    k.L.append(k.lab("nocode2") + ":")
    k("s_mov_b64 exec, s[44:45]")
    k.L.append(lab + ":")

def data_prefetch(k, items):
    for n, (ka, nbytes) in enumerate(items):
        k(f"s_load_dwordx2 s[46:47], s[0:1], {ka}")
        k("s_waitcnt lgkmcnt(0)")
        k.srd(48, 46, nbytes)
        per = (nbytes // 320 + 4095) // 4096 * 4096
        k(f"s_mul_i32 s52, s2, {per}")
        k("v_lshlrev_b32 v40, 4, v0")
        for j in range(per // 4096):
            k(f"buffer_load_dwordx4 v[44:47], v40, s[48:51], s52 offen")
            k("s_add_u32 s52, s52, 4096")

def tlb_touch(k, gran):
    lab = k.lab("notlb")
    k("s_cmp_ge_u32 s2, 24"); k(f"s_cbranch_scc1 {lab}")
    k(f"s_load_dwordx2 s[52:53], s[0:1], {OUT}")
    k("s_lshr_b32 s42, s2, 3"); k("s_lshl_b32 s42, s42, 8")
    k("v_add_u32 v40, s42, v0"); k(f"v_mul_lo_u32 v40, v40, s54") if False else None
    k(f"s_mov_b32 s54, {gran}"); k("v_mul_lo_u32 v40, v40, s54")
    k.srd(48, 10, WS_END)
    k("buffer_load_dword v44, v40, s[48:51], 0 offen")
    k("s_waitcnt lgkmcnt(0)")
    k.srd(48, 52, MB)
    k("buffer_load_dword v45, v40, s[48:51], 0 offen")
    k.L.append(lab + ":")

PREF = {"code": True, "data": False, "tlb": 0}
def k0():
    k = Kern("prep0_kernel", vgpr=64, sgpr=64)
    k("s_cmp_ge_u32 s2, 340")
    k(f"s_cbranch_scc1 {k.lab('done')}")
    k("s_cmp_ge_u32 s2, 320")
    k(f"s_cbranch_scc1 {k.lab('wp')}")
    k.stamp_begin()
    k(f"s_load_dwordx4 s[4:7], s[0:1], {A_K}")
    k(f"s_load_dwordx2 s[8:9], s[0:1], {A_SK}")
    k(f"s_load_dwordx2 s[10:11], s[0:1], {WS}")
    k("s_mul_hi_u32 s12, s2, 0x1999999a")
    k("s_mul_i32 s13, s12, 10")
    k("s_sub_u32 s13, s2, s13")
    k("s_lshl_b32 s14, s12, 6")
    k("s_lshl_b32 s15, s13, 6")
    k("v_lshrrev_b32 v1, 3, v0")
    k("v_and_b32 v2, 7, v0")
    k("v_lshlrev_b32 v2, 4, v2")
    k("v_add_u32 v3, s14, v1")
    k("v_mul_u32_u24 v3, 1280, v3")
    k("s_lshl_b32 s16, s15, 1")
    k("v_add3_u32 v3, v3, v2, s16")
    k("v_subrev_u32 v4, 3840, v3")
    k("v_lshrrev_b32 v5, 6, v0")
    k("v_and_b32 v6, 63, v0")
    k("v_readfirstlane_b32 s17, v5")
    k("s_waitcnt lgkmcnt(0)")
    k.srd(20, 4, MB); k.srd(24, 6, MB); k.srd(28, 8, D * 8); k.srd(32, 10, MB, UR)
    k("s_lshl_b32 s18, s17, 10")
    k("s_mov_b32 m0, s18")
    k("s_mov_b32 s19, 40960")
    k("buffer_load_dwordx4 v4, s[20:23], 0 offen lds")
    k("s_add_u32 m0, s18, 4096")
    k("v_add_u32 v7, 40960, v4")
    k("buffer_load_dwordx4 v7, s[20:23], 0 offen lds")
    k("s_add_u32 m0, s18, 9216")
    k("v_add_u32 v8, 81920, v4")
    k("buffer_load_dwordx4 v3, s[24:27], 0 offen lds")
    k("s_add_u32 m0, s18, 13312")
    k("s_nop 0")
    k("buffer_load_dwordx4 v3, s[24:27], s19 offen lds")
    k("s_cmp_lg_u32 s17, 0")
    k(f"s_cbranch_scc1 {k.lab('skip')}")
    k("s_mov_b32 m0, 8192")
    k("s_nop 0")
    k("buffer_load_dwordx4 v8, s[20:23], 0 offen lds")
    k.label("skip")
    if PREF["code"]: code_prefetch(k, "conv_kernel", "text_end")
    if PREF["tlb"]: tlb_touch(k, PREF["tlb"])
    k("v_add_u32 v9, s15, v6")
    k("v_lshlrev_b32 v10, 3, v9")
    k("buffer_load_dwordx2 v[12:13], v10, s[28:31], 0 offen")
    k("v_and_b32 v10, 15, v6")
    k("v_lshrrev_b32 v11, 2, v10")
    k("s_lshl_b32 s18, s17, 4")
    k("v_add_u32 v11, s18, v11")
    k("v_lshlrev_b32 v11, 7, v11")
    k("v_and_b32 v10, 3, v10")
    k("v_lshlrev_b32 v10, 3, v10")
    k("v_lshrrev_b32 v14, 4, v6")
    k("v_lshlrev_b32 v14, 5, v14")
    k("v_add3_u32 v11, v11, v10, v14")
    k("s_add_u32 s18, s18, s14")
    k("s_sub_u32 s18, 2032, s18")
    k("s_lshl_b32 s18, s18, 1")
    k("v_lshlrev_b32 v9, 12, v9")
    k("v_add_u32 v9, s18, v9")
    k.stamp("issued")
    k("s_waitcnt vmcnt(0)")
    k("s_barrier")
    k.stamp("loaded")
    KR = 16; VR = 26
    for i in range(5): k(f"ds_read_b64_tr_b16 {v(KR+2*i,2)}, v11 offset:{512*i}")
    for i in range(4): k(f"ds_read_b64_tr_b16 {v(VR+2*i,2)}, v11 offset:{9216+512*i}")
    k("v_lshlrev_b32 v34, 16, v12"); k("v_and_b32 v35, 0xffff0000, v12")
    k("v_lshlrev_b32 v36, 16, v13"); k("v_and_b32 v37, 0xffff0000, v13")
    k("s_waitcnt lgkmcnt(0)")
    KF = 38
    for i in range(10):
        k(f"v_lshlrev_b32 v{KF+2*i}, 16, v{KR+i}")
        k(f"v_and_b32 v{KF+2*i+1}, 0xffff0000, v{KR+i}")
    OUTR = 58
    for half in (1, 0):
        for pr in range(4):
            es = (8 * half + 7 - 2 * pr, 8 * half + 6 - 2 * pr)
            for j, e in enumerate(es):
                t = 16 + j
                k(f"v_mul_f32 v{t}, v34, v{KF+e+3}")
                k(f"v_fmac_f32 v{t}, v35, v{KF+e+2}")
                k(f"v_fmac_f32 v{t}, v36, v{KF+e+1}")
                k(f"v_fmac_f32 v{t}, v37, v{KF+e}")
                vr = VR + e // 2
                if e % 2 == 0: k(f"v_lshlrev_b32 v{18+j}, 16, v{vr}")
                else: k(f"v_and_b32 v{18+j}, 0xffff0000, v{vr}")
                k(f"v_mul_f32 v{t}, v{t}, v{18+j}")
            k(f"v_cvt_pk_bf16_f32 v{OUTR+pr}, v16, v17")
        k(f"buffer_store_dwordx4 {v(OUTR,4)}, v9, s[32:35], 0 offen offset:{16*(1-half)}{SSG[0]}")
        OUTR = 20 if half == 1 else OUTR
    if PREF["data"]:
        data_prefetch(k, [(A_H, MB), (B_W1, D*D*2), (A_Q, MB), (B_W2, D*D*2), (B_W3, D*F*2), (B_W4, D*F*2)])
    k.stamp_flush(10, STAMP)
    k.label("done")
    k("s_endpgm")
    k.label("wp")
    k(f"s_load_dwordx4 s[8:11], s[0:1], {B_W1}")
    k(f"s_load_dwordx2 s[12:13], s[0:1], {WS}")
    k("v_lshrrev_b32 v1, 6, v0"); k("v_and_b32 v2, 63, v0"); k("v_readfirstlane_b32 s17, v1")
    k("s_sub_u32 s16, s2, 320"); k("s_lshl_b32 s16, s16, 2"); k("s_add_u32 s16, s16, s17")
    k("s_waitcnt lgkmcnt(0)")
    k.srd(24, 12, WS_END)
    k("s_cmp_lg_u32 s2, 320"); k(f"s_cbranch_scc1 {k.lab('nozero')}")
    k("v_mov_b32 v8, 0"); k("v_mov_b32 v9, 0"); k("v_mov_b32 v10, 0"); k("v_mov_b32 v11, 0")
    k("v_lshlrev_b32 v3, 4, v0"); k(f"s_mov_b32 s18, {CNT}")
    for j in range(3):
        k("buffer_store_dwordx4 v[8:11], v3, s[24:27], s18 offen"); k("s_add_u32 s18, s18, 4096")
    k.label("nozero")
    k("s_mov_b32 s20, s8"); k("s_mov_b32 s21, s9"); k(f"s_mov_b32 s44, {W1T}")
    k("s_cmp_lt_u32 s16, 40"); k(f"s_cbranch_scc1 {k.lab('p12')}")
    k("s_mov_b32 s20, s10"); k("s_mov_b32 s21, s11"); k(f"s_mov_b32 s44, {W2T}"); k("s_sub_u32 s16, s16, 40")
    k.label("p12")
    k(f"s_mov_b32 s22, {D*D*2}"); k("s_mov_b32 s23, 0x20000"); k("s_mov_b32 s40, 1280")
    k("s_lshr_b32 s42, s16, 1"); k("s_and_b32 s41, s16, 1"); k("s_mul_i32 s41, s41, 10")
    k("s_mov_b32 s43, 10"); k("s_mov_b32 s45, 20")
    wprep_part(k, False)
    return k
```

```python
from asmlib import *
from layout import *
from common import *

CPY = 4160
WREG = 4608 + 2 * CPY
K1_LDS = 82944
K0_LDS = 81920

def conv_part(k):
    k.stamp_begin()
    k("v_lshrrev_b32 v1, 6, v0")
    k("v_and_b32 v2, 63, v0")
    k("v_readfirstlane_b32 s17, v1")
    k("s_lshl_b32 s16, s2, 2")
    k("s_add_u32 s16, s16, s17")
    k("s_lshl_b32 s18, s16, 12")
    k("s_mul_i32 s19, s17, %d" % WREG)
    k("v_lshlrev_b32 v3, 4, v2")
    k("v_subrev_u32 v4, 32, v3")
    k("s_lshl_b32 s38, s16, 1")
    k("v_mov_b32 v5, s38")
    k("s_waitcnt lgkmcnt(0)")
    k("s_add_u32 s20, s4, s18"); k("s_addc_u32 s21, s5, 0"); k("s_mov_b32 s22, 4096"); k("s_mov_b32 s23, 0x20000")
    k("s_add_u32 s36, s8, s18"); k("s_addc_u32 s37, s9, 0")
    k.srd(24, 36, 4096, UR); k.srd(28, 36, 4096, YT); k.srd(32, 6, D * 2)
    k.srd(40, 8, WS_END); k.srd(44, 10, MB)
    HB = 48
    k("v_add_u32 v19, 16, v4")
    for q in range(5):
        k(f"buffer_load_dwordx4 {v(HB+8*q,4)}, v4, s[20:23], 0 offen")
        k(f"buffer_load_dword v{HB+8*q+4}, v19, s[20:23], 0 offen")
        if q < 4: k("v_add_u32 v4, 1024, v4"); k("v_add_u32 v19, 1024, v19")
    k("v_subrev_u32 v4, 32, v3")
    k("s_add_u32 m0, s19, 4608")
    k("s_nop 0")
    k("buffer_load_dwordx4 v4, s[20:23], 0 offen lds")
    k("s_add_u32 m0, s19, %d" % (4608 + 1024))
    k("v_add_u32 v4, 1024, v4")
    for q in range(3): k(f"buffer_load_dwordx4 v4, s[20:23], 0 offen offset:{1024*q} lds")
    k("s_add_u32 m0, s19, %d" % (4608 + 4096))
    k("v_add_u32 v4, 3072, v4")
    k("s_mov_b64 exec, 15")
    k("buffer_load_dwordx4 v4, s[20:23], 0 offen lds")
    k("s_mov_b64 exec, -1")
    k("s_mov_b32 m0, s19")
    k("buffer_load_ushort v6, v5, s[32:35], 0 offen")
    for j in range(4): k(f"buffer_load_dwordx4 v3, s[24:27], 0 offen offset:{1024*j} lds")
    k("v_mov_b32 v8, 0"); k("v_mov_b32 v9, 0")
    k("v_lshlrev_b32 v7, 3, v2"); k("v_add_u32 v7, s19, v7")
    k("ds_write_b64 v7, v[8:9] offset:4096")
    k("v_and_b32 v10, 15, v2")
    k("v_lshrrev_b32 v11, 4, v2")
    k("v_add_u32 v13, 1, v10"); k("v_and_b32 v14, 1, v13")
    k(f"v_mul_u32_u24 v12, {CPY}, v14")
    k("v_sub_u32 v13, v13, v14"); k("v_lshlrev_b32 v13, 1, v13"); k("v_lshl_add_u32 v13, v11, 4, v13")
    k("s_add_u32 s38, s19, 4608")
    k("v_add3_u32 v12, v12, v13, s38")
    for j in range(1, 4): k(f"v_add_u32 v{103+j}, {1024*j}, v12")
    k("v_lshlrev_b32 v13, 5, v10"); k("v_lshlrev_b32 v14, 4, v11"); k("v_sub_u32 v13, v14, v13")
    k("s_add_u32 s39, s19, 480"); k("v_add_u32 v13, s39, v13")
    k("s_add_u32 s39, s38, %d" % CPY); k("v_add_u32 v15, s39, v3")
    k("v_sub_u32 v16, 15, v10"); k("v_lshrrev_b32 v17, 3, v16"); k("v_and_b32 v16, 7, v16")
    k("v_and_b32 v18, 1, v16"); k("v_lshlrev_b32 v18, 4, v18")
    k("s_lshr_b32 s48, s2, 3"); k("s_lshl_b32 s48, s48, 2"); k("s_add_u32 s48, s48, s17")
    k("s_mul_i32 s49, s48, 10496"); k(f"s_add_u32 s49, s49, {W1T}")
    k("s_and_b32 s50, s2, 7"); k("s_mul_i32 s51, s48, 4096")
    k.stamp("issued")
    E = 88
    for q in range(5):
        x = HB + 8*q
        k(f"s_waitcnt vmcnt({(8 - 2*q) + 10})")
        if q == 4: k("s_mov_b64 exec, 15")
        for i in range(4): k(f"v_alignbit_b32 v{E+4*(q%2)+i}, v{x+i+1}, v{x+i}, 16")
        k(f"ds_write_b128 v15, {v(E+4*(q%2),4)} offset:{1024*q}")
    k("s_mov_b64 exec, -1")
    AP = 100
    k("s_waitcnt vmcnt(4)")
    k("v_lshlrev_b32 v18, v18, v6")
    k("v_cmp_eq_u32 vcc, v17, v11"); k("v_cndmask_b32 v18, 0, v18, vcc"); k("v_lshrrev_b32 v16, 1, v16")
    for r in range(4):
        k(f"v_cmp_eq_u32 vcc, {r}, v16"); k(f"v_cndmask_b32 v{AP+r}, 0, v18, vcc")
    ACC = 16; A0 = 48; A1 = 112; B0 = 144; B1 = 176
    AR = (12, 104, 105, 106)
    def loads(A, B, rho):
        L = []
        for d in range(8): L.append(f"ds_read_b128 {v(B+4*d,4)}, v13 offset:{64*rho + 512*(7-d)}")
        for m in range(8):
            o = 128*(m % 2) + 16*rho
            L.append(f"ds_read2_b32 {v(A+4*m,2)}, v{AR[m//2]} offset0:{o} offset1:{o+1}")
            L.append(f"ds_read2_b32 {v(A+4*m+2,2)}, v{AR[m//2]} offset0:{o+2} offset1:{o+3}")
        return L
    k.stamp("copies")
    k("s_waitcnt vmcnt(0) lgkmcnt(0)")
    k.stamp("ur")
    for ln in loads(A0, B0, 0): k(ln)
    k("s_waitcnt lgkmcnt(0)")
    for t in range(8):
        k(f"v_mfma_f32_16x16x32_bf16 {v(ACC+4*t,4)}, {v(AP,4)}, {v(B0+4*t,4)}, 0")
    pairs = [(m, d) for m in range(8) for d in range(8 - m)]
    def phase(A, B, nxt, extra):
        for idx, (m, d) in enumerate(pairs):
            k(f"v_mfma_f32_16x16x32_bf16 {v(ACC+4*(m+d),4)}, {v(A+4*m,4)}, {v(B+4*d,4)}, {v(ACC+4*(m+d),4)}")
            if idx < len(nxt): k(nxt[idx])
            elif extra and idx % 3 == 0: k(extra.pop(0))
        k("s_waitcnt lgkmcnt(0)")
    k("s_mov_b32 s52, 0")
    k("s_mul_hi_u32 s53, s48, 0x1999999a"); k("s_mul_i32 s54, s53, 10"); k("s_sub_u32 s54, s48, s54")
    k("s_lshl_b32 s53, s53, 3"); k("s_add_u32 s53, s53, s50"); k("s_mul_i32 s53, s53, 40960"); k("s_lshl_b32 s54, s54, 12"); k("s_add_u32 s53, s53, s54")
    k(".p2align 3")
    k.label("cloop")
    pf = lambda: [f"buffer_load_dwordx4 v[208:211], v3, s[40:43], s49 offen", "s_add_u32 s49, s49, 1024"]
    phase(A0, B0, loads(A1, B1, 1), pf() + ["buffer_load_dwordx4 v[208:211], v3, s[44:47], s53 offen"])
    phase(A1, B1, loads(A0, B0, 2), pf() + pf()[:1] + ["s_add_u32 s49, s49, 1024"])
    for r in AR: k(f"v_add_u32 v{r}, 128, v{r}")
    k("v_add_u32 v13, 128, v13")
    k("s_add_u32 s53, s53, 1024")
    k("s_add_u32 s52, s52, 1")
    k("s_cmp_lt_u32 s52, 4")
    k(f"s_cbranch_scc1 {k.lab('cloop')}")
    k.stamp("loop")
    k("v_lshlrev_b32 v14, 5, v10"); k("v_lshl_add_u32 v14, v11, 3, v14"); k("v_add_u32 v14, s19, v14")
    for t in range(8):
        k(f"v_cvt_pk_bf16_f32 v{A0+2*t}, v{ACC+4*t}, v{ACC+4*t+1}")
        k(f"v_cvt_pk_bf16_f32 v{A0+2*t+1}, v{ACC+4*t+2}, v{ACC+4*t+3}")
        k(f"ds_write_b64 v14, {v(A0+2*t,2)} offset:{512*t}")
    k("v_add_u32 v15, s19, v3")
    k("s_waitcnt lgkmcnt(0)")
    for j in range(4): k(f"ds_read_b128 {v(B0+4*j,4)}, v15 offset:{1024*j}")
    for j in range(4):
        k(f"s_waitcnt lgkmcnt({3-j})")
        k(f"buffer_store_dwordx4 {v(B0+4*j,4)}, v3, s[28:31], 0 offen offset:{1024*j}{SSG[0]}")
    k.stamp_flush(8, STAMP)
    k("s_endpgm")

def wprep_part(k, with_colsum):
    k.label("wprep")
    k("s_mul_i32 s19, s17, 20480")
    k("v_lshrrev_b32 v3, 2, v2"); k("v_and_b32 v4, 3, v2"); k("v_lshlrev_b32 v4, 4, v4")
    k("s_lshl_b32 s47, s41, 5"); k("v_add_u32 v3, s47, v3"); k("v_mul_lo_u32 v3, v3, s40")
    k("s_lshl_b32 s47, s42, 6"); k("v_add3_u32 v3, v3, v4, s47")
    k("s_lshl_b32 s48, s40, 4"); k("s_mov_b32 s49, 0"); k("s_mov_b32 s50, s19")
    k.label("wld")
    k("s_mov_b32 m0, s50"); k("s_add_u32 s49, s49, 1")
    k("buffer_load_dwordx4 v3, s[20:23], 0 offen lds")
    k("s_add_u32 m0, s50, 1024"); k("v_add_u32 v3, s48, v3")
    k("buffer_load_dwordx4 v3, s[20:23], 0 offen lds")
    k("v_add_u32 v3, s48, v3"); k("s_add_u32 s50, s50, 2048")
    k("s_cmp_lt_u32 s49, s43"); k(f"s_cbranch_scc1 {k.lab('wld')}")
    k("v_lshrrev_b32 v5, 4, v2"); k("v_lshlrev_b32 v5, 9, v5"); k("v_bfe_u32 v6, v2, 2, 2"); k("v_lshl_add_u32 v5, v6, 6, v5")
    k("v_and_b32 v6, 3, v2"); k("v_lshl_add_u32 v5, v6, 4, v5"); k("v_add_u32 v5, s19, v5")
    k("s_lshl_b32 s47, s42, 1"); k("s_mul_i32 s47, s47, s45"); k("s_add_u32 s47, s47, s41"); k("s_lshl_b32 s47, s47, 10")
    k("s_add_u32 s47, s47, s44"); k("s_lshl_b32 s51, s45, 10"); k("s_add_u32 s51, s51, s47")
    k("v_lshlrev_b32 v7, 4, v2")
    k("v_mov_b32 v20, 0"); k("v_mov_b32 v21, 0")
    k("s_mov_b32 s52, 0x3f803f80"); k("s_mov_b32 s49, 0")
    k("s_waitcnt vmcnt(0)")
    k.label("wtr")
    k("ds_read_b64_tr_b16 v[8:9], v5"); k("ds_read_b64_tr_b16 v[10:11], v5 offset:256")
    k("ds_read_b64_tr_b16 v[12:13], v5 offset:8"); k("ds_read_b64_tr_b16 v[14:15], v5 offset:264")
    k("v_add_u32 v5, 2048, v5"); k("s_add_u32 s49, s49, 1")
    k("s_waitcnt lgkmcnt(0)")
    k(f"buffer_store_dwordx4 v[8:11], v7, s[24:27], s47 offen{SSG[0]}")
    k(f"buffer_store_dwordx4 v[12:15], v7, s[24:27], s51 offen{SSG[0]}")
    if with_colsum:
        for r in range(4):
            k(f"v_dot2_f32_bf16 v20, v{8+r}, s52, v20"); k(f"v_dot2_f32_bf16 v21, v{12+r}, s52, v21")
    k("s_add_u32 s47, s47, 1024"); k("s_add_u32 s51, s51, 1024")
    k("s_cmp_lt_u32 s49, s43"); k(f"s_cbranch_scc1 {k.lab('wtr')}")
    if with_colsum:
        k("s_cmp_eq_u32 s46, 2"); k(f"s_cbranch_scc1 {k.lab('end')}")
        reduce_g(k, 20, 22); reduce_g(k, 21, 23)
        k(f"s_mul_i32 s47, s46, {F*4}"); k("s_lshl_b32 s48, s42, 7"); k("s_add_u32 s47, s47, s48"); k(f"s_add_u32 s47, s47, {CS3}")
        k("v_and_b32 v6, 15, v2"); k("v_lshlrev_b32 v6, 2, v6")
        k(f"buffer_store_dword v20, v6, s[24:27], s47 offen{SSG[0]}")
        k(f"buffer_store_dword v21, v6, s[24:27], s47 offen offset:64{SSG[0]}")
    k("s_endpgm")

def qstat_part(k):
    k.label("qstat")
    k("v_lshrrev_b32 v3, 4, v2"); k("v_add_u32 v3, s40, v3"); k("v_and_b32 v4, 15, v2")
    k("v_lshlrev_b32 v5, 3, v3"); k("v_mul_u32_u24 v3, 1280, v3"); k("v_lshl_add_u32 v3, v4, 4, v3")
    k("s_mov_b32 s52, 0x3f803f80"); k(f"s_mov_b32 s53, {f2u(1.0/640)}"); k(f"s_mov_b32 s54, {f2u(1e-5)}")
    NT = 4
    for t in range(NT):
        for m in range(5): k(f"buffer_load_dwordx4 {v(32+20*t+4*m,4)}, v3, s[20:23], 0 offen offset:{256*m}")
        k("v_add_u32 v3, 5120, v3")
    for t in range(NT):
        b = 32 + 20*t
        k(f"s_waitcnt vmcnt({5*(NT-1-t) + t})")
        k("v_mov_b32 v10, 0"); k("v_mov_b32 v11, 0")
        for r in range(20):
            k(f"v_dot2_f32_bf16 v10, v{b+r}, s52, v10"); k(f"v_dot2_f32_bf16 v11, v{b+r}, v{b+r}, v11")
        for rot in (8, 4, 2, 1):
            k(f"v_add_f32_dpp v10, v10, v10 row_ror:{rot} row_mask:0xf bank_mask:0xf")
            k(f"v_add_f32_dpp v11, v11, v11 row_ror:{rot} row_mask:0xf bank_mask:0xf")
        k("v_mul_f32 v10, s53, v10"); k("v_mul_f32 v11, s53, v11"); k("v_fma_f32 v11, -v10, v10, v11")
        k("v_max_f32 v11, 0, v11"); k("v_add_f32 v11, s54, v11"); k("v_rsq_f32 v12, v11"); k("v_mul_f32 v13, -v10, v12")
        k(f"buffer_store_dwordx2 v[12:13], v5, s[24:27], s55 offen{SSG[0]}")
        k("v_add_u32 v5, 32, v5")
    k.label("end")
    k("s_endpgm")

def k1():
    k = Kern("conv_kernel", vgpr=216, sgpr=64)
    k("s_cmp_ge_u32 s2, 256"); k(f"s_cbranch_scc1 {k.lab('end')}")
    k("s_cmp_ge_u32 s2, 160"); k(f"s_cbranch_scc1 {k.lab('prep')}")
    k(f"s_load_dwordx4 s[4:7], s[0:1], {A_H}")
    k(f"s_load_dwordx2 s[8:9], s[0:1], {WS}")
    k(f"s_load_dwordx2 s[10:11], s[0:1], {A_Q}")
    conv_part(k)
    k.label("prep")
    k(f"s_load_dwordx4 s[8:11], s[0:1], {B_W3}")
    k(f"s_load_dwordx2 s[12:13], s[0:1], {WS}")
    k(f"s_load_dwordx2 s[14:15], s[0:1], {A_Q}")
    k("v_lshrrev_b32 v1, 6, v0"); k("v_and_b32 v2, 63, v0"); k("v_readfirstlane_b32 s17, v1")
    k("s_sub_u32 s16, s2, 160"); k("s_lshl_b32 s16, s16, 2"); k("s_add_u32 s16, s16, s17")
    k("s_waitcnt lgkmcnt(0)")
    k.srd(24, 12, WS_END)
    k("s_mov_b32 s23, 0x20000"); k("s_mov_b32 s46, 2")
    k("s_cmp_ge_u32 s16, 108"); k(f"s_cbranch_scc1 {k.lab('p4')}")
    k("s_mov_b32 s20, s8"); k("s_mov_b32 s21, s9"); k(f"s_mov_b32 s22, {D*F*2}"); k(f"s_mov_b32 s44, {W3T}")
    k(f"s_mov_b32 s40, {F*2}")
    k("s_lshr_b32 s42, s16, 1"); k("s_and_b32 s46, s16, 1"); k("s_mul_i32 s41, s46, 10")
    k("s_mov_b32 s43, 10"); k("s_mov_b32 s45, 20")
    k(f"s_branch {k.lab('wprep')}")
    k.label("p4")
    k("s_cmp_ge_u32 s16, 228"); k(f"s_cbranch_scc1 {k.lab('pq')}")
    k("s_sub_u32 s16, s16, 108")
    k("s_mov_b32 s20, s10"); k("s_mov_b32 s21, s11"); k(f"s_mov_b32 s22, {D*F*2}"); k(f"s_mov_b32 s44, {W4T}")
    k("s_mov_b32 s40, 1280")
    k("s_mul_hi_u32 s42, s16, 0x2aaaaaab"); k("s_mul_i32 s41, s42, 6"); k("s_sub_u32 s41, s16, s41"); k("s_mul_i32 s41, s41, 9")
    k("s_mov_b32 s43, 9"); k("s_mov_b32 s45, 54")
    k(f"s_branch {k.lab('wprep')}")
    k.label("pq")
    k("s_cmp_ge_u32 s16, 356"); k(f"s_cbranch_scc1 {k.lab('end')}")
    k("s_sub_u32 s16, s16, 228"); k("s_lshl_b32 s40, s16, 4")
    k("s_mov_b32 s20, s14"); k("s_mov_b32 s21, s15"); k(f"s_mov_b32 s22, {MB}"); k(f"s_mov_b32 s55, {QS}")
    k(f"s_branch {k.lab('qstat')}")
    wprep_part(k, True)
    qstat_part(k)
    return k
```

```python
from ph_common import *
import ph_common as pc
import p2, p3, p4, p5

KG_LDS = p4.P4_LDS
C2, C3, C4 = CNT, CNT + 64*128, CNT + 80*128
SPIN_LIMIT = 200000
SG, SG2 = 84, 85
ONLY = ('begin','p2done','s2','gemm3','p3done','s3','gemm4','p4done','s4','main5','end')
MID = (99, 99, 16)
DRAIN_LOADS = 10

def signal(k, vm, nq, s_index, base):
    lab = k.lab(k.uniq("sig"))
    nq.pop(DRAIN_LOADS)
    vm.wait(lambda t: t == "S")
    k.stamp("drained")
    k("s_barrier")
    k("s_cmp_lg_u32 s10, 0"); k(f"s_cbranch_scc1 {lab}")
    k(f"s_lshl_b32 s{SG}, s{s_index}, 7"); k(f"s_add_u32 s{SG}, s{SG}, {base}")
    k("v_mov_b32 v5, 0"); k("v_mov_b32 v6, 1")
    k("s_mov_b64 exec, 1")
    k(f"buffer_atomic_add v6, v5, s[12:15], s{SG} offen sc1")
    k("s_mov_b64 exec, -1")
    k.L.append(lab + ":")

def wait_counters(k, nq, addr_code, target, all_waves_drain, before_barrier=None, mid=0):
    lab = k.lab(k.uniq("wt")); loop = lab + "_l"
    nq.pop(mid)
    k("s_cmp_lg_u32 s10, 0"); k(f"s_cbranch_scc1 {lab}")
    for ln in addr_code: k(ln)
    k(f"s_mov_b32 s{SG2}, 0")
    k.L.append(loop + ":")
    k("buffer_load_dword v6, v5, s[12:15], 0 offen sc1")
    k(f"s_add_u32 s{SG2}, s{SG2}, 1")
    k("s_waitcnt vmcnt(0)")
    k(f"v_cmp_gt_u32 vcc, {target}, v6")
    k(f"s_cmp_gt_u32 s{SG2}, {SPIN_LIMIT}"); k(f"s_cbranch_scc1 {lab}")
    k(f"s_cbranch_vccnz {loop}")
    k.L.append(lab + ":")
    nq.flush()
    if all_waves_drain: k("s_waitcnt vmcnt(0)")
    if before_barrier: before_barrier(k)
    k("s_barrier")

def kg():
    pc.SC = " sc1"; pc.SS = " sc1"
    k = Kern("mlp_kernel", vgpr=256, agpr=256, sgpr=96)
    k("s_cmp_ge_u32 s2, 256"); k(f"s_cbranch_scc1 {k.lab('end')}")
    k.only = ONLY
    k.stamp_begin()
    prologue(k); p2.p2_setup(k)
    wi = p2.p2_w_items(k)
    tail = p2.w2_l2_items(k)
    p3.p35_setup(k)
    prologue_srd(k)
    vm, nq = p2.p2_main(k, wi, [(code_prefetch_group(k, k.lab('ph3'), k.lab('ph4'), 'a', 136), "pf")] + tail, p3.p3_pre)
    k.stamp("p2done")
    signal(k, vm, nq, p2.TT, C2)
    k.label("ph3")
    wait_counters(k, nq, [f"s_lshl_b32 s{SG}, s{p3.T64}, 1", f"s_sub_u32 s{SG}, s{SG}, 1", "v_and_b32 v5, 3, v1", f"v_add_u32 v5, s{SG}, v5",
                      "v_and_b32 v5, 63, v5", "v_lshlrev_b32 v5, 7, v5", f"v_add_u32 v5, {C2}, v5"], 4, True, mid=MID[0])
    k.stamp("s2")
    p4.p4_setup(k); p4.p4_pre_setup(k)
    early = [(g, "E") for g in p4.p4_pre_early(k)]
    vm, nq = p3.p3_main(k, [(code_prefetch_group(k, k.lab('ph4'), k.lab('ph5'), 'b', 184), "pf")], p4.p4_pre_late, early)
    k.stamp("p3done")
    k(f"s_lshr_b32 s83, s{p3.T64}, 1")
    signal(k, vm, nq, 83, C3)
    k.label("ph4")
    wait_counters(k, nq, [f"s_lshl_b32 s{SG}, s{p4.T128}, 7", f"s_add_u32 s{SG}, s{SG}, {C3}", f"v_mov_b32 v5, s{SG}"], 16, True, p4.p4_cs_table, mid=MID[1])
    k.stamp("s3")
    p5.p5_pre_setup(k)
    early = [(g, "E") for g in p5.p5_pre_early(k)]
    vm, nq = p4.p4_main(k, [(code_prefetch_group(k, k.lab('ph5'), k.lab('end'), 'c', 88), "pf")], p5.p5_pre_late, early)
    k.stamp("p4done")
    signal(k, vm, nq, p4.T128, C4)
    k.label("ph5")
    wait_counters(k, nq, [f"s_lshr_b32 s{SG}, s{p3.T64}, 1", f"s_lshl_b32 s{SG}, s{SG}, 7", f"s_add_u32 s{SG}, s{SG}, {C4}", f"v_mov_b32 v5, s{SG}"], 16, False, mid=MID[2])
    k.stamp("s4")
    p5.p5_main(k)
    k.stamp_flush(4, STAMP)
    k.label("end"); k("s_endpgm")
    pc.SC = ""; pc.SS = ""
    return k
```

```python
from ph_common import *
import ph_common as pc

NFIRST = 8
QL = 0; YL = 40960; STL = 81920; XL = 0
P2_LDS = 82944
TT, FQ = 24, 25

def p2_setup(k):
    k(f"s_and_b32 s{TT}, s2, 63"); k(f"s_lshr_b32 s{FQ}, s2, 6")

def p2_w_items(k):
    k(f"s_mul_i32 s26, s{FQ}, 10"); k("s_lshl_b32 s27, s10, 1"); k("s_add_u32 s26, s26, s27"); k("s_mul_i32 s26, s26, 20480")
    k(f"s_add_u32 s26, s26, {W1T}")
    k(f"s_mul_i32 s27, s{FQ}, 10"); k("s_lshr_b32 s28, s10, 1"); k("s_add_u32 s27, s27, s28"); k("s_add_u32 s27, s27, 8")
    k("s_mul_i32 s27, s27, 20480"); k(f"s_add_u32 s27, s27, {W1T}")
    k("s_add_u32 s28, s26, 20480")
    items = []
    for kb in range(20):
        for t in range(3):
            base = (26, 28, 27)[t]
            pre = [f"s_add_u32 s{base}, s{base}, 4096"] if (kb and kb % 4 == 0) else []
            items.append((pre + [f"buffer_load_dwordx4 {a((t*20+kb)*4,4)}, v4, s[12:15], s{base} offen offset:{1024*(kb%4)}"], ("W", kb)))
    return items

def p2_main(k, witems, tail, after_gemm, ysc=""):
    sc = pc.SC; ss = pc.SS
    vm = VM(k)
    k("s_mul_i32 s30, s10, 160")
    k("v_lshrrev_b32 v6, 2, v1"); k("v_add_u32 v6, s30, v6"); k("v_lshlrev_b32 v6, 12, v6")
    k("v_and_b32 v7, 3, v1"); k("v_lshlrev_b32 v7, 4, v7")
    k(f"s_lshl_b32 s31, s{TT}, 6"); k(f"s_add_u32 s31, s31, {YT}")
    k("v_add_u32 v6, v6, v7")
    k("s_mul_i32 s32, s10, 10240"); k(f"s_add_u32 s33, s32, {YL}")
    for i in range(10):
        vm.issue([f"s_add_u32 m0, s33, {1024*i}", "s_add_u32 s31, s31, 65536" if i else "s_nop 0",
                  f"buffer_load_dwordx4 v6, s[12:15], s31 offen lds{ysc}"], "y")
    k("s_lshl_b32 s34, s10, 3")
    k("v_add_u32 v8, s34, v3"); k("v_and_b32 v9, 15, v8"); k("v_xor_b32 v9, v9, v2")
    k(f"s_lshl_b32 s29, s{TT}, 5")
    k("v_add_u32 v10, s29, v8"); k("v_mul_u32_u24 v10, 1280, v10")
    k("v_xor_b32 v11, 4, v9")
    k("v_lshl_add_u32 v8, v9, 4, v10"); k("v_lshl_add_u32 v9, v11, 4, v10"); k("v_add_u32 v9, 5120, v9")
    for a_ in range(2):
        for m in range(5):
            vm.issue([f"s_add_u32 m0, s32, {QL + a_*5120 + 768*m}", "s_nop 0",
                      f"buffer_load_dwordx4 v{8+a_}, s[16:19], 0 offen offset:{256*m} lds"], "q")
    k("v_add_u32 v10, s29, v2"); k("v_lshlrev_b32 v10, 3, v10"); k(f"s_mov_b32 s35, {QS}")
    vm.issue(["buffer_load_dwordx2 v[12:13], v10, s[12:15], s35 offen"], "qs")
    vm.issue(["buffer_load_dwordx2 v[14:15], v10, s[12:15], s35 offen offset:128"], "qs")
    wq = TQ(vm, witems)
    k("v_lshrrev_b32 v10, 2, v2"); k("v_mul_u32_u24 v10, 5120, v10")
    k("v_and_b32 v11, 3, v2"); k("v_lshl_add_u32 v10, v11, 8, v10")
    k("v_xor_b32 v11, v3, v2")
    k("s_mul_i32 s36, s10, 5")
    for i in range(5):
        k(f"s_add_u32 s37, s36, {i}")
        k("s_and_b32 s38, s37, 3"); k("s_lshl_b32 s38, s38, 2")
        k("s_lshr_b32 s37, s37, 2"); k("s_lshl_b32 s37, s37, 10")
        k(f"v_xor_b32 v{16+i}, s38, v11"); k(f"v_lshlrev_b32 v{16+i}, 4, v{16+i}"); k(f"v_add3_u32 v{16+i}, v{16+i}, v10, s37")
    k("v_bfe_u32 v10, v1, 2, 2"); k("v_lshl_add_u32 v10, v3, 3, v10"); k("v_lshlrev_b32 v10, 6, v10")
    k("v_and_b32 v11, 3, v1"); k("v_lshl_add_u32 v10, v11, 3, v10")
    k("v_add_u32 v21, s33, v10")
    k(f"s_and_b32 s37, s{FQ}, 1"); k("s_lshl_b32 s37, s37, 1"); k("s_sub_u32 s37, 1, s37")
    k(f"s_lshr_b32 s38, s{FQ}, 1"); k("s_lshl_b32 s37, s37, s38"); k("s_add_u32 s37, s37, s29")
    k(f"s_mul_i32 s39, s{FQ}, 5")
    k("v_lshlrev_b32 v11, 8, v3")
    k("s_add_u32 s46, s39, s10"); k("s_lshl_b32 s46, s46, 10"); k(f"s_add_u32 s46, s46, {HS}")
    k("s_add_u32 s47, s39, 4"); k("s_lshl_b32 s47, s47, 10"); k(f"s_add_u32 s47, s47, {HS}")
    k("s_lshr_b32 s38, s10, 1"); k("s_lshl_b32 s38, s38, 3"); k("s_add_u32 s47, s47, s38")
    k("s_and_b32 s38, s10, 1"); k("s_lshl_b32 s38, s38, 4")
    for dst, add, base, mask in ((240, "0", "s46", 40), (241, "16", "s46", 42), (242, "s38", "s47", 44)):
        k("v_add_u32 v10, s37, v2")
        if add != "0": k(f"v_add_u32 v10, {add}, v10")
        k(f"v_cmp_le_u32 s[{mask}:{mask+1}], s48, v10") if False else None
        k("v_cmp_le_u32 vcc, 0x800, v10"); k(f"s_mov_b64 s[{mask}:{mask+1}], vcc")
        k("v_and_b32 v10, 0x7ff, v10"); k("v_lshrrev_b32 v22, 4, v10"); k("v_mul_u32_u24 v22, 20480, v22")
        k("v_and_b32 v10, 15, v10"); k("v_lshl_add_u32 v10, v10, 4, v11")
        k(f"v_add3_u32 v{dst}, v10, v22, {base}")
    k(f"s_mov_b32 s50, {f2u(GELU_C0)}"); k(f"s_mov_b32 s51, {f2u(GELU_C1)}")
    k(f"s_mov_b32 s52, {f2u(1.0/640)}"); k(f"s_mov_b32 s53, {f2u(1e-5)}"); k("s_mov_b32 s54, 0xffff0000")
    wq.pop(NFIRST)
    k.stamp("issued")
    vm.wait(lambda t: t in ("y", "q", "qs"))
    k("s_barrier")
    k.stamp("loaded")
    Q = 32; Y = 72; H = 112; T = 192
    def reads(tb, i):
        f = tb*5 + i
        return [f"ds_read_b128 {v(Q+4*f,4)}, v{16+i} offset:{QL + tb*20480}",
                f"ds_read_b64_tr_b16 {v(Y+4*f,2)}, v21 offset:{2048*i + 32*tb}",
                f"ds_read_b64_tr_b16 {v(Y+4*f+2,2)}, v21 offset:{2048*i + 256 + 32*tb}"]
    frs = [(tb, i) for tb in range(2) for i in range(5)]
    for fr in frs[:4]:
        for ln in reads(*fr): k(ln)
    for r in range(22, 30): k(f"v_mov_b32 v{r}, 0")
    step = 0
    for fi, (tb, i) in enumerate(frs):
        f = tb*5 + i
        k(f"s_waitcnt lgkmcnt({3*(min(len(frs), fi + 4) - fi - 1)})")
        if fi + 4 < len(frs):
            for ln in reads(*frs[fi + 4]): k(ln)
        ab = 12 + 2*tb
        for r in range(4):
            h = H + 8*f + 2*r; qq = T + 4*(r % 2); yy = qq + 2
            k(f"v_lshlrev_b32 v{qq}, 16, v{Q+4*f+r}"); k(f"v_and_b32 v{qq+1}, s54, v{Q+4*f+r}")
            k(f"v_lshlrev_b32 v{yy}, 16, v{Y+4*f+r}"); k(f"v_and_b32 v{yy+1}, s54, v{Y+4*f+r}")
            k(f"v_pk_fma_f32 {v(h,2)}, {v(qq,2)}, {v(ab,2)}, {v(ab,2)} op_sel:[0,0,1] op_sel_hi:[1,0,1]")
            k(f"v_pk_fma_f32 {v(h,2)}, {v(h,2)}, {v(yy,2)}, {v(qq,2)}")
            k(f"v_pk_add_f32 {v(22+4*tb,2)}, {v(22+4*tb,2)}, {v(h,2)}")
            k(f"v_pk_fma_f32 {v(24+4*tb,2)}, {v(h,2)}, {v(h,2)}, {v(24+4*tb,2)}")
            step += 1
            if step % 2 == 0: wq.pop()
    pass
    for b in (22, 24, 26, 28): k(f"v_add_f32 v{b}, v{b}, v{b+1}")
    k("v_lshlrev_b32 v10, 4, v2"); k("v_lshl_add_u32 v11, v3, 2, v10"); k("s_lshl_b32 s37, s10, 8"); k(f"s_add_u32 s37, s37, {STL}")
    k("v_permlane32_swap_b32 v22, v26"); k("v_permlane32_swap_b32 v24, v28")
    k("v_add_u32 v11, s37, v11"); k(f"v_add_u32 v10, {STL}, v10")
    k("v_add_f32 v22, v22, v26"); k("v_add_f32 v24, v24, v28")
    wq.pop()
    k("v_permlane16_swap_b32 v22, v24")
    k("v_add_f32 v22, v22, v24")
    k("ds_write_b32 v11, v22")
    wq.pop()
    k("s_waitcnt lgkmcnt(0)")
    k("s_barrier")
    for w in range(4): k(f"ds_read_b128 {v(T+4*w,4)}, v10 offset:{256*w}")
    wq.pop(2)
    k("s_waitcnt lgkmcnt(0)")
    k(f"v_pk_add_f32 {v(T,2)}, {v(T,2)}, {v(T+4,2)}"); k(f"v_pk_add_f32 {v(T+2,2)}, {v(T+2,2)}, {v(T+6,2)}")
    k(f"v_pk_add_f32 {v(T+8,2)}, {v(T+8,2)}, {v(T+12,2)}"); k(f"v_pk_add_f32 {v(T+10,2)}, {v(T+10,2)}, {v(T+14,2)}")
    k(f"v_pk_add_f32 {v(T,2)}, {v(T,2)}, {v(T+8,2)}"); k(f"v_pk_add_f32 {v(T+2,2)}, {v(T+2,2)}, {v(T+10,2)}")
    L = [[], []]
    for tb in range(2):
        t = T + 2*tb; b = 22 + 4*tb; x = T + 8 + 4*tb
        L[tb] = [f"v_mul_f32 v{t}, s52, v{t}", f"v_mul_f32 v{t+1}, s52, v{t+1}", f"v_fma_f32 v{t+1}, -v{t}, v{t}, v{t+1}",
                 f"v_max_f32 v{t+1}, 0, v{t+1}", f"v_add_f32 v{x}, s53, v{t+1}", f"v_rsq_f32 v{b}, v{x}",
                 f"v_mul_f32 v{b+1}, -v{t}, v{b}", f"v_mul_f32 v{x}, v{b}, v{b}", f"v_fma_f32 v{x}, v{x}, v{t+1}, s53",
                 f"v_rsq_f32 v{b+2}, v{x}"] + gelu_scale_consts(b+2, 244 + 2*tb, 248 + tb, 50, 51)
    for ln in interleave(*L): k(ln)
    pass
    k("s_mul_i32 s37, s10, 5120"); k("v_add_u32 v11, s37, v4")
    n = 0
    for fi, (tb, i) in enumerate(frs):
        f = tb*5 + i; b = 22 + 4*tb
        for r in range(4):
            h = H + 8*f + 2*r; t = T + 2*(r % 2)
            k(f"v_pk_fma_f32 {v(t,2)}, {v(h,2)}, {v(b,2)}, {v(b,2)} op_sel:[0,0,1] op_sel_hi:[1,0,1]")
            k(f"v_cvt_pk_bf16_f32 v{Q+4*f+r}, v{t}, v{t+1}")
        k(f"ds_write_b128 v11, {v(Q+4*f,4)} offset:{XL + tb*20480 + 1024*i}")
        wq.pop()
    k(f"s_lshl_b32 s37, s{TT}, 1"); k("s_mul_i32 s37, s37, 20"); k("s_mul_i32 s38, s10, 5"); k("s_add_u32 s37, s37, s38"); k("s_lshl_b32 s37, s37, 10")
    for q4 in range(4):
        tb = q4 & 1
        if q4 < 3: k(f"s_cmp_lg_u32 s{FQ}, {q4}"); k(f"s_cbranch_scc1 {k.lab('st%d' % (q4+1))}")
        k(f"s_add_u32 s38, s37, {(XB if q4 < 2 else HT) + tb*20480}"); k("s_add_u32 s39, s38, 4096")
        for i in range(5):
            f = tb*5 + i; src = Q + 4*f
            if q4 >= 2:
                src = Y + 4*i
                for r in range(4): k(f"v_cvt_pk_bf16_f32 v{src+r}, v{H+8*f+2*r}, v{H+8*f+2*r+1}")
            k(f"buffer_store_dwordx4 {v(src,4)}, v4, s[12:15], s{39 if i==4 else 38} offen offset:{1024*i if i<4 else 0}{ss}")
        if q4 < 3: k(f"s_branch {k.lab('stdone')}"); k.label('st%d' % (q4+1))
    k.label("stdone")
    vm.ops += ["S"] * 5
    k("s_waitcnt lgkmcnt(0)")
    k("s_barrier")
    pass
    ACC = 112; BF = 192
    k("s_and_b32 s37, s10, 1"); k("s_mul_i32 s37, s37, 20480"); k("v_add_u32 v10, s37, v4")
    def breads(kb):
        b = BF + 12*(kb % 4)
        return [f"ds_read_b128 {v(b,4)}, v4 offset:{XL + 1024*kb}", f"ds_read_b128 {v(b+4,4)}, v4 offset:{XL + 20480 + 1024*kb}",
                f"ds_read_b128 {v(b+8,4)}, v10 offset:{XL + 1024*kb}"]
    for kb in range(3):
        for ln in breads(kb): k(ln)
    tq = TQ(vm, tail or [])
    for kb in range(20):
        b = BF + 12*(kb % 4); nb = min(20, kb + 3) - kb - 1
        vm.wait(lambda t: t == ("W", kb), f" lgkmcnt({3*nb})")
        nx = breads(kb + 3) if kb + 3 < 20 else []
        def mf(tile, t, breg):
            c = v(ACC + 4*tile, 4)
            k(f"v_mfma_f32_16x16x32_bf16 {c}, {a((t*20+kb)*4,4)}, {v(breg,4)}, {c if kb else 0}")
        mf(0, 0, b)
        if nx: k(nx[0])
        mf(1, 1, b)
        if nx: k(nx[1])
        mf(2, 0, b + 4)
        if nx: k(nx[2])
        mf(3, 1, b + 4)
        if len(wq): wq.pop(2)
        else: tq.pop()
        mf(4, 2, b + 8)
    tq.flush()
    k.stamp("gemm2")
    k("s_barrier")
    nq = TQ(vm, [(g, "N") for g in after_gemm(k)])
    k("s_bitcmp1_b32 s10, 0"); k("s_cselect_b64 s[56:57], -1, 0")
    k("v_cndmask_b32 v250, v244, v246, s[56:57]"); k("v_cndmask_b32 v251, v245, v247, s[56:57]"); k("v_cndmask_b32 v252, v248, v249, s[56:57]")
    PK = 40
    streams = []
    for tile in range(5):
        ab = (244, 244, 246, 246, 250)[tile]; ir = (248, 248, 249, 249, 252)[tile]; L = []
        for hf in range(2):
            L += gelu_fold(ACC + 4*tile + 2*hf, 64 + 2*tile, PK + 2*tile + hf, ab, ir)
        streams.append(L)
    for n, ln in enumerate(interleave(*streams)):
        k(ln)
    for tb in range(2):
        t0 = PK + 4*tb
        for r in range(4): k(f"v_cndmask_b32_e64 v{t0+r}, v{t0+r}, 0, s[{40+2*tb}:{41+2*tb}]")
        vm.issue([f"buffer_store_dwordx4 {v(t0,4)}, v{240+tb}, s[12:15], 0 offen{ss}"], "S")
    for r in range(2): k(f"v_cndmask_b32_e64 v{PK+8+r}, v{PK+8+r}, 0, s[44:45]")
    vm.issue([f"buffer_store_dwordx2 {v(PK+8,2)}, v242, s[12:15], 0 offen{ss}"], "S")
    return vm, nq

def w2_l2_items(k, sbase=82):
    k(f"s_bfe_u32 s{sbase}, s2, 0x10002"); k(f"s_mul_i32 s{sbase}, s{sbase}, {20*20480}")
    k(f"s_lshr_b32 s{sbase+1}, s2, 3"); k(f"s_lshl_b32 s{sbase+1}, s{sbase+1}, 2"); k(f"s_add_u32 s{sbase+1}, s{sbase+1}, s10")
    k(f"s_lshl_b32 s{sbase+1}, s{sbase+1}, 12"); k(f"s_add_u32 s{sbase}, s{sbase}, s{sbase+1}"); k(f"s_add_u32 s{sbase}, s{sbase}, {W2T}")
    return [([f"buffer_load_dwordx4 v[132:135], v4, s[12:15], s{sbase} offen offset:{1024*i}"], "pf") for i in range(4)]
```

```python
from ph_common import *
import ph_common as pc

P3_LDS = 102400
T64, FC, ODD, TBG, FB, SA, SH = 60, 61, 62, 63, 64, 70, 71
WB, LB = 72, 77
TMP = 78
M0_, M1_ = 80, 81

def p35_setup(k):
    map_t64_fc(k, T64, FC, TMP, TMP+1)
    col5(k, FC, ODD, FB)
    k(f"s_lshl_b32 s{TBG}, s{T64}, 2"); k(f"s_add_u32 s{TBG}, s{TBG}, s10")
    resid_offsets(k, TBG, FB, ODD, SA, SH, TMP)

def p3_pre(k):
    k(f"s_lshl_b32 s{TMP}, s10, 10")
    for l in range(5):
        k(f"s_mul_i32 s{WB+l}, s{FB+l}, 20480"); k(f"s_add_u32 s{WB+l}, s{WB+l}, s{TMP}"); k(f"s_add_u32 s{WB+l}, s{WB+l}, {W2T}")
    k(f"s_mul_i32 s{LB}, s10, 5120")
    G = []
    for c in range(5):
        for l in range(5):
            G.append([f"s_add_u32 m0, s{LB}, {c*20480 + l*1024}", f"s_add_u32 s{WB+l}, s{WB+l}, 4096" if c else "s_nop 0",
                      f"buffer_load_dwordx4 v4, s[12:15], s{WB+l} offen lds"])
    return G

def p3_main(k, tail, after_gemm, early=None):
    sc = pc.SC; ss = pc.SS
    X = 32; R = 112; ACC = 8; AF = 124; NR = 14
    vm = VM(k)
    k(f"s_mul_i32 s{M0_}, s{TBG}, 20480"); k(f"s_add_u32 s{M0_}, s{M0_}, {HS}")
    xl = []
    for kb in range(20):
        pre = [f"s_add_u32 s{M0_}, s{M0_}, 4096"] if (kb and kb % 4 == 0) else []
        xl.append((pre + [f"buffer_load_dwordx4 {v(X+4*kb,4)}, v4, s[12:15], s{M0_} offen offset:{1024*(kb%4)}{sc}"], ("X", kb)))
    res = [([f"s_add_u32 s{M1_}, s{SA}, {XB}", f"buffer_load_dwordx4 {v(R,4)}, v4, s[12:15], s{M1_} offen{sc}"], "R"),
           ([f"buffer_load_dwordx4 {v(R+4,4)}, v4, s[12:15], s{M1_} offen offset:1024{sc}"], "R"),
           ([f"s_add_u32 s{M1_}, s{SH}, {XB}", f"buffer_load_dwordx2 {v(R+8,2)}, v4, s[12:15], s{M1_} offen{sc}"], "R")]
    q = TQ(vm, xl + res + (early or []) + tail); q.pop(10)
    k("v_add_u32 v6, 0x10000, v4")
    def aread(slot, dst):
        off = slot * 1024
        return f"ds_read_b128 {v(dst,4)}, {'v6' if off >= 65536 else 'v4'} offset:{off % 65536}"
    seq = [(kb, l) for kb in range(20) for l in range(5)]
    PRE = 11
    for i in range(PRE): k(aread(seq[i][0]*5 + seq[i][1], AF + 4*(i % NR)))
    for i, (kb, l) in enumerate(seq):
        if l == 0: vm.wait(lambda t: t == ("X", kb))
        left = min(len(seq), i + PRE) - i - 1
        k(f"s_waitcnt lgkmcnt({left})")
        c = v(ACC + 4*l, 4)
        k(f"v_mfma_f32_16x16x32_bf16 {c}, {v(AF + 4*(i % NR),4)}, {v(X+4*kb,4)}, {c if kb else 0}")
        if i + PRE < len(seq):
            j = i + PRE; k(aread(seq[j][0]*5 + seq[j][1], AF + 4*(j % NR)))
        if l == 2 or (l == 4 and kb >= 8): q.pop()
    q.flush()
    k.stamp("gemm3")
    k("s_barrier")
    nq = TQ(vm, [(g, "N") for g in after_gemm(k)])
    vm.wait(lambda t: t == "R")
    k(f"s_mov_b32 s{M0_}, 0xffff0000")
    U = 32
    for l in range(5):
        for hf in range(2):
            src = resid_src(R, l, hf); u = U + 4*l + 2*hf; z = ACC + 4*l + 2*hf
            k(f"v_lshlrev_b32 v{u}, 16, v{src}"); k(f"v_and_b32 v{u+1}, s{M0_}, v{src}")
            k(f"v_pk_add_f32 {v(z,2)}, {v(z,2)}, {v(u,2)}")
    PK = 60
    for i in range(10): k(f"v_cvt_pk_bf16_f32 v{PK+i}, v{ACC+2*i}, v{ACC+2*i+1}")
    k(f"s_add_u32 s{M0_}, s{SA}, {X1}"); k(f"s_add_u32 s{M1_}, s{SH}, {X1}")
    vm.issue([f"buffer_store_dwordx4 {v(PK,4)}, v4, s[12:15], s{M0_} offen{ss}"], "S")
    vm.issue([f"buffer_store_dwordx4 {v(PK+4,4)}, v4, s[12:15], s{M0_} offen offset:1024{ss}"], "S")
    vm.issue([f"buffer_store_dwordx2 {v(PK+8,2)}, v4, s[12:15], s{M1_} offen{ss}"], "S")
    k(f"v_pk_mul_f32 v[72:73], {v(ACC,2)}, {v(ACC,2)}")
    k(f"v_pk_add_f32 v[70:71], {v(ACC,2)}, {v(ACC+2,2)}")
    k(f"v_pk_fma_f32 v[72:73], {v(ACC+2,2)}, {v(ACC+2,2)}, v[72:73]")
    for i in range(2, 10):
        z = ACC + 2*i
        k(f"v_pk_add_f32 v[70:71], v[70:71], {v(z,2)}")
        k(f"v_pk_fma_f32 v[72:73], {v(z,2)}, {v(z,2)}, v[72:73]")
    k("v_add_f32 v70, v70, v71"); k("v_add_f32 v72, v72, v73")
    k(f"s_lshl_b32 s{M0_}, s{TBG}, 3"); k(f"s_add_u32 s{M0_}, s{M0_}, s{FC}"); k(f"s_lshl_b32 s{M0_}, s{M0_}, 7"); k(f"s_add_u32 s{M0_}, s{M0_}, {ST2}")
    k("v_permlane32_swap_b32 v70, v72")
    k("v_add_f32 v70, v70, v72")
    k("v_mov_b32 v71, v70")
    k("v_permlane16_swap_b32 v70, v71")
    k("v_add_f32 v70, v70, v71")
    k("v_mov_b32 v71, v70")
    k("v_lshlrev_b32 v6, 3, v2")
    k("v_permlane32_swap_b32 v70, v71")
    k("s_mov_b64 exec, 0xffff")
    vm.issue([f"buffer_store_dwordx2 v[70:71], v6, s[12:15], s{M0_} offen{ss}"], "S")
    k("s_mov_b64 exec, -1")
    return vm, nq

def w3_l2_items(k, sbase=82):
    k(f"s_bfe_u32 s{sbase}, s2, 0x10002"); k(f"s_mul_i32 s{sbase}, s{sbase}, {56*20480}")
    k(f"s_lshr_b32 s{sbase+1}, s2, 3"); k(f"s_lshl_b32 s{sbase+1}, s{sbase+1}, 2"); k(f"s_add_u32 s{sbase+1}, s{sbase+1}, s10")
    k(f"s_mul_i32 s{sbase+1}, s{sbase+1}, 9216"); k(f"s_add_u32 s{sbase}, s{sbase}, s{sbase+1}"); k(f"s_add_u32 s{sbase}, s{sbase}, {W3T}")
    G = []
    for i in range(9):
        pre = [f"s_add_u32 s{sbase}, s{sbase}, 4096"] if (i and i % 4 == 0) else []
        G.append((pre + [f"buffer_load_dwordx4 v[28:31], v4, s[12:15], s{sbase} offen offset:{1024*(i%4)}"], "pf"))
    return G
```

```python
from ph_common import *
import ph_common as pc

CSL = 143360
P4_LDS = CSL + 512
T128, COL, NP, ODD, P0, TH, TBG = 24, 25, 26, 27, 28, 29, 30
CARRY = 24
CSV = 192

def p4_setup(k):
    k("s_and_b32 s36, s2, 7"); k("s_lshr_b32 s37, s2, 3")
    k(f"s_and_b32 s{T128}, s36, 3"); k("s_and_b32 s38, s37, 3"); k("s_lshl_b32 s38, s38, 2"); k(f"s_add_u32 s{T128}, s{T128}, s38")
    k(f"s_lshr_b32 s{COL}, s36, 2"); k(f"s_lshl_b32 s{COL}, s{COL}, 3"); k("s_lshr_b32 s38, s37, 2"); k(f"s_add_u32 s{COL}, s{COL}, s38")
    k(f"s_mul_i32 s38, s{COL}, 7")
    k(f"s_cmp_eq_u32 s{COL}, 15"); k("s_cselect_b32 s38, 103, s38")
    k(f"s_cmp_ge_u32 s{COL}, 14"); k(f"s_cselect_b32 s{NP}, 2, 3")
    k(f"s_and_b32 s{ODD}, s{COL}, 1")
    k(f"s_add_u32 s{P0}, s38, s{ODD}")
    k(f"s_lshl_b32 s{TH}, s{NP}, 1"); k(f"s_add_u32 s{TH}, s{TH}, s38")
    k(f"s_cmp_eq_u32 s{ODD}, 1"); k(f"s_cselect_b32 s{TH}, s38, s{TH}")
    k(f"s_lshl_b32 s{TBG}, s{T128}, 3"); k("s_lshl_b32 s38, s10, 1"); k(f"s_add_u32 s{TBG}, s{TBG}, s38")

def p4_pre_setup(k):
    k(f"s_mul_i32 s40, s{P0}, 20480"); k("s_mul_i32 s41, s10, 5120"); k("s_add_u32 s40, s40, s41"); k(f"s_add_u32 s40, s40, {W3T}")
    k(f"s_mul_i32 s42, s{TH}, 20480"); k("s_add_u32 s42, s42, s41"); k(f"s_add_u32 s42, s42, {W3T}")

def p4_tile_groups(l):
    src = f"s_add_u32 s44, s40, {l*20480}" if l < 6 else "s_mov_b32 s44, s42"
    src2 = f"s_add_u32 s44, s40, {l*20480 + 4096}" if l < 6 else "s_add_u32 s44, s42, 4096"
    G = []
    for i in range(5):
        pre = []
        if i == 0: pre = [f"s_add_u32 m0, s41, {l*20480}", src]
        if i == 4: pre = [f"s_add_u32 m0, s41, {l*20480 + 4096}", src2]
        G.append(pre + [f"buffer_load_dwordx4 v4, s[12:15], s44 offen offset:{1024*(i%4)} lds"])
    return G

def p4_pre_early(k):
    c = CSV
    G = [[f"v_lshrrev_b32 v{c}, 4, v0", f"v_add_u32 v{c+1}, s{P0}, v{c}", f"v_cmp_eq_u32 vcc, 6, v{c}", f"v_mov_b32 v{c+2}, s{TH}",
          f"v_cndmask_b32 v{c+1}, v{c+1}, v{c+2}, vcc", f"v_lshlrev_b32 v{c+1}, 6, v{c+1}", f"v_lshl_add_u32 v{c+1}, v2, 2, v{c+1}",
          f"s_mov_b32 s45, {CS3}", f"buffer_load_dword v{c+3}, v{c+1}, s[12:15], s45 offen"],
         [f"s_mov_b32 s46, {CS3 + F*4}", f"buffer_load_dword v{c+4}, v{c+1}, s[12:15], s46 offen"]]
    return G + p4_tile_groups(5) + p4_tile_groups(6)

def p4_pre_late(k):
    G = []
    for l in range(5): G += p4_tile_groups(l)
    return G

def p4_cs_table(k):
    c = CSV
    k(f"v_add_f32 v{c+3}, v{c+3}, v{c+4}")
    k(f"v_lshlrev_b32 v{c+4}, 2, v0"); k(f"v_add_u32 v{c+4}, {CSL}, v{c+4}")
    k("v_cmp_gt_u32 vcc, 112, v0")
    k("s_and_saveexec_b64 s[56:57], vcc")
    k(f"s_cbranch_execz {k.lab('nocs')}")
    k(f"ds_write_b32 v{c+4}, v{c+3}")
    k.label("nocs")
    k("s_mov_b64 exec, s[56:57]")
    k("s_waitcnt lgkmcnt(0)")

def p4_main(k, tail, after_gemm, early=None):
    sc = pc.SC; ss = pc.SS
    vm = VM(k)
    k(f"s_mul_i32 s47, s{TBG}, 20480"); k(f"s_add_u32 s47, s47, {X1}"); k("s_add_u32 s48, s47, 20480")
    xl = []
    for kb in range(20):
        for tb in range(2):
            pre = ["s_add_u32 s47, s47, 4096", "s_add_u32 s48, s48, 4096"] if (tb == 0 and kb and kb % 4 == 0) else []
            xl.append((pre + [f"buffer_load_dwordx4 {a((kb*2+tb)*4,4)}, v4, s[12:15], s{47+tb} offen offset:{1024*(kb%4)}{sc}"], ("X", kb)))
    k("v_lshlrev_b32 v6, 8, v3"); k("v_lshl_add_u32 v6, v2, 3, v6")
    k(f"s_lshl_b32 s37, s{TBG}, 10"); k(f"s_add_u32 s37, s37, {ST2}")
    stl = [([f"buffer_load_dwordx2 {v(8 + 4*tb + 2*h_, 2)}, v6, s[12:15], s37 offen offset:{1024*tb + 128*h_}{sc}"], "ST") for tb in range(2) for h_ in range(2)]
    q = TQ(vm, xl[:4] + stl + xl[4:] + (early or []) + tail); q.pop(14)
    k(f"s_mov_b32 s50, {f2u(GELU_C0)}"); k(f"s_mov_b32 s51, {f2u(GELU_C1)}")
    k(f"s_mov_b32 s54, {f2u(1.0/640)}"); k(f"s_mov_b32 s55, {f2u(1e-5)}")
    st = []
    for tb in range(2):
        b = 8 + 4*tb; o = 16 + 2*tb
        st += [f"v_add_f32 v{o}, v{b}, v{b+2}", f"v_add_f32 v{o+1}, v{b+1}, v{b+3}"]
    for tb in range(2):
        for o in (16 + 2*tb, 17 + 2*tb):
            t_ = 8 + (o - 16)
            st += [f"v_mov_b32 v{t_}, v{o}", f"v_permlane32_swap_b32 v{o}, v{t_}", f"v_add_f32 v{o}, v{o}, v{t_}",
                   f"v_mov_b32 v{t_}, v{o}", f"v_permlane16_swap_b32 v{o}, v{t_}", f"v_add_f32 v{o}, v{o}, v{t_}"]
    for tb in range(2):
        o = 16 + 2*tb
        st += [f"v_mul_f32 v{o}, s54, v{o}", f"v_mul_f32 v{o+1}, s54, v{o+1}", f"v_fma_f32 v{o+1}, -v{o}, v{o}, v{o+1}",
               f"v_max_f32 v{o+1}, 0, v{o+1}", f"v_add_f32 v{o+1}, s55, v{o+1}", f"v_rsq_f32 v{o+1}, v{o+1}"]
        st += gelu_scale_consts(o+1, 168 + 2*tb, 172 + tb, 50, 51)
    sq = Queue(k, [[x] for x in st])
    ACC = 32; AF = 176; CS = 120; T = 24; PK = 148; NR = 14
    k("v_lshlrev_b32 v5, 4, v3"); k(f"v_add_u32 v5, {CSL}, v5")
    for l in range(7): k(f"ds_read_b128 {v(CS+4*l,4)}, v5 offset:{64*l}")
    k("v_add_u32 v6, 0x10000, v4"); k("v_add_u32 v7, 0x20000, v4")
    def accr(l, tb): return ACC + 16*(l//2) + 8*tb + 4*(l % 2) if l < 6 else ACC + 48 + 4*tb
    def gemm(tiles):
        seq = [(kb, l) for kb in range(20) for l in tiles]
        PRE = 11
        def rd(i):
            kb, l = seq[i]; off = l*20480 + kb*1024
            reg = "v4" if off < 65536 else ("v6" if off < 131072 else "v7")
            return f"ds_read_b128 {v(AF + 4*(i % NR),4)}, {reg} offset:{off % 65536}"
        k("s_waitcnt lgkmcnt(0)")
        for i in range(PRE): k(rd(i))
        for i, (kb, l) in enumerate(seq):
            if l == tiles[0]: vm.wait(lambda t: t == ("X", kb) or (kb >= 2 and t == "ST"))
            left = min(len(seq), i + PRE) - i - 1
            k(f"s_waitcnt lgkmcnt({left})")
            for tb in range(2):
                c = v(accr(l, tb), 4)
                k(f"v_mfma_f32_16x16x32_bf16 {c}, {v(AF + 4*(i % NR),4)}, {a((kb*2+tb)*4,4)}, {c if kb else 0}")
                if tb == 0 and i + PRE < len(seq): k(rd(i + PRE))
            if l in (tiles[0], tiles[3]) or (kb >= 3 and l == tiles[1]) or (kb >= 16 and l == tiles[2]): q.pop()
            if kb >= 2: sq.pop()
        q.flush(); sq.flush()
    k(f"s_cmp_eq_u32 s{NP}, 2"); k(f"s_cbranch_scc1 {k.lab('g5')}")
    save = (list(q.items), list(vm.ops), list(sq.g))
    gemm([0, 1, 2, 3, 4, 5, 6])
    ops_after = list(vm.ops)
    k(f"s_branch {k.lab('gdone')}")
    k.label("g5")
    q.items, vm.ops, sq.g = save
    gemm([0, 1, 2, 3, 6])
    assert vm.ops == ops_after
    k.label("gdone")
    k.stamp("gemm4")
    nq = TQ(vm, [(g, "N") for g in after_gemm(k)])
    k(f"s_mul_i32 s58, s{TBG}, 55296"); k(f"s_lshr_b32 s59, s{P0}, 1"); k("s_lshl_b32 s59, s59, 10")
    k("s_add_u32 s58, s58, s59"); k(f"s_add_u32 s58, s58, {GG}"); k("s_add_u32 s59, s58, 55296")
    def epi(j, carry):
        streams = []
        for tb in range(2):
            for s_ in (range(2) if j < 3 else [0]):
                L = []; l = 2*j + s_
                for hf in range(2):
                    z = accr(l, tb) + 2*hf; t = T + 2*len(streams); st_ = 16 + 2*tb; cs = CS + 4*l + 2*hf
                    first = [f"v_pk_fma_f32 {v(z,2)}, {v(cs,2)}, {v(st_,2)}, {v(z,2)} op_sel:[0,0,0] op_sel_hi:[1,0,1] neg_lo:[1,0,0] neg_hi:[1,0,0]"]
                    L += gelu_fold(z, t, PK + 8*(j % 2) + 4*tb + 2*s_ + hf if j < 3 else PK + 4*tb + hf, 168 + 2*tb, 172 + tb, first)
                streams.append(L)
        for n, ln in enumerate(interleave(*streams)):
            k(ln)
            if carry and n % CARRY == CARRY - 1: nq.pop()
        if j < 3:
            p = PK + 8*(j % 2)
            vm.issue([f"buffer_store_dwordx4 {v(p,4)}, v4, s[12:15], s58 offen offset:{1024*j}{ss}"], "S")
            vm.issue([f"buffer_store_dwordx4 {v(p+4,4)}, v4, s[12:15], s59 offen offset:{1024*j}{ss}"], "S")
    epi(0, True); epi(1, True)
    k(f"s_cmp_eq_u32 s{NP}, 2"); k(f"s_cbranch_scc1 {k.lab('noe2')}")
    before = len(vm.ops)
    epi(2, False)
    del vm.ops[before:]
    k.label("noe2")
    epi(3, True)
    k(f"s_mul_i32 s58, s{TBG}, 55296"); k(f"s_lshr_b32 s59, s{TH}, 1"); k("s_lshl_b32 s59, s59, 10")
    k("s_add_u32 s58, s58, s59"); k(f"s_lshl_b32 s59, s{ODD}, 3"); k("s_add_u32 s58, s58, s59"); k(f"s_add_u32 s58, s58, {GG}")
    k("s_add_u32 s59, s58, 55296")
    vm.issue([f"buffer_store_dwordx2 {v(PK,2)}, v4, s[12:15], s58 offen{ss}"], "S")
    vm.issue([f"buffer_store_dwordx2 {v(PK+4,2)}, v4, s[12:15], s59 offen{ss}"], "S")
    return vm, nq

def w4_l2_items(k, sbase=82):
    k(f"s_bfe_u32 s{sbase}, s2, 0x10002"); k(f"s_mul_i32 s{sbase}, s{sbase}, {20*55296}")
    k(f"s_lshr_b32 s{sbase+1}, s2, 3"); k(f"s_lshl_b32 s{sbase+1}, s{sbase+1}, 2"); k(f"s_add_u32 s{sbase+1}, s{sbase+1}, s10")
    k(f"s_mul_i32 s{sbase+1}, s{sbase+1}, 9216"); k(f"s_add_u32 s{sbase}, s{sbase}, s{sbase+1}"); k(f"s_add_u32 s{sbase}, s{sbase}, {W4T}")
    G = []
    for i in range(9):
        pre = [f"s_add_u32 s{sbase}, s{sbase}, 4096"] if (i and i % 4 == 0) else []
        G.append((pre + [f"buffer_load_dwordx4 v[164:167], v4, s[12:15], s{sbase} offen offset:{1024*(i%4)}"], "pf"))
    return G
```

```python
from ph_common import *
import ph_common as pc
from p3 import T64, FC, ODD, TBG, FB, SA, SH, WB, LB, TMP

P5_LDS = 61440
NWA = 64
WV = 232

def wreg(i, l):
    f = i*5 + l
    return a(4*f, 4) if f < NWA else v(WV + 4*(f - NWA), 4)

def p5_pre_setup(k):
    k(f"s_mul_i32 s{TMP}, s10, 14336")
    for l in range(5):
        k(f"s_mul_i32 s{WB+l}, s{FB+l}, 55296"); k(f"s_add_u32 s{WB+l}, s{WB+l}, s{TMP}"); k(f"s_add_u32 s{WB+l}, s{WB+l}, {W4T}")
    k("s_cmp_eq_u32 s10, 3"); k(f"s_cselect_b32 s{LB}, 0x40000000, 0")

def p5_w_group(i, l):
    hi = (i // 4) * 4096
    pre = [f"s_add_u32 s{TMP+1}, s{WB+l}, {hi}"] if hi else [f"s_mov_b32 s{TMP+1}, s{WB+l}"]
    if i >= 12: pre.append(f"s_add_u32 s{TMP+1}, s{TMP+1}, s{LB}")
    return pre + [f"buffer_load_dwordx4 {wreg(i,l)}, v4, s[12:15], s{TMP+1} offen offset:{1024*(i%4)} sc1"]

def p5_pre_early(k):
    return [p5_w_group(f // 5, f % 5) for f in range(40, 70)]

def p5_pre_late(k):
    return [p5_w_group(f // 5, f % 5) for f in range(0, 40)]

def p5_main(k):
    sc = pc.SC
    R = 100
    vm = VM(k)
    k("s_mul_i32 s36, s10, 14336")
    for j in range(4):
        k(f"s_add_u32 s37, s10, {j}"); k("s_and_b32 s37, s37, 3")
        k(f"s_lshl_b32 s38, s{T64}, 2"); k("s_add_u32 s37, s37, s38")
        k(f"s_mul_i32 s{46+j}, s37, 55296"); k(f"s_add_u32 s{46+j}, s{46+j}, s36"); k(f"s_add_u32 s{46+j}, s{46+j}, {GG}")
    k("s_cmp_eq_u32 s10, 3"); k("s_cselect_b32 s45, 0x40000000, 4096")
    XR = 124; NS = 4
    xl = []
    for i in range(14):
        for j in range(4):
            pre = [f"s_add_u32 s{46+j}, s{46+j}, {'s45' if i == 12 else 4096}"] if (i and i % 4 == 0) else []
            xl.append((pre + [f"buffer_load_dwordx4 {v(XR + 16*(i % NS) + 4*j,4)}, v4, s[12:15], s{46+j} offen offset:{1024*(i%4)}{sc}"], ("X", i)))
    res = []
    for base, reg in ((HT, R), (X1, R + 10)):
        res.append(([f"s_add_u32 s36, s{SA}, {base}", f"buffer_load_dwordx4 {v(reg,4)}, v4, s[12:15], s36 offen{sc}"], "R"))
        res.append(([f"buffer_load_dwordx4 {v(reg+4,4)}, v4, s[12:15], s36 offen offset:1024{sc}"], "R"))
        res.append(([f"s_add_u32 s37, s{SH}, {base}", f"buffer_load_dwordx2 {v(reg+8,2)}, v4, s[12:15], s37 offen{sc}"], "R"))
    q = TQ(vm, xl); q.pop(12)
    rq = TQ(vm, res)
    ACC = 16; U = 8
    nx = lambda: sum(1 for t in vm.ops if isinstance(t, tuple))
    for i in range(14):
        vm.wait(lambda t: t == ("X", i))
        if i == 0: k.stamp("step0")
        n = 0
        for j in range(4):
            for l in range(5):
                c = v(ACC + 20*j + 4*l, 4)
                k(f"v_mfma_f32_16x16x32_bf16 {c}, {wreg(i,l)}, {v(XR + 16*(i % NS) + 4*j,4)}, {c if i else 0}")
                n += 1
                if n % 5 == 3:
                    if len(q) and nx() < 4*(i + NS): q.pop()
                    elif not len(q): rq.pop()
    rq.flush()
    k.stamp("main5")
    for j in range(1, 4):
        k(f"s_add_u32 s37, s10, {j}"); k("s_and_b32 s37, s37, 3"); k("s_mul_i32 s37, s37, 15360")
        k(f"s_add_u32 s37, s37, {(j-1)*5120}")
        k(f"v_add_u32 v{5+j}, s37, v4")
    for j in range(1, 4):
        for l in range(5):
            k(f"ds_write_b128 v{5+j}, {v(ACC + 20*j + 4*l,4)} offset:{1024*l}")
    k("s_mul_i32 s37, s10, 15360")
    k("v_add_u32 v9, s37, v4")
    vm.wait(lambda t: t == "R")
    k("s_mov_b32 s36, 0xffff0000")
    for l in range(5):
        for hf in range(2):
            z = ACC + 4*l + 2*hf
            for rr in (R, R + 10):
                k(f"v_lshlrev_b32 v{U+2}, 16, v{resid_src(rr,l,hf)}"); k(f"v_and_b32 v{U+3}, s36, v{resid_src(rr,l,hf)}")
                k(f"v_pk_add_f32 {v(z,2)}, {v(z,2)}, {v(U+2,2)}")
    k(f"s_lshl_b32 s37, s{TBG}, 4")
    k("v_add_u32 v6, s37, v2"); k("v_mul_u32_u24 v6, 1280, v6"); k("v_lshl_add_u32 v6, v3, 4, v6")
    k(f"s_lshr_b32 s37, s{FB}, 1"); k("s_lshl_b32 s37, s37, 6")
    k(f"s_lshr_b32 s38, s{FB+4}, 1"); k("s_lshl_b32 s38, s38, 6"); k(f"s_lshl_b32 s39, s{ODD}, 3"); k("s_add_u32 s38, s38, s39")
    k("s_waitcnt lgkmcnt(0)")
    k("s_barrier")
    P = 36; PK = 100
    for j in range(3):
        for l in range(5):
            k(f"ds_read_b128 {v(P + 20*j + 4*l,4)}, v9 offset:{j*5120 + 1024*l}")
    for j in range(3):
        k(f"s_waitcnt lgkmcnt({10 - 5*j})")
        for i in range(10): k(f"v_pk_add_f32 {v(ACC+2*i,2)}, {v(ACC+2*i,2)}, {v(P+20*j+2*i,2)}")
    for i in range(10): k(f"v_cvt_pk_bf16_f32 v{PK+i}, v{ACC+2*i}, v{ACC+2*i+1}")
    k(f"buffer_store_dwordx4 {v(PK,4)}, v6, s[20:23], s37 offen")
    k(f"buffer_store_dwordx4 {v(PK+4,4)}, v6, s[20:23], s37 offen offset:64")
    k(f"buffer_store_dwordx2 {v(PK+8,2)}, v6, s[20:23], s38 offen")
```

```python
import sys
from asmlib import *
from layout import *
from k0 import k0
K0_GRID = 340
from k1 import k1, K1_LDS
from kg import kg, KG_LDS
FUSED = True
HEADER = """; Fused H3 (shift conv, gated long conv) + S-MLP mixer block, six dependent launches.
"""
def build(extra_empty=0):
    if FUSED:
        ks = [k0(), k1(), kg()]
        launches = [("prep0_kernel", K0_GRID, 256, 81920), ("conv_kernel", 256, 256, K1_LDS), ("mlp_kernel", 256, 256, KG_LDS)]
    else:
      ks = [k0(), k1(), k2(), k3(), k4(), k5()]
      launches = [("prep0_kernel", K0_GRID, 256, 81920), ("conv_kernel", 256, 256, K1_LDS), ("g1_kernel", 256, 256, K2_LDS),
                ("g2_kernel", 256, 256, K3_LDS), ("g3_kernel", 256, 256, K4_LDS), ("g4_kernel", 256, 256, K5_LDS)]
    if extra_empty:
        e = Kern("noop_kernel", vgpr=8, sgpr=16); e("s_endpgm"); ks.append(e)
        launches += [("noop_kernel", 256, 256, 0)] * extra_empty
    return build_file(ks, launches, HEADER)
def build_diag():
    import asmlib
    for i, n in enumerate(NAMES): asmlib.DIAG[n] = i
    t = build()
    asmlib.DIAG.clear()
    return t
NAMES = ["prep0_kernel","conv_kernel","g1_kernel","g2_kernel","g3_kernel","g4_kernel","mlp_kernel"]
def write_meta(path):
    import json, asmlib
    for i, n in enumerate(NAMES): asmlib.DIAG[n] = i
    m = {}
    for f, n in (((k0, 320), (k1, 160), (kg, 256)) if FUSED else ((k0, 320), (k1, 160), (k2, 256), (k3, 256), (k4, 256), (k5, 256))):
        k = f(); m[k.name] = {"names": k.names, "nwg": n, "idx": k.diag}
    asmlib.DIAG.clear()
    json.dump(m, open(path, "w"))
    return m
def build_dbgt():
    import asmlib
    for i, n in enumerate(["prep0_kernel","conv_kernel","g1_kernel","g2_kernel","g3_kernel","g4_kernel"]): asmlib.DBGT[n] = i
    t = build()
    asmlib.DBGT.clear()
    return t
if __name__ == "__main__":
    if len(sys.argv) > 2 and sys.argv[2] == "dbgt":
        open(sys.argv[1], "w").write(build_dbgt()); sys.exit(0)
    if len(sys.argv) > 2 and sys.argv[2] == "diag":
        open(sys.argv[1], "w").write(build_diag()); sys.exit(0)
    out = sys.argv[1] if len(sys.argv) > 1 else "pipe.s"
    open(out, "w").write(build(int(sys.argv[2]) if len(sys.argv) > 2 else 0))
```

```python
import re

def v(a, n=1): return f"v{a}" if n == 1 else f"v[{a}:{a+n-1}]"
def a(x, n=1): return f"a{x}" if n == 1 else f"a[{x}:{x+n-1}]"
def s(a_, n=1): return f"s{a_}" if n == 1 else f"s[{a_}:{a_+n-1}]"

_REG = re.compile(r"(?<![\w.])([vas])(?:(\d+)\b|\[(\d+):(\d+)\])")

def regs_in(text):
    out = []
    for m in _REG.finditer(text):
        k = m.group(1)
        if m.group(2) is not None:
            out.append((k, int(m.group(2)), int(m.group(2))))
        else:
            out.append((k, int(m.group(3)), int(m.group(4))))
    return out

def expand(rs):
    o = set()
    for k, lo, hi in rs:
        for i in range(lo, hi + 1): o.add((k, i))
    return o

TRANS = ("v_exp_f32", "v_log_f32", "v_rcp_f32", "v_rsq_f32", "v_sqrt_f32", "v_sin_f32", "v_cos_f32", "v_rcp_iflag_f32")

class Ins:
    __slots__ = ("text", "op", "kind", "defs", "uses", "srcc", "sdefs", "raw", "dpp", "wide_store", "vccdef", "vccuse", "m0def", "m0use", "label", "target", "states", "execdef")
    def __init__(self, text):
        self.text = text
        t = text.split(";")[0].strip()
        self.raw = t
        self.label = None; self.target = None
        self.defs = set(); self.uses = set(); self.srcc = set(); self.sdefs = set()
        self.dpp = False; self.wide_store = False; self.vccdef = False; self.vccuse = False
        self.m0def = False; self.m0use = False; self.states = 1; self.execdef = False
        if t.endswith(":") and " " not in t:
            self.kind = "label"; self.label = t[:-1]; self.op = ""; self.states = 0; return
        if not t or t.startswith("."):
            self.kind = "dir"; self.op = ""; self.states = 0; return
        parts = t.split(None, 1)
        self.op = op = parts[0]
        rest = parts[1] if len(parts) > 1 else ""
        ops = [x.strip() for x in self._split(rest)]
        if op == "s_nop":
            self.kind = "nop"; self.states = int(ops[0], 0) + 1; return
        if op.startswith("s_cbranch") or op == "s_branch":
            self.kind = "branch"; self.target = ops[0]; return
        if op.startswith("v_mfma"):
            self.kind = "mfma"
            self.defs = expand(regs_in(ops[0]))
            self.uses = expand(regs_in(ops[1])) | expand(regs_in(ops[2]))
            self.srcc = expand(regs_in(ops[3]))
            return
        if op.startswith("v_"):
            self.kind = "trans" if op.replace("_e32", "").replace("_e64", "") in TRANS else "valu"
            self.dpp = ("dpp" in op) or ("row_" in rest) or ("quad_perm" in rest) or ("wave_" in rest) or ("row_bcast" in rest)
            if op.startswith("v_cmp"):
                d = ops[0]
                if d == "vcc": self.vccdef = True
                else: self.sdefs = expand(regs_in(d))
                for o in ops[1:]: self.uses |= expand(regs_in(o))
                if op.startswith("v_cmpx"): self.execdef = True
                return
            if op.startswith("v_readfirstlane") or op.startswith("v_readlane"):
                self.sdefs = expand(regs_in(ops[0]))
                for o in ops[1:]: self.uses |= expand(regs_in(o))
                self.kind = "readlane"
                return
            if op.startswith("v_permlane") and "swap" in op:
                self.defs = expand(regs_in(ops[0])) | expand(regs_in(ops[1]))
                self.uses = set(self.defs)
                self.kind = "permlane"
                return
            self.defs = expand(regs_in(ops[0]))
            k = 1
            if "_co_" in op or op.startswith("v_div_scale") or op.startswith("v_mad_u64") or op.startswith("v_mad_i64"):
                if ops[1] == "vcc": self.vccdef = True
                else: self.sdefs = expand(regs_in(ops[1]))
                k = 2
            for o in ops[k:]:
                self.uses |= expand(regs_in(o))
                if o == "vcc": self.vccuse = True
            if op.startswith("v_cndmask") and len(ops) == 3: self.vccuse = True
            if op.startswith("v_fmac") or op.startswith("v_mac") or op.startswith("v_pk_fmac") or op.startswith("v_dot2c") or op.startswith("v_writelane"):
                self.uses |= self.defs
            if "op_sel" in rest and "pk_" not in op: pass
            return
        if op.startswith("buffer_") or op.startswith("global_"):
            self.kind = "vmem"
            allr = expand(regs_in(rest))
            if "lds" in rest.split():
                self.m0use = True; self.uses = allr
            elif "_load" in op:
                self.defs = expand(regs_in(ops[0]))
                for o in ops[1:]: self.uses |= expand(regs_in(o))
            elif "atomic" in op:
                self.uses = allr
                if "sc0" in rest.split(): self.defs = expand(regs_in(ops[0]))
            else:
                self.uses = allr
                if "x4" in op or "x3" in op:
                    if op.startswith("buffer_"): self.wide_store = expand(regs_in(ops[0]))
                    else: self.wide_store = expand(regs_in(ops[1]))
            return
        if op.startswith("ds_"):
            self.kind = "ds"
            if op.startswith("ds_read") or op.startswith("ds_bpermute") or op.startswith("ds_permute") or op.startswith("ds_swizzle"):
                self.defs = expand(regs_in(ops[0]))
                for o in ops[1:]: self.uses |= expand(regs_in(o))
            else:
                self.uses = expand(regs_in(rest))
            return
        if op.startswith("s_"):
            self.kind = "salu"
            if op.startswith("s_cmp") or op in ("s_waitcnt", "s_barrier", "s_endpgm", "s_setprio", "s_sleep"):
                for o in ops: self.uses |= expand(regs_in(o))
                return
            if ops:
                d = ops[0]
                if d == "m0": self.m0def = True
                elif d == "exec": pass
                elif d == "vcc": pass
                else: self.sdefs = expand(regs_in(d))
                for o in ops[1:]: self.uses |= expand(regs_in(o))
            return
        self.kind = "other"
    @staticmethod
    def _split(rest):
        out = []; depth = 0; cur = ""
        for ch in rest:
            if ch == "[": depth += 1
            if ch == "]": depth -= 1
            if ch == "," and depth == 0:
                out.append(cur); cur = ""
            else: cur += ch
        if cur.strip(): out.append(cur)
        return out

VALUISH = ("valu", "trans", "readlane", "permlane")

def need(prev, cur):
    n = 0
    pv = prev.kind in VALUISH
    cv = cur.kind in VALUISH
    vec = lambda st: {r for r in st if r[0] in "va"}
    if pv and prev.kind != "readlane":
        d = vec(prev.defs)
        if cur.kind == "mfma" and d & (cur.uses | cur.srcc): n = max(n, 2)
        if cur.kind == "readlane" and d & cur.uses: n = max(n, 1)
        if cur.kind == "permlane" and d & cur.uses: n = max(n, 2)
        if cur.dpp and d & cur.uses: n = max(n, 2)
        if prev.kind == "trans" and cv and cur.kind != "trans" and d & cur.uses: n = max(n, 1)
        if prev.kind == "trans" and cur.kind == "trans" and d & cur.uses: n = max(n, 1)
    if pv:
        sd = prev.sdefs
        if sd:
            if cur.kind == "vmem" and sd & cur.uses: n = max(n, 5)
            if cv and sd & cur.uses: n = max(n, 4 if cur.kind == "readlane" else 2)
            if cur.kind in ("salu", "branch") and sd & cur.uses: n = max(n, 4)
            if cur.kind == "mfma" and sd & cur.uses: n = max(n, 2)
        if prev.vccdef and cv and cur.vccuse: n = max(n, 2)
        if prev.vccdef and cur.kind in ("salu", "branch") and ("vcc" in cur.raw): n = max(n, 5)
        if prev.execdef and (cv or cur.kind == "mfma"): n = max(n, 5)
    if prev.op.startswith("v_dot"):
        d = vec(prev.defs)
        if d & (cur.uses | cur.defs | cur.srcc):
            same_acc = cur.op == prev.op and cur.defs == prev.defs and cur.raw.split(",")[-1].strip() == prev.raw.split(None,1)[1].split(",")[0].strip() \
                       and not (d & (expand(regs_in(cur.raw.split(",")[1])) | expand(regs_in(cur.raw.split(",")[2]))))
            if not same_acc: n = max(n, 3)
    if prev.kind == "mfma":
        big = "32x32" in prev.op
        d = prev.defs
        if cur.kind == "mfma":
            if d & cur.uses: n = max(n, 12 if big else 8)
            if d & cur.srcc and d != cur.srcc: n = max(n, 10 if big else 6)
            if d & cur.defs and d != cur.srcc: n = max(n, 12 if big else 8)
        elif cv or cur.kind in ("vmem", "ds"):
            if d & (cur.uses | cur.defs): n = max(n, 12 if big else 8)
        if cv and prev.srcc & vec(cur.defs): n = max(n, 7 if big else 3)
    if prev.m0def and cur.m0use: n = max(n, 1)
    if prev.wide_store and (cv or cur.kind in ("ds", "vmem", "mfma")) and prev.wide_store & vec(cur.defs):
        n = max(n, 2)
    return n

MAXD = 13

def check_smem_races(lines):
    pend = set()
    for l in lines:
        x = Ins(l)
        if x.kind in ("label", "dir"): continue
        if x.op.startswith("s_load") or x.op.startswith("s_memtime") or x.op.startswith("s_memrealtime"):
            ops = Ins._split(x.raw.split(None, 1)[1])
            pend |= expand(regs_in(ops[0])); continue
        if x.op == "s_waitcnt" and "lgkmcnt(0)" in x.raw: pend = set(); continue
        touched = {r for r in (x.uses | x.sdefs | x.defs) if r[0] == "s"}
        if touched & pend: raise AssertionError(f"register of an in-flight scalar load touched: {x.raw}")

def pad_hazards(lines, verbose=False):
    check_smem_races(lines)
    ins = [Ins(l) for l in lines]
    labels = {x.label: i for i, x in enumerate(ins) if x.kind == "label"}
    inserted = 0
    out = []
    def required(hist, cur):
        dist = 0; worst = 0
        for p in reversed(hist):
            if p.states == 0: continue
            r = need(p, cur) - dist
            if r > worst: worst = r
            dist += p.states
            if dist >= MAXD: break
        return worst
    def mk_nop(k):
        res = []
        while k > 0:
            t = min(k, 16); res.append(Ins(f"  s_nop {t-1}")); k -= t
        return res
    for i, x in enumerate(ins):
        if x.states:
            r = required(out, x)
            if r > 0:
                if verbose: print(f"pad {r} before: {x.raw}")
                out += mk_nop(r); inserted += r
        if x.kind == "branch" and x.target in labels:
            j = labels[x.target]; dist_pad = 0
            fake = out + [x]
            worst = 0; k = j; walked = []
            cnt = 0
            while k < len(ins) and cnt < MAXD:
                y = ins[k]
                if y.states:
                    r = required(fake + walked, y)
                    worst = max(worst, r)
                    walked.append(y); cnt += y.states
                    if y.kind == "branch" and y.op == "s_branch": break
                    if y.op == "s_endpgm": break
                k += 1
            if worst > 0:
                if verbose: print(f"pad {worst} before branch: {x.raw}")
                out += mk_nop(worst); inserted += worst
        out.append(x)
    return [o.text for o in out], inserted

DIAG = {}
DBGT = {}
class Kern:
    def __init__(self, name, vgpr=256, agpr=0, sgpr=102):
        self.name = name; self.L = []; self.vgpr = vgpr; self.agpr = agpr; self.sgpr = sgpr
        if name in DBGT:
            self.dbgidx = DBGT[name]; self.sgpr = 102
        if name in DIAG:
            self.diag = DIAG[name]; self.sgpr = 102
        self._n = 0
    def __call__(self, t):
        for ln in t.split("\n"):
            ln = ln.strip()
            if not ln: continue
            self.L.append(ln if (ln.endswith(":") and " " not in ln) else "  " + ln)
    def lab(self, n): return f"{self.name}_{n}"
    def label(self, n): self.L.append(self.lab(n) + ":")
    def uniq(self, base):
        self._n += 1; return f"{base}{self._n}"
    diag = None
    nst = 0
    only = None
    def stamp(self, name=""):
        if self.diag is None: return
        if self.only is not None and name not in self.only: return
        self("s_memtime s[98:99]")
        self("s_waitcnt lgkmcnt(0)")
        self(f"s_mov_b32 s{86 + self.nst}, s98")
        self.names = getattr(self, "names", []) + [name]
        self.nst += 1
        assert self.nst <= 12
    def stamp_begin(self):
        self.dbg_begin()
        if self.diag is None: return
        self("s_memrealtime s[100:101]")
        self.stamp("begin")
    def stamp_flush(self, ws_lo, base):
        self.dbg_end()
        if self.diag is None: return
        self.stamp("end")
        self("s_memrealtime s[98:99]")
        self("s_waitcnt vmcnt(0) lgkmcnt(0)")
        self(f"s_load_dwordx2 s[60:61], s[0:1], 104")
        self("s_waitcnt lgkmcnt(0)")
        self(f"s_add_u32 s60, s60, {base}"); self("s_addc_u32 s61, s61, 0"); self("s_mov_b32 s62, 0x1000000"); self("s_mov_b32 s63, 0x20000")
        self(f"s_add_u32 s64, s2, {self.diag*512}"); self("s_lshl_b32 s64, s64, 2")
        self("v_lshrrev_b32 v1, 6, v0"); self("s_nop 1"); self("v_readfirstlane_b32 s65, v1"); self("s_nop 4"); self("s_add_u32 s64, s64, s65"); self("s_lshl_b32 s64, s64, 7")
        self("v_mov_b32 v1, 0")
        for i in range(self.nst):
            self(f"v_mov_b32 v2, s{86+i}")
            self(f"buffer_store_dword v2, v1, s[60:63], s64 offen offset:{4*i}")
            self("s_nop 1")
        self("v_mov_b32 v2, s100"); self("buffer_store_dword v2, v1, s[60:63], s64 offen offset:120"); self("s_nop 1")
        self("v_mov_b32 v2, s98"); self("buffer_store_dword v2, v1, s[60:63], s64 offen offset:124")
    dbgidx = None
    def dbg_begin(self):
        if self.dbgidx is None: return
        self("s_memrealtime s[100:101]")
    def dbg_end(self):
        if self.dbgidx is None: return
        i = self.dbgidx
        self("s_waitcnt vmcnt(0) lgkmcnt(0)")
        self("s_memrealtime s[98:99]")
        self("s_load_dwordx2 s[76:77], s[0:1], 96")
        self("s_waitcnt lgkmcnt(0)")
        self(f"s_add_u32 s76, s76, {512*(5-i)}"); self("s_addc_u32 s77, s77, 0"); self("s_mov_b32 s78, 256"); self("s_mov_b32 s79, 0x20000")
        self("v_mov_b32 v1, 0"); self("v_mov_b32 v2, s98"); self("v_not_b32 v3, s100")
        lab = self.lab(self.uniq("nodbg"))
        self("s_and_b32 s75, s2, 15"); self("s_cmp_lg_u32 s75, 0"); self(f"s_cbranch_scc1 {lab}")
        self("v_cmp_eq_u32 vcc, 0, v0")
        self("s_and_saveexec_b64 s[72:73], vcc")
        self(f"s_cbranch_execz {lab}")
        self(f"buffer_atomic_umax v2, v1, s[76:79], 0 offen offset:{8*i+4}")
        self(f"buffer_atomic_umax v3, v1, s[76:79], 0 offen offset:{8*i}")
        self("s_waitcnt vmcnt(0)")
        self.L.append(lab + ":")
    def srd(self, sreg, ptr_lo, nbytes, add=0):
        if add:
            self(f"s_add_u32 s{sreg}, s{ptr_lo}, {add}")
            self(f"s_addc_u32 s{sreg+1}, s{ptr_lo+1}, 0")
        else:
            self(f"s_mov_b32 s{sreg}, s{ptr_lo}")
            self(f"s_mov_b32 s{sreg+1}, s{ptr_lo+1}")
        self(f"s_mov_b32 s{sreg+2}, {nbytes}")
        self(f"s_mov_b32 s{sreg+3}, 0x20000")
    def text(self, verbose=False):
        body, n = pad_hazards(self.L, verbose)
        hdr = f".globl {self.name}\n.p2align 8\n.type {self.name},@function\n{self.name}:\n"
        return hdr + "\n".join(body) + "\n", n
    def desc(self):
        tot = self.vgpr + self.agpr if self.agpr else self.vgpr
        acc = (self.vgpr + 3) // 4 * 4
        return f""".amdhsa_kernel {self.name}
  .amdhsa_next_free_vgpr {tot}
  .amdhsa_next_free_sgpr {self.sgpr}
  .amdhsa_accum_offset {acc}
  .amdhsa_group_segment_fixed_size 0
  .amdhsa_kernarg_size 112
  .amdhsa_user_sgpr_count 2
  .amdhsa_user_sgpr_kernarg_segment_ptr 1
  .amdhsa_system_sgpr_workgroup_id_x 1
  .amdhsa_float_denorm_mode_32 3
.end_amdhsa_kernel
"""

def build_file(kernels, launches, header_comments=""):
    t = ""
    for n, g, b, l in launches:
        t += f"; @launch kernel={n} grid=({g},1,1) block=({b},1,1) lds={l}\n"
    t += header_comments
    t += '.amdgcn_target "amdgcn-amd-amdhsa--gfx950"\n.text\n'
    for k in kernels:
        body, n = k.text()
        t += body
    t += "text_end:\n"
    t += '.section .rodata,"a"\n'
    for k in kernels:
        t += ".p2align 6\n" + k.desc()
    return t
```

```python
from ph_common import *
import ph_common as pc
import p2, p3, p4, p5

LDS = p4.P4_LDS
C2, C3, C4 = CNT, CNT + 64*128, CNT + 128*128
C0, C1, CPA, CPB = CNT + 192*128, CNT + 232*128, CNT + 240*128, CNT + 241*128
FLG = None
FALL = CNT + 242*128
SPIN_LIMIT = 200000
SG, SG2 = 84, 85
PFSTART = 1
PFGAP = 5
DRAIN_LOADS = 10
MID = (99, 99, 16)
ONLY = None
CPY = 4160
WREG = 4608 + 2*CPY
CONVL = 92160
KVL = 17408
KVO = 2*KVL

def atomic_signal(k, offset_code, lab, target, flag_code=None, first=False):
    if target is None:
        k("s_cmp_lg_u32 s10, 0"); k(f"s_cbranch_scc1 {lab}")
        if first: wait_init(k)
        for ln in offset_code: k(ln)
        k("v_mov_b32 v5, 0"); k("v_mov_b32 v6, 1")
        k("s_mov_b64 exec, 1")
        k(f"buffer_atomic_add v6, v5, s[12:15], s{SG} offen sc1")
        k("s_mov_b64 exec, -1")
        k.L.append(lab + ":")
        return
    k("s_cmp_lg_u32 s10, 0"); k(f"s_cbranch_scc1 {lab}")
    if first: wait_init(k)
    for ln in offset_code: k(ln)
    k("v_mov_b32 v5, 0"); k("v_mov_b32 v6, 1")
    k("s_mov_b64 exec, 1")
    k(f"buffer_atomic_add v6, v5, s[12:15], s{SG} offen sc0 sc1")
    for ln in (flag_code or [f"s_add_u32 s{SG}, s{SG}, {FLG}"]): k(ln)
    k("s_waitcnt vmcnt(0)")
    k.stamp("atom%d" % target + lab[-2:])
    k(f"v_cmp_eq_u32 vcc, {target - 1}, v6")
    k("v_mov_b32 v6, 1")
    k("s_and_b64 exec, exec, vcc")
    k(f"s_cbranch_execz {lab}_x")
    k(f"buffer_store_dword v6, v5, s[12:15], s{SG} offen sc1")
    k.L.append(lab + "_x:")
    k("s_mov_b64 exec, -1")
    k.L.append(lab + ":")

def signal(k, vm, nq, offset_code, target, flag_code=None, first=False):
    lab = k.lab(k.uniq("sig"))
    if nq: nq.pop(DRAIN_LOADS)
    if vm: vm.wait(lambda t: t == "S")
    else: k("s_waitcnt vmcnt(0)")
    k.stamp("drained%d" % k._n)
    k("s_barrier")
    atomic_signal(k, offset_code, lab, target, flag_code, first)

def poll(k, addr_code, target_reg_code, va=5, vd=6, vt=7):
    lab = k.lab(k.uniq("pl")); loop = lab + "_l"
    for ln in addr_code + target_reg_code: k(ln)
    k(f"s_mov_b32 s{SG2}, 0")
    k.L.append(loop + ":")
    k(f"buffer_load_dword v{vd}, v{va}, s[12:15], 0 offen sc1")
    k(f"s_add_u32 s{SG2}, s{SG2}, 1")
    k("s_waitcnt vmcnt(0)")
    k(f"v_cmp_gt_u32 vcc, v{vt}, v{vd}")
    k(f"s_cmp_gt_u32 s{SG2}, {SPIN_LIMIT}"); k(f"s_cbranch_scc1 {lab}")
    k(f"s_cbranch_vccnz {loop}")
    k.L.append(lab + ":")

def wait_counters(k, nq, addr_code, target_code, all_waves_drain, before_barrier=None, mid=0):
    lab = k.lab(k.uniq("wt"))
    if nq: nq.pop(mid)
    k("s_cmp_lg_u32 s10, 0"); k(f"s_cbranch_scc1 {lab}")
    k.stamp("prepoll" + lab[-2:])
    poll(k, addr_code, target_code)
    k.stamp("polled" + lab[-2:])
    k.L.append(lab + ":")
    if nq: nq.flush()
    if all_waves_drain: k("s_waitcnt vmcnt(0)")
    if before_barrier: before_barrier(k)
    k("s_barrier")

def shard_addr(base): return ["v_and_b32 v5, 7, v1", "v_lshlrev_b32 v5, 7, v5", f"v_add_u32 v5, {base}, v5"]
def own_shard(base): return [f"s_and_b32 s{SG}, s2, 7", f"s_lshl_b32 s{SG}, s{SG}, 7", f"s_add_u32 s{SG}, s{SG}, {base}"]

def init_srd(k):
    k("s_mov_b32 s74, 256"); k("s_mov_b32 s75, 0x20000")

def wait_init(k):
    lab = k.lab(k.uniq("in")); loop = lab + "_l"
    k("v_mov_b32 v5, 0"); k(f"s_mov_b32 s{SG2}, 0")
    k.L.append(loop + ":")
    k("buffer_load_dword v6, v5, s[72:75], 0 offen sc1")
    k(f"s_add_u32 s{SG2}, s{SG2}, 1")
    k("s_waitcnt vmcnt(0)")
    k("v_cmp_eq_u32 vcc, 0, v6")
    k(f"s_cmp_gt_u32 s{SG2}, {SPIN_LIMIT}"); k(f"s_cbranch_scc1 {lab}")
    k(f"s_cbranch_vccnz {loop}")
    k.L.append(lab + ":")

def vm_after(vm):
    return vm

def kv_issue(k, vm):
    k("s_sub_u32 s29, s2, 160"); k("s_cmp_lt_u32 s29, 65"); k("s_cselect_b32 s29, 2, 1")
    for j in range(2):
        k(f"s_add_u32 s26, s2, {95*j}")
        k("s_mul_hi_u32 s27, s26, 0x1999999a"); k("s_mul_i32 s28, s27, 10"); k("s_sub_u32 s28, s26, s28")
        k(f"s_lshl_b32 s{30+2*j}, s27, 6"); k(f"s_lshl_b32 s{31+2*j}, s28, 6")
    k("v_lshrrev_b32 v5, 3, v0"); k("v_and_b32 v6, 7, v0"); k("v_lshlrev_b32 v6, 4, v6")
    k.srd(48, 36, MB); k.srd(52, 38, MB); k.srd(56, 40, D*8)
    k("s_lshl_b32 s26, s10, 10"); k("s_mov_b32 s27, 40960")
    for j in range(2):
        b = j*KVL
        if j == 1: k("s_cmp_lt_u32 s29, 2"); k(f"s_cbranch_scc1 {k.lab('kv1')}")
        k(f"v_add_u32 v{8+j}, s{30+2*j}, v5"); k(f"v_mul_u32_u24 v{8+j}, 1280, v{8+j}")
        k(f"s_lshl_b32 s28, s{31+2*j}, 1"); k(f"v_add3_u32 v{8+j}, v{8+j}, v6, s28")
        k(f"v_subrev_u32 v{10+j}, 3840, v{8+j}")
        G = [[f"s_add_u32 m0, s26, {b}", "s_nop 0", f"buffer_load_dwordx4 v{10+j}, s[48:51], 0 offen lds"],
             [f"s_add_u32 m0, s26, {b + 4096}", f"v_add_u32 v7, 40960, v{10+j}", "buffer_load_dwordx4 v7, s[48:51], 0 offen lds"],
             [f"s_add_u32 m0, s26, {b + 9216}", "s_nop 0", f"buffer_load_dwordx4 v{8+j}, s[52:55], 0 offen lds"],
             [f"s_add_u32 m0, s26, {b + 13312}", "s_nop 0", f"buffer_load_dwordx4 v{8+j}, s[52:55], s27 offen lds"],
             [f"s_mov_b32 m0, {b + 8192}", "v_lshrrev_b32 v7, 3, v1", f"v_add_u32 v7, s{30+2*j}, v7", "v_mul_u32_u24 v7, 1280, v7",
              "v_and_b32 v18, 7, v1", "v_lshlrev_b32 v18, 4, v18", f"s_lshl_b32 s28, s{31+2*j}, 1", "v_add3_u32 v7, v7, v18, s28",
              "v_add_u32 v7, 78080, v7", "buffer_load_dwordx4 v7, s[48:51], 0 offen lds"],
             [f"v_add_u32 v{16+j}, s{31+2*j}, v1", f"v_lshlrev_b32 v{16+j}, 3, v{16+j}", f"buffer_load_dwordx2 {v(12+2*j,2)}, v{16+j}, s[56:59], 0 offen"]]
        for g in G:
            if j == 0: vm.issue(g, "kv")
            else:
                for ln in g: k(ln)
    k.label("kv1")

def kv_compute(k):
    k("v_and_b32 v10, 15, v1"); k("v_lshrrev_b32 v11, 2, v10"); k("s_lshl_b32 s42, s10, 4"); k("v_add_u32 v11, s42, v11")
    k("v_lshlrev_b32 v11, 7, v11"); k("v_and_b32 v10, 3, v10"); k("v_lshlrev_b32 v10, 3, v10"); k("v_lshlrev_b32 v16, 5, v3")
    k("v_add3_u32 v11, v11, v10, v16")
    k("s_mov_b32 s45, 0"); k("s_mov_b32 s46, 0xffff0000"); k(f"s_mov_b32 s47, {KVO}")
    k(".p2align 3")
    k.label("kvloop")
    k("v_mul_u32_u24 v9, 144, v1"); k("s_lshl_b32 s43, s10, 5"); k(f"s_sub_u32 s43, {KVO + 96}, s43"); k("v_add_u32 v9, s43, v9")
    KR = 16; VR = 26; KF = 38
    for i in range(5): k(f"ds_read_b64_tr_b16 {v(KR+2*i,2)}, v11 offset:{512*i}")
    for i in range(4): k(f"ds_read_b64_tr_b16 {v(VR+2*i,2)}, v11 offset:{9216+512*i}")
    k("v_lshlrev_b32 v34, 16, v12"); k("v_and_b32 v35, s46, v12"); k("v_lshlrev_b32 v36, 16, v13"); k("v_and_b32 v37, s46, v13")
    k("s_waitcnt lgkmcnt(4)")
    for i in range(10):
        k(f"v_lshlrev_b32 v{KF+2*i}, 16, v{KR+i}"); k(f"v_and_b32 v{KF+2*i+1}, s46, v{KR+i}")
    k("s_waitcnt lgkmcnt(0)")
    OUTR = 58
    for half in (1, 0):
        for pr in range(4):
            es = (8*half + 7 - 2*pr, 8*half + 6 - 2*pr)
            for j, e in enumerate(es):
                t = 16 + j
                k(f"v_mul_f32 v{t}, v34, v{KF+e+3}"); k(f"v_fmac_f32 v{t}, v35, v{KF+e+2}")
                k(f"v_fmac_f32 v{t}, v36, v{KF+e+1}"); k(f"v_fmac_f32 v{t}, v37, v{KF+e}")
                vr = VR + e//2
                if e % 2 == 0: k(f"v_lshlrev_b32 v{18+j}, 16, v{vr}")
                else: k(f"v_and_b32 v{18+j}, s46, v{vr}")
                k(f"v_mul_f32 v{t}, v{t}, v{18+j}")
            k(f"v_cvt_pk_bf16_f32 v{OUTR+pr}, v16, v17")
        k(f"ds_write_b128 v9, {v(OUTR,4)} offset:{16*(1-half)}")
        OUTR = 20
    k("v_lshrrev_b32 v5, 3, v1"); k("v_add_u32 v5, s42, v5"); k("v_and_b32 v6, 7, v1"); k("v_lshlrev_b32 v6, 4, v6")
    k("v_mul_u32_u24 v7, 144, v5"); k(f"v_add3_u32 v7, v7, v6, s47")
    k("v_add_u32 v5, s31, v5"); k("v_lshlrev_b32 v5, 12, v5"); k("v_add_u32 v5, v5, v6")
    k("s_sub_u32 s43, 1984, s30"); k("s_lshl_b32 s43, s43, 1"); k(f"s_add_u32 s43, s43, {UR}"); k("s_add_u32 s44, s43, 32768")
    k("s_waitcnt lgkmcnt(0)")
    k("s_barrier")
    k("ds_read_b128 v[16:19], v7"); k("ds_read_b128 v[20:23], v7 offset:1152")
    k("s_waitcnt lgkmcnt(1)")
    k("buffer_store_dwordx4 v[16:19], v5, s[12:15], s43 offen sc1")
    k("s_waitcnt lgkmcnt(0)")
    k("buffer_store_dwordx4 v[20:23], v5, s[12:15], s44 offen sc1")
    k("s_barrier")
    k("s_mov_b32 s30, s32"); k("s_mov_b32 s31, s33")
    k("v_mov_b32 v12, v14"); k("v_mov_b32 v13, v15"); k(f"v_add_u32 v11, {KVL}, v11")
    k("s_add_u32 s45, s45, 1"); k("s_cmp_lt_u32 s45, s29"); k(f"s_cbranch_scc1 {k.lab('kvloop')}")

HB = 128; E = 168
def conv_h_issue(k, vm):
    k("s_lshl_b32 s83, s2, 2"); k("s_add_u32 s83, s83, s10")
    k("s_lshl_b32 s35, s83, 12")
    k(f"s_mul_i32 s82, s10, {WREG}"); k(f"s_add_u32 s82, s82, {CONVL}")
    k("v_subrev_u32 v5, 32, v4"); k("v_add_u32 v6, 16, v5")
    k("s_lshl_b32 s28, s83, 1"); k("v_mov_b32 v19, s28")
    k("s_add_u32 s76, s76, s35"); k("s_addc_u32 s77, s77, 0")
    k("s_mov_b32 s78, 4096"); k("s_mov_b32 s79, 0x20000")
    for q in range(5):
        vm.issue([f"buffer_load_dwordx4 {v(HB+8*q,4)}, v5, s[76:79], 0 offen"], ("h", q))
        vm.issue([f"buffer_load_dword v{HB+8*q+4}, v6, s[76:79], 0 offen"] + (["v_add_u32 v5, 1024, v5", "v_add_u32 v6, 1024, v6"] if q < 4 else []), ("h", q))
    k("v_subrev_u32 v5, 32, v4")
    vm.issue(["s_add_u32 m0, s82, 4608", "s_nop 0", "buffer_load_dwordx4 v5, s[76:79], 0 offen lds"], "h0")
    k("s_add_u32 m0, s82, %d" % (4608 + 1024)); k("v_add_u32 v5, 1024, v5")
    for q in range(3): vm.issue([f"buffer_load_dwordx4 v5, s[76:79], 0 offen offset:{1024*q} lds"], "h0")
    k("s_add_u32 m0, s82, %d" % (4608 + 4096)); k("v_add_u32 v5, 3072, v5")
    vm.issue(["s_mov_b64 exec, 15", "buffer_load_dwordx4 v5, s[76:79], 0 offen lds", "s_mov_b64 exec, -1"], "h0")
    k("s_mov_b32 s44, s80"); k("s_mov_b32 s45, s81"); k(f"s_mov_b32 s46, {D*2}"); k("s_mov_b32 s47, 0x20000")
    vm.issue(["buffer_load_ushort v176, v19, s[44:47], 0 offen"], "D")

def conv_h_copy1(k):
    k("s_add_u32 s42, s82, %d" % (4608 + CPY)); k("v_add_u32 v5, s42, v4")
    for q in range(5):
        x = HB + 8*q
        if q == 4: k("s_mov_b64 exec, 15")
        for i in range(4): k(f"v_alignbit_b32 v{E+4*(q%2)+i}, v{x+i+1}, v{x+i}, 16")
        k(f"ds_write_b128 v5, {v(E+4*(q%2),4)} offset:{1024*q}")
    k("s_mov_b64 exec, -1")

def conv_main(k, prefetch_items):
    vm = VM(k)
    k(f"s_lshl_b32 s35, s83, 12"); k(f"s_add_u32 s36, s35, {UR}")
    k("s_mov_b32 m0, s82"); k("s_nop 0")
    for j in range(4): vm.issue([f"buffer_load_dwordx4 v4, s[12:15], s36 offen offset:{1024*j} sc1 lds"], "ur")
    k("v_mov_b32 v8, 0"); k("v_mov_b32 v9, 0"); k("v_lshlrev_b32 v7, 3, v1"); k("v_add_u32 v7, s82, v7")
    k("ds_write_b64 v7, v[8:9] offset:4096")
    k("v_add_u32 v13, 1, v2"); k("v_and_b32 v14, 1, v13"); k(f"v_mul_u32_u24 v12, {CPY}, v14")
    k("v_sub_u32 v13, v13, v14"); k("v_lshlrev_b32 v13, 1, v13"); k("v_lshl_add_u32 v13, v3, 4, v13")
    k("s_add_u32 s38, s82, 4608"); k("v_add3_u32 v12, v12, v13, s38")
    for j in range(1, 4): k(f"v_add_u32 v{103+j}, {1024*j}, v12")
    k("v_lshlrev_b32 v13, 5, v2"); k("v_lshlrev_b32 v14, 4, v3"); k("v_sub_u32 v13, v14, v13")
    k("s_add_u32 s39, s82, 480"); k("v_add_u32 v13, s39, v13")
    AP = 100
    k("v_sub_u32 v16, 15, v2"); k("v_lshrrev_b32 v17, 3, v16"); k("v_and_b32 v16, 7, v16")
    k("v_and_b32 v18, 1, v16"); k("v_lshlrev_b32 v18, 4, v18"); k("v_lshlrev_b32 v18, v18, v176")
    k("v_cmp_eq_u32 vcc, v17, v3"); k("v_cndmask_b32 v18, 0, v18, vcc"); k("v_lshrrev_b32 v16, 1, v16")
    for r in range(4):
        k(f"v_cmp_eq_u32 vcc, {r}, v16"); k(f"v_cndmask_b32 v{AP+r}, 0, v18, vcc")
    ACC = 16; A0 = 48; A1 = 112; B0 = 144; B1 = 176
    AR = (12, 104, 105, 106)
    def loads(A, B, rho):
        L = []
        for d in range(8): L.append(f"ds_read_b128 {v(B+4*d,4)}, v13 offset:{64*rho + 512*(7-d)}")
        for m in range(8):
            o = 128*(m % 2) + 16*rho
            L.append(f"ds_read2_b32 {v(A+4*m,2)}, v{AR[m//2]} offset0:{o} offset1:{o+1}")
            L.append(f"ds_read2_b32 {v(A+4*m+2,2)}, v{AR[m//2]} offset0:{o+2} offset1:{o+3}")
        return L
    pq = TQ(vm, prefetch_items)
    vm.wait(lambda t: t == "ur", " lgkmcnt(0)")
    k.stamp("ur")
    for ln in loads(A0, B0, 0): k(ln)
    k("s_waitcnt lgkmcnt(0)")
    for t in range(8): k(f"v_mfma_f32_16x16x32_bf16 {v(ACC+4*t,4)}, {v(AP,4)}, {v(B0+4*t,4)}, 0")
    pairs = [(m, d) for m in range(8) for d in range(8 - m)]
    for rho in range(8):
        A, B = (A0, B0) if rho % 2 == 0 else (A1, B1)
        An, Bn = (A1, B1) if rho % 2 == 0 else (A0, B0)
        nxt = loads(An, Bn, rho + 1) if rho < 7 else []
        if rho == PFSTART - 1:
            k(f"v_mov_b32 v5, {FALL + 8*128}")
            k("buffer_load_dword v6, v5, s[12:15], 0 offen sc1"); k("v_mov_b32 v7, 1")
        if rho == PFSTART:
            ok = k.lab("prepok")
            k("s_waitcnt vmcnt(0)"); k("v_cmp_gt_u32 vcc, v7, v6"); k(f"s_cbranch_vccz {ok}")
            poll(k, [], [])
            k.L.append(ok + ":")
        for idx, (m, d) in enumerate(pairs):
            k(f"v_mfma_f32_16x16x32_bf16 {v(ACC+4*(m+d),4)}, {v(A+4*m,4)}, {v(B+4*d,4)}, {v(ACC+4*(m+d),4)}")
            if idx < len(nxt): k(nxt[idx])
            if rho >= PFSTART and idx % PFGAP == 1: pq.pop()
        k("s_waitcnt lgkmcnt(0)")
    k.stamp("loop")
    k("v_lshlrev_b32 v14, 5, v2"); k("v_lshl_add_u32 v14, v3, 3, v14"); k("v_add_u32 v14, s82, v14")
    for t in range(8):
        k(f"v_cvt_pk_bf16_f32 v{A0+2*t}, v{ACC+4*t}, v{ACC+4*t+1}"); k(f"v_cvt_pk_bf16_f32 v{A0+2*t+1}, v{ACC+4*t+2}, v{ACC+4*t+3}")
        k(f"ds_write_b64 v14, {v(A0+2*t,2)} offset:{512*t}")
    k("v_add_u32 v15, s82, v4")
    k("s_waitcnt lgkmcnt(0)")
    for j in range(4): k(f"ds_read_b128 {v(B0+4*j,4)}, v15 offset:{1024*j}")
    k(f"s_add_u32 s36, s35, {YT}")
    for j in range(4):
        k(f"s_waitcnt lgkmcnt({3-j})")
        vm.issue([f"buffer_store_dwordx4 {v(B0+4*j,4)}, v4, s[12:15], s36 offen offset:{1024*j} sc1"], "S")
    return vm, pq

def wtask_issue(k, tag, ldsbase):
    k("s_mov_b32 s51, 0x20000")
    k("s_lshl_b32 s34, s10, 14"); k(f"s_add_u32 s34, s34, {ldsbase}")
    k("v_lshrrev_b32 v5, 3, v1"); k("v_and_b32 v6, 7, v1"); k("v_lshlrev_b32 v6, 4, v6")
    k("s_lshl_b32 s47, s41, 5"); k("v_add_u32 v5, s47, v5"); k("v_mul_lo_u32 v5, v5, s40")
    k("s_lshl_b32 s47, s42, 7"); k("v_add3_u32 v5, v5, v6, s47")
    k("s_lshl_b32 s52, s40, 3"); k("s_lshl_b32 s53, s43, 2"); k("s_mov_b32 s54, s34")
    k.label("wld" + tag)
    k("s_mov_b32 m0, s54"); k("s_sub_u32 s53, s53, 1")
    k("buffer_load_dwordx4 v5, s[48:51], 0 offen lds")
    k("v_add_u32 v5, s52, v5"); k("s_add_u32 s54, s54, 1024")
    k("s_cmp_lg_u32 s53, 0"); k(f"s_cbranch_scc1 {k.lab('wld' + tag)}")

def wtask_finish(k, tag, nxt):
    k("v_lshlrev_b32 v5, 10, v3"); k("v_bfe_u32 v6, v1, 2, 2"); k("v_lshl_add_u32 v5, v6, 7, v5")
    k("v_and_b32 v6, 3, v1"); k("v_lshl_add_u32 v5, v6, 4, v5"); k("v_add_u32 v5, s34, v5")
    k("s_lshl_b32 s47, s42, 2"); k("s_mul_i32 s47, s47, s45"); k("s_add_u32 s47, s47, s41"); k("s_lshl_b32 s47, s47, 10")
    k("s_add_u32 s47, s47, s44"); k("s_lshl_b32 s55, s45, 10")
    for r in range(4): k(f"v_mov_b32 v{24+r}, 0")
    k("s_mov_b32 s52, 0x3f803f80"); k("s_mov_b32 s53, 0")
    k.stamp("wiss" + tag)
    k("s_waitcnt vmcnt(0)")
    k.stamp("wld" + tag)
    k.label("wtr" + tag)
    for t in range(4):
        o = 64*(t//2) + 8*(t % 2)
        k(f"ds_read_b64_tr_b16 {v(8+4*t,2)}, v5 offset:{o}"); k(f"ds_read_b64_tr_b16 {v(10+4*t,2)}, v5 offset:{o+512}")
    k("v_add_u32 v5, 4096, v5"); k("s_add_u32 s53, s53, 1")
    k("s_mov_b32 s54, s47")
    for t in range(4):
        k(f"s_waitcnt lgkmcnt({6 - 2*t})")
        k(f"buffer_store_dwordx4 {v(8+4*t,4)}, v4, s[12:15], s54 offen sc1")
        if t < 3: k("s_add_u32 s54, s54, s55")
    for r in range(4):
        for t in range(4): k(f"v_dot2_f32_bf16 v{24+t}, v{8+4*t+r}, s52, v{24+t}")
    k("s_add_u32 s47, s47, 1024")
    k("s_cmp_lt_u32 s53, s43"); k(f"s_cbranch_scc1 {k.lab('wtr' + tag)}")
    k("s_cmp_ge_u32 s46, 5"); k(f"s_cbranch_scc1 {nxt}")
    for t in range(4): k(f"v_mov_b32 v{28+t}, v{24+t}")
    for t in range(4): k(f"v_permlane32_swap_b32 v{24+t}, v{28+t}")
    for t in range(4): k(f"v_add_f32 v{24+t}, v{24+t}, v{28+t}")
    for t in range(4): k(f"v_mov_b32 v{28+t}, v{24+t}")
    for t in range(4): k(f"v_permlane16_swap_b32 v{24+t}, v{28+t}")
    for t in range(4): k(f"v_add_f32 v{24+t}, v{24+t}, v{28+t}")
    k(f"s_mul_i32 s47, s46, {F*4}"); k("s_lshl_b32 s52, s42, 8"); k("s_add_u32 s47, s47, s52"); k(f"s_add_u32 s47, s47, {CS3}")
    k("v_lshlrev_b32 v6, 2, v2")
    k("s_mov_b64 exec, 0xffff")
    for t in range(4): k(f"buffer_store_dword v{24+t}, v6, s[12:15], s47 offen offset:{64*t} sc1")
    k("s_mov_b64 exec, -1")
    k(f"s_branch {nxt}")

def w1_params(k):
    k("s_sub_u32 s35, s2, 225"); k("s_lshl_b32 s35, s35, 2"); k("s_add_u32 s35, s35, s10")
    k("s_mov_b32 s48, s76"); k("s_mov_b32 s49, s77")
    k(f"s_mov_b32 s50, {D*D*2}"); k("s_mov_b32 s40, 1280"); k(f"s_mov_b32 s44, {W1T}"); k("s_mov_b32 s45, 20"); k("s_mov_b32 s46, 5")
    k("s_mul_hi_u32 s41, s35, 0x1999999a"); k("s_mul_i32 s42, s41, 10"); k("s_sub_u32 s42, s35, s42"); k("s_mov_b32 s43, 2"); k("s_lshl_b32 s41, s41, 1")

def prep_part(k):
    k("s_sub_u32 s35, s2, 225"); k("s_cmp_ge_u32 s35, 25"); k(f"s_cbranch_scc1 {k.lab('roundB')}")
    w1_params(k)
    doneA = k.lab("doneA")
    wtask_finish(k, "A", doneA)
    k.L.append(doneA + ":")
    k.stamp("doneA")
    signal(k, None, None, [f"s_mov_b32 s{SG}, {CPA}"], 25, [f"s_mov_b32 s{SG}, {FALL + 8*128}"])
    k.label("roundB")
    k("s_sub_u32 s33, s2, 160"); k("s_cmp_ge_u32 s33, 64"); k(f"s_cbranch_scc1 {k.lab('noq')}")
    k("s_lshl_b32 s33, s33, 2"); k("s_add_u32 s33, s33, s10"); k("s_mul_i32 s33, s33, 10240")
    for i in range(10):
        k(f"buffer_load_dwordx4 v[32:35], v4, s[16:19], s33 offen offset:{1024*(i%4)}")
        if i % 4 == 3: k("s_add_u32 s33, s33, 4096")
    k.label("noq")
    k("s_sub_u32 s33, s2, 160"); k("s_lshl_b32 s33, s33, 2"); k("s_add_u32 s33, s33, s10")
    doneB = k.lab("doneB")
    k("s_cmp_ge_u32 s33, 325"); k(f"s_cbranch_scc1 {doneB}")
    k("s_mov_b32 s46, 5"); k("s_mov_b32 s43, 4")
    k("s_cmp_ge_u32 s33, 50"); k(f"s_cbranch_scc1 {k.lab('pw3')}")
    k("s_mov_b32 s48, s78"); k("s_mov_b32 s49, s79"); k(f"s_mov_b32 s50, {D*D*2}"); k("s_mov_b32 s40, 1280"); k(f"s_mov_b32 s44, {W2T}"); k("s_mov_b32 s45, 20")
    k("s_mul_hi_u32 s41, s33, 0x1999999a"); k("s_mul_i32 s42, s41, 10"); k("s_sub_u32 s42, s33, s42"); k("s_lshl_b32 s41, s41, 2")
    k(f"s_branch {k.lab('wtB')}")
    k.label("pw3")
    k("s_cmp_ge_u32 s33, 185"); k(f"s_cbranch_scc1 {k.lab('pw4')}")
    k("s_sub_u32 s35, s33, 50")
    k("s_mov_b32 s48, s80"); k("s_mov_b32 s49, s81"); k(f"s_mov_b32 s50, {D*F*2}"); k(f"s_mov_b32 s40, {F*2}"); k(f"s_mov_b32 s44, {W3T}"); k("s_mov_b32 s45, 20")
    k("s_mul_hi_u32 s46, s35, 0x97b425f"); k("s_mul_i32 s42, s46, 27"); k("s_sub_u32 s42, s35, s42"); k("s_lshl_b32 s41, s46, 2")
    k(f"s_branch {k.lab('wtB')}")
    k.label("pw4")
    k("s_sub_u32 s35, s33, 185")
    k("s_mov_b32 s48, s82"); k("s_mov_b32 s49, s83"); k(f"s_mov_b32 s50, {D*F*2}"); k("s_mov_b32 s40, 1280"); k(f"s_mov_b32 s44, {W4T}"); k("s_mov_b32 s45, 54")
    k("s_mul_hi_u32 s41, s35, 0x1999999a"); k("s_mul_i32 s42, s41, 10"); k("s_sub_u32 s42, s35, s42")
    k("s_cmp_eq_u32 s41, 13"); k("s_cselect_b32 s43, 2, 4"); k("s_lshl_b32 s41, s41, 2")
    k.label("wtB")
    wtask_issue(k, "B", 0)
    wtask_finish(k, "B", doneB)
    k.L.append(doneB + ":")
    k.stamp("doneB")
    signal(k, None, None, [f"s_mov_b32 s{SG}, {CPB}"], 96, [f"s_mov_b32 s{SG}, {FALL + 9*128}"])

def mega():
    pc.SC = " sc1"; pc.SS = " sc1"
    k = Kern("block_kernel", vgpr=256, agpr=256, sgpr=96)
    k.only = ONLY
    k("s_cmp_ge_u32 s2, 256"); k(f"s_cbranch_scc1 {k.lab('end')}")
    k.stamp_begin()
    k(f"s_load_dwordx8 s[36:43], s[0:1], {A_K}")
    k(f"s_load_dwordx2 s[44:45], s[0:1], {A_D}")
    k(f"s_load_dwordx8 s[76:83], s[0:1], {B_W1}")
    k(f"s_load_dwordx2 s[72:73], s[0:1], {DBG}")
    prologue(k); p2.p2_setup(k); p3.p35_setup(k, 26)
    pre_items_setup = lambda: (p2.p2_pre_setup(k), p2.p2_pre_items(k))[1]
    prologue_srd(k)
    init_srd(k)
    k("s_cmp_ge_u32 s2, 160"); k(f"s_cbranch_scc1 {k.lab('keepw')}")
    k("s_mov_b32 s76, s42"); k("s_mov_b32 s77, s43"); k("s_mov_b32 s80, s44"); k("s_mov_b32 s81, s45")
    k.label("keepw")
    k("s_cmp_eq_u32 s2, 255"); k(f"s_cbranch_scc1 {k.lab('zero')}")
    vm = VM(k)
    kv_issue(k, vm)
    vm.issue(code_prefetch_group(k, k.lab("code0"), k.lab("end"), "z", 180, sreg=26), "pf")
    k.label("code0")
    k("s_sub_u32 s35, s2, 225"); k("s_cmp_ge_u32 s35, 25"); k(f"s_cbranch_scc1 {k.lab('now1')}")
    w1_params(k)
    wtask_issue(k, "A", 65536)
    k.label("now1")
    k.stamp("kvissued")
    vm.wait(lambda t: t == "kv")
    k("s_barrier")
    k.stamp("kvin")
    k("v_mov_b32 v178, 0")
    k("buffer_load_dword v177, v178, s[72:75], 0 offen sc1")
    vmh = VM(k)
    k("s_cmp_ge_u32 s2, 160"); k(f"s_cbranch_scc1 {k.lab('noh')}")
    conv_h_issue(k, vmh)
    k.label("noh")
    kv_compute(k)
    k.stamp("kvdone")
    k("s_waitcnt vmcnt(0)")
    k.stamp("kvdrain")
    ok = k.lab("initok")
    k("v_cmp_eq_u32 vcc, 0, v177"); k(f"s_cbranch_vccz {ok}")
    wait_init(k)
    k.L.append(ok + ":")
    k("s_barrier")
    tile_cnt = lambda add: [f"s_add_u32 s84, s2, {add}", "s_mul_hi_u32 s85, s84, 0x1999999a", "s_mul_i32 s28, s85, 10", "s_sub_u32 s84, s84, s28",
                            "s_lshl_b32 s84, s84, 2", "s_and_b32 s85, s85, 3", "s_add_u32 s84, s84, s85", "s_lshl_b32 s84, s84, 7", f"s_add_u32 s84, s84, {C0}"]
    atomic_signal(k, tile_cnt(0), k.lab("sigc0"), None)
    k("s_cmp_lt_u32 s29, 2"); k(f"s_cbranch_scc1 {k.lab('sigc0b')}")
    atomic_signal(k, tile_cnt(95), k.lab("sigc0c"), None)
    k.label("sigc0b")
    k.stamp("kvsig")
    k("s_cmp_ge_u32 s2, 160"); k(f"s_cbranch_scc1 {k.lab('prep')}")
    conv_h_copy1(k)
    items = pre_items_setup()
    wait_counters(k, None, ["s_lshr_b32 s84, s2, 4", "s_lshl_b32 s84, s84, 9", f"s_add_u32 s84, s84, {C0}", "v_and_b32 v5, 3, v1", "v_lshlrev_b32 v5, 7, v5", "v_add_u32 v5, s84, v5",
], ["v_mov_b32 v7, 8"], False)
    k.stamp("s0")
    vm, pq = conv_main(k, items)
    k.stamp("convdone")
    lab = k.lab("sigc1")
    p2.p2_qstats(k, lambda: vm.wait(lambda t: t == "q"))
    vm.wait(lambda t: t == "S"); k("s_barrier"); atomic_signal(k, own_shard(C1), lab, 20, [f"s_and_b32 s{SG}, s2, 7", f"s_lshl_b32 s{SG}, s{SG}, 7", f"s_add_u32 s{SG}, s{SG}, {FALL}"])
    pq.flush()
    k(f"s_branch {k.lab('join')}")
    k.label("zero")
    k("v_mov_b32 v8, 0"); k("v_mov_b32 v9, 0"); k("v_mov_b32 v10, 0"); k("v_mov_b32 v11, 0")
    k("v_lshlrev_b32 v5, 4, v0"); k(f"s_mov_b32 s35, {CNT}")
    for j in range(8):
        k("buffer_store_dwordx4 v[8:11], v5, s[12:15], s35 offen sc1"); k("s_add_u32 s35, s35, 4096")
    k("s_waitcnt vmcnt(0)")
    k("s_barrier")
    k("v_mov_b32 v5, 0"); k("v_mov_b32 v6, 1")
    k("s_cmp_lg_u32 s10, 0"); k(f"s_cbranch_scc1 {k.lab('prep')}")
    k("s_mov_b64 exec, 1")
    k("buffer_store_dword v6, v5, s[72:75], 0 offen sc1")
    k("s_mov_b64 exec, -1")
    k.label("prep")
    prep_part(k)
    items = pre_items_setup()
    wait_counters(k, None, [f"v_mov_b32 v5, {FALL + 8*128}"], ["v_mov_b32 v7, 1"], False)
    k.stamp("cpa")
    for g, t in items:
        for ln in g: k(ln)
    p2.p2_qstats(k, lambda: k("s_waitcnt vmcnt(60)"))
    k.label("join")
    wait_counters(k, None, ["v_min_u32 v5, 9, v1", "v_lshlrev_b32 v5, 7, v5", f"v_add_u32 v5, {FALL}, v5"], ["v_mov_b32 v7, 1"], False)
    k.stamp("s1")
    tail = p2.w2_l2_items(k)
    vm, nq = p2.p2_main(k, [(code_prefetch_group(k, k.lab('ph3'), k.lab('ph4'), 'a', 136), "pf")] + tail, p3.p3_pre)
    k.stamp("p2done")
    signal(k, vm, nq, [f"s_lshl_b32 s{SG}, s{p2.TT}, 7", f"s_add_u32 s{SG}, s{SG}, {C2}"], None)
    k.label("ph3")
    wait_counters(k, nq, [f"s_lshl_b32 s{SG}, s{p3.T64}, 1", f"s_sub_u32 s{SG}, s{SG}, 1", "v_and_b32 v5, 3, v1", f"v_add_u32 v5, s{SG}, v5",
                          "v_and_b32 v5, 63, v5", "v_lshlrev_b32 v5, 7, v5", f"v_add_u32 v5, {C2}, v5"], ["v_mov_b32 v7, 4"], True, mid=MID[0])
    k.stamp("s2")
    p4.p4_setup(k); p4.p4_pre_setup(k)
    early = [(g, "E") for g in p4.p4_pre_early(k)]
    vm, nq = p3.p3_main(k, [(code_prefetch_group(k, k.lab('ph4'), k.lab('ph5'), 'b', 184), "pf")], p4.p4_pre_late, early)
    k.stamp("p3done")
    signal(k, vm, nq, [f"s_lshr_b32 s{SG}, s{p3.T64}, 1", f"s_lshl_b32 s{SG}, s{SG}, 2", f"s_lshr_b32 s{SG2}, s{p3.FC}, 1", f"s_add_u32 s{SG}, s{SG}, s{SG2}",
                          f"s_lshl_b32 s{SG}, s{SG}, 7", f"s_add_u32 s{SG}, s{SG}, {C3}"], None)
    k.label("ph4")
    wait_counters(k, nq, [f"s_lshl_b32 s{SG}, s{p4.T128}, 9", f"s_add_u32 s{SG}, s{SG}, {C3}", "v_and_b32 v5, 3, v1", "v_lshlrev_b32 v5, 7, v5", f"v_add_u32 v5, s{SG}, v5"], ["v_mov_b32 v7, 4"],
                  True, p4.p4_cs_table, mid=MID[1])
    k.stamp("s3")
    p5.p5_pre_setup(k)
    early = [(g, "E") for g in p5.p5_pre_early(k)]
    vm, nq = p4.p4_main(k, [(code_prefetch_group(k, k.lab('ph5'), k.lab('end'), 'c', 88), "pf")], p5.p5_pre_late, early)
    k.stamp("p4done")
    signal(k, vm, nq, [f"s_lshl_b32 s{SG}, s{p4.T128}, 2", f"s_lshr_b32 s{SG2}, s{p4.COL}, 2", f"s_add_u32 s{SG}, s{SG}, s{SG2}",
                          f"s_lshl_b32 s{SG}, s{SG}, 7", f"s_add_u32 s{SG}, s{SG}, {C4}"], None)
    k.label("ph5")
    wait_counters(k, nq, [f"s_lshr_b32 s{SG}, s{p3.T64}, 1", f"s_lshl_b32 s{SG}, s{SG}, 9", f"s_add_u32 s{SG}, s{SG}, {C4}", "v_and_b32 v5, 3, v1", "v_lshlrev_b32 v5, 7, v5", f"v_add_u32 v5, s{SG}, v5"],
                  ["v_mov_b32 v7, 4"], False, mid=MID[2])
    k.stamp("s4")
    p5.p5_main(k)
    k.stamp_flush(4, STAMP)
    k.label("end"); k("s_endpgm")
    pc.SC = ""; pc.SS = ""
    return k
```

```python
from ph_common import *
import ph_common as pc

NFIRST = 8
QL = 0; YL = 40960; STL = 81920; XL = 0
P2_LDS = 82944
TT, FQ = 24, 25

def p2_setup(k):
    k(f"s_and_b32 s{TT}, s2, 63"); k(f"s_lshr_b32 s{FQ}, s2, 6")

def p2_w_items(k):
    k(f"s_mul_i32 s26, s{FQ}, 10"); k("s_lshl_b32 s27, s10, 1"); k("s_add_u32 s26, s26, s27"); k("s_mul_i32 s26, s26, 20480")
    k(f"s_add_u32 s26, s26, {W1T}")
    k(f"s_mul_i32 s27, s{FQ}, 10"); k("s_lshr_b32 s28, s10, 1"); k("s_add_u32 s27, s27, s28"); k("s_add_u32 s27, s27, 8")
    k("s_mul_i32 s27, s27, 20480"); k(f"s_add_u32 s27, s27, {W1T}")
    k("s_add_u32 s28, s26, 20480")
    items = []
    for kb in range(20):
        for t in range(3):
            base = (26, 28, 27)[t]
            pre = [f"s_add_u32 s{base}, s{base}, 4096"] if (kb and kb % 4 == 0) else []
            items.append((pre + [f"buffer_load_dwordx4 {a((t*20+kb)*4,4)}, v4, s[12:15], s{base} offen offset:{1024*(kb%4)} sc1"], ("W", kb)))
    return items

QA = 212

def p2_pre_setup(k):
    k("s_lshl_b32 s34, s10, 3")
    k("v_add_u32 v8, s34, v3"); k("v_and_b32 v9, 15, v8"); k("v_xor_b32 v9, v9, v2")
    k(f"s_lshl_b32 s29, s{TT}, 5")
    k("v_add_u32 v10, s29, v8"); k("v_mul_u32_u24 v10, 1280, v10")
    k("v_xor_b32 v11, 4, v9")
    k(f"v_lshl_add_u32 v{QA}, v9, 4, v10"); k(f"v_lshl_add_u32 v{QA+1}, v11, 4, v10"); k(f"v_add_u32 v{QA+1}, 5120, v{QA+1}")

def p2_pre_items(k):
    items = []
    for a_ in range(2):
        for m in range(5):
            items.append(([f"s_mul_i32 s84, s10, 10240", f"s_add_u32 m0, s84, {QL + a_*5120 + 768*m}", "s_nop 0",
                           f"buffer_load_dwordx4 v{QA+a_}, s[16:19], 0 offen offset:{256*m} lds"], "q"))
    return items + p2_w_items(k)

QREG = 32

def stats_exchange(k, T):
    k("v_lshlrev_b32 v10, 4, v2"); k("v_lshl_add_u32 v11, v3, 2, v10"); k("s_lshl_b32 s37, s10, 8"); k(f"s_add_u32 s37, s37, {STL}")
    k("v_permlane32_swap_b32 v22, v26"); k("v_permlane32_swap_b32 v24, v28")
    k("v_add_u32 v11, s37, v11"); k(f"v_add_u32 v10, {STL}, v10")
    k("v_add_f32 v22, v22, v26"); k("v_add_f32 v24, v24, v28")
    k("v_permlane16_swap_b32 v22, v24")
    k("v_add_f32 v22, v22, v24")
    k("ds_write_b32 v11, v22")
    k("s_waitcnt lgkmcnt(0)")
    k("s_barrier")
    for w in range(4): k(f"ds_read_b128 {v(T+4*w,4)}, v10 offset:{256*w}")
    k("s_waitcnt lgkmcnt(0)")
    k(f"v_pk_add_f32 {v(T,2)}, {v(T,2)}, {v(T+4,2)}"); k(f"v_pk_add_f32 {v(T+2,2)}, {v(T+2,2)}, {v(T+6,2)}")
    k(f"v_pk_add_f32 {v(T+8,2)}, {v(T+8,2)}, {v(T+12,2)}"); k(f"v_pk_add_f32 {v(T+10,2)}, {v(T+10,2)}, {v(T+14,2)}")
    k(f"v_pk_add_f32 {v(T,2)}, {v(T,2)}, {v(T+8,2)}"); k(f"v_pk_add_f32 {v(T+2,2)}, {v(T+2,2)}, {v(T+10,2)}")

def p2_q_addresses(k):
    k("v_lshrrev_b32 v10, 2, v2"); k("v_mul_u32_u24 v10, 5120, v10")
    k("v_and_b32 v11, 3, v2"); k("v_lshl_add_u32 v10, v11, 8, v10")
    k("v_xor_b32 v11, v3, v2")
    k("s_mul_i32 s36, s10, 5")
    for i in range(5):
        k(f"s_add_u32 s37, s36, {i}")
        k("s_and_b32 s38, s37, 3"); k("s_lshl_b32 s38, s38, 2")
        k("s_lshr_b32 s37, s37, 2"); k("s_lshl_b32 s37, s37, 10")
        k(f"v_xor_b32 v{16+i}, s38, v11"); k(f"v_lshlrev_b32 v{16+i}, 4, v{16+i}"); k(f"v_add3_u32 v{16+i}, v{16+i}, v10, s37")

def p2_qstats(k, wait_q):
    p2_q_addresses(k)
    wait_q()
    k("s_barrier")
    for tb in range(2):
        for i in range(5): k(f"ds_read_b128 {v(QREG+4*(tb*5+i),4)}, v{16+i} offset:{QL + tb*20480}")
    for r in (22, 24, 26, 28): k(f"v_mov_b32 v{r}, 0")
    k("s_mov_b32 s38, 0x3f803f80")
    for tb in range(2):
        k(f"s_waitcnt lgkmcnt({5 - 5*tb})")
        for r in range(20):
            x = QREG + 20*tb + r
            k(f"v_dot2_f32_bf16 v{22+4*tb}, v{x}, s38, v{22+4*tb}"); k(f"v_dot2_f32_bf16 v{24+4*tb}, v{x}, v{x}, v{24+4*tb}")
    T = 192
    stats_exchange(k, T)
    k(f"s_mov_b32 s52, {f2u(1.0/640)}"); k(f"s_mov_b32 s53, {f2u(1e-5)}")
    L = [[], []]
    for tb in range(2):
        t = T + 2*tb; o = QA + 2 + 2*tb
        L[tb] = [f"v_mul_f32 v{t}, s52, v{t}", f"v_mul_f32 v{t+1}, s52, v{t+1}", f"v_fma_f32 v{t+1}, -v{t}, v{t}, v{t+1}",
                 f"v_max_f32 v{t+1}, 0, v{t+1}", f"v_add_f32 v{t+1}, s53, v{t+1}", f"v_rsq_f32 v{o}, v{t+1}", f"v_mul_f32 v{o+1}, -v{t}, v{o}"]
    for ln in interleave(*L): k(ln)

def p2_y_loads(k, vm):
    k("s_mul_i32 s30, s10, 160")
    k("v_lshrrev_b32 v6, 2, v1"); k("v_add_u32 v6, s30, v6"); k("v_lshlrev_b32 v6, 12, v6")
    k("v_and_b32 v7, 3, v1"); k("v_lshlrev_b32 v7, 4, v7")
    k(f"s_lshl_b32 s31, s{TT}, 6"); k(f"s_add_u32 s31, s31, {YT}")
    k("v_add_u32 v6, v6, v7")
    k("s_mul_i32 s32, s10, 10240"); k(f"s_add_u32 s33, s32, {YL}")
    for i in range(10):
        vm.issue([f"s_add_u32 m0, s33, {1024*i}", "s_add_u32 s31, s31, 65536" if i else "s_nop 0",
                  f"buffer_load_dwordx4 v6, s[12:15], s31 offen sc1 lds"], "y")

def p2_main(k, tail, after_gemm):
    sc = pc.SC; ss = pc.SS
    vm = VM(k)
    p2_y_loads(k, vm)
    k(f"s_lshl_b32 s29, s{TT}, 5")
    k("v_bfe_u32 v10, v1, 2, 2"); k("v_lshl_add_u32 v10, v3, 3, v10"); k("v_lshlrev_b32 v10, 6, v10")
    k("v_and_b32 v11, 3, v1"); k("v_lshl_add_u32 v10, v11, 3, v10")
    k("v_add_u32 v21, s33, v10")
    k(f"s_and_b32 s37, s{FQ}, 1"); k("s_lshl_b32 s37, s37, 1"); k("s_sub_u32 s37, 1, s37")
    k(f"s_lshr_b32 s38, s{FQ}, 1"); k("s_lshl_b32 s37, s37, s38"); k("s_add_u32 s37, s37, s29")
    k(f"s_mul_i32 s39, s{FQ}, 5")
    k("v_lshlrev_b32 v11, 8, v3")
    k("s_add_u32 s46, s39, s10"); k("s_lshl_b32 s46, s46, 10"); k(f"s_add_u32 s46, s46, {HS}")
    k("s_add_u32 s47, s39, 4"); k("s_lshl_b32 s47, s47, 10"); k(f"s_add_u32 s47, s47, {HS}")
    k("s_lshr_b32 s38, s10, 1"); k("s_lshl_b32 s38, s38, 3"); k("s_add_u32 s47, s47, s38")
    k("s_and_b32 s38, s10, 1"); k("s_lshl_b32 s38, s38, 4")
    for dst, add, base, mask in ((240, "0", "s46", 40), (241, "16", "s46", 42), (242, "s38", "s47", 44)):
        k("v_add_u32 v10, s37, v2")
        if add != "0": k(f"v_add_u32 v10, {add}, v10")
        k(f"v_cmp_le_u32 s[{mask}:{mask+1}], s48, v10") if False else None
        k("v_cmp_le_u32 vcc, 0x800, v10"); k(f"s_mov_b64 s[{mask}:{mask+1}], vcc")
        k("v_and_b32 v10, 0x7ff, v10"); k("v_lshrrev_b32 v22, 4, v10"); k("v_mul_u32_u24 v22, 20480, v22")
        k("v_and_b32 v10, 15, v10"); k("v_lshl_add_u32 v10, v10, 4, v11")
        k(f"v_add3_u32 v{dst}, v10, v22, {base}")
    k(f"s_mov_b32 s50, {f2u(GELU_C0)}"); k(f"s_mov_b32 s51, {f2u(GELU_C1)}")
    k(f"s_mov_b32 s52, {f2u(1.0/640)}"); k(f"s_mov_b32 s53, {f2u(1e-5)}"); k("s_mov_b32 s54, 0xffff0000")
    k.stamp("issued")
    vm.wait(lambda t: t == "y")
    k("s_barrier")
    k.stamp("loaded")
    Q = 32; Y = 72; H = 112; T = 192
    def reads(tb, i):
        f = tb*5 + i
        return [f"ds_read_b64_tr_b16 {v(Y+4*f,2)}, v21 offset:{2048*i + 32*tb}",
                f"ds_read_b64_tr_b16 {v(Y+4*f+2,2)}, v21 offset:{2048*i + 256 + 32*tb}"]
    frs = [(tb, i) for tb in range(2) for i in range(5)]
    for fr in frs[:4]:
        for ln in reads(*fr): k(ln)
    for r in range(22, 30): k(f"v_mov_b32 v{r}, 0")
    step = 0
    for fi, (tb, i) in enumerate(frs):
        f = tb*5 + i
        k(f"s_waitcnt lgkmcnt({2*(min(len(frs), fi + 4) - fi - 1)})")
        if fi + 4 < len(frs):
            for ln in reads(*frs[fi + 4]): k(ln)
        ab = QA + 2 + 2*tb
        for r in range(4):
            h = H + 8*f + 2*r; qq = T + 4*(r % 2); yy = qq + 2
            k(f"v_lshlrev_b32 v{qq}, 16, v{Q+4*f+r}"); k(f"v_and_b32 v{qq+1}, s54, v{Q+4*f+r}")
            k(f"v_lshlrev_b32 v{yy}, 16, v{Y+4*f+r}"); k(f"v_and_b32 v{yy+1}, s54, v{Y+4*f+r}")
            k(f"v_pk_fma_f32 {v(h,2)}, {v(qq,2)}, {v(ab,2)}, {v(ab,2)} op_sel:[0,0,1] op_sel_hi:[1,0,1]")
            k(f"v_pk_fma_f32 {v(h,2)}, {v(h,2)}, {v(yy,2)}, {v(qq,2)}")
            k(f"v_pk_add_f32 {v(22+4*tb,2)}, {v(22+4*tb,2)}, {v(h,2)}")
            k(f"v_pk_fma_f32 {v(24+4*tb,2)}, {v(h,2)}, {v(h,2)}, {v(24+4*tb,2)}")
            step += 1
    pass
    for b in (22, 24, 26, 28): k(f"v_add_f32 v{b}, v{b}, v{b+1}")
    stats_exchange(k, T)
    L = [[], []]
    for tb in range(2):
        t = T + 2*tb; b = 22 + 4*tb; x = T + 8 + 4*tb
        L[tb] = [f"v_mul_f32 v{t}, s52, v{t}", f"v_mul_f32 v{t+1}, s52, v{t+1}", f"v_fma_f32 v{t+1}, -v{t}, v{t}, v{t+1}",
                 f"v_max_f32 v{t+1}, 0, v{t+1}", f"v_add_f32 v{x}, s53, v{t+1}", f"v_rsq_f32 v{b}, v{x}",
                 f"v_mul_f32 v{b+1}, -v{t}, v{b}", f"v_mul_f32 v{x}, v{b}, v{b}", f"v_fma_f32 v{x}, v{x}, v{t+1}, s53",
                 f"v_rsq_f32 v{b+2}, v{x}"] + gelu_scale_consts(b+2, 244 + 2*tb, 248 + tb, 50, 51)
    for ln in interleave(*L): k(ln)
    pass
    k("s_mul_i32 s37, s10, 5120"); k("v_add_u32 v11, s37, v4")
    n = 0
    for fi, (tb, i) in enumerate(frs):
        f = tb*5 + i; b = 22 + 4*tb
        for r in range(4):
            h = H + 8*f + 2*r; t = T + 2*(r % 2)
            k(f"v_pk_fma_f32 {v(t,2)}, {v(h,2)}, {v(b,2)}, {v(b,2)} op_sel:[0,0,1] op_sel_hi:[1,0,1]")
            k(f"v_cvt_pk_bf16_f32 v{Q+4*f+r}, v{t}, v{t+1}")
        k(f"ds_write_b128 v11, {v(Q+4*f,4)} offset:{XL + tb*20480 + 1024*i}")
    k(f"s_lshl_b32 s37, s{TT}, 1"); k("s_mul_i32 s37, s37, 20"); k("s_mul_i32 s38, s10, 5"); k("s_add_u32 s37, s37, s38"); k("s_lshl_b32 s37, s37, 10")
    for q4 in range(4):
        tb = q4 & 1
        if q4 < 3: k(f"s_cmp_lg_u32 s{FQ}, {q4}"); k(f"s_cbranch_scc1 {k.lab('st%d' % (q4+1))}")
        k(f"s_add_u32 s38, s37, {(XB if q4 < 2 else HT) + tb*20480}"); k("s_add_u32 s39, s38, 4096")
        for i in range(5):
            f = tb*5 + i; src = Q + 4*f
            if q4 >= 2:
                src = Y + 4*i
                for r in range(4): k(f"v_cvt_pk_bf16_f32 v{src+r}, v{H+8*f+2*r}, v{H+8*f+2*r+1}")
            k(f"buffer_store_dwordx4 {v(src,4)}, v4, s[12:15], s{39 if i==4 else 38} offen offset:{1024*i if i<4 else 0}{ss}")
        if q4 < 3: k(f"s_branch {k.lab('stdone')}"); k.label('st%d' % (q4+1))
    k.label("stdone")
    vm.ops += ["S"] * 5
    k("s_waitcnt lgkmcnt(0)")
    k("s_barrier")
    pass
    ACC = 112; BF = 192
    k("s_and_b32 s37, s10, 1"); k("s_mul_i32 s37, s37, 20480"); k("v_add_u32 v10, s37, v4")
    def breads(kb):
        b = BF + 12*(kb % 4)
        return [f"ds_read_b128 {v(b,4)}, v4 offset:{XL + 1024*kb}", f"ds_read_b128 {v(b+4,4)}, v4 offset:{XL + 20480 + 1024*kb}",
                f"ds_read_b128 {v(b+8,4)}, v10 offset:{XL + 1024*kb}"]
    for kb in range(3):
        for ln in breads(kb): k(ln)
    tq = TQ(vm, tail or [])
    for kb in range(20):
        b = BF + 12*(kb % 4); nb = min(20, kb + 3) - kb - 1
        k(f"s_waitcnt lgkmcnt({3*nb})")
        nx = breads(kb + 3) if kb + 3 < 20 else []
        def mf(tile, t, breg):
            c = v(ACC + 4*tile, 4)
            k(f"v_mfma_f32_16x16x32_bf16 {c}, {a((t*20+kb)*4,4)}, {v(breg,4)}, {c if kb else 0}")
        mf(0, 0, b)
        if nx: k(nx[0])
        mf(1, 1, b)
        if nx: k(nx[1])
        mf(2, 0, b + 4)
        if nx: k(nx[2])
        mf(3, 1, b + 4)
        tq.pop()
        mf(4, 2, b + 8)
    tq.flush()
    k.stamp("gemm2")
    k("s_barrier")
    nq = TQ(vm, [(g, "N") for g in after_gemm(k)])
    k("s_bitcmp1_b32 s10, 0"); k("s_cselect_b64 s[56:57], -1, 0")
    k("v_cndmask_b32 v250, v244, v246, s[56:57]"); k("v_cndmask_b32 v251, v245, v247, s[56:57]"); k("v_cndmask_b32 v252, v248, v249, s[56:57]")
    PK = 40
    streams = []
    for tile in range(5):
        ab = (244, 244, 246, 246, 250)[tile]; ir = (248, 248, 249, 249, 252)[tile]; L = []
        for hf in range(2):
            L += gelu_fold(ACC + 4*tile + 2*hf, 64 + 2*tile, PK + 2*tile + hf, ab, ir)
        streams.append(L)
    for n, ln in enumerate(interleave(*streams)):
        k(ln)
    for tb in range(2):
        t0 = PK + 4*tb
        for r in range(4): k(f"v_cndmask_b32_e64 v{t0+r}, v{t0+r}, 0, s[{40+2*tb}:{41+2*tb}]")
        vm.issue([f"buffer_store_dwordx4 {v(t0,4)}, v{240+tb}, s[12:15], 0 offen{ss}"], "S")
    for r in range(2): k(f"v_cndmask_b32_e64 v{PK+8+r}, v{PK+8+r}, 0, s[44:45]")
    vm.issue([f"buffer_store_dwordx2 {v(PK+8,2)}, v242, s[12:15], 0 offen{ss}"], "S")
    return vm, nq

def w2_l2_items(k, sbase=82):
    k(f"s_bfe_u32 s{sbase}, s2, 0x10002"); k(f"s_mul_i32 s{sbase}, s{sbase}, {20*20480}")
    k(f"s_lshr_b32 s{sbase+1}, s2, 3"); k(f"s_lshl_b32 s{sbase+1}, s{sbase+1}, 2"); k(f"s_add_u32 s{sbase+1}, s{sbase+1}, s10")
    k(f"s_lshl_b32 s{sbase+1}, s{sbase+1}, 12"); k(f"s_add_u32 s{sbase}, s{sbase}, s{sbase+1}"); k(f"s_add_u32 s{sbase}, s{sbase}, {W2T}")
    return [([f"buffer_load_dwordx4 v[132:135], v4, s[12:15], s{sbase} offen offset:{1024*i}"], "pf") for i in range(4)]
```

```python
from ph_common import *
import ph_common as pc

P3_LDS = 102400
T64, FC, ODD, TBG, FB, SA, SH = 60, 61, 62, 63, 64, 70, 71
WB, LB = 72, 77
TMP = 78
M0_, M1_ = 80, 81

def p35_setup(k, tmp=TMP):
    map_t64_fc(k, T64, FC, tmp, tmp+1)
    col5(k, FC, ODD, FB)
    k(f"s_lshl_b32 s{TBG}, s{T64}, 2"); k(f"s_add_u32 s{TBG}, s{TBG}, s10")
    resid_offsets(k, TBG, FB, ODD, SA, SH, tmp)

def p3_pre(k):
    k(f"s_lshl_b32 s{TMP}, s10, 10")
    for l in range(5):
        k(f"s_mul_i32 s{WB+l}, s{FB+l}, 20480"); k(f"s_add_u32 s{WB+l}, s{WB+l}, s{TMP}"); k(f"s_add_u32 s{WB+l}, s{WB+l}, {W2T}")
    k(f"s_mul_i32 s{LB}, s10, 5120")
    G = []
    for c in range(5):
        for l in range(5):
            G.append([f"s_add_u32 m0, s{LB}, {c*20480 + l*1024}", f"s_add_u32 s{WB+l}, s{WB+l}, 4096" if c else "s_nop 0",
                      f"buffer_load_dwordx4 v4, s[12:15], s{WB+l} offen sc1 lds"])
    return G

def p3_main(k, tail, after_gemm, early=None):
    sc = pc.SC; ss = pc.SS
    X = 32; R = 112; ACC = 8; AF = 124; NR = 14
    vm = VM(k)
    k(f"s_mul_i32 s{M0_}, s{TBG}, 20480"); k(f"s_add_u32 s{M0_}, s{M0_}, {HS}")
    xl = []
    for kb in range(20):
        pre = [f"s_add_u32 s{M0_}, s{M0_}, 4096"] if (kb and kb % 4 == 0) else []
        xl.append((pre + [f"buffer_load_dwordx4 {v(X+4*kb,4)}, v4, s[12:15], s{M0_} offen offset:{1024*(kb%4)}{sc}"], ("X", kb)))
    res = [([f"s_add_u32 s{M1_}, s{SA}, {XB}", f"buffer_load_dwordx4 {v(R,4)}, v4, s[12:15], s{M1_} offen{sc}"], "R"),
           ([f"buffer_load_dwordx4 {v(R+4,4)}, v4, s[12:15], s{M1_} offen offset:1024{sc}"], "R"),
           ([f"s_add_u32 s{M1_}, s{SH}, {XB}", f"buffer_load_dwordx2 {v(R+8,2)}, v4, s[12:15], s{M1_} offen{sc}"], "R")]
    q = TQ(vm, xl + res + (early or []) + tail); q.pop(10)
    k("v_add_u32 v6, 0x10000, v4")
    def aread(slot, dst):
        off = slot * 1024
        return f"ds_read_b128 {v(dst,4)}, {'v6' if off >= 65536 else 'v4'} offset:{off % 65536}"
    seq = [(kb, l) for kb in range(20) for l in range(5)]
    PRE = 11
    for i in range(PRE): k(aread(seq[i][0]*5 + seq[i][1], AF + 4*(i % NR)))
    for i, (kb, l) in enumerate(seq):
        if l == 0: vm.wait(lambda t: t == ("X", kb))
        left = min(len(seq), i + PRE) - i - 1
        k(f"s_waitcnt lgkmcnt({left})")
        c = v(ACC + 4*l, 4)
        k(f"v_mfma_f32_16x16x32_bf16 {c}, {v(AF + 4*(i % NR),4)}, {v(X+4*kb,4)}, {c if kb else 0}")
        if i + PRE < len(seq):
            j = i + PRE; k(aread(seq[j][0]*5 + seq[j][1], AF + 4*(j % NR)))
        if l == 2 or (l == 4 and kb >= 5): q.pop()
    q.flush()
    k.stamp("gemm3")
    k("s_barrier")
    nq = TQ(vm, [(g, "N") for g in after_gemm(k)])
    vm.wait(lambda t: t == "R")
    k(f"s_mov_b32 s{M0_}, 0xffff0000")
    U = 32
    for l in range(5):
        for hf in range(2):
            src = resid_src(R, l, hf); u = U + 4*l + 2*hf; z = ACC + 4*l + 2*hf
            k(f"v_lshlrev_b32 v{u}, 16, v{src}"); k(f"v_and_b32 v{u+1}, s{M0_}, v{src}")
            k(f"v_pk_add_f32 {v(z,2)}, {v(z,2)}, {v(u,2)}")
    PK = 60
    for i in range(10): k(f"v_cvt_pk_bf16_f32 v{PK+i}, v{ACC+2*i}, v{ACC+2*i+1}")
    k(f"s_add_u32 s{M0_}, s{SA}, {X1}"); k(f"s_add_u32 s{M1_}, s{SH}, {X1}")
    vm.issue([f"buffer_store_dwordx4 {v(PK,4)}, v4, s[12:15], s{M0_} offen{ss}"], "S")
    vm.issue([f"buffer_store_dwordx4 {v(PK+4,4)}, v4, s[12:15], s{M0_} offen offset:1024{ss}"], "S")
    vm.issue([f"buffer_store_dwordx2 {v(PK+8,2)}, v4, s[12:15], s{M1_} offen{ss}"], "S")
    k(f"v_pk_mul_f32 v[72:73], {v(ACC,2)}, {v(ACC,2)}")
    k(f"v_pk_add_f32 v[70:71], {v(ACC,2)}, {v(ACC+2,2)}")
    k(f"v_pk_fma_f32 v[72:73], {v(ACC+2,2)}, {v(ACC+2,2)}, v[72:73]")
    for i in range(2, 10):
        z = ACC + 2*i
        k(f"v_pk_add_f32 v[70:71], v[70:71], {v(z,2)}")
        k(f"v_pk_fma_f32 v[72:73], {v(z,2)}, {v(z,2)}, v[72:73]")
    k("v_add_f32 v70, v70, v71"); k("v_add_f32 v72, v72, v73")
    k(f"s_lshl_b32 s{M0_}, s{TBG}, 3"); k(f"s_add_u32 s{M0_}, s{M0_}, s{FC}"); k(f"s_lshl_b32 s{M0_}, s{M0_}, 7"); k(f"s_add_u32 s{M0_}, s{M0_}, {ST2}")
    k("v_permlane32_swap_b32 v70, v72")
    k("v_add_f32 v70, v70, v72")
    k("v_mov_b32 v71, v70")
    k("v_permlane16_swap_b32 v70, v71")
    k("v_add_f32 v70, v70, v71")
    k("v_mov_b32 v71, v70")
    k("v_lshlrev_b32 v6, 3, v2")
    k("v_permlane32_swap_b32 v70, v71")
    k("s_mov_b64 exec, 0xffff")
    vm.issue([f"buffer_store_dwordx2 v[70:71], v6, s[12:15], s{M0_} offen{ss}"], "S")
    k("s_mov_b64 exec, -1")
    return vm, nq

def w3_l2_items(k, sbase=82):
    k(f"s_bfe_u32 s{sbase}, s2, 0x10002"); k(f"s_mul_i32 s{sbase}, s{sbase}, {56*20480}")
    k(f"s_lshr_b32 s{sbase+1}, s2, 3"); k(f"s_lshl_b32 s{sbase+1}, s{sbase+1}, 2"); k(f"s_add_u32 s{sbase+1}, s{sbase+1}, s10")
    k(f"s_mul_i32 s{sbase+1}, s{sbase+1}, 9216"); k(f"s_add_u32 s{sbase}, s{sbase}, s{sbase+1}"); k(f"s_add_u32 s{sbase}, s{sbase}, {W3T}")
    G = []
    for i in range(9):
        pre = [f"s_add_u32 s{sbase}, s{sbase}, 4096"] if (i and i % 4 == 0) else []
        G.append((pre + [f"buffer_load_dwordx4 v[28:31], v4, s[12:15], s{sbase} offen offset:{1024*(i%4)}"], "pf"))
    return G
```

```python
from ph_common import *
import ph_common as pc

CSL = 143360
P4_LDS = CSL + 512
T128, COL, NP, ODD, P0, TH, TBG = 24, 25, 26, 27, 28, 29, 30
CARRY = 24
CSV = 192

def p4_setup(k):
    k("s_and_b32 s36, s2, 7"); k("s_lshr_b32 s37, s2, 3")
    k(f"s_and_b32 s{T128}, s36, 3"); k("s_and_b32 s38, s37, 3"); k("s_lshl_b32 s38, s38, 2"); k(f"s_add_u32 s{T128}, s{T128}, s38")
    k(f"s_lshr_b32 s{COL}, s36, 2"); k(f"s_lshl_b32 s{COL}, s{COL}, 3"); k("s_lshr_b32 s38, s37, 2"); k(f"s_add_u32 s{COL}, s{COL}, s38")
    k(f"s_mul_i32 s38, s{COL}, 7")
    k(f"s_cmp_eq_u32 s{COL}, 15"); k("s_cselect_b32 s38, 103, s38")
    k(f"s_cmp_ge_u32 s{COL}, 14"); k(f"s_cselect_b32 s{NP}, 2, 3")
    k(f"s_and_b32 s{ODD}, s{COL}, 1")
    k(f"s_add_u32 s{P0}, s38, s{ODD}")
    k(f"s_lshl_b32 s{TH}, s{NP}, 1"); k(f"s_add_u32 s{TH}, s{TH}, s38")
    k(f"s_cmp_eq_u32 s{ODD}, 1"); k(f"s_cselect_b32 s{TH}, s38, s{TH}")
    k(f"s_lshl_b32 s{TBG}, s{T128}, 3"); k("s_lshl_b32 s38, s10, 1"); k(f"s_add_u32 s{TBG}, s{TBG}, s38")

def p4_pre_setup(k):
    k(f"s_mul_i32 s40, s{P0}, 20480"); k("s_mul_i32 s41, s10, 5120"); k("s_add_u32 s40, s40, s41"); k(f"s_add_u32 s40, s40, {W3T}")
    k(f"s_mul_i32 s42, s{TH}, 20480"); k("s_add_u32 s42, s42, s41"); k(f"s_add_u32 s42, s42, {W3T}")

def p4_tile_groups(l):
    src = f"s_add_u32 s44, s40, {l*20480}" if l < 6 else "s_mov_b32 s44, s42"
    src2 = f"s_add_u32 s44, s40, {l*20480 + 4096}" if l < 6 else "s_add_u32 s44, s42, 4096"
    G = []
    for i in range(5):
        pre = []
        if i == 0: pre = [f"s_add_u32 m0, s41, {l*20480}", src]
        if i == 4: pre = [f"s_add_u32 m0, s41, {l*20480 + 4096}", src2]
        G.append(pre + [f"buffer_load_dwordx4 v4, s[12:15], s44 offen offset:{1024*(i%4)} sc1 lds"])
    return G

def p4_pre_early(k):
    c = CSV
    G = [[f"v_lshrrev_b32 v{c}, 4, v0", f"v_add_u32 v{c+1}, s{P0}, v{c}", f"v_cmp_eq_u32 vcc, 6, v{c}", f"v_mov_b32 v{c+2}, s{TH}",
          f"v_cndmask_b32 v{c+1}, v{c+1}, v{c+2}, vcc", f"v_lshlrev_b32 v{c+1}, 6, v{c+1}", f"v_lshl_add_u32 v{c+1}, v2, 2, v{c+1}",
          f"s_mov_b32 s45, {CS3}", f"buffer_load_dword v{c+3}, v{c+1}, s[12:15], s45 offen sc1"]]
    for j in range(1, 5):
        G.append([f"s_mov_b32 s45, {CS3 + j*F*4}", f"buffer_load_dword v{c+3+j}, v{c+1}, s[12:15], s45 offen sc1"])
    return G + p4_tile_groups(5) + p4_tile_groups(6)

def p4_pre_late(k):
    G = []
    for l in range(5): G += p4_tile_groups(l)
    return G

def p4_cs_table(k):
    c = CSV
    k(f"v_add_f32 v{c+3}, v{c+3}, v{c+4}"); k(f"v_add_f32 v{c+5}, v{c+5}, v{c+6}")
    k(f"v_add_f32 v{c+3}, v{c+3}, v{c+7}"); k(f"v_add_f32 v{c+3}, v{c+3}, v{c+5}")
    k(f"v_lshlrev_b32 v{c+4}, 2, v0"); k(f"v_add_u32 v{c+4}, {CSL}, v{c+4}")
    k("v_cmp_gt_u32 vcc, 112, v0")
    k("s_and_saveexec_b64 s[56:57], vcc")
    k(f"s_cbranch_execz {k.lab('nocs')}")
    k(f"ds_write_b32 v{c+4}, v{c+3}")
    k.label("nocs")
    k("s_mov_b64 exec, s[56:57]")
    k("s_waitcnt lgkmcnt(0)")

def p4_main(k, tail, after_gemm, early=None):
    sc = pc.SC; ss = pc.SS
    vm = VM(k)
    k(f"s_mul_i32 s47, s{TBG}, 20480"); k(f"s_add_u32 s47, s47, {X1}"); k("s_add_u32 s48, s47, 20480")
    xl = []
    for kb in range(20):
        for tb in range(2):
            pre = ["s_add_u32 s47, s47, 4096", "s_add_u32 s48, s48, 4096"] if (tb == 0 and kb and kb % 4 == 0) else []
            xl.append((pre + [f"buffer_load_dwordx4 {a((kb*2+tb)*4,4)}, v4, s[12:15], s{47+tb} offen offset:{1024*(kb%4)}{sc}"], ("X", kb)))
    k("v_lshlrev_b32 v6, 8, v3"); k("v_lshl_add_u32 v6, v2, 3, v6")
    k(f"s_lshl_b32 s37, s{TBG}, 10"); k(f"s_add_u32 s37, s37, {ST2}")
    stl = [([f"buffer_load_dwordx2 {v(8 + 4*tb + 2*h_, 2)}, v6, s[12:15], s37 offen offset:{1024*tb + 128*h_}{sc}"], "ST") for tb in range(2) for h_ in range(2)]
    q = TQ(vm, xl[:4] + stl + xl[4:] + (early or []) + tail); q.pop(14)
    k(f"s_mov_b32 s50, {f2u(GELU_C0)}"); k(f"s_mov_b32 s51, {f2u(GELU_C1)}")
    k(f"s_mov_b32 s54, {f2u(1.0/640)}"); k(f"s_mov_b32 s55, {f2u(1e-5)}")
    st = []
    for tb in range(2):
        b = 8 + 4*tb; o = 16 + 2*tb
        st += [f"v_add_f32 v{o}, v{b}, v{b+2}", f"v_add_f32 v{o+1}, v{b+1}, v{b+3}"]
    for tb in range(2):
        for o in (16 + 2*tb, 17 + 2*tb):
            t_ = 8 + (o - 16)
            st += [f"v_mov_b32 v{t_}, v{o}", f"v_permlane32_swap_b32 v{o}, v{t_}", f"v_add_f32 v{o}, v{o}, v{t_}",
                   f"v_mov_b32 v{t_}, v{o}", f"v_permlane16_swap_b32 v{o}, v{t_}", f"v_add_f32 v{o}, v{o}, v{t_}"]
    for tb in range(2):
        o = 16 + 2*tb
        st += [f"v_mul_f32 v{o}, s54, v{o}", f"v_mul_f32 v{o+1}, s54, v{o+1}", f"v_fma_f32 v{o+1}, -v{o}, v{o}, v{o+1}",
               f"v_max_f32 v{o+1}, 0, v{o+1}", f"v_add_f32 v{o+1}, s55, v{o+1}", f"v_rsq_f32 v{o+1}, v{o+1}"]
        st += gelu_scale_consts(o+1, 168 + 2*tb, 172 + tb, 50, 51)
    sq = Queue(k, [[x] for x in st])
    ACC = 32; AF = 176; CS = 120; T = 24; PK = 148; NR = 14
    k("v_lshlrev_b32 v5, 4, v3"); k(f"v_add_u32 v5, {CSL}, v5")
    for l in range(7): k(f"ds_read_b128 {v(CS+4*l,4)}, v5 offset:{64*l}")
    k("v_add_u32 v6, 0x10000, v4"); k("v_add_u32 v7, 0x20000, v4")
    def accr(l, tb): return ACC + 16*(l//2) + 8*tb + 4*(l % 2) if l < 6 else ACC + 48 + 4*tb
    def gemm(tiles):
        seq = [(kb, l) for kb in range(20) for l in tiles]
        PRE = 11
        def rd(i):
            kb, l = seq[i]; off = l*20480 + kb*1024
            reg = "v4" if off < 65536 else ("v6" if off < 131072 else "v7")
            return f"ds_read_b128 {v(AF + 4*(i % NR),4)}, {reg} offset:{off % 65536}"
        k("s_waitcnt lgkmcnt(0)")
        for i in range(PRE): k(rd(i))
        for i, (kb, l) in enumerate(seq):
            if l == tiles[0]: vm.wait(lambda t: t == ("X", kb) or (kb >= 2 and t == "ST"))
            left = min(len(seq), i + PRE) - i - 1
            k(f"s_waitcnt lgkmcnt({left})")
            for tb in range(2):
                c = v(accr(l, tb), 4)
                k(f"v_mfma_f32_16x16x32_bf16 {c}, {v(AF + 4*(i % NR),4)}, {a((kb*2+tb)*4,4)}, {c if kb else 0}")
                if tb == 0 and i + PRE < len(seq): k(rd(i + PRE))
            if l in (tiles[0], tiles[3]) or (kb >= 3 and l == tiles[1]) or (kb >= 16 and l == tiles[2]): q.pop()
            if kb >= 2: sq.pop()
        q.flush(); sq.flush()
    k(f"s_cmp_eq_u32 s{NP}, 2"); k(f"s_cbranch_scc1 {k.lab('g5')}")
    save = (list(q.items), list(vm.ops), list(sq.g))
    gemm([0, 1, 2, 3, 4, 5, 6])
    ops_after = list(vm.ops)
    k(f"s_branch {k.lab('gdone')}")
    k.label("g5")
    q.items, vm.ops, sq.g = save
    gemm([0, 1, 2, 3, 6])
    assert vm.ops == ops_after
    k.label("gdone")
    k.stamp("gemm4")
    nq = TQ(vm, [(g, "N") for g in after_gemm(k)])
    k(f"s_mul_i32 s58, s{TBG}, 55296"); k(f"s_lshr_b32 s59, s{P0}, 1"); k("s_lshl_b32 s59, s59, 10")
    k("s_add_u32 s58, s58, s59"); k(f"s_add_u32 s58, s58, {GG}"); k("s_add_u32 s59, s58, 55296")
    def epi(j, carry):
        streams = []
        for tb in range(2):
            for s_ in (range(2) if j < 3 else [0]):
                L = []; l = 2*j + s_
                for hf in range(2):
                    z = accr(l, tb) + 2*hf; t = T + 2*len(streams); st_ = 16 + 2*tb; cs = CS + 4*l + 2*hf
                    first = [f"v_pk_fma_f32 {v(z,2)}, {v(cs,2)}, {v(st_,2)}, {v(z,2)} op_sel:[0,0,0] op_sel_hi:[1,0,1] neg_lo:[1,0,0] neg_hi:[1,0,0]"]
                    L += gelu_fold(z, t, PK + 8*(j % 2) + 4*tb + 2*s_ + hf if j < 3 else PK + 4*tb + hf, 168 + 2*tb, 172 + tb, first)
                streams.append(L)
        for n, ln in enumerate(interleave(*streams)):
            k(ln)
            if carry and n % CARRY == CARRY - 1: nq.pop()
        if j < 3:
            p = PK + 8*(j % 2)
            vm.issue([f"buffer_store_dwordx4 {v(p,4)}, v4, s[12:15], s58 offen offset:{1024*j}{ss}"], "S")
            vm.issue([f"buffer_store_dwordx4 {v(p+4,4)}, v4, s[12:15], s59 offen offset:{1024*j}{ss}"], "S")
    epi(0, True); epi(1, True)
    k(f"s_cmp_eq_u32 s{NP}, 2"); k(f"s_cbranch_scc1 {k.lab('noe2')}")
    before = len(vm.ops)
    epi(2, False)
    del vm.ops[before:]
    k.label("noe2")
    epi(3, True)
    k(f"s_mul_i32 s58, s{TBG}, 55296"); k(f"s_lshr_b32 s59, s{TH}, 1"); k("s_lshl_b32 s59, s59, 10")
    k("s_add_u32 s58, s58, s59"); k(f"s_lshl_b32 s59, s{ODD}, 3"); k("s_add_u32 s58, s58, s59"); k(f"s_add_u32 s58, s58, {GG}")
    k("s_add_u32 s59, s58, 55296")
    vm.issue([f"buffer_store_dwordx2 {v(PK,2)}, v4, s[12:15], s58 offen{ss}"], "S")
    vm.issue([f"buffer_store_dwordx2 {v(PK+4,2)}, v4, s[12:15], s59 offen{ss}"], "S")
    return vm, nq

def w4_l2_items(k, sbase=82):
    k(f"s_bfe_u32 s{sbase}, s2, 0x10002"); k(f"s_mul_i32 s{sbase}, s{sbase}, {20*55296}")
    k(f"s_lshr_b32 s{sbase+1}, s2, 3"); k(f"s_lshl_b32 s{sbase+1}, s{sbase+1}, 2"); k(f"s_add_u32 s{sbase+1}, s{sbase+1}, s10")
    k(f"s_mul_i32 s{sbase+1}, s{sbase+1}, 9216"); k(f"s_add_u32 s{sbase}, s{sbase}, s{sbase+1}"); k(f"s_add_u32 s{sbase}, s{sbase}, {W4T}")
    G = []
    for i in range(9):
        pre = [f"s_add_u32 s{sbase}, s{sbase}, 4096"] if (i and i % 4 == 0) else []
        G.append((pre + [f"buffer_load_dwordx4 v[164:167], v4, s[12:15], s{sbase} offen offset:{1024*(i%4)}"], "pf"))
    return G
```

```python
import sys, json
import asmlib
from asmlib import *
from layout import *
import mega
HEADER = """; H3 (shift conv, gate, long causal conv) + S-MLP mixer block in one persistent launch: 256 workgroups, one per CU.
"""
NAME = "sequential_preLN__ssm_conv_h3__mixer_s_mlp__prompt_kernel"
def build(diag=False, only=None):
    if diag:
        asmlib.DIAG["block_kernel"] = 0
        mega.ONLY = only
    k = mega.mega()
    asmlib.DIAG.clear()
    meta = {"block_kernel": {"names": getattr(k, "names", []), "nwg": 256, "idx": 0}}
    txt = build_file([k], [], HEADER)
    txt = txt.replace("block_kernel", NAME)
    txt = f"; @launch grid=(256,1,1) block=(256,1,1) lds={mega.LDS}\n" + txt
    return txt, meta
if __name__ == "__main__":
    out = sys.argv[1]
    if len(sys.argv) > 2:
        only = tuple(sys.argv[2].split(","))
        t, m = build(True, only)
        m = {NAME: m["block_kernel"]}
        json.dump(m, open(out.replace(".s", ".json"), "w"))
    else:
        t, m = build()
    open(out, "w").write(t)
```

```python
from ph_common import *
import ph_common as pc
import p2, p3, p4, p5

LDS = p4.P4_LDS
C2, C3, C4 = CNT, CNT + 64*128, CNT + 128*128
C0, C1, CPA, CPB = CNT + 192*128, CNT + 232*128, CNT + 240*128, CNT + 241*128
FLG = None
FALL = CNT + 242*128
SPIN_LIMIT = 200000
SG, SG2 = 84, 85
NFOLLOW = 0
WGAP = 6
NWLOOP = 30
NWA = 45
PFSTART = 1
PFGAP = 6
DRAIN_LOADS = 10
MID = (99, 99, 16)
ONLY = None
CPY = 4160
WREG = 4608 + 2*CPY
CONVL = 92160
KVL = 17408
KVO = 2*KVL

def atomic_signal(k, offset_code, lab, target, flag_code=None, first=False):
    if target is None:
        k("s_cmp_lg_u32 s10, 0"); k(f"s_cbranch_scc1 {lab}")
        if first: wait_init(k)
        for ln in offset_code: k(ln)
        k("v_mov_b32 v5, 0"); k("v_mov_b32 v6, 1")
        k("s_mov_b64 exec, 1")
        k(f"buffer_atomic_add v6, v5, s[12:15], s{SG} offen sc1")
        k("s_mov_b64 exec, -1")
        k.L.append(lab + ":")
        return
    k("s_cmp_lg_u32 s10, 0"); k(f"s_cbranch_scc1 {lab}")
    if first: wait_init(k)
    for ln in offset_code: k(ln)
    k("v_mov_b32 v5, 0"); k("v_mov_b32 v6, 1")
    k("s_mov_b64 exec, 1")
    k(f"buffer_atomic_add v6, v5, s[12:15], s{SG} offen sc0 sc1")
    for ln in (flag_code or [f"s_add_u32 s{SG}, s{SG}, {FLG}"]): k(ln)
    k("s_waitcnt vmcnt(0)")
    k.stamp("atom%d" % target + lab[-2:])
    k(f"v_cmp_eq_u32 vcc, {target - 1}, v6")
    k("v_mov_b32 v6, 1")
    k("s_and_b64 exec, exec, vcc")
    k(f"s_cbranch_execz {lab}_x")
    k(f"buffer_store_dword v6, v5, s[12:15], s{SG} offen sc1")
    k.L.append(lab + "_x:")
    k("s_mov_b64 exec, -1")
    k.L.append(lab + ":")

def signal(k, vm, nq, offset_code, target, flag_code=None, first=False):
    lab = k.lab(k.uniq("sig"))
    if nq: nq.pop(DRAIN_LOADS)
    if vm: vm.wait(lambda t: t == "S")
    else: k("s_waitcnt vmcnt(0)")
    k.stamp("drained%d" % k._n)
    k("s_barrier")
    atomic_signal(k, offset_code, lab, target, flag_code, first)

def poll(k, addr_code, target_reg_code, va=5, vd=6, vt=7):
    lab = k.lab(k.uniq("pl")); loop = lab + "_l"
    for ln in addr_code + target_reg_code: k(ln)
    k(f"s_mov_b32 s{SG2}, 0")
    k.L.append(loop + ":")
    k(f"buffer_load_dword v{vd}, v{va}, s[12:15], 0 offen sc1")
    k(f"s_add_u32 s{SG2}, s{SG2}, 1")
    k("s_waitcnt vmcnt(0)")
    k(f"v_cmp_gt_u32 vcc, v{vt}, v{vd}")
    k(f"s_cmp_gt_u32 s{SG2}, {SPIN_LIMIT}"); k(f"s_cbranch_scc1 {lab}")
    k(f"s_cbranch_vccnz {loop}")
    k.L.append(lab + ":")

def wait_counters(k, nq, addr_code, target_code, all_waves_drain, before_barrier=None, mid=0):
    lab = k.lab(k.uniq("wt"))
    if nq: nq.pop(mid)
    k("s_cmp_lg_u32 s10, 0"); k(f"s_cbranch_scc1 {lab}")
    k.stamp("prepoll" + lab[-2:])
    poll(k, addr_code, target_code)
    k.stamp("polled" + lab[-2:])
    k.L.append(lab + ":")
    if nq: nq.flush()
    if all_waves_drain: k("s_waitcnt vmcnt(0)")
    if before_barrier: before_barrier(k)
    k("s_barrier")

def cpa_sample(): return [f"v_mov_b32 v220, {FALL + 8*128}", "buffer_load_dword v219, v220, s[12:15], 0 offen sc1"]
def cpa_check(k):
    ok = k.lab(k.uniq("cpaok"))
    k("v_cmp_eq_u32 vcc, 0, v219"); k(f"s_cbranch_vccz {ok}")
    poll(k, [f"v_mov_b32 v5, {FALL + 8*128}"], ["v_mov_b32 v7, 1"])
    k.L.append(ok + ":")

def shard_addr(base): return ["v_and_b32 v5, 7, v1", "v_lshlrev_b32 v5, 7, v5", f"v_add_u32 v5, {base}, v5"]
def own_shard(base): return [f"s_and_b32 s{SG}, s2, 7", f"s_lshl_b32 s{SG}, s{SG}, 7", f"s_add_u32 s{SG}, s{SG}, {base}"]

def init_srd(k):
    k("s_mov_b32 s74, 256"); k("s_mov_b32 s75, 0x20000")

def wait_init(k):
    lab = k.lab(k.uniq("in")); loop = lab + "_l"
    k("v_mov_b32 v5, 0"); k(f"s_mov_b32 s{SG2}, 0")
    k.L.append(loop + ":")
    k("buffer_load_dword v6, v5, s[72:75], 0 offen sc1")
    k(f"s_add_u32 s{SG2}, s{SG2}, 1")
    k("s_waitcnt vmcnt(0)")
    k("v_cmp_eq_u32 vcc, 0, v6")
    k(f"s_cmp_gt_u32 s{SG2}, {SPIN_LIMIT}"); k(f"s_cbranch_scc1 {lab}")
    k(f"s_cbranch_vccnz {loop}")
    k.L.append(lab + ":")

def vm_after(vm):
    return vm

def kv_issue(k, vm):
    k("s_sub_u32 s29, s2, 160"); k("s_cmp_lt_u32 s29, 78"); k("s_cselect_b32 s29, 2, 1")
    for j in range(2):
        k(f"s_add_u32 s26, s2, {82*j}")
        k("s_mul_hi_u32 s27, s26, 0x1999999a"); k("s_mul_i32 s28, s27, 10"); k("s_sub_u32 s28, s26, s28")
        k(f"s_lshl_b32 s{30+2*j}, s27, 6"); k(f"s_lshl_b32 s{31+2*j}, s28, 6")
    k("v_lshrrev_b32 v5, 3, v0"); k("v_and_b32 v6, 7, v0"); k("v_lshlrev_b32 v6, 4, v6")
    k("s_waitcnt lgkmcnt(0)")
    k.srd(48, 36, MB); k.srd(52, 38, MB); k.srd(56, 40, D*8)
    k("s_lshl_b32 s26, s10, 10"); k("s_mov_b32 s27, 40960")
    for j in range(2):
        b = j*KVL
        if j == 1: k("s_cmp_lt_u32 s29, 2"); k(f"s_cbranch_scc1 {k.lab('kv1')}")
        k(f"v_add_u32 v{8+j}, s{30+2*j}, v5"); k(f"v_mul_u32_u24 v{8+j}, 1280, v{8+j}")
        k(f"s_lshl_b32 s28, s{31+2*j}, 1"); k(f"v_add3_u32 v{8+j}, v{8+j}, v6, s28")
        k(f"v_subrev_u32 v{10+j}, 3840, v{8+j}")
        G = [[f"s_add_u32 m0, s26, {b}", "s_nop 0", f"buffer_load_dwordx4 v{10+j}, s[48:51], 0 offen lds"],
             [f"s_add_u32 m0, s26, {b + 4096}", f"v_add_u32 v7, 40960, v{10+j}", "buffer_load_dwordx4 v7, s[48:51], 0 offen lds"],
             [f"s_add_u32 m0, s26, {b + 9216}", "s_nop 0", f"buffer_load_dwordx4 v{8+j}, s[52:55], 0 offen lds"],
             [f"s_add_u32 m0, s26, {b + 13312}", "s_nop 0", f"buffer_load_dwordx4 v{8+j}, s[52:55], s27 offen lds"],
             [f"s_mov_b32 m0, {b + 8192}", "v_lshrrev_b32 v7, 3, v1", f"v_add_u32 v7, s{30+2*j}, v7", "v_mul_u32_u24 v7, 1280, v7",
              "v_and_b32 v18, 7, v1", "v_lshlrev_b32 v18, 4, v18", f"s_lshl_b32 s28, s{31+2*j}, 1", "v_add3_u32 v7, v7, v18, s28",
              "v_add_u32 v7, 78080, v7", "buffer_load_dwordx4 v7, s[48:51], 0 offen lds"],
             [f"v_add_u32 v{16+j}, s{31+2*j}, v1", f"v_lshlrev_b32 v{16+j}, 3, v{16+j}", f"buffer_load_dwordx2 {v(12+2*j,2)}, v{16+j}, s[56:59], 0 offen"]]
        for g in G:
            if j == 0: vm.issue(g, "kv")
            else:
                for ln in g: k(ln)
    k.label("kv1")

def kv_compute(k):
    k("v_and_b32 v10, 15, v1"); k("v_lshrrev_b32 v11, 2, v10"); k("s_lshl_b32 s42, s10, 4"); k("v_add_u32 v11, s42, v11")
    k("v_lshlrev_b32 v11, 7, v11"); k("v_and_b32 v10, 3, v10"); k("v_lshlrev_b32 v10, 3, v10"); k("v_lshlrev_b32 v16, 5, v3")
    k("v_add3_u32 v11, v11, v10, v16")
    k("s_mov_b32 s45, 0"); k("s_mov_b32 s46, 0xffff0000"); k(f"s_mov_b32 s47, {KVO}")
    k(".p2align 3")
    k.label("kvloop")
    k("v_mul_u32_u24 v9, 144, v1"); k("s_lshl_b32 s43, s10, 5"); k(f"s_sub_u32 s43, {KVO + 96}, s43"); k("v_add_u32 v9, s43, v9")
    KR = 16; VR = 26; KF = 38
    for i in range(5): k(f"ds_read_b64_tr_b16 {v(KR+2*i,2)}, v11 offset:{512*i}")
    for i in range(4): k(f"ds_read_b64_tr_b16 {v(VR+2*i,2)}, v11 offset:{9216+512*i}")
    k("v_lshlrev_b32 v34, 16, v12"); k("v_and_b32 v35, s46, v12"); k("v_lshlrev_b32 v36, 16, v13"); k("v_and_b32 v37, s46, v13")
    k("s_waitcnt lgkmcnt(4)")
    for i in range(10):
        k(f"v_lshlrev_b32 v{KF+2*i}, 16, v{KR+i}"); k(f"v_and_b32 v{KF+2*i+1}, s46, v{KR+i}")
    k("s_waitcnt lgkmcnt(0)")
    OUTR = 58
    for half in (1, 0):
        for pr in range(4):
            es = (8*half + 7 - 2*pr, 8*half + 6 - 2*pr)
            for j, e in enumerate(es):
                t = 16 + j
                k(f"v_mul_f32 v{t}, v34, v{KF+e+3}"); k(f"v_fmac_f32 v{t}, v35, v{KF+e+2}")
                k(f"v_fmac_f32 v{t}, v36, v{KF+e+1}"); k(f"v_fmac_f32 v{t}, v37, v{KF+e}")
                vr = VR + e//2
                if e % 2 == 0: k(f"v_lshlrev_b32 v{18+j}, 16, v{vr}")
                else: k(f"v_and_b32 v{18+j}, s46, v{vr}")
                k(f"v_mul_f32 v{t}, v{t}, v{18+j}")
            k(f"v_cvt_pk_bf16_f32 v{OUTR+pr}, v16, v17")
        k(f"ds_write_b128 v9, {v(OUTR,4)} offset:{16*(1-half)}")
        OUTR = 20
    k("v_lshrrev_b32 v5, 3, v1"); k("v_add_u32 v5, s42, v5"); k("v_and_b32 v6, 7, v1"); k("v_lshlrev_b32 v6, 4, v6")
    k("v_mul_u32_u24 v7, 144, v5"); k(f"v_add3_u32 v7, v7, v6, s47")
    k("v_add_u32 v5, s31, v5"); k("v_lshlrev_b32 v5, 12, v5"); k("v_add_u32 v5, v5, v6")
    k("s_sub_u32 s43, 1984, s30"); k("s_lshl_b32 s43, s43, 1"); k(f"s_add_u32 s43, s43, {UR}"); k("s_add_u32 s44, s43, 32768")
    k("s_waitcnt lgkmcnt(0)")
    k("s_barrier")
    k("ds_read_b128 v[16:19], v7"); k("ds_read_b128 v[20:23], v7 offset:1152")
    k("s_waitcnt lgkmcnt(1)")
    k("buffer_store_dwordx4 v[16:19], v5, s[12:15], s43 offen sc1")
    k("s_waitcnt lgkmcnt(0)")
    k("buffer_store_dwordx4 v[20:23], v5, s[12:15], s44 offen sc1")
    k("s_barrier")
    k("s_mov_b32 s30, s32"); k("s_mov_b32 s31, s33")
    k("v_mov_b32 v12, v14"); k("v_mov_b32 v13, v15"); k(f"v_add_u32 v11, {KVL}, v11")
    k("s_add_u32 s45, s45, 1"); k("s_cmp_lt_u32 s45, s29"); k(f"s_cbranch_scc1 {k.lab('kvloop')}")

HB = 128; E = 168
def conv_h_issue(k, vm):
    k("s_lshl_b32 s83, s2, 2"); k("s_add_u32 s83, s83, s10")
    k("s_lshl_b32 s35, s83, 12")
    k(f"s_mul_i32 s82, s10, {WREG}"); k(f"s_add_u32 s82, s82, {CONVL}")
    k("v_subrev_u32 v5, 32, v4"); k("v_add_u32 v6, 16, v5")
    k("s_lshl_b32 s28, s83, 1"); k("v_mov_b32 v19, s28")
    k("s_add_u32 s76, s76, s35"); k("s_addc_u32 s77, s77, 0")
    k("s_mov_b32 s78, 4096"); k("s_mov_b32 s79, 0x20000")
    for q in range(5):
        vm.issue([f"buffer_load_dwordx4 {v(HB+8*q,4)}, v5, s[76:79], 0 offen"], ("h", q))
        vm.issue([f"buffer_load_dword v{HB+8*q+4}, v6, s[76:79], 0 offen"] + (["v_add_u32 v5, 1024, v5", "v_add_u32 v6, 1024, v6"] if q < 4 else []), ("h", q))
    k("v_subrev_u32 v5, 32, v4")
    vm.issue(["s_add_u32 m0, s82, 4608", "s_nop 0", "buffer_load_dwordx4 v5, s[76:79], 0 offen lds"], "h0")
    k("s_add_u32 m0, s82, %d" % (4608 + 1024)); k("v_add_u32 v5, 1024, v5")
    for q in range(3): vm.issue([f"buffer_load_dwordx4 v5, s[76:79], 0 offen offset:{1024*q} lds"], "h0")
    k("s_add_u32 m0, s82, %d" % (4608 + 4096)); k("v_add_u32 v5, 3072, v5")
    vm.issue(["s_mov_b64 exec, 15", "buffer_load_dwordx4 v5, s[76:79], 0 offen lds", "s_mov_b64 exec, -1"], "h0")
    k("s_mov_b32 s44, s80"); k("s_mov_b32 s45, s81"); k(f"s_mov_b32 s46, {D*2}"); k("s_mov_b32 s47, 0x20000")
    vm.issue(["buffer_load_ushort v176, v19, s[44:47], 0 offen"], "D")

def conv_h_copy1(k):
    k("s_add_u32 s42, s82, %d" % (4608 + CPY)); k("v_add_u32 v5, s42, v4")
    for q in range(5):
        x = HB + 8*q
        if q == 4: k("s_mov_b64 exec, 15")
        for i in range(4): k(f"v_alignbit_b32 v{E+4*(q%2)+i}, v{x+i+1}, v{x+i}, 16")
        k(f"ds_write_b128 v5, {v(E+4*(q%2),4)} offset:{1024*q}")
    k("s_mov_b64 exec, -1")

def conv_main(k, prefetch_items, wloop):
    vm = VM(k)
    k(f"s_lshl_b32 s35, s83, 12"); k(f"s_add_u32 s36, s35, {UR}")
    k("s_mov_b32 m0, s82"); k("s_nop 0")
    for j in range(4): vm.issue([f"buffer_load_dwordx4 v4, s[12:15], s36 offen offset:{1024*j} sc1 lds"], "ur")
    k("v_mov_b32 v8, 0"); k("v_mov_b32 v9, 0"); k("v_lshlrev_b32 v7, 3, v1"); k("v_add_u32 v7, s82, v7")
    k("ds_write_b64 v7, v[8:9] offset:4096")
    k("v_add_u32 v13, 1, v2"); k("v_and_b32 v14, 1, v13"); k(f"v_mul_u32_u24 v12, {CPY}, v14")
    k("v_sub_u32 v13, v13, v14"); k("v_lshlrev_b32 v13, 1, v13"); k("v_lshl_add_u32 v13, v3, 4, v13")
    k("s_add_u32 s38, s82, 4608"); k("v_add3_u32 v12, v12, v13, s38")
    for j in range(1, 4): k(f"v_add_u32 v{103+j}, {1024*j}, v12")
    k("v_lshlrev_b32 v13, 5, v2"); k("v_lshlrev_b32 v14, 4, v3"); k("v_sub_u32 v13, v14, v13")
    k("s_add_u32 s39, s82, 480"); k("v_add_u32 v13, s39, v13")
    AP = 100
    k("v_sub_u32 v16, 15, v2"); k("v_lshrrev_b32 v17, 3, v16"); k("v_and_b32 v16, 7, v16")
    k("v_and_b32 v18, 1, v16"); k("v_lshlrev_b32 v18, 4, v18"); k("v_lshlrev_b32 v18, v18, v176")
    k("v_cmp_eq_u32 vcc, v17, v3"); k("v_cndmask_b32 v18, 0, v18, vcc"); k("v_lshrrev_b32 v16, 1, v16")
    for r in range(4):
        k(f"v_cmp_eq_u32 vcc, {r}, v16"); k(f"v_cndmask_b32 v{AP+r}, 0, v18, vcc")
    ACC = 16; A0 = 48; A1 = 112; B0 = 144; B1 = 176
    AR = (12, 104, 105, 106)
    def loads(A, B, rho):
        L = []
        for d in range(8): L.append(f"ds_read_b128 {v(B+4*d,4)}, v13 offset:{64*rho + 512*(7-d)}")
        for m in range(8):
            o = 128*(m % 2) + 16*rho
            L.append(f"ds_read2_b32 {v(A+4*m,2)}, v{AR[m//2]} offset0:{o} offset1:{o+1}")
            L.append(f"ds_read2_b32 {v(A+4*m+2,2)}, v{AR[m//2]} offset0:{o+2} offset1:{o+3}")
        return L
    pq = TQ(vm, prefetch_items)
    vm.wait(lambda t: t == "ur", " lgkmcnt(0)")
    k.stamp("ur")
    for ln in loads(A0, B0, 0): k(ln)
    k("s_waitcnt lgkmcnt(0)")
    for t in range(8): k(f"v_mfma_f32_16x16x32_bf16 {v(ACC+4*t,4)}, {v(AP,4)}, {v(B0+4*t,4)}, 0")
    pairs = [(m, d) for m in range(8) for d in range(8 - m)]
    for rho in range(8):
        A, B = (A0, B0) if rho % 2 == 0 else (A1, B1)
        An, Bn = (A1, B1) if rho % 2 == 0 else (A0, B0)
        nxt = loads(An, Bn, rho + 1) if rho < 7 else []
        if wloop:
            if rho == 1: vm.issue(cpa_sample(), "cpa")
            if rho == 2:
                pq.flush(); vm.wait(lambda t: t == "cpa"); cpa_check(k); pq.items = list(wloop)
        elif rho == 7: pq.flush(); vm.issue(cpa_sample(), "cpa")
        for idx, (m, d) in enumerate(pairs):
            k(f"v_mfma_f32_16x16x32_bf16 {v(ACC+4*(m+d),4)}, {v(A+4*m,4)}, {v(B+4*d,4)}, {v(ACC+4*(m+d),4)}")
            if idx < len(nxt): k(nxt[idx])
            if rho >= PFSTART and idx % (PFGAP if (rho < 2 or not wloop) else WGAP) == 1: pq.pop()
        k("s_waitcnt lgkmcnt(0)")
    pq.flush()
    k.stamp("loop")
    k("v_lshlrev_b32 v14, 5, v2"); k("v_lshl_add_u32 v14, v3, 3, v14"); k("v_add_u32 v14, s82, v14")
    for t in range(8):
        k(f"v_cvt_pk_bf16_f32 v{A0+2*t}, v{ACC+4*t}, v{ACC+4*t+1}"); k(f"v_cvt_pk_bf16_f32 v{A0+2*t+1}, v{ACC+4*t+2}, v{ACC+4*t+3}")
        k(f"ds_write_b64 v14, {v(A0+2*t,2)} offset:{512*t}")
    k("v_add_u32 v15, s82, v4")
    k("s_waitcnt lgkmcnt(0)")
    for j in range(4): k(f"ds_read_b128 {v(B0+4*j,4)}, v15 offset:{1024*j}")
    k(f"s_add_u32 s36, s35, {YT}")
    for j in range(4):
        k(f"s_waitcnt lgkmcnt({3-j})")
        vm.issue([f"buffer_store_dwordx4 {v(B0+4*j,4)}, v4, s[12:15], s36 offen offset:{1024*j} sc1"], "S")
    return vm, pq

def wtask_issue(k, tag, ldsbase):
    k("s_mov_b32 s51, 0x20000")
    k("s_lshl_b32 s34, s10, 14"); k(f"s_add_u32 s34, s34, {ldsbase}")
    k("v_lshrrev_b32 v5, 3, v1"); k("v_and_b32 v6, 7, v1"); k("v_lshlrev_b32 v6, 4, v6")
    k("s_lshl_b32 s47, s41, 5"); k("v_add_u32 v5, s47, v5"); k("v_mul_lo_u32 v5, v5, s40")
    k("s_lshl_b32 s47, s42, 7"); k("v_add3_u32 v5, v5, v6, s47")
    k("s_lshl_b32 s52, s40, 3"); k("s_lshl_b32 s53, s43, 2"); k("s_mov_b32 s54, s34")
    k.label("wld" + tag)
    k("s_mov_b32 m0, s54"); k("s_sub_u32 s53, s53, 1")
    k("buffer_load_dwordx4 v5, s[48:51], 0 offen lds")
    k("v_add_u32 v5, s52, v5"); k("s_add_u32 s54, s54, 1024")
    k("s_cmp_lg_u32 s53, 0"); k(f"s_cbranch_scc1 {k.lab('wld' + tag)}")

def wtask_finish(k, tag, nxt):
    k("v_lshlrev_b32 v5, 10, v3"); k("v_bfe_u32 v6, v1, 2, 2"); k("v_lshl_add_u32 v5, v6, 7, v5")
    k("v_and_b32 v6, 3, v1"); k("v_lshl_add_u32 v5, v6, 4, v5"); k("v_add_u32 v5, s34, v5")
    k("s_lshl_b32 s47, s42, 2"); k("s_mul_i32 s47, s47, s45"); k("s_add_u32 s47, s47, s41"); k("s_lshl_b32 s47, s47, 10")
    k("s_add_u32 s47, s47, s44"); k("s_lshl_b32 s55, s45, 10")
    for r in range(4): k(f"v_mov_b32 v{24+r}, 0")
    k("s_mov_b32 s52, 0x3f803f80"); k("s_mov_b32 s53, 0")
    k.stamp("wiss" + tag)
    k("s_waitcnt vmcnt(0)")
    k.stamp("wld" + tag)
    k.label("wtr" + tag)
    for t in range(4):
        o = 64*(t//2) + 8*(t % 2)
        k(f"ds_read_b64_tr_b16 {v(8+4*t,2)}, v5 offset:{o}"); k(f"ds_read_b64_tr_b16 {v(10+4*t,2)}, v5 offset:{o+512}")
    k("v_add_u32 v5, 4096, v5"); k("s_add_u32 s53, s53, 1")
    k("s_mov_b32 s54, s47")
    for t in range(4):
        k(f"s_waitcnt lgkmcnt({6 - 2*t})")
        k(f"buffer_store_dwordx4 {v(8+4*t,4)}, v4, s[12:15], s54 offen sc1")
        if t < 3: k("s_add_u32 s54, s54, s55")
    for r in range(4):
        for t in range(4): k(f"v_dot2_f32_bf16 v{24+t}, v{8+4*t+r}, s52, v{24+t}")
    k("s_add_u32 s47, s47, 1024")
    k("s_cmp_lt_u32 s53, s43"); k(f"s_cbranch_scc1 {k.lab('wtr' + tag)}")
    k("s_cmp_ge_u32 s46, 5"); k(f"s_cbranch_scc1 {nxt}")
    for t in range(4): k(f"v_mov_b32 v{28+t}, v{24+t}")
    for t in range(4): k(f"v_permlane32_swap_b32 v{24+t}, v{28+t}")
    for t in range(4): k(f"v_add_f32 v{24+t}, v{24+t}, v{28+t}")
    for t in range(4): k(f"v_mov_b32 v{28+t}, v{24+t}")
    for t in range(4): k(f"v_permlane16_swap_b32 v{24+t}, v{28+t}")
    for t in range(4): k(f"v_add_f32 v{24+t}, v{24+t}, v{28+t}")
    k(f"s_mul_i32 s47, s46, {F*4}"); k("s_lshl_b32 s52, s42, 8"); k("s_add_u32 s47, s47, s52"); k(f"s_add_u32 s47, s47, {CS3}")
    k("v_lshlrev_b32 v6, 2, v2")
    k("s_mov_b64 exec, 0xffff")
    for t in range(4): k(f"buffer_store_dword v{24+t}, v6, s[12:15], s47 offen offset:{64*t} sc1")
    k("s_mov_b64 exec, -1")
    k(f"s_branch {nxt}")

def w1_params(k):
    k("s_sub_u32 s35, s2, 242"); k("s_lshl_b32 s35, s35, 2"); k("s_add_u32 s35, s35, s10")
    k("s_mov_b32 s48, s76"); k("s_mov_b32 s49, s77")
    k(f"s_mov_b32 s50, {D*D*2}"); k("s_mov_b32 s40, 1280"); k(f"s_mov_b32 s44, {W1T}"); k("s_mov_b32 s45, 20"); k("s_mov_b32 s46, 5")
    k("s_mul_hi_u32 s41, s35, 0x1999999a"); k("s_mul_i32 s42, s41, 10"); k("s_sub_u32 s42, s35, s42"); k("s_mov_b32 s43, 4"); k("s_lshl_b32 s41, s41, 2")

def prep_part(k, pre_items_setup):
    k("s_sub_u32 s33, s2, 160"); k("s_cmp_ge_u32 s33, 64"); k(f"s_cbranch_scc1 {k.lab('noq')}")
    k("s_cmp_eq_u32 s10, 0"); k(f"s_cbranch_scc1 {k.lab('noq')}")
    k("s_mul_i32 s33, s33, 3"); k("s_add_u32 s33, s33, s10"); k("s_sub_u32 s33, s33, 1"); k("s_mul_i32 s33, s33, 14336")
    for i in range(14):
        k(f"buffer_load_dwordx4 v[32:35], v4, s[16:19], s33 offen offset:{1024*(i%4)}")
        if i % 4 == 3: k("s_add_u32 s33, s33, 4096")
    k.label("noq")
    k.label("roundB")
    qitems, witems = pre_items_setup()
    k("s_sub_u32 s33, s2, 160"); k("s_lshl_b32 s33, s33, 2"); k("s_add_u32 s33, s33, s10")
    k("s_mov_b32 s43, 0")
    k("s_cmp_ge_u32 s33, 325"); k(f"s_cbranch_scc1 {k.lab('noB')}")
    k("s_mov_b32 s46, 5"); k("s_mov_b32 s43, 4")
    k("s_cmp_ge_u32 s33, 50"); k(f"s_cbranch_scc1 {k.lab('pw3')}")
    k("s_mov_b32 s48, s78"); k("s_mov_b32 s49, s79"); k(f"s_mov_b32 s50, {D*D*2}"); k("s_mov_b32 s40, 1280"); k(f"s_mov_b32 s44, {W2T}"); k("s_mov_b32 s45, 20")
    k("s_mul_hi_u32 s41, s33, 0x1999999a"); k("s_mul_i32 s42, s41, 10"); k("s_sub_u32 s42, s33, s42"); k("s_lshl_b32 s41, s41, 2")
    k(f"s_branch {k.lab('wtB')}")
    k.label("pw3")
    k("s_cmp_ge_u32 s33, 185"); k(f"s_cbranch_scc1 {k.lab('pw4')}")
    k("s_sub_u32 s35, s33, 50")
    k("s_mov_b32 s48, s80"); k("s_mov_b32 s49, s81"); k(f"s_mov_b32 s50, {D*F*2}"); k(f"s_mov_b32 s40, {F*2}"); k(f"s_mov_b32 s44, {W3T}"); k("s_mov_b32 s45, 20")
    k("s_mul_hi_u32 s46, s35, 0x97b425f"); k("s_mul_i32 s42, s46, 27"); k("s_sub_u32 s42, s35, s42"); k("s_lshl_b32 s41, s46, 2")
    k(f"s_branch {k.lab('wtB')}")
    k.label("pw4")
    k("s_sub_u32 s35, s33, 185")
    k("s_mov_b32 s48, s82"); k("s_mov_b32 s49, s83"); k(f"s_mov_b32 s50, {D*F*2}"); k("s_mov_b32 s40, 1280"); k(f"s_mov_b32 s44, {W4T}"); k("s_mov_b32 s45, 54")
    k("s_mul_hi_u32 s41, s35, 0x1999999a"); k("s_mul_i32 s42, s41, 10"); k("s_sub_u32 s42, s35, s42")
    k("s_cmp_eq_u32 s41, 13"); k("s_cselect_b32 s43, 2, 4"); k("s_lshl_b32 s41, s41, 2")
    k.label("wtB")
    wtask_issue(k, "B", 45056)
    k.label("noB")
    for g, t in qitems:
        for ln in g: k(ln)
    for ln in cpa_sample(): k(ln)
    doneB = k.lab("doneB")
    k("s_cmp_eq_u32 s43, 0"); k(f"s_cbranch_scc1 {doneB}")
    wtask_finish(k, "B", doneB)
    k.L.append(doneB + ":")
    k.stamp("doneB")
    signal(k, None, None, [f"s_mov_b32 s{SG}, {CPB}"], 96, [f"s_mov_b32 s{SG}, {FALL + 9*128}"])
    p2.p2_qstats(k, lambda: None)
    cpa_check(k)
    return witems

def mega():
    pc.SC = " sc1"; pc.SS = " sc1"
    k = Kern("block_kernel", vgpr=256, agpr=256, sgpr=96)
    k.only = ONLY
    k("s_cmp_ge_u32 s2, 256"); k(f"s_cbranch_scc1 {k.lab('end')}")
    k.stamp_begin()
    k(f"s_load_dwordx8 s[36:43], s[0:1], {A_K}")
    k(f"s_load_dwordx2 s[44:45], s[0:1], {A_D}")
    k(f"s_load_dwordx8 s[76:83], s[0:1], {B_W1}")
    k(f"s_load_dwordx2 s[72:73], s[0:1], {DBG}")
    prologue(k)
    pre_items_setup = lambda: (p2.p2_pre_setup(k), p2.p2_pre_items(k))[1]
    def common_setup():
        p2.p2_setup(k); p3.p35_setup(k, 26)
        k.srd(12, 4, WS_END); k.srd(16, 8, MB); k.srd(20, 6, MB)
        init_srd(k)
    k("s_cmp_lt_u32 s2, 242"); k(f"s_cbranch_scc1 {k.lab('kvwg')}")
    k("s_waitcnt lgkmcnt(0)")
    common_setup()
    k("s_cmp_eq_u32 s2, 255"); k(f"s_cbranch_scc1 {k.lab('zero')}")
    k(f"s_branch {k.lab('w1only')}")
    k.label("kvwg")
    vm = VM(k)
    kv_issue(k, vm)
    common_setup()
    k("s_cmp_ge_u32 s2, 160"); k(f"s_cbranch_scc1 {k.lab('keepw')}")
    k("s_mov_b32 s76, s42"); k("s_mov_b32 s77, s43"); k("s_mov_b32 s80, s44"); k("s_mov_b32 s81, s45")
    k.label("keepw")
    vm.issue(code_prefetch_group(k, k.lab("code0"), k.lab("end"), "z", 180, sreg=26), "pf")
    k.label("code0")
    k.stamp("kvissued")
    vm.wait(lambda t: t == "kv")
    k("s_barrier")
    k.stamp("kvin")
    k("v_mov_b32 v178, 0")
    k("buffer_load_dword v177, v178, s[72:75], 0 offen sc1")
    vmh = VM(k)
    k("s_cmp_ge_u32 s2, 160"); k(f"s_cbranch_scc1 {k.lab('noh')}")
    conv_h_issue(k, vmh)
    k.label("noh")
    kv_compute(k)
    k.stamp("kvdone")
    k("s_waitcnt vmcnt(0)")
    k.stamp("kvdrain")
    ok = k.lab("initok")
    k("v_cmp_eq_u32 vcc, 0, v177"); k(f"s_cbranch_vccz {ok}")
    wait_init(k)
    k.L.append(ok + ":")
    k("s_barrier")
    tile_cnt = lambda add: [f"s_add_u32 s84, s2, {add}", "s_mul_hi_u32 s85, s84, 0x1999999a", "s_mul_i32 s28, s85, 10", "s_sub_u32 s84, s84, s28",
                            "s_lshl_b32 s84, s84, 2", "s_and_b32 s85, s85, 3", "s_add_u32 s84, s84, s85", "s_lshl_b32 s84, s84, 7", f"s_add_u32 s84, s84, {C0}"]
    atomic_signal(k, tile_cnt(0), k.lab("sigc0"), None)
    k("s_cmp_lt_u32 s29, 2"); k(f"s_cbranch_scc1 {k.lab('sigc0b')}")
    atomic_signal(k, tile_cnt(82), k.lab("sigc0c"), None)
    k.label("sigc0b")
    k.stamp("kvsig")
    k("s_cmp_ge_u32 s2, 160"); k(f"s_cbranch_scc1 {k.lab('prep')}")
    conv_h_copy1(k)
    qitems, witems = pre_items_setup()
    wait_counters(k, None, ["s_lshr_b32 s84, s2, 4", "s_lshl_b32 s84, s84, 9", f"s_add_u32 s84, s84, {C0}", "v_and_b32 v5, 3, v1", "v_lshlrev_b32 v5, 7, v5", "v_add_u32 v5, s84, v5"],
                  ["v_mov_b32 v7, 8"], False)
    k.stamp("s0")
    vm, pq = conv_main(k, qitems, witems[:NWLOOP])
    k.stamp("convdone")
    lab = k.lab("sigc1")
    p2.p2_qstats(k, lambda: vm.wait(lambda t: t == "q"))
    vm.wait(lambda t: t == "S"); k("s_barrier")
    cpa_check(k)
    atomic_signal(k, own_shard(C1), lab, 20, [f"s_and_b32 s{SG}, s2, 7", f"s_lshl_b32 s{SG}, s{SG}, 7", f"s_add_u32 s{SG}, s{SG}, {FALL}"])
    k(f"s_branch {k.lab('wconv') if NWLOOP else k.lab('wfirst')}")
    k.label("w1only")
    w1_params(k)
    doneA = k.lab("doneA")
    k("s_cmp_ge_u32 s35, 50"); k(f"s_cbranch_scc1 {doneA}")
    wtask_issue(k, "A", 0)
    wtask_finish(k, "A", doneA)
    k.L.append(doneA + ":")
    k.stamp("doneA")
    signal(k, None, None, [f"s_mov_b32 s{SG}, {CPA}"], 13, [f"s_mov_b32 s{SG}, {FALL + 8*128}"], first=True)
    k(f"s_branch {k.lab('prep')}")
    k.label("zero")
    k("v_mov_b32 v8, 0"); k("v_mov_b32 v9, 0"); k("v_mov_b32 v10, 0"); k("v_mov_b32 v11, 0")
    k("v_lshlrev_b32 v5, 4, v0"); k(f"s_mov_b32 s35, {CNT}")
    for j in range(8):
        k("buffer_store_dwordx4 v[8:11], v5, s[12:15], s35 offen sc1"); k("s_add_u32 s35, s35, 4096")
    k("s_waitcnt vmcnt(0)")
    k("s_barrier")
    k("v_mov_b32 v5, 0"); k("v_mov_b32 v6, 1")
    k("s_cmp_lg_u32 s10, 0"); k(f"s_cbranch_scc1 {k.lab('prep')}")
    k("s_mov_b64 exec, 1")
    k("buffer_store_dword v6, v5, s[72:75], 0 offen sc1")
    k("s_mov_b64 exec, -1")
    k.label("prep")
    witems = prep_part(k, pre_items_setup)
    k.label("wfirst")
    k.stamp("cpa")
    for g, t in witems[:NWLOOP]:
        for ln in g: k(ln)
    k.label("wconv")
    for g, t in witems[NWLOOP:max(NWA, NWLOOP)]:
        for ln in g: k(ln)
    wait_counters(k, None, ["v_min_u32 v5, 9, v1", "v_lshlrev_b32 v5, 7, v5", f"v_add_u32 v5, {FALL}, v5"], ["v_mov_b32 v7, 1"], False)
    k.stamp("s1")
    p3.p3_pre_setup(k)
    early = [(g, "E") for g in p3.p3_pre_early(k)]
    vm, nq = p2.p2_main(k, witems[max(NWA, NWLOOP):], [(code_prefetch_group(k, k.lab('ph3'), k.lab('ph4'), 'a', 136), "pf")], p3.p3_pre_late, early)
    k.stamp("p2done")
    signal(k, vm, nq, [f"s_lshl_b32 s{SG}, s{p2.TT}, 7", f"s_add_u32 s{SG}, s{SG}, {C2}"], None)
    k.label("ph3")
    wait_counters(k, nq, [f"s_lshl_b32 s{SG}, s{p3.T64}, 1", f"s_sub_u32 s{SG}, s{SG}, 1", "v_and_b32 v5, 3, v1", f"v_add_u32 v5, s{SG}, v5",
                          "v_and_b32 v5, 63, v5", "v_lshlrev_b32 v5, 7, v5", f"v_add_u32 v5, {C2}, v5"], ["v_mov_b32 v7, 4"], True, mid=MID[0])
    k.stamp("s2")
    p4.p4_setup(k); p4.p4_pre_setup(k)
    early = [(g, "E") for g in p4.p4_pre_early(k)]
    vm, nq = p3.p3_main(k, [(code_prefetch_group(k, k.lab('ph4'), k.lab('ph5'), 'b', 184), "pf")], p4.p4_pre_late, early)
    k.stamp("p3done")
    signal(k, vm, nq, [f"s_lshr_b32 s{SG}, s{p3.T64}, 1", f"s_lshl_b32 s{SG}, s{SG}, 2", f"s_lshr_b32 s{SG2}, s{p3.FC}, 1", f"s_add_u32 s{SG}, s{SG}, s{SG2}",
                          f"s_lshl_b32 s{SG}, s{SG}, 7", f"s_add_u32 s{SG}, s{SG}, {C3}"], None)
    k.label("ph4")
    wait_counters(k, nq, [f"s_lshl_b32 s{SG}, s{p4.T128}, 9", f"s_add_u32 s{SG}, s{SG}, {C3}", "v_and_b32 v5, 3, v1", "v_lshlrev_b32 v5, 7, v5", f"v_add_u32 v5, s{SG}, v5"], ["v_mov_b32 v7, 4"],
                  True, p4.p4_cs_table, mid=MID[1])
    k.stamp("s3")
    p5.p5_pre_setup(k)
    early = [(g, "E") for g in p5.p5_pre_early(k)]
    vm, nq = p4.p4_main(k, [(code_prefetch_group(k, k.lab('ph5'), k.lab('end'), 'c', 88), "pf")], p5.p5_pre_late, early,
                        follow=[(g, "F") for g in p5.p5_pre_late(k)[:NFOLLOW]], nfollow=NFOLLOW)
    k.stamp("p4done")
    signal(k, vm, nq, [f"s_lshl_b32 s{SG}, s{p4.T128}, 2", f"s_lshr_b32 s{SG2}, s{p4.COL}, 2", f"s_add_u32 s{SG}, s{SG}, s{SG2}",
                          f"s_lshl_b32 s{SG}, s{SG}, 7", f"s_add_u32 s{SG}, s{SG}, {C4}"], None)
    k.label("ph5")
    wait_counters(k, nq, [f"s_lshr_b32 s{SG}, s{p3.T64}, 1", f"s_lshl_b32 s{SG}, s{SG}, 9", f"s_add_u32 s{SG}, s{SG}, {C4}", "v_and_b32 v5, 3, v1", "v_lshlrev_b32 v5, 7, v5", f"v_add_u32 v5, s{SG}, v5"],
                  ["v_mov_b32 v7, 4"], False, mid=MID[2])
    k.stamp("s4")
    p5.p5_main(k)
    k.stamp_flush(4, STAMP)
    k.label("end"); k("s_endpgm")
    pc.SC = ""; pc.SS = ""
    return k
```

```python
from ph_common import *
import ph_common as pc

NFIRST = 8
QL = 0; YL = 40960; STL = 81920; XL = 0
P2_LDS = 82944
TT, FQ = 24, 25

def p2_setup(k):
    k(f"s_and_b32 s{TT}, s2, 63"); k(f"s_lshr_b32 s{FQ}, s2, 6")

def p2_w_items(k):
    k(f"s_mul_i32 s26, s{FQ}, 10"); k("s_lshl_b32 s27, s10, 1"); k("s_add_u32 s26, s26, s27"); k("s_mul_i32 s26, s26, 20480")
    k(f"s_add_u32 s26, s26, {W1T}")
    k(f"s_mul_i32 s27, s{FQ}, 10"); k("s_lshr_b32 s28, s10, 1"); k("s_add_u32 s27, s27, s28"); k("s_add_u32 s27, s27, 8")
    k("s_mul_i32 s27, s27, 20480"); k(f"s_add_u32 s27, s27, {W1T}")
    k("s_add_u32 s28, s26, 20480")
    items = []
    for kb in range(20):
        for t in range(3):
            base = (26, 28, 27)[t]
            pre = [f"s_add_u32 s{base}, s{base}, 4096"] if (kb and kb % 4 == 0) else []
            items.append((pre + [f"buffer_load_dwordx4 {a((t*20+kb)*4,4)}, v4, s[12:15], s{base} offen offset:{1024*(kb%4)} sc1"], ("W", kb)))
    return items

QA = 212

def p2_pre_setup(k):
    k("s_lshl_b32 s34, s10, 3")
    k("v_add_u32 v8, s34, v3"); k("v_and_b32 v9, 15, v8"); k("v_xor_b32 v9, v9, v2")
    k(f"s_lshl_b32 s29, s{TT}, 5")
    k("v_add_u32 v10, s29, v8"); k("v_mul_u32_u24 v10, 1280, v10")
    k("v_xor_b32 v11, 4, v9")
    k(f"v_lshl_add_u32 v{QA}, v9, 4, v10"); k(f"v_lshl_add_u32 v{QA+1}, v11, 4, v10"); k(f"v_add_u32 v{QA+1}, 5120, v{QA+1}")

def p2_pre_items(k):
    items = []
    for a_ in range(2):
        for m in range(5):
            items.append(([f"s_mul_i32 s84, s10, 10240", f"s_add_u32 m0, s84, {QL + a_*5120 + 768*m}", "s_nop 0",
                           f"buffer_load_dwordx4 v{QA+a_}, s[16:19], 0 offen offset:{256*m} lds"], "q"))
    return items, p2_w_items(k)

QREG = 32

def stats_exchange(k, T):
    k("v_lshlrev_b32 v10, 4, v2"); k("v_lshl_add_u32 v11, v3, 2, v10"); k("s_lshl_b32 s37, s10, 8"); k(f"s_add_u32 s37, s37, {STL}")
    k("v_permlane32_swap_b32 v22, v26"); k("v_permlane32_swap_b32 v24, v28")
    k("v_add_u32 v11, s37, v11"); k(f"v_add_u32 v10, {STL}, v10")
    k("v_add_f32 v22, v22, v26"); k("v_add_f32 v24, v24, v28")
    k("v_permlane16_swap_b32 v22, v24")
    k("v_add_f32 v22, v22, v24")
    k("ds_write_b32 v11, v22")
    k("s_waitcnt lgkmcnt(0)")
    k("s_barrier")
    for w in range(4): k(f"ds_read_b128 {v(T+4*w,4)}, v10 offset:{256*w}")
    k("s_waitcnt lgkmcnt(0)")
    k(f"v_pk_add_f32 {v(T,2)}, {v(T,2)}, {v(T+4,2)}"); k(f"v_pk_add_f32 {v(T+2,2)}, {v(T+2,2)}, {v(T+6,2)}")
    k(f"v_pk_add_f32 {v(T+8,2)}, {v(T+8,2)}, {v(T+12,2)}"); k(f"v_pk_add_f32 {v(T+10,2)}, {v(T+10,2)}, {v(T+14,2)}")
    k(f"v_pk_add_f32 {v(T,2)}, {v(T,2)}, {v(T+8,2)}"); k(f"v_pk_add_f32 {v(T+2,2)}, {v(T+2,2)}, {v(T+10,2)}")

def p2_q_addresses(k):
    k("v_lshrrev_b32 v10, 2, v2"); k("v_mul_u32_u24 v10, 5120, v10")
    k("v_and_b32 v11, 3, v2"); k("v_lshl_add_u32 v10, v11, 8, v10")
    k("v_xor_b32 v11, v3, v2")
    k("s_mul_i32 s36, s10, 5")
    for i in range(5):
        k(f"s_add_u32 s37, s36, {i}")
        k("s_and_b32 s38, s37, 3"); k("s_lshl_b32 s38, s38, 2")
        k("s_lshr_b32 s37, s37, 2"); k("s_lshl_b32 s37, s37, 10")
        k(f"v_xor_b32 v{16+i}, s38, v11"); k(f"v_lshlrev_b32 v{16+i}, 4, v{16+i}"); k(f"v_add3_u32 v{16+i}, v{16+i}, v10, s37")

def p2_qstats(k, wait_q):
    p2_q_addresses(k)
    wait_q()
    k("s_barrier")
    for tb in range(2):
        for i in range(5): k(f"ds_read_b128 {v(QREG+4*(tb*5+i),4)}, v{16+i} offset:{QL + tb*20480}")
    for r in (22, 24, 26, 28): k(f"v_mov_b32 v{r}, 0")
    k("s_mov_b32 s38, 0x3f803f80")
    for tb in range(2):
        k(f"s_waitcnt lgkmcnt({5 - 5*tb})")
        for r in range(20):
            x = QREG + 20*tb + r
            k(f"v_dot2_f32_bf16 v{22+4*tb}, v{x}, s38, v{22+4*tb}"); k(f"v_dot2_f32_bf16 v{24+4*tb}, v{x}, v{x}, v{24+4*tb}")
    T = 192
    stats_exchange(k, T)
    k(f"s_mov_b32 s52, {f2u(1.0/640)}"); k(f"s_mov_b32 s53, {f2u(1e-5)}")
    L = [[], []]
    for tb in range(2):
        t = T + 2*tb; o = QA + 2 + 2*tb
        L[tb] = [f"v_mul_f32 v{t}, s52, v{t}", f"v_mul_f32 v{t+1}, s52, v{t+1}", f"v_fma_f32 v{t+1}, -v{t}, v{t}, v{t+1}",
                 f"v_max_f32 v{t+1}, 0, v{t+1}", f"v_add_f32 v{t+1}, s53, v{t+1}", f"v_rsq_f32 v{o}, v{t+1}", f"v_mul_f32 v{o+1}, -v{t}, v{o}"]
    for ln in interleave(*L): k(ln)

def p2_y_loads(k, vm):
    k("s_mul_i32 s30, s10, 160")
    k("v_lshrrev_b32 v6, 2, v1"); k("v_add_u32 v6, s30, v6"); k("v_lshlrev_b32 v6, 12, v6")
    k("v_and_b32 v7, 3, v1"); k("v_lshlrev_b32 v7, 4, v7")
    k(f"s_lshl_b32 s31, s{TT}, 6"); k(f"s_add_u32 s31, s31, {YT}")
    k("v_add_u32 v6, v6, v7")
    k("s_mul_i32 s32, s10, 10240"); k(f"s_add_u32 s33, s32, {YL}")
    for i in range(10):
        vm.issue([f"s_add_u32 m0, s33, {1024*i}", "s_add_u32 s31, s31, 65536" if i else "s_nop 0",
                  f"buffer_load_dwordx4 v6, s[12:15], s31 offen sc1 lds"], "y")

def p2_main(k, wrest, tail, after_gemm, early=None):
    sc = pc.SC; ss = pc.SS
    vm = VM(k)
    p2_y_loads(k, vm)
    wq = TQ(vm, wrest)
    k(f"s_lshl_b32 s29, s{TT}, 5")
    k("v_bfe_u32 v10, v1, 2, 2"); k("v_lshl_add_u32 v10, v3, 3, v10"); k("v_lshlrev_b32 v10, 6, v10")
    k("v_and_b32 v11, 3, v1"); k("v_lshl_add_u32 v10, v11, 3, v10")
    k("v_add_u32 v21, s33, v10")
    k(f"s_and_b32 s37, s{FQ}, 1"); k("s_lshl_b32 s37, s37, 1"); k("s_sub_u32 s37, 1, s37")
    k(f"s_lshr_b32 s38, s{FQ}, 1"); k("s_lshl_b32 s37, s37, s38"); k("s_add_u32 s37, s37, s29")
    k(f"s_mul_i32 s39, s{FQ}, 5")
    k("v_lshlrev_b32 v11, 8, v3")
    k("s_add_u32 s46, s39, s10"); k("s_lshl_b32 s46, s46, 10"); k(f"s_add_u32 s46, s46, {HS}")
    k("s_add_u32 s47, s39, 4"); k("s_lshl_b32 s47, s47, 10"); k(f"s_add_u32 s47, s47, {HS}")
    k("s_lshr_b32 s38, s10, 1"); k("s_lshl_b32 s38, s38, 3"); k("s_add_u32 s47, s47, s38")
    k("s_and_b32 s38, s10, 1"); k("s_lshl_b32 s38, s38, 4")
    for dst, add, base, mask in ((240, "0", "s46", 40), (241, "16", "s46", 42), (242, "s38", "s47", 44)):
        k("v_add_u32 v10, s37, v2")
        if add != "0": k(f"v_add_u32 v10, {add}, v10")
        k(f"v_cmp_le_u32 s[{mask}:{mask+1}], s48, v10") if False else None
        k("v_cmp_le_u32 vcc, 0x800, v10"); k(f"s_mov_b64 s[{mask}:{mask+1}], vcc")
        k("v_and_b32 v10, 0x7ff, v10"); k("v_lshrrev_b32 v22, 4, v10"); k("v_mul_u32_u24 v22, 20480, v22")
        k("v_and_b32 v10, 15, v10"); k("v_lshl_add_u32 v10, v10, 4, v11")
        k(f"v_add3_u32 v{dst}, v10, v22, {base}")
    k(f"s_mov_b32 s50, {f2u(GELU_C0)}"); k(f"s_mov_b32 s51, {f2u(GELU_C1)}")
    k(f"s_mov_b32 s52, {f2u(1.0/640)}"); k(f"s_mov_b32 s53, {f2u(1e-5)}"); k("s_mov_b32 s54, 0xffff0000")
    k.stamp("issued")
    vm.wait(lambda t: t == "y")
    k("s_barrier")
    k.stamp("loaded")
    Q = 32; Y = 72; H = 112; T = 192
    def reads(tb, i):
        f = tb*5 + i
        return [f"ds_read_b64_tr_b16 {v(Y+4*f,2)}, v21 offset:{2048*i + 32*tb}",
                f"ds_read_b64_tr_b16 {v(Y+4*f+2,2)}, v21 offset:{2048*i + 256 + 32*tb}"]
    frs = [(tb, i) for tb in range(2) for i in range(5)]
    for fr in frs[:4]:
        for ln in reads(*fr): k(ln)
    for r in range(22, 30): k(f"v_mov_b32 v{r}, 0")
    step = 0
    for fi, (tb, i) in enumerate(frs):
        f = tb*5 + i
        k(f"s_waitcnt lgkmcnt({2*(min(len(frs), fi + 4) - fi - 1)})")
        if fi + 4 < len(frs):
            for ln in reads(*frs[fi + 4]): k(ln)
        ab = QA + 2 + 2*tb
        for r in range(4):
            h = H + 8*f + 2*r; qq = T + 4*(r % 2); yy = qq + 2
            k(f"v_lshlrev_b32 v{qq}, 16, v{Q+4*f+r}"); k(f"v_and_b32 v{qq+1}, s54, v{Q+4*f+r}")
            k(f"v_lshlrev_b32 v{yy}, 16, v{Y+4*f+r}"); k(f"v_and_b32 v{yy+1}, s54, v{Y+4*f+r}")
            k(f"v_pk_fma_f32 {v(h,2)}, {v(qq,2)}, {v(ab,2)}, {v(ab,2)} op_sel:[0,0,1] op_sel_hi:[1,0,1]")
            k(f"v_pk_fma_f32 {v(h,2)}, {v(h,2)}, {v(yy,2)}, {v(qq,2)}")
            k(f"v_pk_add_f32 {v(22+4*tb,2)}, {v(22+4*tb,2)}, {v(h,2)}")
            k(f"v_pk_fma_f32 {v(24+4*tb,2)}, {v(h,2)}, {v(h,2)}, {v(24+4*tb,2)}")
            step += 1
            if step % 2 == 0: wq.pop()
    pass
    for b in (22, 24, 26, 28): k(f"v_add_f32 v{b}, v{b}, v{b+1}")
    stats_exchange(k, T)
    L = [[], []]
    for tb in range(2):
        t = T + 2*tb; b = 22 + 4*tb; x = T + 8 + 4*tb
        L[tb] = [f"v_mul_f32 v{t}, s52, v{t}", f"v_mul_f32 v{t+1}, s52, v{t+1}", f"v_fma_f32 v{t+1}, -v{t}, v{t}, v{t+1}",
                 f"v_max_f32 v{t+1}, 0, v{t+1}", f"v_add_f32 v{x}, s53, v{t+1}", f"v_rsq_f32 v{b}, v{x}",
                 f"v_mul_f32 v{b+1}, -v{t}, v{b}", f"v_mul_f32 v{x}, v{b}, v{b}", f"v_fma_f32 v{x}, v{x}, v{t+1}, s53",
                 f"v_rsq_f32 v{b+2}, v{x}"] + gelu_scale_consts(b+2, 244 + 2*tb, 248 + tb, 50, 51)
    for ln in interleave(*L): k(ln)
    pass
    k("s_mul_i32 s37, s10, 5120"); k("v_add_u32 v11, s37, v4")
    n = 0
    for fi, (tb, i) in enumerate(frs):
        f = tb*5 + i; b = 22 + 4*tb
        for r in range(4):
            h = H + 8*f + 2*r; t = T + 2*(r % 2)
            k(f"v_pk_fma_f32 {v(t,2)}, {v(h,2)}, {v(b,2)}, {v(b,2)} op_sel:[0,0,1] op_sel_hi:[1,0,1]")
            k(f"v_cvt_pk_bf16_f32 v{Q+4*f+r}, v{t}, v{t+1}")
        k(f"ds_write_b128 v11, {v(Q+4*f,4)} offset:{XL + tb*20480 + 1024*i}")
        wq.pop()
    k(f"s_lshl_b32 s37, s{TT}, 1"); k("s_mul_i32 s37, s37, 20"); k("s_mul_i32 s38, s10, 5"); k("s_add_u32 s37, s37, s38"); k("s_lshl_b32 s37, s37, 10")
    for q4 in range(4):
        tb = q4 & 1
        if q4 < 3: k(f"s_cmp_lg_u32 s{FQ}, {q4}"); k(f"s_cbranch_scc1 {k.lab('st%d' % (q4+1))}")
        k(f"s_add_u32 s38, s37, {(XB if q4 < 2 else HT) + tb*20480}"); k("s_add_u32 s39, s38, 4096")
        for i in range(5):
            f = tb*5 + i; src = Q + 4*f
            if q4 >= 2:
                src = Y + 4*i
                for r in range(4): k(f"v_cvt_pk_bf16_f32 v{src+r}, v{H+8*f+2*r}, v{H+8*f+2*r+1}")
            k(f"buffer_store_dwordx4 {v(src,4)}, v4, s[12:15], s{39 if i==4 else 38} offen offset:{1024*i if i<4 else 0}{ss}")
        if q4 < 3: k(f"s_branch {k.lab('stdone')}"); k.label('st%d' % (q4+1))
    k.label("stdone")
    vm.ops += ["S"] * 5
    k("s_waitcnt lgkmcnt(0)")
    k("s_barrier")
    pass
    ACC = 112; BF = 192
    k("s_and_b32 s37, s10, 1"); k("s_mul_i32 s37, s37, 20480"); k("v_add_u32 v10, s37, v4")
    def breads(kb):
        b = BF + 12*(kb % 4)
        return [f"ds_read_b128 {v(b,4)}, v4 offset:{XL + 1024*kb}", f"ds_read_b128 {v(b+4,4)}, v4 offset:{XL + 20480 + 1024*kb}",
                f"ds_read_b128 {v(b+8,4)}, v10 offset:{XL + 1024*kb}"]
    for kb in range(3):
        for ln in breads(kb): k(ln)
    wq.flush()
    tq = TQ(vm, (early or []) + (tail or []))
    for kb in range(20):
        b = BF + 12*(kb % 4); nb = min(20, kb + 3) - kb - 1
        if any(t == ("W", kb) for t in vm.ops): vm.wait(lambda t: t == ("W", kb), f" lgkmcnt({3*nb})")
        else: k(f"s_waitcnt lgkmcnt({3*nb})")
        nx = breads(kb + 3) if kb + 3 < 20 else []
        def mf(tile, t, breg):
            c = v(ACC + 4*tile, 4)
            k(f"v_mfma_f32_16x16x32_bf16 {c}, {a((t*20+kb)*4,4)}, {v(breg,4)}, {c if kb else 0}")
        mf(0, 0, b)
        if nx: k(nx[0])
        mf(1, 1, b)
        if nx: k(nx[1])
        mf(2, 0, b + 4)
        if nx: k(nx[2])
        mf(3, 1, b + 4)
        tq.pop()
        mf(4, 2, b + 8)
    tq.flush()
    k.stamp("gemm2")
    k("s_barrier")
    nq = TQ(vm, [(g, "N") for g in after_gemm(k)])
    k("s_bitcmp1_b32 s10, 0"); k("s_cselect_b64 s[56:57], -1, 0")
    k("v_cndmask_b32 v250, v244, v246, s[56:57]"); k("v_cndmask_b32 v251, v245, v247, s[56:57]"); k("v_cndmask_b32 v252, v248, v249, s[56:57]")
    PK = 40
    streams = []
    for tile in range(5):
        ab = (244, 244, 246, 246, 250)[tile]; ir = (248, 248, 249, 249, 252)[tile]; L = []
        for hf in range(2):
            L += gelu_fold(ACC + 4*tile + 2*hf, 64 + 2*tile, PK + 2*tile + hf, ab, ir)
        streams.append(L)
    for n, ln in enumerate(interleave(*streams)):
        k(ln)
    for tb in range(2):
        t0 = PK + 4*tb
        for r in range(4): k(f"v_cndmask_b32_e64 v{t0+r}, v{t0+r}, 0, s[{40+2*tb}:{41+2*tb}]")
        vm.issue([f"buffer_store_dwordx4 {v(t0,4)}, v{240+tb}, s[12:15], 0 offen{ss}"], "S")
    for r in range(2): k(f"v_cndmask_b32_e64 v{PK+8+r}, v{PK+8+r}, 0, s[44:45]")
    vm.issue([f"buffer_store_dwordx2 {v(PK+8,2)}, v242, s[12:15], 0 offen{ss}"], "S")
    return vm, nq

def w2_l2_items(k, sbase=82):
    k(f"s_bfe_u32 s{sbase}, s2, 0x10002"); k(f"s_mul_i32 s{sbase}, s{sbase}, {20*20480}")
    k(f"s_lshr_b32 s{sbase+1}, s2, 3"); k(f"s_lshl_b32 s{sbase+1}, s{sbase+1}, 2"); k(f"s_add_u32 s{sbase+1}, s{sbase+1}, s10")
    k(f"s_lshl_b32 s{sbase+1}, s{sbase+1}, 12"); k(f"s_add_u32 s{sbase}, s{sbase}, s{sbase+1}"); k(f"s_add_u32 s{sbase}, s{sbase}, {W2T}")
    return [([f"buffer_load_dwordx4 v[132:135], v4, s[12:15], s{sbase} offen offset:{1024*i}"], "pf") for i in range(4)]
```

```python
from ph_common import *
import ph_common as pc

P3_LDS = 102400
T64, FC, ODD, TBG, FB, SA, SH = 60, 61, 62, 63, 64, 70, 71
WB, LB = 72, 77
TMP = 78
M0_, M1_ = 80, 81

def p35_setup(k, tmp=TMP):
    map_t64_fc(k, T64, FC, tmp, tmp+1)
    col5(k, FC, ODD, FB)
    k(f"s_lshl_b32 s{TBG}, s{T64}, 2"); k(f"s_add_u32 s{TBG}, s{TBG}, s10")
    resid_offsets(k, TBG, FB, ODD, SA, SH, tmp)

def p3_pre_setup(k):
    k(f"s_lshl_b32 s{TMP}, s10, 10")
    for l in range(5):
        k(f"s_mul_i32 s{WB+l}, s{FB+l}, 20480"); k(f"s_add_u32 s{WB+l}, s{WB+l}, s{TMP}"); k(f"s_add_u32 s{WB+l}, s{WB+l}, {W2T}")
    k(f"s_mul_i32 s{LB}, s10, 5120")

def p3_chunk_groups(chunks):
    G = []
    for c in chunks:
        for l in range(5):
            G.append([f"s_add_u32 m0, s{LB}, {c*20480 + l*1024}", f"s_add_u32 s{TMP+1}, s{WB+l}, {4096*c}",
                      f"buffer_load_dwordx4 v4, s[12:15], s{TMP+1} offen sc1 lds"])
    return G

EARLY_CHUNKS = []
def p3_pre_early(k): return p3_chunk_groups(EARLY_CHUNKS)
def p3_pre_late(k): return p3_chunk_groups([c for c in range(5) if c not in EARLY_CHUNKS])

def p3_main(k, tail, after_gemm, early=None):
    sc = pc.SC; ss = pc.SS
    X = 32; R = 112; ACC = 8; AF = 124; NR = 14
    vm = VM(k)
    k(f"s_mul_i32 s{M0_}, s{TBG}, 20480"); k(f"s_add_u32 s{M0_}, s{M0_}, {HS}")
    xl = []
    for kb in range(20):
        pre = [f"s_add_u32 s{M0_}, s{M0_}, 4096"] if (kb and kb % 4 == 0) else []
        xl.append((pre + [f"buffer_load_dwordx4 {v(X+4*kb,4)}, v4, s[12:15], s{M0_} offen offset:{1024*(kb%4)}{sc}"], ("X", kb)))
    res = [([f"s_add_u32 s{M1_}, s{SA}, {XB}", f"buffer_load_dwordx4 {v(R,4)}, v4, s[12:15], s{M1_} offen{sc}"], "R"),
           ([f"buffer_load_dwordx4 {v(R+4,4)}, v4, s[12:15], s{M1_} offen offset:1024{sc}"], "R"),
           ([f"s_add_u32 s{M1_}, s{SH}, {XB}", f"buffer_load_dwordx2 {v(R+8,2)}, v4, s[12:15], s{M1_} offen{sc}"], "R")]
    q = TQ(vm, xl + res + (early or []) + tail); q.pop(10)
    k("v_add_u32 v6, 0x10000, v4")
    def aread(slot, dst):
        off = slot * 1024
        return f"ds_read_b128 {v(dst,4)}, {'v6' if off >= 65536 else 'v4'} offset:{off % 65536}"
    seq = [(kb, l) for kb in range(20) for l in range(5)]
    PRE = 11
    for i in range(PRE): k(aread(seq[i][0]*5 + seq[i][1], AF + 4*(i % NR)))
    for i, (kb, l) in enumerate(seq):
        if l == 0: vm.wait(lambda t: t == ("X", kb))
        left = min(len(seq), i + PRE) - i - 1
        k(f"s_waitcnt lgkmcnt({left})")
        c = v(ACC + 4*l, 4)
        k(f"v_mfma_f32_16x16x32_bf16 {c}, {v(AF + 4*(i % NR),4)}, {v(X+4*kb,4)}, {c if kb else 0}")
        if i + PRE < len(seq):
            j = i + PRE; k(aread(seq[j][0]*5 + seq[j][1], AF + 4*(j % NR)))
        if l == 2 or (l == 4 and kb >= 5): q.pop()
    q.flush()
    k.stamp("gemm3")
    k("s_barrier")
    nq = TQ(vm, [(g, "N") for g in after_gemm(k)])
    vm.wait(lambda t: t == "R")
    k(f"s_mov_b32 s{M0_}, 0xffff0000")
    U = 32
    for l in range(5):
        for hf in range(2):
            src = resid_src(R, l, hf); u = U + 4*l + 2*hf; z = ACC + 4*l + 2*hf
            k(f"v_lshlrev_b32 v{u}, 16, v{src}"); k(f"v_and_b32 v{u+1}, s{M0_}, v{src}")
            k(f"v_pk_add_f32 {v(z,2)}, {v(z,2)}, {v(u,2)}")
    PK = 60
    for i in range(10): k(f"v_cvt_pk_bf16_f32 v{PK+i}, v{ACC+2*i}, v{ACC+2*i+1}")
    k(f"s_add_u32 s{M0_}, s{SA}, {X1}"); k(f"s_add_u32 s{M1_}, s{SH}, {X1}")
    vm.issue([f"buffer_store_dwordx4 {v(PK,4)}, v4, s[12:15], s{M0_} offen{ss}"], "S")
    vm.issue([f"buffer_store_dwordx4 {v(PK+4,4)}, v4, s[12:15], s{M0_} offen offset:1024{ss}"], "S")
    vm.issue([f"buffer_store_dwordx2 {v(PK+8,2)}, v4, s[12:15], s{M1_} offen{ss}"], "S")
    k(f"v_pk_mul_f32 v[72:73], {v(ACC,2)}, {v(ACC,2)}")
    k(f"v_pk_add_f32 v[70:71], {v(ACC,2)}, {v(ACC+2,2)}")
    k(f"v_pk_fma_f32 v[72:73], {v(ACC+2,2)}, {v(ACC+2,2)}, v[72:73]")
    for i in range(2, 10):
        z = ACC + 2*i
        k(f"v_pk_add_f32 v[70:71], v[70:71], {v(z,2)}")
        k(f"v_pk_fma_f32 v[72:73], {v(z,2)}, {v(z,2)}, v[72:73]")
    k("v_add_f32 v70, v70, v71"); k("v_add_f32 v72, v72, v73")
    k(f"s_lshl_b32 s{M0_}, s{TBG}, 3"); k(f"s_add_u32 s{M0_}, s{M0_}, s{FC}"); k(f"s_lshl_b32 s{M0_}, s{M0_}, 7"); k(f"s_add_u32 s{M0_}, s{M0_}, {ST2}")
    k("v_permlane32_swap_b32 v70, v72")
    k("v_add_f32 v70, v70, v72")
    k("v_mov_b32 v71, v70")
    k("v_permlane16_swap_b32 v70, v71")
    k("v_add_f32 v70, v70, v71")
    k("v_mov_b32 v71, v70")
    k("v_lshlrev_b32 v6, 3, v2")
    k("v_permlane32_swap_b32 v70, v71")
    k("s_mov_b64 exec, 0xffff")
    vm.issue([f"buffer_store_dwordx2 v[70:71], v6, s[12:15], s{M0_} offen{ss}"], "S")
    k("s_mov_b64 exec, -1")
    return vm, nq

def w3_l2_items(k, sbase=82):
    k(f"s_bfe_u32 s{sbase}, s2, 0x10002"); k(f"s_mul_i32 s{sbase}, s{sbase}, {56*20480}")
    k(f"s_lshr_b32 s{sbase+1}, s2, 3"); k(f"s_lshl_b32 s{sbase+1}, s{sbase+1}, 2"); k(f"s_add_u32 s{sbase+1}, s{sbase+1}, s10")
    k(f"s_mul_i32 s{sbase+1}, s{sbase+1}, 9216"); k(f"s_add_u32 s{sbase}, s{sbase}, s{sbase+1}"); k(f"s_add_u32 s{sbase}, s{sbase}, {W3T}")
    G = []
    for i in range(9):
        pre = [f"s_add_u32 s{sbase}, s{sbase}, 4096"] if (i and i % 4 == 0) else []
        G.append((pre + [f"buffer_load_dwordx4 v[28:31], v4, s[12:15], s{sbase} offen offset:{1024*(i%4)}"], "pf"))
    return G
```

```python
from ph_common import *
import ph_common as pc

CSL = 143360
P4_LDS = CSL + 512
T128, COL, NP, ODD, P0, TH, TBG = 24, 25, 26, 27, 28, 29, 30
WAIT2 = True
FOLLOW_KB = 8
CARRY = 24
CSV = 192

def p4_setup(k):
    k("s_and_b32 s36, s2, 7"); k("s_lshr_b32 s37, s2, 3")
    k(f"s_and_b32 s{T128}, s36, 3"); k("s_and_b32 s38, s37, 3"); k("s_lshl_b32 s38, s38, 2"); k(f"s_add_u32 s{T128}, s{T128}, s38")
    k(f"s_lshr_b32 s{COL}, s36, 2"); k(f"s_lshl_b32 s{COL}, s{COL}, 3"); k("s_lshr_b32 s38, s37, 2"); k(f"s_add_u32 s{COL}, s{COL}, s38")
    k(f"s_mul_i32 s38, s{COL}, 7")
    k(f"s_cmp_eq_u32 s{COL}, 15"); k("s_cselect_b32 s38, 103, s38")
    k(f"s_cmp_ge_u32 s{COL}, 14"); k(f"s_cselect_b32 s{NP}, 2, 3")
    k(f"s_and_b32 s{ODD}, s{COL}, 1")
    k(f"s_add_u32 s{P0}, s38, s{ODD}")
    k(f"s_lshl_b32 s{TH}, s{NP}, 1"); k(f"s_add_u32 s{TH}, s{TH}, s38")
    k(f"s_cmp_eq_u32 s{ODD}, 1"); k(f"s_cselect_b32 s{TH}, s38, s{TH}")
    k(f"s_lshl_b32 s{TBG}, s{T128}, 3"); k("s_lshl_b32 s38, s10, 1"); k(f"s_add_u32 s{TBG}, s{TBG}, s38")

def p4_pre_setup(k):
    k(f"s_mul_i32 s40, s{P0}, 20480"); k("s_mul_i32 s41, s10, 5120"); k("s_add_u32 s40, s40, s41"); k(f"s_add_u32 s40, s40, {W3T}")
    k(f"s_mul_i32 s42, s{TH}, 20480"); k("s_add_u32 s42, s42, s41"); k(f"s_add_u32 s42, s42, {W3T}")

def p4_tile_groups(l):
    src = f"s_add_u32 s44, s40, {l*20480}" if l < 6 else "s_mov_b32 s44, s42"
    src2 = f"s_add_u32 s44, s40, {l*20480 + 4096}" if l < 6 else "s_add_u32 s44, s42, 4096"
    G = []
    for i in range(5):
        pre = []
        if i == 0: pre = [f"s_add_u32 m0, s41, {l*20480}", src]
        if i == 4: pre = [f"s_add_u32 m0, s41, {l*20480 + 4096}", src2]
        G.append(pre + [f"buffer_load_dwordx4 v4, s[12:15], s44 offen offset:{1024*(i%4)} sc1 lds"])
    return G

def p4_pre_early(k):
    c = CSV
    G = [[f"v_lshrrev_b32 v{c}, 4, v0", f"v_add_u32 v{c+1}, s{P0}, v{c}", f"v_cmp_eq_u32 vcc, 6, v{c}", f"v_mov_b32 v{c+2}, s{TH}",
          f"v_cndmask_b32 v{c+1}, v{c+1}, v{c+2}, vcc", f"v_lshlrev_b32 v{c+1}, 6, v{c+1}", f"v_lshl_add_u32 v{c+1}, v2, 2, v{c+1}",
          f"s_mov_b32 s45, {CS3}", f"buffer_load_dword v{c+3}, v{c+1}, s[12:15], s45 offen sc1"]]
    for j in range(1, 5):
        G.append([f"s_mov_b32 s45, {CS3 + j*F*4}", f"buffer_load_dword v{c+3+j}, v{c+1}, s[12:15], s45 offen sc1"])
    return G + p4_tile_groups(5) + p4_tile_groups(6)

def p4_pre_late(k):
    G = []
    for l in range(5): G += p4_tile_groups(l)
    return G

def p4_cs_table(k):
    c = CSV
    k(f"v_add_f32 v{c+3}, v{c+3}, v{c+4}"); k(f"v_add_f32 v{c+5}, v{c+5}, v{c+6}")
    k(f"v_add_f32 v{c+3}, v{c+3}, v{c+7}"); k(f"v_add_f32 v{c+3}, v{c+3}, v{c+5}")
    k(f"v_lshlrev_b32 v{c+4}, 2, v0"); k(f"v_add_u32 v{c+4}, {CSL}, v{c+4}")
    k("v_cmp_gt_u32 vcc, 112, v0")
    k("s_and_saveexec_b64 s[56:57], vcc")
    k(f"s_cbranch_execz {k.lab('nocs')}")
    k(f"ds_write_b32 v{c+4}, v{c+3}")
    k.label("nocs")
    k("s_mov_b64 exec, s[56:57]")
    k("s_waitcnt lgkmcnt(0)")

def p4_main(k, tail, after_gemm, early=None, follow=None, nfollow=0):
    sc = pc.SC; ss = pc.SS
    vm = VM(k)
    k(f"s_mul_i32 s47, s{TBG}, 20480"); k(f"s_add_u32 s47, s47, {X1}"); k("s_add_u32 s48, s47, 20480")
    xl = []
    for kb in range(20):
        for tb in range(2):
            pre = ["s_add_u32 s47, s47, 4096", "s_add_u32 s48, s48, 4096"] if (tb == 0 and kb and kb % 4 == 0) else []
            xl.append((pre + [f"buffer_load_dwordx4 {a((kb*2+tb)*4,4)}, v4, s[12:15], s{47+tb} offen offset:{1024*(kb%4)}{sc}"], ("X", kb)))
    k("v_lshlrev_b32 v6, 8, v3"); k("v_lshl_add_u32 v6, v2, 3, v6")
    k(f"s_lshl_b32 s37, s{TBG}, 10"); k(f"s_add_u32 s37, s37, {ST2}")
    stl = [([f"buffer_load_dwordx2 {v(8 + 4*tb + 2*h_, 2)}, v6, s[12:15], s37 offen offset:{1024*tb + 128*h_}{sc}"], "ST") for tb in range(2) for h_ in range(2)]
    q = TQ(vm, xl[:4] + stl + xl[4:] + (early or []) + tail); q.pop(14)
    k(f"s_mov_b32 s50, {f2u(GELU_C0)}"); k(f"s_mov_b32 s51, {f2u(GELU_C1)}")
    k(f"s_mov_b32 s54, {f2u(1.0/640)}"); k(f"s_mov_b32 s55, {f2u(1e-5)}")
    st = []
    for tb in range(2):
        b = 8 + 4*tb; o = 16 + 2*tb
        st += [f"v_add_f32 v{o}, v{b}, v{b+2}", f"v_add_f32 v{o+1}, v{b+1}, v{b+3}"]
    for tb in range(2):
        for o in (16 + 2*tb, 17 + 2*tb):
            t_ = 8 + (o - 16)
            st += [f"v_mov_b32 v{t_}, v{o}", f"v_permlane32_swap_b32 v{o}, v{t_}", f"v_add_f32 v{o}, v{o}, v{t_}",
                   f"v_mov_b32 v{t_}, v{o}", f"v_permlane16_swap_b32 v{o}, v{t_}", f"v_add_f32 v{o}, v{o}, v{t_}"]
    for tb in range(2):
        o = 16 + 2*tb
        st += [f"v_mul_f32 v{o}, s54, v{o}", f"v_mul_f32 v{o+1}, s54, v{o+1}", f"v_fma_f32 v{o+1}, -v{o}, v{o}, v{o+1}",
               f"v_max_f32 v{o+1}, 0, v{o+1}", f"v_add_f32 v{o+1}, s55, v{o+1}", f"v_rsq_f32 v{o+1}, v{o+1}"]
        st += gelu_scale_consts(o+1, 168 + 2*tb, 172 + tb, 50, 51)
    sq = Queue(k, [[x] for x in st])
    fq = TQ(vm, follow or [])
    ACC = 32; AF = 176; CS = 120; T = 24; PK = 148; NR = 14
    k("v_lshlrev_b32 v5, 4, v3"); k(f"v_add_u32 v5, {CSL}, v5")
    for l in range(7): k(f"ds_read_b128 {v(CS+4*l,4)}, v5 offset:{64*l}")
    k("v_add_u32 v6, 0x10000, v4"); k("v_add_u32 v7, 0x20000, v4")
    def accr(l, tb): return ACC + 16*(l//2) + 8*tb + 4*(l % 2) if l < 6 else ACC + 48 + 4*tb
    def gemm(tiles):
        seq = [(kb, l) for kb in range(20) for l in tiles]
        PRE = 11
        def rd(i):
            kb, l = seq[i]; off = l*20480 + kb*1024
            reg = "v4" if off < 65536 else ("v6" if off < 131072 else "v7")
            return f"ds_read_b128 {v(AF + 4*(i % NR),4)}, {reg} offset:{off % 65536}"
        k("s_waitcnt lgkmcnt(0)")
        for i in range(PRE): k(rd(i))
        for i, (kb, l) in enumerate(seq):
            if l == tiles[0]: vm.wait(lambda t: t == ("X", kb) or (kb >= 2 and t == "ST"))
            if l == tiles[0] and len(tiles) == 7 and kb in (2, 8, 14): k.stamp_nowait("kb%d" % kb)
            if WAIT2 and i % 2 == 0:
                left = min(len(seq), i + PRE) - min(len(seq), i + 2)
                k(f"s_waitcnt lgkmcnt({left})")
            elif not WAIT2:
                left = min(len(seq), i + PRE) - i - 1
                k(f"s_waitcnt lgkmcnt({left})")
            for tb in range(2):
                c = v(accr(l, tb), 4)
                k(f"v_mfma_f32_16x16x32_bf16 {c}, {v(AF + 4*(i % NR),4)}, {a((kb*2+tb)*4,4)}, {c if kb else 0}")
                if tb == 0 and i + PRE < len(seq): k(rd(i + PRE))
            if l in (tiles[0], tiles[3]) or (kb >= 3 and l == tiles[1]) or (kb >= 16 and l == tiles[2]): q.pop()
            if kb >= 2: sq.pop()
            if l == tiles[2] and kb >= FOLLOW_KB and len(fq) and ((nfollow - len(fq)) >> 1) < kb: fq.pop(2 if kb >= 16 else 1)
        q.flush(); sq.flush(); fq.flush()
    k(f"s_cmp_eq_u32 s{NP}, 2"); k(f"s_cbranch_scc1 {k.lab('g5')}")
    save = (list(q.items), list(vm.ops), list(sq.g), list(fq.items))
    gemm([0, 1, 2, 3, 4, 5, 6])
    ops_after = list(vm.ops)
    k(f"s_branch {k.lab('gdone')}")
    k.label("g5")
    q.items, vm.ops, sq.g, fq.items = save
    gemm([0, 1, 2, 3, 6])
    assert vm.ops == ops_after
    k.label("gdone")
    k.stamp("gemm4")
    nq = TQ(vm, [(g, "N") for g in after_gemm(k)[nfollow:]])
    k(f"s_mul_i32 s58, s{TBG}, 55296"); k(f"s_lshr_b32 s59, s{P0}, 1"); k("s_lshl_b32 s59, s59, 10")
    k("s_add_u32 s58, s58, s59"); k(f"s_add_u32 s58, s58, {GG}"); k("s_add_u32 s59, s58, 55296")
    def epi(j, carry):
        streams = []
        for tb in range(2):
            for s_ in (range(2) if j < 3 else [0]):
                L = []; l = 2*j + s_
                for hf in range(2):
                    z = accr(l, tb) + 2*hf; t = T + 2*len(streams); st_ = 16 + 2*tb; cs = CS + 4*l + 2*hf
                    first = [f"v_pk_fma_f32 {v(z,2)}, {v(cs,2)}, {v(st_,2)}, {v(z,2)} op_sel:[0,0,0] op_sel_hi:[1,0,1] neg_lo:[1,0,0] neg_hi:[1,0,0]"]
                    L += gelu_fold(z, t, PK + 8*(j % 2) + 4*tb + 2*s_ + hf if j < 3 else PK + 4*tb + hf, 168 + 2*tb, 172 + tb, first)
                streams.append(L)
        for n, ln in enumerate(interleave(*streams)):
            k(ln)
            if carry and n % CARRY == CARRY - 1: nq.pop()
        if j < 3:
            p = PK + 8*(j % 2)
            vm.issue([f"buffer_store_dwordx4 {v(p,4)}, v4, s[12:15], s58 offen offset:{1024*j}{ss}"], "S")
            vm.issue([f"buffer_store_dwordx4 {v(p+4,4)}, v4, s[12:15], s59 offen offset:{1024*j}{ss}"], "S")
    epi(0, True); epi(1, True)
    k(f"s_cmp_eq_u32 s{NP}, 2"); k(f"s_cbranch_scc1 {k.lab('noe2')}")
    before = len(vm.ops)
    epi(2, False)
    del vm.ops[before:]
    k.label("noe2")
    epi(3, True)
    k(f"s_mul_i32 s58, s{TBG}, 55296"); k(f"s_lshr_b32 s59, s{TH}, 1"); k("s_lshl_b32 s59, s59, 10")
    k("s_add_u32 s58, s58, s59"); k(f"s_lshl_b32 s59, s{ODD}, 3"); k("s_add_u32 s58, s58, s59"); k(f"s_add_u32 s58, s58, {GG}")
    k("s_add_u32 s59, s58, 55296")
    vm.issue([f"buffer_store_dwordx2 {v(PK,2)}, v4, s[12:15], s58 offen{ss}"], "S")
    vm.issue([f"buffer_store_dwordx2 {v(PK+4,2)}, v4, s[12:15], s59 offen{ss}"], "S")
    return vm, nq

def w4_l2_items(k, sbase=82):
    k(f"s_bfe_u32 s{sbase}, s2, 0x10002"); k(f"s_mul_i32 s{sbase}, s{sbase}, {20*55296}")
    k(f"s_lshr_b32 s{sbase+1}, s2, 3"); k(f"s_lshl_b32 s{sbase+1}, s{sbase+1}, 2"); k(f"s_add_u32 s{sbase+1}, s{sbase+1}, s10")
    k(f"s_mul_i32 s{sbase+1}, s{sbase+1}, 9216"); k(f"s_add_u32 s{sbase}, s{sbase}, s{sbase+1}"); k(f"s_add_u32 s{sbase}, s{sbase}, {W4T}")
    G = []
    for i in range(9):
        pre = [f"s_add_u32 s{sbase}, s{sbase}, 4096"] if (i and i % 4 == 0) else []
        G.append((pre + [f"buffer_load_dwordx4 v[164:167], v4, s[12:15], s{sbase} offen offset:{1024*(i%4)}"], "pf"))
    return G
```

```python
from ph_common import *
import ph_common as pc
from p3 import T64, FC, ODD, TBG, FB, SA, SH, WB, LB, TMP

P5_LDS = 61440
OUTSC = " sc1"
NWA = 64
WV = 232

def wreg(i, l):
    f = i*5 + l
    return a(4*f, 4) if f < NWA else v(WV + 4*(f - NWA), 4)

def p5_pre_setup(k):
    k(f"s_mul_i32 s{TMP}, s10, 14336")
    for l in range(5):
        k(f"s_mul_i32 s{WB+l}, s{FB+l}, 55296"); k(f"s_add_u32 s{WB+l}, s{WB+l}, s{TMP}"); k(f"s_add_u32 s{WB+l}, s{WB+l}, {W4T}")
    k("s_cmp_eq_u32 s10, 3"); k(f"s_cselect_b32 s{LB}, 0x40000000, 0")

def p5_w_group(i, l):
    hi = (i // 4) * 4096
    pre = [f"s_add_u32 s{TMP+1}, s{WB+l}, {hi}"] if hi else [f"s_mov_b32 s{TMP+1}, s{WB+l}"]
    if i >= 12: pre.append(f"s_add_u32 s{TMP+1}, s{TMP+1}, s{LB}")
    return pre + [f"buffer_load_dwordx4 {wreg(i,l)}, v4, s[12:15], s{TMP+1} offen offset:{1024*(i%4)} sc1"]

def p5_pre_early(k):
    return [p5_w_group(f // 5, f % 5) for f in range(40, 70)]

def p5_pre_late(k):
    return [p5_w_group(f // 5, f % 5) for f in range(0, 40)]

def p5_main(k):
    sc = pc.SC
    R = 100
    vm = VM(k)
    k("s_mul_i32 s36, s10, 14336")
    for j in range(4):
        k(f"s_add_u32 s37, s10, {j}"); k("s_and_b32 s37, s37, 3")
        k(f"s_lshl_b32 s38, s{T64}, 2"); k("s_add_u32 s37, s37, s38")
        k(f"s_mul_i32 s{46+j}, s37, 55296"); k(f"s_add_u32 s{46+j}, s{46+j}, s36"); k(f"s_add_u32 s{46+j}, s{46+j}, {GG}")
    k("s_cmp_eq_u32 s10, 3"); k("s_cselect_b32 s45, 0x40000000, 4096")
    XR = 124; NS = 4
    xl = []
    for i in range(14):
        for j in range(4):
            pre = [f"s_add_u32 s{46+j}, s{46+j}, {'s45' if i == 12 else 4096}"] if (i and i % 4 == 0) else []
            xl.append((pre + [f"buffer_load_dwordx4 {v(XR + 16*(i % NS) + 4*j,4)}, v4, s[12:15], s{46+j} offen offset:{1024*(i%4)}{sc}"], ("X", i)))
    res = []
    for base, reg in ((HT, R), (X1, R + 10)):
        res.append(([f"s_add_u32 s36, s{SA}, {base}", f"buffer_load_dwordx4 {v(reg,4)}, v4, s[12:15], s36 offen{sc}"], "R"))
        res.append(([f"buffer_load_dwordx4 {v(reg+4,4)}, v4, s[12:15], s36 offen offset:1024{sc}"], "R"))
        res.append(([f"s_add_u32 s37, s{SH}, {base}", f"buffer_load_dwordx2 {v(reg+8,2)}, v4, s[12:15], s37 offen{sc}"], "R"))
    q = TQ(vm, xl); q.pop(12)
    rq = TQ(vm, res)
    ACC = 16; U = 8
    nx = lambda: sum(1 for t in vm.ops if isinstance(t, tuple))
    for i in range(14):
        vm.wait(lambda t: t == ("X", i))
        if i == 0: k.stamp("step0")
        n = 0
        for j in range(4):
            for l in range(5):
                c = v(ACC + 20*j + 4*l, 4)
                k(f"v_mfma_f32_16x16x32_bf16 {c}, {wreg(i,l)}, {v(XR + 16*(i % NS) + 4*j,4)}, {c if i else 0}")
                n += 1
                if n % 5 == 3:
                    if len(q) and nx() < 4*(i + NS): q.pop()
                    elif not len(q): rq.pop()
    rq.flush()
    k.stamp("main5")
    for j in range(1, 4):
        k(f"s_add_u32 s37, s10, {j}"); k("s_and_b32 s37, s37, 3"); k("s_mul_i32 s37, s37, 15360")
        k(f"s_add_u32 s37, s37, {(j-1)*5120}")
        k(f"v_add_u32 v{5+j}, s37, v4")
    for j in range(1, 4):
        for l in range(5):
            k(f"ds_write_b128 v{5+j}, {v(ACC + 20*j + 4*l,4)} offset:{1024*l}")
    k("s_mul_i32 s37, s10, 15360")
    k("v_add_u32 v9, s37, v4")
    vm.wait(lambda t: t == "R")
    k("s_mov_b32 s36, 0xffff0000")
    for l in range(5):
        for hf in range(2):
            z = ACC + 4*l + 2*hf
            for rr in (R, R + 10):
                k(f"v_lshlrev_b32 v{U+2}, 16, v{resid_src(rr,l,hf)}"); k(f"v_and_b32 v{U+3}, s36, v{resid_src(rr,l,hf)}")
                k(f"v_pk_add_f32 {v(z,2)}, {v(z,2)}, {v(U+2,2)}")
    k(f"s_lshl_b32 s37, s{TBG}, 4")
    k("v_add_u32 v6, s37, v2"); k("v_mul_u32_u24 v6, 1280, v6"); k("v_lshl_add_u32 v6, v3, 4, v6")
    k(f"s_lshr_b32 s37, s{FB}, 1"); k("s_lshl_b32 s37, s37, 6")
    k(f"s_lshr_b32 s38, s{FB+4}, 1"); k("s_lshl_b32 s38, s38, 6"); k(f"s_lshl_b32 s39, s{ODD}, 3"); k("s_add_u32 s38, s38, s39")
    k("s_waitcnt lgkmcnt(0)")
    k("s_barrier")
    P = 36; PK = 100
    for j in range(3):
        for l in range(5):
            k(f"ds_read_b128 {v(P + 20*j + 4*l,4)}, v9 offset:{j*5120 + 1024*l}")
    for j in range(3):
        k(f"s_waitcnt lgkmcnt({10 - 5*j})")
        for i in range(10): k(f"v_pk_add_f32 {v(ACC+2*i,2)}, {v(ACC+2*i,2)}, {v(P+20*j+2*i,2)}")
    for i in range(10): k(f"v_cvt_pk_bf16_f32 v{PK+i}, v{ACC+2*i}, v{ACC+2*i+1}")
    k(f"buffer_store_dwordx4 {v(PK,4)}, v6, s[20:23], s37 offen{OUTSC}")
    k(f"buffer_store_dwordx4 {v(PK+4,4)}, v6, s[20:23], s37 offen offset:64{OUTSC}")
    k(f"buffer_store_dwordx2 {v(PK+8,2)}, v6, s[20:23], s38 offen{OUTSC}")
```

```python
import sys, importlib, json
import gen_mega, mega, p2, p3, p4, p5, ph_common
name = sys.argv[1]
for kv in sys.argv[2:]:
    k, v_ = kv.split("="); m, a = k.split(".")
    setattr(sys.modules[m], a, eval(v_))
t, meta = gen_mega.build(True, ("begin", "end"))
open(f"ab_{name}.s", "w").write(t)
t, meta = gen_mega.build()
open(f"variants/{name}.s", "w").write(t)
```

```python
import re

def v(a, n=1): return f"v{a}" if n == 1 else f"v[{a}:{a+n-1}]"
def a(x, n=1): return f"a{x}" if n == 1 else f"a[{x}:{x+n-1}]"
def s(a_, n=1): return f"s{a_}" if n == 1 else f"s[{a_}:{a_+n-1}]"

_REG = re.compile(r"(?<![\w.])([vas])(?:(\d+)\b|\[(\d+):(\d+)\])")

def regs_in(text):
    out = []
    for m in _REG.finditer(text):
        k = m.group(1)
        if m.group(2) is not None:
            out.append((k, int(m.group(2)), int(m.group(2))))
        else:
            out.append((k, int(m.group(3)), int(m.group(4))))
    return out

def expand(rs):
    o = set()
    for k, lo, hi in rs:
        for i in range(lo, hi + 1): o.add((k, i))
    return o

TRANS = ("v_exp_f32", "v_log_f32", "v_rcp_f32", "v_rsq_f32", "v_sqrt_f32", "v_sin_f32", "v_cos_f32", "v_rcp_iflag_f32")

class Ins:
    __slots__ = ("text", "op", "kind", "defs", "uses", "srcc", "sdefs", "raw", "dpp", "wide_store", "vccdef", "vccuse", "m0def", "m0use", "label", "target", "states", "execdef")
    def __init__(self, text):
        self.text = text
        t = text.split(";")[0].strip()
        self.raw = t
        self.label = None; self.target = None
        self.defs = set(); self.uses = set(); self.srcc = set(); self.sdefs = set()
        self.dpp = False; self.wide_store = False; self.vccdef = False; self.vccuse = False
        self.m0def = False; self.m0use = False; self.states = 1; self.execdef = False
        if t.endswith(":") and " " not in t:
            self.kind = "label"; self.label = t[:-1]; self.op = ""; self.states = 0; return
        if not t or t.startswith("."):
            self.kind = "dir"; self.op = ""; self.states = 0; return
        parts = t.split(None, 1)
        self.op = op = parts[0]
        rest = parts[1] if len(parts) > 1 else ""
        ops = [x.strip() for x in self._split(rest)]
        if op == "s_nop":
            self.kind = "nop"; self.states = int(ops[0], 0) + 1; return
        if op.startswith("s_cbranch") or op == "s_branch":
            self.kind = "branch"; self.target = ops[0]; return
        if op.startswith("v_mfma"):
            self.kind = "mfma"
            self.defs = expand(regs_in(ops[0]))
            self.uses = expand(regs_in(ops[1])) | expand(regs_in(ops[2]))
            self.srcc = expand(regs_in(ops[3]))
            return
        if op.startswith("v_"):
            self.kind = "trans" if op.replace("_e32", "").replace("_e64", "") in TRANS else "valu"
            self.dpp = ("dpp" in op) or ("row_" in rest) or ("quad_perm" in rest) or ("wave_" in rest) or ("row_bcast" in rest)
            if op.startswith("v_cmp"):
                d = ops[0]
                if d == "vcc": self.vccdef = True
                else: self.sdefs = expand(regs_in(d))
                for o in ops[1:]: self.uses |= expand(regs_in(o))
                if op.startswith("v_cmpx"): self.execdef = True
                return
            if op.startswith("v_readfirstlane") or op.startswith("v_readlane"):
                self.sdefs = expand(regs_in(ops[0]))
                for o in ops[1:]: self.uses |= expand(regs_in(o))
                self.kind = "readlane"
                return
            if op.startswith("v_permlane") and "swap" in op:
                self.defs = expand(regs_in(ops[0])) | expand(regs_in(ops[1]))
                self.uses = set(self.defs)
                self.kind = "permlane"
                return
            self.defs = expand(regs_in(ops[0]))
            k = 1
            if "_co_" in op or op.startswith("v_div_scale") or op.startswith("v_mad_u64") or op.startswith("v_mad_i64"):
                if ops[1] == "vcc": self.vccdef = True
                else: self.sdefs = expand(regs_in(ops[1]))
                k = 2
            for o in ops[k:]:
                self.uses |= expand(regs_in(o))
                if o == "vcc": self.vccuse = True
            if op.startswith("v_cndmask") and len(ops) == 3: self.vccuse = True
            if op.startswith("v_fmac") or op.startswith("v_mac") or op.startswith("v_pk_fmac") or op.startswith("v_dot2c") or op.startswith("v_writelane"):
                self.uses |= self.defs
            if "op_sel" in rest and "pk_" not in op: pass
            return
        if op.startswith("buffer_") or op.startswith("global_"):
            self.kind = "vmem"
            allr = expand(regs_in(rest))
            if "lds" in rest.split():
                self.m0use = True; self.uses = allr
            elif "_load" in op:
                self.defs = expand(regs_in(ops[0]))
                for o in ops[1:]: self.uses |= expand(regs_in(o))
            elif "atomic" in op:
                self.uses = allr
                if "sc0" in rest.split(): self.defs = expand(regs_in(ops[0]))
            else:
                self.uses = allr
                if "x4" in op or "x3" in op:
                    if op.startswith("buffer_"): self.wide_store = expand(regs_in(ops[0]))
                    else: self.wide_store = expand(regs_in(ops[1]))
            return
        if op.startswith("ds_"):
            self.kind = "ds"
            if op.startswith("ds_read") or op.startswith("ds_bpermute") or op.startswith("ds_permute") or op.startswith("ds_swizzle"):
                self.defs = expand(regs_in(ops[0]))
                for o in ops[1:]: self.uses |= expand(regs_in(o))
            else:
                self.uses = expand(regs_in(rest))
            return
        if op.startswith("s_"):
            self.kind = "salu"
            if op.startswith("s_cmp") or op in ("s_waitcnt", "s_barrier", "s_endpgm", "s_setprio", "s_sleep"):
                for o in ops: self.uses |= expand(regs_in(o))
                return
            if ops:
                d = ops[0]
                if d == "m0": self.m0def = True
                elif d == "exec": pass
                elif d == "vcc": pass
                else: self.sdefs = expand(regs_in(d))
                for o in ops[1:]: self.uses |= expand(regs_in(o))
            return
        self.kind = "other"
    @staticmethod
    def _split(rest):
        out = []; depth = 0; cur = ""
        for ch in rest:
            if ch == "[": depth += 1
            if ch == "]": depth -= 1
            if ch == "," and depth == 0:
                out.append(cur); cur = ""
            else: cur += ch
        if cur.strip(): out.append(cur)
        return out

VALUISH = ("valu", "trans", "readlane", "permlane")

def need(prev, cur):
    n = 0
    pv = prev.kind in VALUISH
    cv = cur.kind in VALUISH
    vec = lambda st: {r for r in st if r[0] in "va"}
    if pv and prev.kind != "readlane":
        d = vec(prev.defs)
        if cur.kind == "mfma" and d & (cur.uses | cur.srcc): n = max(n, 2)
        if cur.kind == "readlane" and d & cur.uses: n = max(n, 1)
        if cur.kind == "permlane" and d & cur.uses: n = max(n, 2)
        if cur.dpp and d & cur.uses: n = max(n, 2)
        if prev.kind == "trans" and cv and cur.kind != "trans" and d & cur.uses: n = max(n, 1)
        if prev.kind == "trans" and cur.kind == "trans" and d & cur.uses: n = max(n, 1)
    if pv:
        sd = prev.sdefs
        if sd:
            if cur.kind == "vmem" and sd & cur.uses: n = max(n, 5)
            if cv and sd & cur.uses: n = max(n, 4 if cur.kind == "readlane" else 2)
            if cur.kind in ("salu", "branch") and sd & cur.uses: n = max(n, 4)
            if cur.kind == "mfma" and sd & cur.uses: n = max(n, 2)
        if prev.vccdef and cv and cur.vccuse: n = max(n, 2)
        if prev.vccdef and cur.kind in ("salu", "branch") and ("vcc" in cur.raw): n = max(n, 5)
        if prev.execdef and (cv or cur.kind == "mfma"): n = max(n, 5)
    if prev.op.startswith("v_dot"):
        d = vec(prev.defs)
        if d & (cur.uses | cur.defs | cur.srcc):
            same_acc = cur.op == prev.op and cur.defs == prev.defs and cur.raw.split(",")[-1].strip() == prev.raw.split(None,1)[1].split(",")[0].strip() \
                       and not (d & (expand(regs_in(cur.raw.split(",")[1])) | expand(regs_in(cur.raw.split(",")[2]))))
            if not same_acc: n = max(n, 3)
    if prev.kind == "mfma":
        big = "32x32" in prev.op
        d = prev.defs
        if cur.kind == "mfma":
            if d & cur.uses: n = max(n, 12 if big else 8)
            if d & cur.srcc and d != cur.srcc: n = max(n, 10 if big else 6)
            if d & cur.defs and d != cur.srcc: n = max(n, 12 if big else 8)
        elif cv or cur.kind in ("vmem", "ds"):
            if d & (cur.uses | cur.defs): n = max(n, 12 if big else 8)
        if cv and prev.srcc & vec(cur.defs): n = max(n, 7 if big else 3)
    if prev.m0def and cur.m0use: n = max(n, 1)
    if prev.wide_store and (cv or cur.kind in ("ds", "vmem", "mfma")) and prev.wide_store & vec(cur.defs):
        n = max(n, 2)
    return n

MAXD = 13

def check_smem_races(lines):
    pend = set()
    for l in lines:
        x = Ins(l)
        if x.kind in ("label", "dir"): continue
        if x.op.startswith("s_load") or x.op.startswith("s_memtime") or x.op.startswith("s_memrealtime"):
            ops = Ins._split(x.raw.split(None, 1)[1])
            pend |= expand(regs_in(ops[0])); continue
        if x.op == "s_waitcnt" and "lgkmcnt(0)" in x.raw: pend = set(); continue
        touched = {r for r in (x.uses | x.sdefs | x.defs) if r[0] == "s"}
        if touched & pend: raise AssertionError(f"register of an in-flight scalar load touched: {x.raw}")

def pad_hazards(lines, verbose=False):
    check_smem_races(lines)
    ins = [Ins(l) for l in lines]
    labels = {x.label: i for i, x in enumerate(ins) if x.kind == "label"}
    inserted = 0
    out = []
    def required(hist, cur):
        dist = 0; worst = 0
        for p in reversed(hist):
            if p.states == 0: continue
            r = need(p, cur) - dist
            if r > worst: worst = r
            dist += p.states
            if dist >= MAXD: break
        return worst
    def mk_nop(k):
        res = []
        while k > 0:
            t = min(k, 16); res.append(Ins(f"  s_nop {t-1}")); k -= t
        return res
    for i, x in enumerate(ins):
        if x.states:
            r = required(out, x)
            if r > 0:
                if verbose: print(f"pad {r} before: {x.raw}")
                out += mk_nop(r); inserted += r
        if x.kind == "branch" and x.target in labels:
            j = labels[x.target]; dist_pad = 0
            fake = out + [x]
            worst = 0; k = j; walked = []
            cnt = 0
            while k < len(ins) and cnt < MAXD:
                y = ins[k]
                if y.states:
                    r = required(fake + walked, y)
                    worst = max(worst, r)
                    walked.append(y); cnt += y.states
                    if y.kind == "branch" and y.op == "s_branch": break
                    if y.op == "s_endpgm": break
                k += 1
            if worst > 0:
                if verbose: print(f"pad {worst} before branch: {x.raw}")
                out += mk_nop(worst); inserted += worst
        out.append(x)
    return [o.text for o in out], inserted

DIAG = {}
DBGT = {}
class Kern:
    def __init__(self, name, vgpr=256, agpr=0, sgpr=102):
        self.name = name; self.L = []; self.vgpr = vgpr; self.agpr = agpr; self.sgpr = sgpr
        if name in DBGT:
            self.dbgidx = DBGT[name]; self.sgpr = 102
        if name in DIAG:
            self.diag = DIAG[name]; self.sgpr = 102
        self._n = 0
    def __call__(self, t):
        for ln in t.split("\n"):
            ln = ln.strip()
            if not ln: continue
            self.L.append(ln if (ln.endswith(":") and " " not in ln) else "  " + ln)
    def lab(self, n): return f"{self.name}_{n}"
    def label(self, n): self.L.append(self.lab(n) + ":")
    def uniq(self, base):
        self._n += 1; return f"{base}{self._n}"
    diag = None
    nst = 0
    only = None
    def stamp(self, name=""):
        if self.diag is None: return
        if self.only is not None and name not in self.only: return
        self("s_memtime s[98:99]")
        self("s_waitcnt lgkmcnt(0)")
        self(f"s_mov_b32 s{86 + self.nst}, s98")
        self.names = getattr(self, "names", []) + [name]
        self.nst += 1
        assert self.nst <= 12
    def stamp_nowait(self, name):
        if self.diag is None: return
        if self.only is not None and name not in self.only: return
        r = 86 + self.nst
        if r % 2: self.nst += 1; self.names.append("pad"); r += 1
        self(f"s_memtime s[{r}:{r+1}]")
        self.names += [name, "pad"]; self.nst += 2
        assert self.nst <= 12
    def stamp_begin(self):
        self.dbg_begin()
        if self.diag is None: return
        self("s_memrealtime s[100:101]")
        self.stamp("begin")
    def stamp_flush(self, ws_lo, base):
        self.dbg_end()
        if self.diag is None: return
        self.stamp("end")
        self("s_memrealtime s[98:99]")
        self("s_waitcnt vmcnt(0) lgkmcnt(0)")
        self(f"s_load_dwordx2 s[60:61], s[0:1], 104")
        self("s_waitcnt lgkmcnt(0)")
        self(f"s_add_u32 s60, s60, {base}"); self("s_addc_u32 s61, s61, 0"); self("s_mov_b32 s62, 0x1000000"); self("s_mov_b32 s63, 0x20000")
        self(f"s_add_u32 s64, s2, {self.diag*512}"); self("s_lshl_b32 s64, s64, 2")
        self("v_lshrrev_b32 v1, 6, v0"); self("s_nop 1"); self("v_readfirstlane_b32 s65, v1"); self("s_nop 4"); self("s_add_u32 s64, s64, s65"); self("s_lshl_b32 s64, s64, 7")
        self("v_mov_b32 v1, 0")
        for i in range(self.nst):
            self(f"v_mov_b32 v2, s{86+i}")
            self(f"buffer_store_dword v2, v1, s[60:63], s64 offen offset:{4*i}")
            self("s_nop 1")
        self("v_mov_b32 v2, s100"); self("buffer_store_dword v2, v1, s[60:63], s64 offen offset:120"); self("s_nop 1")
        self("v_mov_b32 v2, s98"); self("buffer_store_dword v2, v1, s[60:63], s64 offen offset:124")
    dbgidx = None
    def dbg_begin(self):
        if self.dbgidx is None: return
        self("s_memrealtime s[100:101]")
    def dbg_end(self):
        if self.dbgidx is None: return
        i = self.dbgidx
        self("s_waitcnt vmcnt(0) lgkmcnt(0)")
        self("s_memrealtime s[98:99]")
        self("s_load_dwordx2 s[76:77], s[0:1], 96")
        self("s_waitcnt lgkmcnt(0)")
        self(f"s_add_u32 s76, s76, {512*(5-i)}"); self("s_addc_u32 s77, s77, 0"); self("s_mov_b32 s78, 256"); self("s_mov_b32 s79, 0x20000")
        self("v_mov_b32 v1, 0"); self("v_mov_b32 v2, s98"); self("v_not_b32 v3, s100")
        lab = self.lab(self.uniq("nodbg"))
        self("s_and_b32 s75, s2, 15"); self("s_cmp_lg_u32 s75, 0"); self(f"s_cbranch_scc1 {lab}")
        self("v_cmp_eq_u32 vcc, 0, v0")
        self("s_and_saveexec_b64 s[72:73], vcc")
        self(f"s_cbranch_execz {lab}")
        self(f"buffer_atomic_umax v2, v1, s[76:79], 0 offen offset:{8*i+4}")
        self(f"buffer_atomic_umax v3, v1, s[76:79], 0 offen offset:{8*i}")
        self("s_waitcnt vmcnt(0)")
        self.L.append(lab + ":")
    def srd(self, sreg, ptr_lo, nbytes, add=0):
        if add:
            self(f"s_add_u32 s{sreg}, s{ptr_lo}, {add}")
            self(f"s_addc_u32 s{sreg+1}, s{ptr_lo+1}, 0")
        else:
            self(f"s_mov_b32 s{sreg}, s{ptr_lo}")
            self(f"s_mov_b32 s{sreg+1}, s{ptr_lo+1}")
        self(f"s_mov_b32 s{sreg+2}, {nbytes}")
        self(f"s_mov_b32 s{sreg+3}, 0x20000")
    def text(self, verbose=False):
        body, n = pad_hazards(self.L, verbose)
        hdr = f".globl {self.name}\n.p2align 8\n.type {self.name},@function\n{self.name}:\n"
        return hdr + "\n".join(body) + "\n", n
    def desc(self):
        tot = self.vgpr + self.agpr if self.agpr else self.vgpr
        acc = (self.vgpr + 3) // 4 * 4
        return f""".amdhsa_kernel {self.name}
  .amdhsa_next_free_vgpr {tot}
  .amdhsa_next_free_sgpr {self.sgpr}
  .amdhsa_accum_offset {acc}
  .amdhsa_group_segment_fixed_size 0
  .amdhsa_kernarg_size 112
  .amdhsa_user_sgpr_count 2
  .amdhsa_user_sgpr_kernarg_segment_ptr 1
  .amdhsa_system_sgpr_workgroup_id_x 1
  .amdhsa_float_denorm_mode_32 3
.end_amdhsa_kernel
"""

def build_file(kernels, launches, header_comments=""):
    t = ""
    for n, g, b, l in launches:
        t += f"; @launch kernel={n} grid=({g},1,1) block=({b},1,1) lds={l}\n"
    t += header_comments
    t += '.amdgcn_target "amdgcn-amd-amdhsa--gfx950"\n.text\n'
    for k in kernels:
        body, n = k.text()
        t += body
    t += "text_end:\n"
    t += '.section .rodata,"a"\n'
    for k in kernels:
        t += ".p2align 6\n" + k.desc()
    return t
```

```python
from ph_common import *
import ph_common as pc
import p2, p3, p4, p5

LDS = p4.P4_LDS
C2, C3, C4 = CNT, CNT + 64*128, CNT + 128*128
C0, C1, CPA, CPB = CNT + 192*128, CNT + 232*128, CNT + 240*128, CNT + 241*128
FLG = None
FALL = CNT + 242*128
SPIN_LIMIT = 200000
SG, SG2 = 84, 85
NFOLLOW = 0
WGAP = 6
QEARLY = True
QWARM = False
WSTART = 2
NWLOOP = 36
NWA = 48
PFSTART = 1
PFGAP = 6
DRAIN_LOADS = 10
MID = (99, 99, 16)
ONLY = None
CPY = 4160
WREG = 4608 + 2*CPY
CONVL = 92160
KVL = 17408
KVO = 2*KVL

def atomic_signal(k, offset_code, lab, target, flag_code=None, first=False):
    if target is None:
        k("s_cmp_lg_u32 s10, 0"); k(f"s_cbranch_scc1 {lab}")
        if first: wait_init(k)
        for ln in offset_code: k(ln)
        k("v_mov_b32 v5, 0"); k("v_mov_b32 v6, 1")
        k("s_mov_b64 exec, 1")
        k(f"buffer_atomic_add v6, v5, s[12:15], s{SG} offen sc1")
        k("s_mov_b64 exec, -1")
        k.L.append(lab + ":")
        return
    k("s_cmp_lg_u32 s10, 0"); k(f"s_cbranch_scc1 {lab}")
    if first: wait_init(k)
    for ln in offset_code: k(ln)
    k("v_mov_b32 v5, 0"); k("v_mov_b32 v6, 1")
    k("s_mov_b64 exec, 1")
    k(f"buffer_atomic_add v6, v5, s[12:15], s{SG} offen sc0 sc1")
    for ln in (flag_code or [f"s_add_u32 s{SG}, s{SG}, {FLG}"]): k(ln)
    k("s_waitcnt vmcnt(0)")
    k.stamp("atom%d" % target + lab[-2:])
    k(f"v_cmp_eq_u32 vcc, {target - 1}, v6")
    k("v_mov_b32 v6, 1")
    k("s_and_b64 exec, exec, vcc")
    k(f"s_cbranch_execz {lab}_x")
    k(f"buffer_store_dword v6, v5, s[12:15], s{SG} offen sc1")
    k.L.append(lab + "_x:")
    k("s_mov_b64 exec, -1")
    k.L.append(lab + ":")

def signal(k, vm, nq, offset_code, target, flag_code=None, first=False):
    lab = k.lab(k.uniq("sig"))
    if nq: nq.pop(DRAIN_LOADS)
    if vm: vm.wait(lambda t: t == "S")
    else: k("s_waitcnt vmcnt(0)")
    k.stamp("drained%d" % k._n)
    if first:
        l2 = k.lab(k.uniq("fi"))
        k("s_cmp_lg_u32 s10, 0"); k(f"s_cbranch_scc1 {l2}")
        wait_init(k)
        k.L.append(l2 + ":")
    k("s_barrier")
    atomic_signal(k, offset_code, lab, target, flag_code, False)

def poll(k, addr_code, target_reg_code, va=5, vd=6, vt=7):
    lab = k.lab(k.uniq("pl")); loop = lab + "_l"
    for ln in addr_code + target_reg_code: k(ln)
    k(f"s_mov_b32 s{SG2}, 0")
    k.L.append(loop + ":")
    k(f"buffer_load_dword v{vd}, v{va}, s[12:15], 0 offen sc1")
    k(f"s_add_u32 s{SG2}, s{SG2}, 1")
    k("s_waitcnt vmcnt(0)")
    k(f"v_cmp_gt_u32 vcc, v{vt}, v{vd}")
    k(f"s_cmp_gt_u32 s{SG2}, {SPIN_LIMIT}"); k(f"s_cbranch_scc1 {lab}")
    k(f"s_cbranch_vccnz {loop}")
    k.L.append(lab + ":")

def wait_counters(k, nq, addr_code, target_code, all_waves_drain, before_barrier=None, mid=0):
    lab = k.lab(k.uniq("wt"))
    if nq: nq.pop(mid)
    k("s_cmp_lg_u32 s10, 0"); k(f"s_cbranch_scc1 {lab}")
    k.stamp("prepoll" + lab[-2:])
    poll(k, addr_code, target_code)
    k.stamp("polled" + lab[-2:])
    k.L.append(lab + ":")
    if nq: nq.flush()
    if all_waves_drain: k("s_waitcnt vmcnt(0)")
    if before_barrier: before_barrier(k)
    k("s_barrier")

def cpa_sample(): return [f"v_mov_b32 v220, {FALL + 8*128}", "buffer_load_dword v219, v220, s[12:15], 0 offen sc1"]
def cpa_check(k):
    ok = k.lab(k.uniq("cpaok"))
    k("v_cmp_eq_u32 vcc, 0, v219"); k(f"s_cbranch_vccz {ok}")
    poll(k, [f"v_mov_b32 v5, {FALL + 8*128}"], ["v_mov_b32 v7, 1"])
    k.L.append(ok + ":")

def shard_addr(base): return ["v_and_b32 v5, 7, v1", "v_lshlrev_b32 v5, 7, v5", f"v_add_u32 v5, {base}, v5"]
def own_shard(base): return [f"s_and_b32 s{SG}, s2, 7", f"s_lshl_b32 s{SG}, s{SG}, 7", f"s_add_u32 s{SG}, s{SG}, {base}"]

def init_srd(k):
    k("s_mov_b32 s74, 256"); k("s_mov_b32 s75, 0x20000")

def wait_init(k):
    lab = k.lab(k.uniq("in")); loop = lab + "_l"
    k("v_mov_b32 v5, 0"); k(f"s_mov_b32 s{SG2}, 0")
    k.L.append(loop + ":")
    k("buffer_load_dword v6, v5, s[72:75], 0 offen sc1")
    k(f"s_add_u32 s{SG2}, s{SG2}, 1")
    k("s_waitcnt vmcnt(0)")
    k("v_cmp_eq_u32 vcc, 0, v6")
    k(f"s_cmp_gt_u32 s{SG2}, {SPIN_LIMIT}"); k(f"s_cbranch_scc1 {lab}")
    k(f"s_cbranch_vccnz {loop}")
    k.L.append(lab + ":")

def vm_after(vm):
    return vm

def kv_issue(k, vm):
    k("s_sub_u32 s29, s2, 160"); k("s_cmp_lt_u32 s29, 78"); k("s_cselect_b32 s29, 2, 1")
    for j in range(2):
        k(f"s_add_u32 s26, s2, {82*j}")
        k("s_mul_hi_u32 s27, s26, 0x1999999a"); k("s_mul_i32 s28, s27, 10"); k("s_sub_u32 s28, s26, s28")
        k(f"s_lshl_b32 s{30+2*j}, s27, 6"); k(f"s_lshl_b32 s{31+2*j}, s28, 6")
    k("v_lshrrev_b32 v5, 3, v0"); k("v_and_b32 v6, 7, v0"); k("v_lshlrev_b32 v6, 4, v6")
    k("s_waitcnt lgkmcnt(0)")
    k.srd(48, 36, MB); k.srd(52, 38, MB); k.srd(56, 40, D*8)
    k("s_lshl_b32 s26, s10, 10"); k("s_mov_b32 s27, 40960")
    for j in range(2):
        b = j*KVL
        if j == 1: k("s_cmp_lt_u32 s29, 2"); k(f"s_cbranch_scc1 {k.lab('kv1')}")
        k(f"v_add_u32 v{8+j}, s{30+2*j}, v5"); k(f"v_mul_u32_u24 v{8+j}, 1280, v{8+j}")
        k(f"s_lshl_b32 s28, s{31+2*j}, 1"); k(f"v_add3_u32 v{8+j}, v{8+j}, v6, s28")
        k(f"v_subrev_u32 v{10+j}, 3840, v{8+j}")
        G = [[f"s_add_u32 m0, s26, {b}", "s_nop 0", f"buffer_load_dwordx4 v{10+j}, s[48:51], 0 offen lds"],
             [f"s_add_u32 m0, s26, {b + 4096}", f"v_add_u32 v7, 40960, v{10+j}", "buffer_load_dwordx4 v7, s[48:51], 0 offen lds"],
             [f"s_add_u32 m0, s26, {b + 9216}", "s_nop 0", f"buffer_load_dwordx4 v{8+j}, s[52:55], 0 offen lds"],
             [f"s_add_u32 m0, s26, {b + 13312}", "s_nop 0", f"buffer_load_dwordx4 v{8+j}, s[52:55], s27 offen lds"],
             [f"s_mov_b32 m0, {b + 8192}", "v_lshrrev_b32 v7, 3, v1", f"v_add_u32 v7, s{30+2*j}, v7", "v_mul_u32_u24 v7, 1280, v7",
              "v_and_b32 v18, 7, v1", "v_lshlrev_b32 v18, 4, v18", f"s_lshl_b32 s28, s{31+2*j}, 1", "v_add3_u32 v7, v7, v18, s28",
              "v_add_u32 v7, 78080, v7", "buffer_load_dwordx4 v7, s[48:51], 0 offen lds"],
             [f"v_add_u32 v{16+j}, s{31+2*j}, v1", f"v_lshlrev_b32 v{16+j}, 3, v{16+j}", f"buffer_load_dwordx2 {v(12+2*j,2)}, v{16+j}, s[56:59], 0 offen"]]
        for g in G:
            if j == 0: vm.issue(g, "kv")
            else:
                for ln in g: k(ln)
    k.label("kv1")

def kv_compute(k):
    k("v_and_b32 v10, 15, v1"); k("v_lshrrev_b32 v11, 2, v10"); k("s_lshl_b32 s42, s10, 4"); k("v_add_u32 v11, s42, v11")
    k("v_lshlrev_b32 v11, 7, v11"); k("v_and_b32 v10, 3, v10"); k("v_lshlrev_b32 v10, 3, v10"); k("v_lshlrev_b32 v16, 5, v3")
    k("v_add3_u32 v11, v11, v10, v16")
    k("s_mov_b32 s45, 0"); k("s_mov_b32 s46, 0xffff0000"); k(f"s_mov_b32 s47, {KVO}")
    k(".p2align 3")
    k.label("kvloop")
    k("v_mul_u32_u24 v9, 144, v1"); k("s_lshl_b32 s43, s10, 5"); k(f"s_sub_u32 s43, {KVO + 96}, s43"); k("v_add_u32 v9, s43, v9")
    KR = 16; VR = 26; KF = 38
    for i in range(5): k(f"ds_read_b64_tr_b16 {v(KR+2*i,2)}, v11 offset:{512*i}")
    for i in range(4): k(f"ds_read_b64_tr_b16 {v(VR+2*i,2)}, v11 offset:{9216+512*i}")
    k("v_lshlrev_b32 v34, 16, v12"); k("v_and_b32 v35, s46, v12"); k("v_lshlrev_b32 v36, 16, v13"); k("v_and_b32 v37, s46, v13")
    k("s_waitcnt lgkmcnt(4)")
    for i in range(10):
        k(f"v_lshlrev_b32 v{KF+2*i}, 16, v{KR+i}"); k(f"v_and_b32 v{KF+2*i+1}, s46, v{KR+i}")
    k("s_waitcnt lgkmcnt(0)")
    OUTR = 58
    for half in (1, 0):
        for pr in range(4):
            es = (8*half + 7 - 2*pr, 8*half + 6 - 2*pr)
            for j, e in enumerate(es):
                t = 16 + j
                k(f"v_mul_f32 v{t}, v34, v{KF+e+3}"); k(f"v_fmac_f32 v{t}, v35, v{KF+e+2}")
                k(f"v_fmac_f32 v{t}, v36, v{KF+e+1}"); k(f"v_fmac_f32 v{t}, v37, v{KF+e}")
                vr = VR + e//2
                if e % 2 == 0: k(f"v_lshlrev_b32 v{18+j}, 16, v{vr}")
                else: k(f"v_and_b32 v{18+j}, s46, v{vr}")
                k(f"v_mul_f32 v{t}, v{t}, v{18+j}")
            k(f"v_cvt_pk_bf16_f32 v{OUTR+pr}, v16, v17")
        k(f"ds_write_b128 v9, {v(OUTR,4)} offset:{16*(1-half)}")
        OUTR = 20
    k("v_lshrrev_b32 v5, 3, v1"); k("v_add_u32 v5, s42, v5"); k("v_and_b32 v6, 7, v1"); k("v_lshlrev_b32 v6, 4, v6")
    k("v_mul_u32_u24 v7, 144, v5"); k(f"v_add3_u32 v7, v7, v6, s47")
    k("v_add_u32 v5, s31, v5"); k("v_lshlrev_b32 v5, 12, v5"); k("v_add_u32 v5, v5, v6")
    k("s_sub_u32 s43, 1984, s30"); k("s_lshl_b32 s43, s43, 1"); k(f"s_add_u32 s43, s43, {UR}"); k("s_add_u32 s44, s43, 32768")
    k("s_waitcnt lgkmcnt(0)")
    k("s_barrier")
    k("ds_read_b128 v[16:19], v7"); k("ds_read_b128 v[20:23], v7 offset:1152")
    k("s_waitcnt lgkmcnt(1)")
    k("buffer_store_dwordx4 v[16:19], v5, s[12:15], s43 offen sc1")
    k("s_waitcnt lgkmcnt(0)")
    k("buffer_store_dwordx4 v[20:23], v5, s[12:15], s44 offen sc1")
    k("s_add_u32 s45, s45, 1"); k("s_cmp_ge_u32 s45, s29"); k(f"s_cbranch_scc1 {k.lab('kvexit')}")
    k("s_waitcnt vmcnt(4)")
    k("s_barrier")
    k("s_mov_b32 s30, s32"); k("s_mov_b32 s31, s33")
    k("v_mov_b32 v12, v14"); k("v_mov_b32 v13, v15"); k(f"v_add_u32 v11, {KVL}, v11")
    k(f"s_branch {k.lab('kvloop')}")
    k.label("kvexit")

HB = 128; E = 168
def conv_h_issue(k, vm):
    k("s_lshl_b32 s83, s2, 2"); k("s_add_u32 s83, s83, s10")
    k("s_lshl_b32 s35, s83, 12")
    k(f"s_mul_i32 s82, s10, {WREG}"); k(f"s_add_u32 s82, s82, {CONVL}")
    k("v_subrev_u32 v5, 32, v4"); k("v_add_u32 v6, 16, v5")
    k("s_lshl_b32 s28, s83, 1"); k("v_mov_b32 v19, s28")
    k("s_add_u32 s76, s76, s35"); k("s_addc_u32 s77, s77, 0")
    k("s_mov_b32 s78, 4096"); k("s_mov_b32 s79, 0x20000")
    for q in range(5):
        vm.issue([f"buffer_load_dwordx4 {v(HB+8*q,4)}, v5, s[76:79], 0 offen"], ("h", q))
        vm.issue([f"buffer_load_dword v{HB+8*q+4}, v6, s[76:79], 0 offen"] + (["v_add_u32 v5, 1024, v5", "v_add_u32 v6, 1024, v6"] if q < 4 else []), ("h", q))
    k("v_subrev_u32 v5, 32, v4")
    vm.issue(["s_add_u32 m0, s82, 4608", "s_nop 0", "buffer_load_dwordx4 v5, s[76:79], 0 offen lds"], "h0")
    k("s_add_u32 m0, s82, %d" % (4608 + 1024)); k("v_add_u32 v5, 1024, v5")
    for q in range(3): vm.issue([f"buffer_load_dwordx4 v5, s[76:79], 0 offen offset:{1024*q} lds"], "h0")
    k("s_add_u32 m0, s82, %d" % (4608 + 4096)); k("v_add_u32 v5, 3072, v5")
    vm.issue(["s_mov_b64 exec, 15", "buffer_load_dwordx4 v5, s[76:79], 0 offen lds", "s_mov_b64 exec, -1"], "h0")
    k("s_mov_b32 s44, s80"); k("s_mov_b32 s45, s81"); k(f"s_mov_b32 s46, {D*2}"); k("s_mov_b32 s47, 0x20000")
    vm.issue(["buffer_load_ushort v176, v19, s[44:47], 0 offen"], "D")

def conv_h_copy1(k):
    k("s_add_u32 s42, s82, %d" % (4608 + CPY)); k("v_add_u32 v5, s42, v4")
    for q in range(5):
        x = HB + 8*q
        if q == 4: k("s_mov_b64 exec, 15")
        for i in range(4): k(f"v_alignbit_b32 v{E+4*(q%2)+i}, v{x+i+1}, v{x+i}, 16")
        k(f"ds_write_b128 v5, {v(E+4*(q%2),4)} offset:{1024*q}")
    k("s_mov_b64 exec, -1")

def conv_main(k, prefetch_items, wloop):
    vm = VM(k)
    k(f"s_lshl_b32 s35, s83, 12"); k(f"s_add_u32 s36, s35, {UR}")
    k("s_mov_b32 m0, s82"); k("s_nop 0")
    for j in range(4): vm.issue([f"buffer_load_dwordx4 v4, s[12:15], s36 offen offset:{1024*j} sc1 lds"], "ur")
    k("v_mov_b32 v8, 0"); k("v_mov_b32 v9, 0"); k("v_lshlrev_b32 v7, 3, v1"); k("v_add_u32 v7, s82, v7")
    k("ds_write_b64 v7, v[8:9] offset:4096")
    k("v_add_u32 v13, 1, v2"); k("v_and_b32 v14, 1, v13"); k(f"v_mul_u32_u24 v12, {CPY}, v14")
    k("v_sub_u32 v13, v13, v14"); k("v_lshlrev_b32 v13, 1, v13"); k("v_lshl_add_u32 v13, v3, 4, v13")
    k("s_add_u32 s38, s82, 4608"); k("v_add3_u32 v12, v12, v13, s38")
    for j in range(1, 4): k(f"v_add_u32 v{103+j}, {1024*j}, v12")
    k("v_lshlrev_b32 v13, 5, v2"); k("v_lshlrev_b32 v14, 4, v3"); k("v_sub_u32 v13, v14, v13")
    k("s_add_u32 s39, s82, 480"); k("v_add_u32 v13, s39, v13")
    AP = 100
    k("v_sub_u32 v16, 15, v2"); k("v_lshrrev_b32 v17, 3, v16"); k("v_and_b32 v16, 7, v16")
    k("v_and_b32 v18, 1, v16"); k("v_lshlrev_b32 v18, 4, v18"); k("v_lshlrev_b32 v18, v18, v176")
    k("v_cmp_eq_u32 vcc, v17, v3"); k("v_cndmask_b32 v18, 0, v18, vcc"); k("v_lshrrev_b32 v16, 1, v16")
    for r in range(4):
        k(f"v_cmp_eq_u32 vcc, {r}, v16"); k(f"v_cndmask_b32 v{AP+r}, 0, v18, vcc")
    ACC = 16; A0 = 48; A1 = 112; B0 = 144; B1 = 176
    AR = (12, 104, 105, 106)
    def loads(A, B, rho):
        L = []
        for d in range(8): L.append(f"ds_read_b128 {v(B+4*d,4)}, v13 offset:{64*rho + 512*(7-d)}")
        for m in range(8):
            o = 128*(m % 2) + 16*rho
            L.append(f"ds_read2_b32 {v(A+4*m,2)}, v{AR[m//2]} offset0:{o} offset1:{o+1}")
            L.append(f"ds_read2_b32 {v(A+4*m+2,2)}, v{AR[m//2]} offset0:{o+2} offset1:{o+3}")
        return L
    pq = TQ(vm, prefetch_items)
    vm.wait(lambda t: t == "ur", " lgkmcnt(0)")
    k.stamp("ur")
    for ln in loads(A0, B0, 0): k(ln)
    k("s_waitcnt lgkmcnt(0)")
    for t in range(8): k(f"v_mfma_f32_16x16x32_bf16 {v(ACC+4*t,4)}, {v(AP,4)}, {v(B0+4*t,4)}, 0")
    pairs = [(m, d) for m in range(8) for d in range(8 - m)]
    for rho in range(8):
        A, B = (A0, B0) if rho % 2 == 0 else (A1, B1)
        An, Bn = (A1, B1) if rho % 2 == 0 else (A0, B0)
        nxt = loads(An, Bn, rho + 1) if rho < 7 else []
        if wloop:
            if rho == WSTART - 1: vm.issue(cpa_sample(), "cpa")
            if rho == WSTART:
                pq.flush(); vm.wait(lambda t: t == "cpa"); cpa_check(k); pq.items = list(wloop)
        elif rho == 7: pq.flush(); vm.issue(cpa_sample(), "cpa")
        for idx, (m, d) in enumerate(pairs):
            k(f"v_mfma_f32_16x16x32_bf16 {v(ACC+4*(m+d),4)}, {v(A+4*m,4)}, {v(B+4*d,4)}, {v(ACC+4*(m+d),4)}")
            if idx < len(nxt): k(nxt[idx])
            if rho >= PFSTART and idx % (PFGAP if (rho < WSTART or not wloop) else WGAP) == 1: pq.pop()
        k("s_waitcnt lgkmcnt(0)")
    pq.flush()
    k.stamp("loop")
    k("v_lshlrev_b32 v14, 5, v2"); k("v_lshl_add_u32 v14, v3, 3, v14"); k("v_add_u32 v14, s82, v14")
    for t in range(8):
        k(f"v_cvt_pk_bf16_f32 v{A0+2*t}, v{ACC+4*t}, v{ACC+4*t+1}"); k(f"v_cvt_pk_bf16_f32 v{A0+2*t+1}, v{ACC+4*t+2}, v{ACC+4*t+3}")
        k(f"ds_write_b64 v14, {v(A0+2*t,2)} offset:{512*t}")
    k("v_add_u32 v15, s82, v4")
    k("s_waitcnt lgkmcnt(0)")
    for j in range(4): k(f"ds_read_b128 {v(B0+4*j,4)}, v15 offset:{1024*j}")
    k(f"s_add_u32 s36, s35, {YT}")
    for j in range(4):
        k(f"s_waitcnt lgkmcnt({3-j})")
        vm.issue([f"buffer_store_dwordx4 {v(B0+4*j,4)}, v4, s[12:15], s36 offen offset:{1024*j} sc1"], "S")
    return vm, pq

def wtask_issue(k, tag, ldsbase):
    k("s_mov_b32 s51, 0x20000")
    k("s_lshl_b32 s34, s10, 14"); k(f"s_add_u32 s34, s34, {ldsbase}")
    k("v_lshrrev_b32 v5, 3, v1"); k("v_and_b32 v6, 7, v1"); k("v_lshlrev_b32 v6, 4, v6")
    k("s_lshl_b32 s47, s41, 5"); k("v_add_u32 v5, s47, v5"); k("v_mul_lo_u32 v5, v5, s40")
    k("s_lshl_b32 s47, s42, 7"); k("v_add3_u32 v5, v5, v6, s47")
    k("s_lshl_b32 s52, s40, 3"); k("s_lshl_b32 s53, s43, 2"); k("s_mov_b32 s54, s34")
    k.label("wld" + tag)
    k("s_mov_b32 m0, s54"); k("s_sub_u32 s53, s53, 1")
    k("buffer_load_dwordx4 v5, s[48:51], 0 offen lds")
    k("v_add_u32 v5, s52, v5"); k("s_add_u32 s54, s54, 1024")
    k("s_cmp_lg_u32 s53, 0"); k(f"s_cbranch_scc1 {k.lab('wld' + tag)}")

def wtask_finish(k, tag, nxt):
    k("v_lshlrev_b32 v5, 10, v3"); k("v_bfe_u32 v6, v1, 2, 2"); k("v_lshl_add_u32 v5, v6, 7, v5")
    k("v_and_b32 v6, 3, v1"); k("v_lshl_add_u32 v5, v6, 4, v5"); k("v_add_u32 v5, s34, v5")
    k("s_lshl_b32 s47, s42, 2"); k("s_mul_i32 s47, s47, s45"); k("s_add_u32 s47, s47, s41"); k("s_lshl_b32 s47, s47, 10")
    k("s_add_u32 s47, s47, s44"); k("s_lshl_b32 s55, s45, 10")
    for r in range(4): k(f"v_mov_b32 v{24+r}, 0")
    k("s_mov_b32 s52, 0x3f803f80"); k("s_mov_b32 s53, 0")
    k.stamp("wiss" + tag)
    k("s_waitcnt vmcnt(0)")
    k.stamp("wld" + tag)
    k.label("wtr" + tag)
    for t in range(4):
        o = 64*(t//2) + 8*(t % 2)
        k(f"ds_read_b64_tr_b16 {v(8+4*t,2)}, v5 offset:{o}"); k(f"ds_read_b64_tr_b16 {v(10+4*t,2)}, v5 offset:{o+512}")
    k("v_add_u32 v5, 4096, v5"); k("s_add_u32 s53, s53, 1")
    k("s_mov_b32 s54, s47")
    for t in range(4):
        k(f"s_waitcnt lgkmcnt({6 - 2*t})")
        k(f"buffer_store_dwordx4 {v(8+4*t,4)}, v4, s[12:15], s54 offen sc1")
        if t < 3: k("s_add_u32 s54, s54, s55")
    for r in range(4):
        for t in range(4): k(f"v_dot2_f32_bf16 v{24+t}, v{8+4*t+r}, s52, v{24+t}")
    k("s_add_u32 s47, s47, 1024")
    k("s_cmp_lt_u32 s53, s43"); k(f"s_cbranch_scc1 {k.lab('wtr' + tag)}")
    k("s_cmp_ge_u32 s46, 5"); k(f"s_cbranch_scc1 {nxt}")
    for t in range(4): k(f"v_mov_b32 v{28+t}, v{24+t}")
    for t in range(4): k(f"v_permlane32_swap_b32 v{24+t}, v{28+t}")
    for t in range(4): k(f"v_add_f32 v{24+t}, v{24+t}, v{28+t}")
    for t in range(4): k(f"v_mov_b32 v{28+t}, v{24+t}")
    for t in range(4): k(f"v_permlane16_swap_b32 v{24+t}, v{28+t}")
    for t in range(4): k(f"v_add_f32 v{24+t}, v{24+t}, v{28+t}")
    k(f"s_mul_i32 s47, s46, {F*4}"); k("s_lshl_b32 s52, s42, 8"); k("s_add_u32 s47, s47, s52"); k(f"s_add_u32 s47, s47, {CS3}")
    k("v_lshlrev_b32 v6, 2, v2")
    k("s_mov_b64 exec, 0xffff")
    for t in range(4): k(f"buffer_store_dword v{24+t}, v6, s[12:15], s47 offen offset:{64*t} sc1")
    k("s_mov_b64 exec, -1")
    k(f"s_branch {nxt}")

def w1_params(k):
    k("s_sub_u32 s35, s2, 242"); k("s_lshl_b32 s35, s35, 2"); k("s_add_u32 s35, s35, s10")
    k("s_mov_b32 s48, s76"); k("s_mov_b32 s49, s77")
    k(f"s_mov_b32 s50, {D*D*2}"); k("s_mov_b32 s40, 1280"); k(f"s_mov_b32 s44, {W1T}"); k("s_mov_b32 s45, 20"); k("s_mov_b32 s46, 5")
    k("s_mul_hi_u32 s41, s35, 0x1999999a"); k("s_mul_i32 s42, s41, 10"); k("s_sub_u32 s42, s35, s42"); k("s_mov_b32 s43, 4"); k("s_lshl_b32 s41, s41, 2")

def prep_part(k, pre_items_setup):
    if QWARM:
        k("s_sub_u32 s33, s2, 160"); k("s_cmp_ge_u32 s33, 64"); k(f"s_cbranch_scc1 {k.lab('noq')}")
        k("s_cmp_eq_u32 s10, 0"); k(f"s_cbranch_scc1 {k.lab('noq')}")
        k("s_mul_i32 s33, s33, 3"); k("s_add_u32 s33, s33, s10"); k("s_sub_u32 s33, s33, 1"); k("s_mul_i32 s33, s33, 14336")
        for i in range(14):
            k(f"buffer_load_dwordx4 v[32:35], v4, s[16:19], s33 offen offset:{1024*(i%4)}")
            if i % 4 == 3: k("s_add_u32 s33, s33, 4096")
    k.label("noq")
    k.label("roundB")
    qitems, witems = pre_items_setup()
    k("s_sub_u32 s33, s2, 160"); k("s_lshl_b32 s33, s33, 2"); k("s_add_u32 s33, s33, s10")
    k("s_mov_b32 s43, 0")
    k("s_cmp_ge_u32 s33, 325"); k(f"s_cbranch_scc1 {k.lab('noB')}")
    k("s_mov_b32 s46, 5"); k("s_mov_b32 s43, 4")
    k("s_cmp_ge_u32 s33, 50"); k(f"s_cbranch_scc1 {k.lab('pw3')}")
    k("s_mov_b32 s48, s78"); k("s_mov_b32 s49, s79"); k(f"s_mov_b32 s50, {D*D*2}"); k("s_mov_b32 s40, 1280"); k(f"s_mov_b32 s44, {W2T}"); k("s_mov_b32 s45, 20")
    k("s_mul_hi_u32 s41, s33, 0x1999999a"); k("s_mul_i32 s42, s41, 10"); k("s_sub_u32 s42, s33, s42"); k("s_lshl_b32 s41, s41, 2")
    k(f"s_branch {k.lab('wtB')}")
    k.label("pw3")
    k("s_cmp_ge_u32 s33, 185"); k(f"s_cbranch_scc1 {k.lab('pw4')}")
    k("s_sub_u32 s35, s33, 50")
    k("s_mov_b32 s48, s80"); k("s_mov_b32 s49, s81"); k(f"s_mov_b32 s50, {D*F*2}"); k(f"s_mov_b32 s40, {F*2}"); k(f"s_mov_b32 s44, {W3T}"); k("s_mov_b32 s45, 20")
    k("s_mul_hi_u32 s46, s35, 0x97b425f"); k("s_mul_i32 s42, s46, 27"); k("s_sub_u32 s42, s35, s42"); k("s_lshl_b32 s41, s46, 2")
    k(f"s_branch {k.lab('wtB')}")
    k.label("pw4")
    k("s_sub_u32 s35, s33, 185")
    k("s_mov_b32 s48, s82"); k("s_mov_b32 s49, s83"); k(f"s_mov_b32 s50, {D*F*2}"); k("s_mov_b32 s40, 1280"); k(f"s_mov_b32 s44, {W4T}"); k("s_mov_b32 s45, 54")
    k("s_mul_hi_u32 s41, s35, 0x1999999a"); k("s_mul_i32 s42, s41, 10"); k("s_sub_u32 s42, s35, s42")
    k("s_cmp_eq_u32 s41, 13"); k("s_cselect_b32 s43, 2, 4"); k("s_lshl_b32 s41, s41, 2")
    k.label("wtB")
    wtask_issue(k, "B", 45056)
    k.label("noB")
    for g, t in qitems:
        for ln in g: k(ln)
    for ln in cpa_sample(): k(ln)
    doneB = k.lab("doneB")
    k("s_cmp_eq_u32 s43, 0"); k(f"s_cbranch_scc1 {doneB}")
    wtask_finish(k, "B", doneB)
    k.L.append(doneB + ":")
    k.stamp("doneB")
    signal(k, None, None, [f"s_mov_b32 s{SG}, {CPB}"], 96, [f"s_mov_b32 s{SG}, {FALL + 9*128}"])
    p2.p2_qstats(k, lambda: None)
    cpa_check(k)
    return witems

def mega():
    pc.SC = " sc1"; pc.SS = " sc1"
    k = Kern("block_kernel", vgpr=256, agpr=256, sgpr=96)
    k.only = ONLY
    k("s_cmp_ge_u32 s2, 256"); k(f"s_cbranch_scc1 {k.lab('end')}")
    k.stamp_begin()
    k(f"s_load_dwordx8 s[36:43], s[0:1], {A_K}")
    k(f"s_load_dwordx2 s[44:45], s[0:1], {A_D}")
    k(f"s_load_dwordx8 s[76:83], s[0:1], {B_W1}")
    k(f"s_load_dwordx2 s[72:73], s[0:1], {DBG}")
    prologue(k)
    pre_items_setup = lambda: (p2.p2_pre_setup(k), p2.p2_pre_items(k))[1]
    def common_setup():
        p2.p2_setup(k); p3.p35_setup(k, 26)
        k.srd(12, 4, WS_END); k.srd(16, 8, MB); k.srd(20, 6, MB)
        init_srd(k)
    k("s_cmp_lt_u32 s2, 242"); k(f"s_cbranch_scc1 {k.lab('kvwg')}")
    k("s_waitcnt lgkmcnt(0)")
    common_setup()
    k("s_cmp_eq_u32 s2, 255"); k(f"s_cbranch_scc1 {k.lab('zero')}")
    k(f"s_branch {k.lab('w1only')}")
    k.label("kvwg")
    vm = VM(k)
    kv_issue(k, vm)
    common_setup()
    k("s_cmp_ge_u32 s2, 160"); k(f"s_cbranch_scc1 {k.lab('keepw')}")
    k("s_mov_b32 s76, s42"); k("s_mov_b32 s77, s43"); k("s_mov_b32 s80, s44"); k("s_mov_b32 s81, s45")
    k.label("keepw")
    vm.issue(code_prefetch_group(k, k.lab("code0"), k.lab("end"), "z", 180, sreg=26), "pf")
    k.label("code0")
    k.stamp("kvissued")
    k("s_cmp_lt_u32 s29, 2"); k(f"s_cbranch_scc1 {k.lab('kvw1')}")
    k("s_waitcnt vmcnt(7)")
    k(f"s_branch {k.lab('kvw2')}")
    k.label("kvw1")
    vm.wait(lambda t: t == "kv")
    k.label("kvw2")
    k("s_barrier")
    k.stamp("kvin")
    k("v_mov_b32 v178, 0")
    k("buffer_load_dword v177, v178, s[72:75], 0 offen sc1")
    vmh = VM(k)
    k("s_cmp_ge_u32 s2, 160"); k(f"s_cbranch_scc1 {k.lab('noh')}")
    conv_h_issue(k, vmh)
    k.label("noh")
    kv_compute(k)
    k.stamp("kvdone")
    k("s_waitcnt vmcnt(0)")
    k.stamp("kvdrain")
    ok = k.lab("initok")
    k("v_cmp_eq_u32 vcc, 0, v177"); k(f"s_cbranch_vccz {ok}")
    wait_init(k)
    k.L.append(ok + ":")
    k("s_barrier")
    tile_cnt = lambda add: [f"s_add_u32 s84, s2, {add}", "s_mul_hi_u32 s85, s84, 0x1999999a", "s_mul_i32 s28, s85, 10", "s_sub_u32 s84, s84, s28",
                            "s_lshl_b32 s84, s84, 2", "s_and_b32 s85, s85, 3", "s_add_u32 s84, s84, s85", "s_lshl_b32 s84, s84, 7", f"s_add_u32 s84, s84, {C0}"]
    atomic_signal(k, tile_cnt(0), k.lab("sigc0"), None)
    k("s_cmp_lt_u32 s29, 2"); k(f"s_cbranch_scc1 {k.lab('sigc0b')}")
    atomic_signal(k, tile_cnt(82), k.lab("sigc0c"), None)
    k.label("sigc0b")
    k.stamp("kvsig")
    k("s_cmp_ge_u32 s2, 160"); k(f"s_cbranch_scc1 {k.lab('prep')}")
    conv_h_copy1(k)
    qitems, witems = pre_items_setup()
    if QEARLY:
        for g, t in qitems:
            for ln in g: k(ln)
        qitems = []
    wait_counters(k, None, ["s_lshr_b32 s84, s2, 4", "s_lshl_b32 s84, s84, 9", f"s_add_u32 s84, s84, {C0}", "v_and_b32 v5, 3, v1", "v_lshlrev_b32 v5, 7, v5", "v_add_u32 v5, s84, v5"],
                  ["v_mov_b32 v7, 8"], False)
    k.stamp("s0")
    vm, pq = conv_main(k, qitems, witems[:NWLOOP])
    k.stamp("convdone")
    lab = k.lab("sigc1")
    p2.p2_qstats(k, (lambda: None) if QEARLY else (lambda: vm.wait(lambda t: t == "q")))
    vm.wait(lambda t: t == "S"); k("s_barrier")
    cpa_check(k)
    atomic_signal(k, own_shard(C1), lab, 20, [f"s_and_b32 s{SG}, s2, 7", f"s_lshl_b32 s{SG}, s{SG}, 7", f"s_add_u32 s{SG}, s{SG}, {FALL}"])
    k(f"s_branch {k.lab('wconv') if NWLOOP else k.lab('wfirst')}")
    k.label("w1only")
    w1_params(k)
    doneA = k.lab("doneA")
    k("s_cmp_ge_u32 s35, 50"); k(f"s_cbranch_scc1 {doneA}")
    wtask_issue(k, "A", 0)
    wtask_finish(k, "A", doneA)
    k.L.append(doneA + ":")
    k.stamp("doneA")
    signal(k, None, None, [f"s_mov_b32 s{SG}, {CPA}"], 13, [f"s_mov_b32 s{SG}, {FALL + 8*128}"], first=True)
    k(f"s_branch {k.lab('prep')}")
    k.label("zero")
    k("v_mov_b32 v8, 0"); k("v_mov_b32 v9, 0"); k("v_mov_b32 v10, 0"); k("v_mov_b32 v11, 0")
    k("v_lshlrev_b32 v5, 4, v0"); k(f"s_mov_b32 s35, {CNT}")
    for j in range(8):
        k("buffer_store_dwordx4 v[8:11], v5, s[12:15], s35 offen sc1"); k("s_add_u32 s35, s35, 4096")
    k("s_waitcnt vmcnt(0)")
    k("s_barrier")
    k("v_mov_b32 v5, 0"); k("v_mov_b32 v6, 1")
    k("s_cmp_lg_u32 s10, 0"); k(f"s_cbranch_scc1 {k.lab('prep')}")
    k("s_mov_b64 exec, 1")
    k("buffer_store_dword v6, v5, s[72:75], 0 offen sc1")
    k("s_mov_b64 exec, -1")
    k.label("prep")
    witems = prep_part(k, pre_items_setup)
    k.label("wfirst")
    k.stamp("cpa")
    for g, t in witems[:NWLOOP]:
        for ln in g: k(ln)
    k.label("wconv")
    for g, t in witems[NWLOOP:max(NWA, NWLOOP)]:
        for ln in g: k(ln)
    wait_counters(k, None, ["v_min_u32 v5, 9, v1", "v_lshlrev_b32 v5, 7, v5", f"v_add_u32 v5, {FALL}, v5"], ["v_mov_b32 v7, 1"], False)
    k.stamp("s1")
    p3.p3_pre_setup(k)
    early = [(g, "E") for g in p3.p3_pre_early(k)]
    vm, nq = p2.p2_main(k, witems[max(NWA, NWLOOP):], [(code_prefetch_group(k, k.lab('ph3'), k.lab('ph4'), 'a', 136), "pf")], p3.p3_pre_late, early)
    k.stamp("p2done")
    signal(k, vm, nq, [f"s_lshl_b32 s{SG}, s{p2.TT}, 7", f"s_add_u32 s{SG}, s{SG}, {C2}"], None)
    k.label("ph3")
    wait_counters(k, nq, [f"s_lshl_b32 s{SG}, s{p3.T64}, 1", f"s_sub_u32 s{SG}, s{SG}, 1", "v_and_b32 v5, 3, v1", f"v_add_u32 v5, s{SG}, v5",
                          "v_and_b32 v5, 63, v5", "v_lshlrev_b32 v5, 7, v5", f"v_add_u32 v5, {C2}, v5"], ["v_mov_b32 v7, 4"], True, mid=MID[0])
    k.stamp("s2")
    p4.p4_setup(k); p4.p4_pre_setup(k)
    early = [(g, "E") for g in p4.p4_pre_early(k)]
    vm, nq = p3.p3_main(k, [(code_prefetch_group(k, k.lab('ph4'), k.lab('ph5'), 'b', 184), "pf")], p4.p4_pre_late, early)
    k.stamp("p3done")
    signal(k, vm, nq, [f"s_lshr_b32 s{SG}, s{p3.T64}, 1", f"s_lshl_b32 s{SG}, s{SG}, 2", f"s_lshr_b32 s{SG2}, s{p3.FC}, 1", f"s_add_u32 s{SG}, s{SG}, s{SG2}",
                          f"s_lshl_b32 s{SG}, s{SG}, 7", f"s_add_u32 s{SG}, s{SG}, {C3}"], None)
    k.label("ph4")
    wait_counters(k, nq, [f"s_lshl_b32 s{SG}, s{p4.T128}, 9", f"s_add_u32 s{SG}, s{SG}, {C3}", "v_and_b32 v5, 3, v1", "v_lshlrev_b32 v5, 7, v5", f"v_add_u32 v5, s{SG}, v5"], ["v_mov_b32 v7, 4"],
                  True, p4.p4_cs_table, mid=MID[1])
    k.stamp("s3")
    p5.p5_pre_setup(k)
    early = [(g, "E") for g in p5.p5_pre_early(k)]
    vm, nq = p4.p4_main(k, [(code_prefetch_group(k, k.lab('ph5'), k.lab('end'), 'c', 88), "pf")], p5.p5_pre_late, early,
                        follow=[(g, "F") for g in p5.p5_pre_late(k)[:NFOLLOW]], nfollow=NFOLLOW)
    k.stamp("p4done")
    signal(k, vm, nq, [f"s_lshl_b32 s{SG}, s{p4.T128}, 2", f"s_lshr_b32 s{SG2}, s{p4.COL}, 2", f"s_add_u32 s{SG}, s{SG}, s{SG2}",
                          f"s_lshl_b32 s{SG}, s{SG}, 7", f"s_add_u32 s{SG}, s{SG}, {C4}"], None)
    k.label("ph5")
    wait_counters(k, nq, [f"s_lshr_b32 s{SG}, s{p3.T64}, 1", f"s_lshl_b32 s{SG}, s{SG}, 9", f"s_add_u32 s{SG}, s{SG}, {C4}", "v_and_b32 v5, 3, v1", "v_lshlrev_b32 v5, 7, v5", f"v_add_u32 v5, s{SG}, v5"],
                  ["v_mov_b32 v7, 4"], False, mid=MID[2])
    k.stamp("s4")
    p5.p5_main(k)
    k.stamp_flush(4, STAMP)
    k.label("end"); k("s_endpgm")
    pc.SC = ""; pc.SS = ""
    return k
```

```python
from ph_common import *
import ph_common as pc
import p2, p3, p4, p5

LDS = p4.P4_LDS
C2, C3, C4 = CNT, CNT + 64*128, CNT + 128*128
C0, C1, CPA, CPB = CNT + 192*128, CNT + 232*128, CNT + 240*128, CNT + 241*128
FLG = None
FALL = CNT + 242*128
C1D = CNT + 256*128
S1DIRECT = False
SPIN_LIMIT = 200000
SG, SG2 = 84, 85
NFOLLOW = 0
WGAP = 6
QEARLY = True
QWARM = False
WSTART = 2
NWLOOP = 36
NWA = 48
PFSTART = 1
PFGAP = 6
DRAIN_LOADS = 10
MID = (99, 99, 16)
ONLY = None
CPY = 4160
WREG = 4608 + 2*CPY
CONVL = 92160
KVL = 17408
KVO = 2*KVL

def atomic_signal(k, offset_code, lab, target, flag_code=None, first=False):
    if target is None:
        k("s_cmp_lg_u32 s10, 0"); k(f"s_cbranch_scc1 {lab}")
        if first: wait_init(k)
        for ln in offset_code: k(ln)
        k("v_mov_b32 v5, 0"); k("v_mov_b32 v6, 1")
        k("s_mov_b64 exec, 1")
        k(f"buffer_atomic_add v6, v5, s[12:15], s{SG} offen sc1")
        k("s_mov_b64 exec, -1")
        k.L.append(lab + ":")
        return
    k("s_cmp_lg_u32 s10, 0"); k(f"s_cbranch_scc1 {lab}")
    if first: wait_init(k)
    for ln in offset_code: k(ln)
    k("v_mov_b32 v5, 0"); k("v_mov_b32 v6, 1")
    k("s_mov_b64 exec, 1")
    k(f"buffer_atomic_add v6, v5, s[12:15], s{SG} offen sc0 sc1")
    for ln in (flag_code or [f"s_add_u32 s{SG}, s{SG}, {FLG}"]): k(ln)
    k("s_waitcnt vmcnt(0)")
    k.stamp("atom%d" % target + lab[-2:])
    k(f"v_cmp_eq_u32 vcc, {target - 1}, v6")
    k("v_mov_b32 v6, 1")
    k("s_and_b64 exec, exec, vcc")
    k(f"s_cbranch_execz {lab}_x")
    k(f"buffer_store_dword v6, v5, s[12:15], s{SG} offen sc1")
    k.L.append(lab + "_x:")
    k("s_mov_b64 exec, -1")
    k.L.append(lab + ":")

def signal(k, vm, nq, offset_code, target, flag_code=None, first=False):
    lab = k.lab(k.uniq("sig"))
    if nq: nq.pop(DRAIN_LOADS)
    if vm: vm.wait(lambda t: t == "S")
    else: k("s_waitcnt vmcnt(0)")
    k.stamp("drained%d" % k._n)
    if first:
        l2 = k.lab(k.uniq("fi"))
        k("s_cmp_lg_u32 s10, 0"); k(f"s_cbranch_scc1 {l2}")
        wait_init(k)
        k.L.append(l2 + ":")
    k("s_barrier")
    atomic_signal(k, offset_code, lab, target, flag_code, False)

def poll(k, addr_code, target_reg_code, va=5, vd=6, vt=7):
    lab = k.lab(k.uniq("pl")); loop = lab + "_l"
    for ln in addr_code + target_reg_code: k(ln)
    k(f"s_mov_b32 s{SG2}, 0")
    k.L.append(loop + ":")
    k(f"buffer_load_dword v{vd}, v{va}, s[12:15], 0 offen sc1")
    k(f"s_add_u32 s{SG2}, s{SG2}, 1")
    k("s_waitcnt vmcnt(0)")
    k(f"v_cmp_gt_u32 vcc, v{vt}, v{vd}")
    k(f"s_cmp_gt_u32 s{SG2}, {SPIN_LIMIT}"); k(f"s_cbranch_scc1 {lab}")
    k(f"s_cbranch_vccnz {loop}")
    k.L.append(lab + ":")

def wait_counters(k, nq, addr_code, target_code, all_waves_drain, before_barrier=None, mid=0):
    lab = k.lab(k.uniq("wt"))
    if nq: nq.pop(mid)
    k("s_cmp_lg_u32 s10, 0"); k(f"s_cbranch_scc1 {lab}")
    k.stamp("prepoll" + lab[-2:])
    poll(k, addr_code, target_code)
    k.stamp("polled" + lab[-2:])
    k.L.append(lab + ":")
    if nq: nq.flush()
    if all_waves_drain: k("s_waitcnt vmcnt(0)")
    if before_barrier: before_barrier(k)
    k("s_barrier")

def cpa_sample(): return [f"v_mov_b32 v220, {FALL + 8*128}", "buffer_load_dword v219, v220, s[12:15], 0 offen sc1"]
def cpa_check(k):
    ok = k.lab(k.uniq("cpaok"))
    k("v_cmp_eq_u32 vcc, 0, v219"); k(f"s_cbranch_vccz {ok}")
    poll(k, [f"v_mov_b32 v5, {FALL + 8*128}"], ["v_mov_b32 v7, 1"])
    k.L.append(ok + ":")

def shard_addr(base): return ["v_and_b32 v5, 7, v1", "v_lshlrev_b32 v5, 7, v5", f"v_add_u32 v5, {base}, v5"]
def own_shard(base): return [f"s_and_b32 s{SG}, s2, 7", f"s_lshl_b32 s{SG}, s{SG}, 7", f"s_add_u32 s{SG}, s{SG}, {base}"]

def init_srd(k):
    k("s_mov_b32 s74, 256"); k("s_mov_b32 s75, 0x20000")

def wait_init(k):
    lab = k.lab(k.uniq("in")); loop = lab + "_l"
    k("v_mov_b32 v5, 0"); k(f"s_mov_b32 s{SG2}, 0")
    k.L.append(loop + ":")
    k("buffer_load_dword v6, v5, s[72:75], 0 offen sc1")
    k(f"s_add_u32 s{SG2}, s{SG2}, 1")
    k("s_waitcnt vmcnt(0)")
    k("v_cmp_eq_u32 vcc, 0, v6")
    k(f"s_cmp_gt_u32 s{SG2}, {SPIN_LIMIT}"); k(f"s_cbranch_scc1 {lab}")
    k(f"s_cbranch_vccnz {loop}")
    k.L.append(lab + ":")

def vm_after(vm):
    return vm

def kv_issue(k, vm):
    k("s_sub_u32 s29, s2, 160"); k("s_cmp_lt_u32 s29, 78"); k("s_cselect_b32 s29, 2, 1")
    for j in range(2):
        k(f"s_add_u32 s26, s2, {82*j}")
        k("s_mul_hi_u32 s27, s26, 0x1999999a"); k("s_mul_i32 s28, s27, 10"); k("s_sub_u32 s28, s26, s28")
        k(f"s_lshl_b32 s{30+2*j}, s27, 6"); k(f"s_lshl_b32 s{31+2*j}, s28, 6")
    k("v_lshrrev_b32 v5, 3, v0"); k("v_and_b32 v6, 7, v0"); k("v_lshlrev_b32 v6, 4, v6")
    k("s_waitcnt lgkmcnt(0)")
    k.srd(48, 36, MB); k.srd(52, 38, MB); k.srd(56, 40, D*8)
    k("s_lshl_b32 s26, s10, 10"); k("s_mov_b32 s27, 40960")
    for j in range(2):
        b = j*KVL
        if j == 1: k("s_cmp_lt_u32 s29, 2"); k(f"s_cbranch_scc1 {k.lab('kv1')}")
        k(f"v_add_u32 v{8+j}, s{30+2*j}, v5"); k(f"v_mul_u32_u24 v{8+j}, 1280, v{8+j}")
        k(f"s_lshl_b32 s28, s{31+2*j}, 1"); k(f"v_add3_u32 v{8+j}, v{8+j}, v6, s28")
        k(f"v_subrev_u32 v{10+j}, 3840, v{8+j}")
        G = [[f"s_add_u32 m0, s26, {b}", "s_nop 0", f"buffer_load_dwordx4 v{10+j}, s[48:51], 0 offen lds"],
             [f"s_add_u32 m0, s26, {b + 4096}", f"v_add_u32 v7, 40960, v{10+j}", "buffer_load_dwordx4 v7, s[48:51], 0 offen lds"],
             [f"s_add_u32 m0, s26, {b + 9216}", "s_nop 0", f"buffer_load_dwordx4 v{8+j}, s[52:55], 0 offen lds"],
             [f"s_add_u32 m0, s26, {b + 13312}", "s_nop 0", f"buffer_load_dwordx4 v{8+j}, s[52:55], s27 offen lds"],
             [f"s_mov_b32 m0, {b + 8192}", "v_lshrrev_b32 v7, 3, v1", f"v_add_u32 v7, s{30+2*j}, v7", "v_mul_u32_u24 v7, 1280, v7",
              "v_and_b32 v18, 7, v1", "v_lshlrev_b32 v18, 4, v18", f"s_lshl_b32 s28, s{31+2*j}, 1", "v_add3_u32 v7, v7, v18, s28",
              "v_add_u32 v7, 78080, v7", "buffer_load_dwordx4 v7, s[48:51], 0 offen lds"],
             [f"v_add_u32 v{16+j}, s{31+2*j}, v1", f"v_lshlrev_b32 v{16+j}, 3, v{16+j}", f"buffer_load_dwordx2 {v(12+2*j,2)}, v{16+j}, s[56:59], 0 offen"]]
        for g in G:
            if j == 0: vm.issue(g, "kv")
            else:
                for ln in g: k(ln)
    k.label("kv1")

def kv_compute(k):
    k("v_and_b32 v10, 15, v1"); k("v_lshrrev_b32 v11, 2, v10"); k("s_lshl_b32 s42, s10, 4"); k("v_add_u32 v11, s42, v11")
    k("v_lshlrev_b32 v11, 7, v11"); k("v_and_b32 v10, 3, v10"); k("v_lshlrev_b32 v10, 3, v10"); k("v_lshlrev_b32 v16, 5, v3")
    k("v_add3_u32 v11, v11, v10, v16")
    k("s_mov_b32 s45, 0"); k("s_mov_b32 s46, 0xffff0000"); k(f"s_mov_b32 s47, {KVO}")
    k(".p2align 3")
    k.label("kvloop")
    k("v_mul_u32_u24 v9, 144, v1"); k("s_lshl_b32 s43, s10, 5"); k(f"s_sub_u32 s43, {KVO + 96}, s43"); k("v_add_u32 v9, s43, v9")
    KR = 16; VR = 26; KF = 38
    for i in range(5): k(f"ds_read_b64_tr_b16 {v(KR+2*i,2)}, v11 offset:{512*i}")
    for i in range(4): k(f"ds_read_b64_tr_b16 {v(VR+2*i,2)}, v11 offset:{9216+512*i}")
    k("v_lshlrev_b32 v34, 16, v12"); k("v_and_b32 v35, s46, v12"); k("v_lshlrev_b32 v36, 16, v13"); k("v_and_b32 v37, s46, v13")
    k("s_waitcnt lgkmcnt(4)")
    for i in range(10):
        k(f"v_lshlrev_b32 v{KF+2*i}, 16, v{KR+i}"); k(f"v_and_b32 v{KF+2*i+1}, s46, v{KR+i}")
    k("s_waitcnt lgkmcnt(0)")
    OUTR = 58
    for half in (1, 0):
        for pr in range(4):
            es = (8*half + 7 - 2*pr, 8*half + 6 - 2*pr)
            for j, e in enumerate(es):
                t = 16 + j
                k(f"v_mul_f32 v{t}, v34, v{KF+e+3}"); k(f"v_fmac_f32 v{t}, v35, v{KF+e+2}")
                k(f"v_fmac_f32 v{t}, v36, v{KF+e+1}"); k(f"v_fmac_f32 v{t}, v37, v{KF+e}")
                vr = VR + e//2
                if e % 2 == 0: k(f"v_lshlrev_b32 v{18+j}, 16, v{vr}")
                else: k(f"v_and_b32 v{18+j}, s46, v{vr}")
                k(f"v_mul_f32 v{t}, v{t}, v{18+j}")
            k(f"v_cvt_pk_bf16_f32 v{OUTR+pr}, v16, v17")
        k(f"ds_write_b128 v9, {v(OUTR,4)} offset:{16*(1-half)}")
        OUTR = 20
    k("v_lshrrev_b32 v5, 3, v1"); k("v_add_u32 v5, s42, v5"); k("v_and_b32 v6, 7, v1"); k("v_lshlrev_b32 v6, 4, v6")
    k("v_mul_u32_u24 v7, 144, v5"); k(f"v_add3_u32 v7, v7, v6, s47")
    k("v_add_u32 v5, s31, v5"); k("v_lshlrev_b32 v5, 12, v5"); k("v_add_u32 v5, v5, v6")
    k("s_sub_u32 s43, 1984, s30"); k("s_lshl_b32 s43, s43, 1"); k(f"s_add_u32 s43, s43, {UR}"); k("s_add_u32 s44, s43, 32768")
    k("s_waitcnt lgkmcnt(0)")
    k("s_barrier")
    k("ds_read_b128 v[16:19], v7"); k("ds_read_b128 v[20:23], v7 offset:1152")
    k("s_waitcnt lgkmcnt(1)")
    k("buffer_store_dwordx4 v[16:19], v5, s[12:15], s43 offen sc1")
    k("s_waitcnt lgkmcnt(0)")
    k("buffer_store_dwordx4 v[20:23], v5, s[12:15], s44 offen sc1")
    k("s_add_u32 s45, s45, 1"); k("s_cmp_ge_u32 s45, s29"); k(f"s_cbranch_scc1 {k.lab('kvexit')}")
    k("s_waitcnt vmcnt(4)")
    k("s_barrier")
    k("s_mov_b32 s30, s32"); k("s_mov_b32 s31, s33")
    k("v_mov_b32 v12, v14"); k("v_mov_b32 v13, v15"); k(f"v_add_u32 v11, {KVL}, v11")
    k(f"s_branch {k.lab('kvloop')}")
    k.label("kvexit")

HB = 128; E = 168
def conv_h_issue(k, vm):
    k("s_lshl_b32 s83, s2, 2"); k("s_add_u32 s83, s83, s10")
    k("s_lshl_b32 s35, s83, 12")
    k(f"s_mul_i32 s82, s10, {WREG}"); k(f"s_add_u32 s82, s82, {CONVL}")
    k("v_subrev_u32 v5, 32, v4"); k("v_add_u32 v6, 16, v5")
    k("s_lshl_b32 s28, s83, 1"); k("v_mov_b32 v19, s28")
    k("s_add_u32 s76, s76, s35"); k("s_addc_u32 s77, s77, 0")
    k("s_mov_b32 s78, 4096"); k("s_mov_b32 s79, 0x20000")
    for q in range(5):
        vm.issue([f"buffer_load_dwordx4 {v(HB+8*q,4)}, v5, s[76:79], 0 offen"], ("h", q))
        vm.issue([f"buffer_load_dword v{HB+8*q+4}, v6, s[76:79], 0 offen"] + (["v_add_u32 v5, 1024, v5", "v_add_u32 v6, 1024, v6"] if q < 4 else []), ("h", q))
    k("v_subrev_u32 v5, 32, v4")
    vm.issue(["s_add_u32 m0, s82, 4608", "s_nop 0", "buffer_load_dwordx4 v5, s[76:79], 0 offen lds"], "h0")
    k("s_add_u32 m0, s82, %d" % (4608 + 1024)); k("v_add_u32 v5, 1024, v5")
    for q in range(3): vm.issue([f"buffer_load_dwordx4 v5, s[76:79], 0 offen offset:{1024*q} lds"], "h0")
    k("s_add_u32 m0, s82, %d" % (4608 + 4096)); k("v_add_u32 v5, 3072, v5")
    vm.issue(["s_mov_b64 exec, 15", "buffer_load_dwordx4 v5, s[76:79], 0 offen lds", "s_mov_b64 exec, -1"], "h0")
    k("s_mov_b32 s44, s80"); k("s_mov_b32 s45, s81"); k(f"s_mov_b32 s46, {D*2}"); k("s_mov_b32 s47, 0x20000")
    vm.issue(["buffer_load_ushort v176, v19, s[44:47], 0 offen"], "D")

def conv_h_copy1(k):
    k("s_add_u32 s42, s82, %d" % (4608 + CPY)); k("v_add_u32 v5, s42, v4")
    for q in range(5):
        x = HB + 8*q
        if q == 4: k("s_mov_b64 exec, 15")
        for i in range(4): k(f"v_alignbit_b32 v{E+4*(q%2)+i}, v{x+i+1}, v{x+i}, 16")
        k(f"ds_write_b128 v5, {v(E+4*(q%2),4)} offset:{1024*q}")
    k("s_mov_b64 exec, -1")

def conv_main(k, prefetch_items, wloop):
    vm = VM(k)
    k(f"s_lshl_b32 s35, s83, 12"); k(f"s_add_u32 s36, s35, {UR}")
    k("s_mov_b32 m0, s82"); k("s_nop 0")
    for j in range(4): vm.issue([f"buffer_load_dwordx4 v4, s[12:15], s36 offen offset:{1024*j} sc1 lds"], "ur")
    k("v_mov_b32 v8, 0"); k("v_mov_b32 v9, 0"); k("v_lshlrev_b32 v7, 3, v1"); k("v_add_u32 v7, s82, v7")
    k("ds_write_b64 v7, v[8:9] offset:4096")
    k("v_add_u32 v13, 1, v2"); k("v_and_b32 v14, 1, v13"); k(f"v_mul_u32_u24 v12, {CPY}, v14")
    k("v_sub_u32 v13, v13, v14"); k("v_lshlrev_b32 v13, 1, v13"); k("v_lshl_add_u32 v13, v3, 4, v13")
    k("s_add_u32 s38, s82, 4608"); k("v_add3_u32 v12, v12, v13, s38")
    for j in range(1, 4): k(f"v_add_u32 v{103+j}, {1024*j}, v12")
    k("v_lshlrev_b32 v13, 5, v2"); k("v_lshlrev_b32 v14, 4, v3"); k("v_sub_u32 v13, v14, v13")
    k("s_add_u32 s39, s82, 480"); k("v_add_u32 v13, s39, v13")
    AP = 100
    k("v_sub_u32 v16, 15, v2"); k("v_lshrrev_b32 v17, 3, v16"); k("v_and_b32 v16, 7, v16")
    k("v_and_b32 v18, 1, v16"); k("v_lshlrev_b32 v18, 4, v18"); k("v_lshlrev_b32 v18, v18, v176")
    k("v_cmp_eq_u32 vcc, v17, v3"); k("v_cndmask_b32 v18, 0, v18, vcc"); k("v_lshrrev_b32 v16, 1, v16")
    for r in range(4):
        k(f"v_cmp_eq_u32 vcc, {r}, v16"); k(f"v_cndmask_b32 v{AP+r}, 0, v18, vcc")
    ACC = 16; A0 = 48; A1 = 112; B0 = 144; B1 = 176
    AR = (12, 104, 105, 106)
    def loads(A, B, rho):
        L = []
        for d in range(8): L.append(f"ds_read_b128 {v(B+4*d,4)}, v13 offset:{64*rho + 512*(7-d)}")
        for m in range(8):
            o = 128*(m % 2) + 16*rho
            L.append(f"ds_read2_b32 {v(A+4*m,2)}, v{AR[m//2]} offset0:{o} offset1:{o+1}")
            L.append(f"ds_read2_b32 {v(A+4*m+2,2)}, v{AR[m//2]} offset0:{o+2} offset1:{o+3}")
        return L
    pq = TQ(vm, prefetch_items)
    vm.wait(lambda t: t == "ur", " lgkmcnt(0)")
    k.stamp("ur")
    for ln in loads(A0, B0, 0): k(ln)
    k("s_waitcnt lgkmcnt(0)")
    for t in range(8): k(f"v_mfma_f32_16x16x32_bf16 {v(ACC+4*t,4)}, {v(AP,4)}, {v(B0+4*t,4)}, 0")
    pairs = [(m, d) for m in range(8) for d in range(8 - m)]
    for rho in range(8):
        A, B = (A0, B0) if rho % 2 == 0 else (A1, B1)
        An, Bn = (A1, B1) if rho % 2 == 0 else (A0, B0)
        nxt = loads(An, Bn, rho + 1) if rho < 7 else []
        if wloop:
            if rho == WSTART - 1: vm.issue(cpa_sample(), "cpa")
            if rho == WSTART:
                pq.flush(); vm.wait(lambda t: t == "cpa"); cpa_check(k); pq.items = list(wloop)
        elif rho == 7: pq.flush(); vm.issue(cpa_sample(), "cpa")
        for idx, (m, d) in enumerate(pairs):
            k(f"v_mfma_f32_16x16x32_bf16 {v(ACC+4*(m+d),4)}, {v(A+4*m,4)}, {v(B+4*d,4)}, {v(ACC+4*(m+d),4)}")
            if idx < len(nxt): k(nxt[idx])
            if rho >= PFSTART and idx % (PFGAP if (rho < WSTART or not wloop) else WGAP) == 1: pq.pop()
        k("s_waitcnt lgkmcnt(0)")
    pq.flush()
    k.stamp("loop")
    k("v_lshlrev_b32 v14, 5, v2"); k("v_lshl_add_u32 v14, v3, 3, v14"); k("v_add_u32 v14, s82, v14")
    for t in range(8):
        k(f"v_cvt_pk_bf16_f32 v{A0+2*t}, v{ACC+4*t}, v{ACC+4*t+1}"); k(f"v_cvt_pk_bf16_f32 v{A0+2*t+1}, v{ACC+4*t+2}, v{ACC+4*t+3}")
        k(f"ds_write_b64 v14, {v(A0+2*t,2)} offset:{512*t}")
    k("v_add_u32 v15, s82, v4")
    k("s_waitcnt lgkmcnt(0)")
    for j in range(4): k(f"ds_read_b128 {v(B0+4*j,4)}, v15 offset:{1024*j}")
    k(f"s_add_u32 s36, s35, {YT}")
    for j in range(4):
        k(f"s_waitcnt lgkmcnt({3-j})")
        vm.issue([f"buffer_store_dwordx4 {v(B0+4*j,4)}, v4, s[12:15], s36 offen offset:{1024*j} sc1"], "S")
    return vm, pq

def wtask_issue(k, tag, ldsbase):
    k("s_mov_b32 s51, 0x20000")
    k("s_lshl_b32 s34, s10, 14"); k(f"s_add_u32 s34, s34, {ldsbase}")
    k("v_lshrrev_b32 v5, 3, v1"); k("v_and_b32 v6, 7, v1"); k("v_lshlrev_b32 v6, 4, v6")
    k("s_lshl_b32 s47, s41, 5"); k("v_add_u32 v5, s47, v5"); k("v_mul_lo_u32 v5, v5, s40")
    k("s_lshl_b32 s47, s42, 7"); k("v_add3_u32 v5, v5, v6, s47")
    k("s_lshl_b32 s52, s40, 3"); k("s_lshl_b32 s53, s43, 2"); k("s_mov_b32 s54, s34")
    k.label("wld" + tag)
    k("s_mov_b32 m0, s54"); k("s_sub_u32 s53, s53, 1")
    k("buffer_load_dwordx4 v5, s[48:51], 0 offen lds")
    k("v_add_u32 v5, s52, v5"); k("s_add_u32 s54, s54, 1024")
    k("s_cmp_lg_u32 s53, 0"); k(f"s_cbranch_scc1 {k.lab('wld' + tag)}")

def wtask_finish(k, tag, nxt):
    k("v_lshlrev_b32 v5, 10, v3"); k("v_bfe_u32 v6, v1, 2, 2"); k("v_lshl_add_u32 v5, v6, 7, v5")
    k("v_and_b32 v6, 3, v1"); k("v_lshl_add_u32 v5, v6, 4, v5"); k("v_add_u32 v5, s34, v5")
    k("s_lshl_b32 s47, s42, 2"); k("s_mul_i32 s47, s47, s45"); k("s_add_u32 s47, s47, s41"); k("s_lshl_b32 s47, s47, 10")
    k("s_add_u32 s47, s47, s44"); k("s_lshl_b32 s55, s45, 10")
    for r in range(4): k(f"v_mov_b32 v{24+r}, 0")
    k("s_mov_b32 s52, 0x3f803f80"); k("s_mov_b32 s53, 0")
    k.stamp("wiss" + tag)
    k("s_waitcnt vmcnt(0)")
    k.stamp("wld" + tag)
    k.label("wtr" + tag)
    for t in range(4):
        o = 64*(t//2) + 8*(t % 2)
        k(f"ds_read_b64_tr_b16 {v(8+4*t,2)}, v5 offset:{o}"); k(f"ds_read_b64_tr_b16 {v(10+4*t,2)}, v5 offset:{o+512}")
    k("v_add_u32 v5, 4096, v5"); k("s_add_u32 s53, s53, 1")
    k("s_mov_b32 s54, s47")
    for t in range(4):
        k(f"s_waitcnt lgkmcnt({6 - 2*t})")
        k(f"buffer_store_dwordx4 {v(8+4*t,4)}, v4, s[12:15], s54 offen sc1")
        if t < 3: k("s_add_u32 s54, s54, s55")
    for r in range(4):
        for t in range(4): k(f"v_dot2_f32_bf16 v{24+t}, v{8+4*t+r}, s52, v{24+t}")
    k("s_add_u32 s47, s47, 1024")
    k("s_cmp_lt_u32 s53, s43"); k(f"s_cbranch_scc1 {k.lab('wtr' + tag)}")
    k("s_cmp_ge_u32 s46, 5"); k(f"s_cbranch_scc1 {nxt}")
    for t in range(4): k(f"v_mov_b32 v{28+t}, v{24+t}")
    for t in range(4): k(f"v_permlane32_swap_b32 v{24+t}, v{28+t}")
    for t in range(4): k(f"v_add_f32 v{24+t}, v{24+t}, v{28+t}")
    for t in range(4): k(f"v_mov_b32 v{28+t}, v{24+t}")
    for t in range(4): k(f"v_permlane16_swap_b32 v{24+t}, v{28+t}")
    for t in range(4): k(f"v_add_f32 v{24+t}, v{24+t}, v{28+t}")
    k(f"s_mul_i32 s47, s46, {F*4}"); k("s_lshl_b32 s52, s42, 8"); k("s_add_u32 s47, s47, s52"); k(f"s_add_u32 s47, s47, {CS3}")
    k("v_lshlrev_b32 v6, 2, v2")
    k("s_mov_b64 exec, 0xffff")
    for t in range(4): k(f"buffer_store_dword v{24+t}, v6, s[12:15], s47 offen offset:{64*t} sc1")
    k("s_mov_b64 exec, -1")
    k(f"s_branch {nxt}")

def w1_params(k):
    k("s_sub_u32 s35, s2, 242"); k("s_lshl_b32 s35, s35, 2"); k("s_add_u32 s35, s35, s10")
    k("s_mov_b32 s48, s76"); k("s_mov_b32 s49, s77")
    k(f"s_mov_b32 s50, {D*D*2}"); k("s_mov_b32 s40, 1280"); k(f"s_mov_b32 s44, {W1T}"); k("s_mov_b32 s45, 20"); k("s_mov_b32 s46, 5")
    k("s_mul_hi_u32 s41, s35, 0x1999999a"); k("s_mul_i32 s42, s41, 10"); k("s_sub_u32 s42, s35, s42"); k("s_mov_b32 s43, 4"); k("s_lshl_b32 s41, s41, 2")

def prep_part(k, pre_items_setup):
    if QWARM:
        k("s_sub_u32 s33, s2, 160"); k("s_cmp_ge_u32 s33, 64"); k(f"s_cbranch_scc1 {k.lab('noq')}")
        k("s_cmp_eq_u32 s10, 0"); k(f"s_cbranch_scc1 {k.lab('noq')}")
        k("s_mul_i32 s33, s33, 3"); k("s_add_u32 s33, s33, s10"); k("s_sub_u32 s33, s33, 1"); k("s_mul_i32 s33, s33, 14336")
        for i in range(14):
            k(f"buffer_load_dwordx4 v[32:35], v4, s[16:19], s33 offen offset:{1024*(i%4)}")
            if i % 4 == 3: k("s_add_u32 s33, s33, 4096")
    k.label("noq")
    k.label("roundB")
    qitems, witems = pre_items_setup()
    k("s_sub_u32 s33, s2, 160"); k("s_lshl_b32 s33, s33, 2"); k("s_add_u32 s33, s33, s10")
    k("s_mov_b32 s43, 0")
    k("s_cmp_ge_u32 s33, 325"); k(f"s_cbranch_scc1 {k.lab('noB')}")
    k("s_mov_b32 s46, 5"); k("s_mov_b32 s43, 4")
    k("s_cmp_ge_u32 s33, 50"); k(f"s_cbranch_scc1 {k.lab('pw3')}")
    k("s_mov_b32 s48, s78"); k("s_mov_b32 s49, s79"); k(f"s_mov_b32 s50, {D*D*2}"); k("s_mov_b32 s40, 1280"); k(f"s_mov_b32 s44, {W2T}"); k("s_mov_b32 s45, 20")
    k("s_mul_hi_u32 s41, s33, 0x1999999a"); k("s_mul_i32 s42, s41, 10"); k("s_sub_u32 s42, s33, s42"); k("s_lshl_b32 s41, s41, 2")
    k(f"s_branch {k.lab('wtB')}")
    k.label("pw3")
    k("s_cmp_ge_u32 s33, 185"); k(f"s_cbranch_scc1 {k.lab('pw4')}")
    k("s_sub_u32 s35, s33, 50")
    k("s_mov_b32 s48, s80"); k("s_mov_b32 s49, s81"); k(f"s_mov_b32 s50, {D*F*2}"); k(f"s_mov_b32 s40, {F*2}"); k(f"s_mov_b32 s44, {W3T}"); k("s_mov_b32 s45, 20")
    k("s_mul_hi_u32 s46, s35, 0x97b425f"); k("s_mul_i32 s42, s46, 27"); k("s_sub_u32 s42, s35, s42"); k("s_lshl_b32 s41, s46, 2")
    k(f"s_branch {k.lab('wtB')}")
    k.label("pw4")
    k("s_sub_u32 s35, s33, 185")
    k("s_mov_b32 s48, s82"); k("s_mov_b32 s49, s83"); k(f"s_mov_b32 s50, {D*F*2}"); k("s_mov_b32 s40, 1280"); k(f"s_mov_b32 s44, {W4T}"); k("s_mov_b32 s45, 54")
    k("s_mul_hi_u32 s41, s35, 0x1999999a"); k("s_mul_i32 s42, s41, 10"); k("s_sub_u32 s42, s35, s42")
    k("s_cmp_eq_u32 s41, 13"); k("s_cselect_b32 s43, 2, 4"); k("s_lshl_b32 s41, s41, 2")
    k.label("wtB")
    wtask_issue(k, "B", 45056)
    k.label("noB")
    for g, t in qitems:
        for ln in g: k(ln)
    for ln in cpa_sample(): k(ln)
    doneB = k.lab("doneB")
    k("s_cmp_eq_u32 s43, 0"); k(f"s_cbranch_scc1 {doneB}")
    wtask_finish(k, "B", doneB)
    k.L.append(doneB + ":")
    k.stamp("doneB")
    signal(k, None, None, [f"s_mov_b32 s{SG}, {CPB}"], 96, [f"s_mov_b32 s{SG}, {FALL + 9*128}"])
    p2.p2_qstats(k, lambda: None)
    cpa_check(k)
    return witems

def mega():
    pc.SC = " sc1"; pc.SS = " sc1"
    k = Kern("block_kernel", vgpr=256, agpr=256, sgpr=96)
    k.only = ONLY
    k("s_cmp_ge_u32 s2, 256"); k(f"s_cbranch_scc1 {k.lab('end')}")
    k.stamp_begin()
    k(f"s_load_dwordx8 s[36:43], s[0:1], {A_K}")
    k(f"s_load_dwordx2 s[44:45], s[0:1], {A_D}")
    k(f"s_load_dwordx8 s[76:83], s[0:1], {B_W1}")
    k(f"s_load_dwordx2 s[72:73], s[0:1], {DBG}")
    prologue(k)
    pre_items_setup = lambda: (p2.p2_pre_setup(k), p2.p2_pre_items(k))[1]
    def common_setup():
        p2.p2_setup(k); p3.p35_setup(k, 26)
        k.srd(12, 4, WS_END); k.srd(16, 8, MB); k.srd(20, 6, MB)
        init_srd(k)
    k("s_cmp_lt_u32 s2, 242"); k(f"s_cbranch_scc1 {k.lab('kvwg')}")
    k("s_waitcnt lgkmcnt(0)")
    common_setup()
    k("s_cmp_eq_u32 s2, 255"); k(f"s_cbranch_scc1 {k.lab('zero')}")
    k(f"s_branch {k.lab('w1only')}")
    k.label("kvwg")
    vm = VM(k)
    kv_issue(k, vm)
    common_setup()
    k("s_cmp_ge_u32 s2, 160"); k(f"s_cbranch_scc1 {k.lab('keepw')}")
    k("s_mov_b32 s76, s42"); k("s_mov_b32 s77, s43"); k("s_mov_b32 s80, s44"); k("s_mov_b32 s81, s45")
    k.label("keepw")
    vm.issue(code_prefetch_group(k, k.lab("code0"), k.lab("end"), "z", 180, sreg=26), "pf")
    k.label("code0")
    k.stamp("kvissued")
    k("s_cmp_lt_u32 s29, 2"); k(f"s_cbranch_scc1 {k.lab('kvw1')}")
    k("s_waitcnt vmcnt(7)")
    k(f"s_branch {k.lab('kvw2')}")
    k.label("kvw1")
    vm.wait(lambda t: t == "kv")
    k.label("kvw2")
    k("s_barrier")
    k.stamp("kvin")
    k("v_mov_b32 v178, 0")
    k("buffer_load_dword v177, v178, s[72:75], 0 offen sc1")
    vmh = VM(k)
    k("s_cmp_ge_u32 s2, 160"); k(f"s_cbranch_scc1 {k.lab('noh')}")
    conv_h_issue(k, vmh)
    k.label("noh")
    kv_compute(k)
    k.stamp("kvdone")
    k("s_waitcnt vmcnt(0)")
    k.stamp("kvdrain")
    ok = k.lab("initok")
    k("v_cmp_eq_u32 vcc, 0, v177"); k(f"s_cbranch_vccz {ok}")
    wait_init(k)
    k.L.append(ok + ":")
    k("s_barrier")
    tile_cnt = lambda add: [f"s_add_u32 s84, s2, {add}", "s_mul_hi_u32 s85, s84, 0x1999999a", "s_mul_i32 s28, s85, 10", "s_sub_u32 s84, s84, s28",
                            "s_lshl_b32 s84, s84, 2", "s_and_b32 s85, s85, 3", "s_add_u32 s84, s84, s85", "s_lshl_b32 s84, s84, 7", f"s_add_u32 s84, s84, {C0}"]
    atomic_signal(k, tile_cnt(0), k.lab("sigc0"), None)
    k("s_cmp_lt_u32 s29, 2"); k(f"s_cbranch_scc1 {k.lab('sigc0b')}")
    atomic_signal(k, tile_cnt(82), k.lab("sigc0c"), None)
    k.label("sigc0b")
    k.stamp("kvsig")
    k("s_cmp_ge_u32 s2, 160"); k(f"s_cbranch_scc1 {k.lab('prep')}")
    conv_h_copy1(k)
    qitems, witems = pre_items_setup()
    if QEARLY:
        for g, t in qitems:
            for ln in g: k(ln)
        qitems = []
    wait_counters(k, None, ["s_lshr_b32 s84, s2, 4", "s_lshl_b32 s84, s84, 9", f"s_add_u32 s84, s84, {C0}", "v_and_b32 v5, 3, v1", "v_lshlrev_b32 v5, 7, v5", "v_add_u32 v5, s84, v5"],
                  ["v_mov_b32 v7, 8"], False)
    k.stamp("s0")
    vm, pq = conv_main(k, qitems, witems[:NWLOOP])
    k.stamp("convdone")
    lab = k.lab("sigc1")
    p2.p2_qstats(k, (lambda: None) if QEARLY else (lambda: vm.wait(lambda t: t == "q")))
    vm.wait(lambda t: t == "S"); k("s_barrier")
    cpa_check(k)
    if S1DIRECT:
        atomic_signal(k, [f"s_lshr_b32 s{SG}, s2, 3", f"s_lshl_b32 s{SG}, s{SG}, 7", f"s_add_u32 s{SG}, s{SG}, {C1D}"], lab, None)
    else:
        atomic_signal(k, own_shard(C1), lab, 20, [f"s_and_b32 s{SG}, s2, 7", f"s_lshl_b32 s{SG}, s{SG}, 7", f"s_add_u32 s{SG}, s{SG}, {FALL}"])
    k(f"s_branch {k.lab('wconv') if NWLOOP else k.lab('wfirst')}")
    k.label("w1only")
    w1_params(k)
    doneA = k.lab("doneA")
    k("s_cmp_ge_u32 s35, 50"); k(f"s_cbranch_scc1 {doneA}")
    wtask_issue(k, "A", 0)
    wtask_finish(k, "A", doneA)
    k.L.append(doneA + ":")
    k.stamp("doneA")
    signal(k, None, None, [f"s_mov_b32 s{SG}, {CPA}"], 13, [f"s_mov_b32 s{SG}, {FALL + 8*128}"], first=True)
    k(f"s_branch {k.lab('prep')}")
    k.label("zero")
    k("v_mov_b32 v8, 0"); k("v_mov_b32 v9, 0"); k("v_mov_b32 v10, 0"); k("v_mov_b32 v11, 0")
    k("v_lshlrev_b32 v5, 4, v0"); k(f"s_mov_b32 s35, {CNT}")
    for j in range(9):
        k("buffer_store_dwordx4 v[8:11], v5, s[12:15], s35 offen sc1"); k("s_add_u32 s35, s35, 4096")
    k("s_waitcnt vmcnt(0)")
    k("s_barrier")
    k("v_mov_b32 v5, 0"); k("v_mov_b32 v6, 1")
    k("s_cmp_lg_u32 s10, 0"); k(f"s_cbranch_scc1 {k.lab('prep')}")
    k("s_mov_b64 exec, 1")
    k("buffer_store_dword v6, v5, s[72:75], 0 offen sc1")
    k("s_mov_b64 exec, -1")
    k.label("prep")
    witems = prep_part(k, pre_items_setup)
    k.label("wfirst")
    k.stamp("cpa")
    for g, t in witems[:NWLOOP]:
        for ln in g: k(ln)
    k.label("wconv")
    for g, t in witems[NWLOOP:max(NWA, NWLOOP)]:
        for ln in g: k(ln)
    p3.p3_pre_setup(k)
    if S1DIRECT:
        wait_counters(k, None, ["v_min_u32 v5, 19, v1", "v_lshlrev_b32 v5, 7, v5", f"v_add_u32 v5, {C1D}, v5", f"v_mov_b32 v6, {FALL + 9*128}",
                                "v_cmp_lt_u32 vcc, 19, v1", "v_cndmask_b32 v5, v5, v6, vcc"], ["v_mov_b32 v7, 8", "v_cndmask_b32 v7, v7, 1, vcc"], False)
    else:
        wait_counters(k, None, ["v_min_u32 v5, 9, v1", "v_lshlrev_b32 v5, 7, v5", f"v_add_u32 v5, {FALL}, v5"], ["v_mov_b32 v7, 1"], False)
    k.stamp("s1")
    early = [(g, "E") for g in p3.p3_pre_early(k)]
    vm, nq = p2.p2_main(k, witems[max(NWA, NWLOOP):], [(code_prefetch_group(k, k.lab('ph3'), k.lab('ph4'), 'a', 136), "pf")], p3.p3_pre_late, early)
    k.stamp("p2done")
    signal(k, vm, nq, [f"s_lshl_b32 s{SG}, s{p2.TT}, 7", f"s_add_u32 s{SG}, s{SG}, {C2}"], None)
    k.label("ph3")
    p4.p4_setup(k); p4.p4_pre_setup(k)
    wait_counters(k, nq, [f"s_lshl_b32 s{SG}, s{p3.T64}, 1", f"s_sub_u32 s{SG}, s{SG}, 1", "v_and_b32 v5, 3, v1", f"v_add_u32 v5, s{SG}, v5",
                          "v_and_b32 v5, 63, v5", "v_lshlrev_b32 v5, 7, v5", f"v_add_u32 v5, {C2}, v5"], ["v_mov_b32 v7, 4"], True, mid=MID[0])
    k.stamp("s2")
    early = [(g, "E") for g in p4.p4_pre_early(k)]
    vm, nq = p3.p3_main(k, [(code_prefetch_group(k, k.lab('ph4'), k.lab('ph5'), 'b', 184), "pf")], p4.p4_pre_late, early)
    k.stamp("p3done")
    signal(k, vm, nq, [f"s_lshr_b32 s{SG}, s{p3.T64}, 1", f"s_lshl_b32 s{SG}, s{SG}, 2", f"s_lshr_b32 s{SG2}, s{p3.FC}, 1", f"s_add_u32 s{SG}, s{SG}, s{SG2}",
                          f"s_lshl_b32 s{SG}, s{SG}, 7", f"s_add_u32 s{SG}, s{SG}, {C3}"], None)
    k.label("ph4")
    p5.p5_pre_setup(k)
    wait_counters(k, nq, [f"s_lshl_b32 s{SG}, s{p4.T128}, 9", f"s_add_u32 s{SG}, s{SG}, {C3}", "v_and_b32 v5, 3, v1", "v_lshlrev_b32 v5, 7, v5", f"v_add_u32 v5, s{SG}, v5"], ["v_mov_b32 v7, 4"],
                  True, p4.p4_cs_table, mid=MID[1])
    k.stamp("s3")
    early = [(g, "E") for g in p5.p5_pre_early(k)]
    vm, nq = p4.p4_main(k, [(code_prefetch_group(k, k.lab('ph5'), k.lab('end'), 'c', 88), "pf")], p5.p5_pre_late, early,
                        follow=[(g, "F") for g in p5.p5_pre_late(k)[:NFOLLOW]], nfollow=NFOLLOW)
    k.stamp("p4done")
    signal(k, vm, nq, [f"s_lshl_b32 s{SG}, s{p4.T128}, 2", f"s_lshr_b32 s{SG2}, s{p4.COL}, 2", f"s_add_u32 s{SG}, s{SG}, s{SG2}",
                          f"s_lshl_b32 s{SG}, s{SG}, 7", f"s_add_u32 s{SG}, s{SG}, {C4}"], None)
    k.label("ph5")
    wait_counters(k, nq, [f"s_lshr_b32 s{SG}, s{p3.T64}, 1", f"s_lshl_b32 s{SG}, s{SG}, 9", f"s_add_u32 s{SG}, s{SG}, {C4}", "v_and_b32 v5, 3, v1", "v_lshlrev_b32 v5, 7, v5", f"v_add_u32 v5, s{SG}, v5"],
                  ["v_mov_b32 v7, 4"], False, mid=MID[2])
    k.stamp("s4")
    p5.p5_main(k)
    k.stamp_flush(4, STAMP)
    k.label("end"); k("s_endpgm")
    pc.SC = ""; pc.SS = ""
    return k
```

```python
from ph_common import *
import ph_common as pc
from p3 import T64, FC, ODD, TBG, FB, SA, SH, WB, LB, TMP

P5_LDS = 61440
OUTSC = " sc1"
RSLOOP = 0
NWA = 64
WV = 232

def wreg(i, l):
    f = i*5 + l
    return a(4*f, 4) if f < NWA else v(WV + 4*(f - NWA), 4)

def p5_pre_setup(k):
    k(f"s_mul_i32 s{TMP}, s10, 14336")
    for l in range(5):
        k(f"s_mul_i32 s{WB+l}, s{FB+l}, 55296"); k(f"s_add_u32 s{WB+l}, s{WB+l}, s{TMP}"); k(f"s_add_u32 s{WB+l}, s{WB+l}, {W4T}")
    k("s_cmp_eq_u32 s10, 3"); k(f"s_cselect_b32 s{LB}, 0x40000000, 0")

def p5_w_group(i, l):
    hi = (i // 4) * 4096
    pre = [f"s_add_u32 s{TMP+1}, s{WB+l}, {hi}"] if hi else [f"s_mov_b32 s{TMP+1}, s{WB+l}"]
    if i >= 12: pre.append(f"s_add_u32 s{TMP+1}, s{TMP+1}, s{LB}")
    return pre + [f"buffer_load_dwordx4 {wreg(i,l)}, v4, s[12:15], s{TMP+1} offen offset:{1024*(i%4)} sc1"]

def p5_pre_early(k):
    return [p5_w_group(f // 5, f % 5) for f in range(40, 70)]

def p5_pre_late(k):
    return [p5_w_group(f // 5, f % 5) for f in range(0, 40)]

def p5_main(k):
    sc = pc.SC
    R = 100
    vm = VM(k)
    k("s_mul_i32 s36, s10, 14336")
    for j in range(4):
        k(f"s_add_u32 s37, s10, {j}"); k("s_and_b32 s37, s37, 3")
        k(f"s_lshl_b32 s38, s{T64}, 2"); k("s_add_u32 s37, s37, s38")
        k(f"s_mul_i32 s{46+j}, s37, 55296"); k(f"s_add_u32 s{46+j}, s{46+j}, s36"); k(f"s_add_u32 s{46+j}, s{46+j}, {GG}")
    k("s_cmp_eq_u32 s10, 3"); k("s_cselect_b32 s45, 0x40000000, 4096")
    XR = 124; NS = 4
    xl = []
    for i in range(14):
        for j in range(4):
            pre = [f"s_add_u32 s{46+j}, s{46+j}, {'s45' if i == 12 else 4096}"] if (i and i % 4 == 0) else []
            xl.append((pre + [f"buffer_load_dwordx4 {v(XR + 16*(i % NS) + 4*j,4)}, v4, s[12:15], s{46+j} offen offset:{1024*(i%4)}{sc}"], ("X", i)))
    res = []
    for base, reg in ((HT, R), (X1, R + 10)):
        res.append(([f"s_add_u32 s36, s{SA}, {base}", f"buffer_load_dwordx4 {v(reg,4)}, v4, s[12:15], s36 offen{sc}"], "R"))
        res.append(([f"buffer_load_dwordx4 {v(reg+4,4)}, v4, s[12:15], s36 offen offset:1024{sc}"], "R"))
        res.append(([f"s_add_u32 s37, s{SH}, {base}", f"buffer_load_dwordx2 {v(reg+8,2)}, v4, s[12:15], s37 offen{sc}"], "R"))
    q = TQ(vm, xl); q.pop(12)
    rq = TQ(vm, res)
    ACC = 16; U = 8; RS = 188
    rs = []
    for l in range(5):
        for hf in range(2):
            z = RS + 4*l + 2*hf
            rs += [f"v_lshlrev_b32 v{z}, 16, v{resid_src(R,l,hf)}", f"v_and_b32 v{z+1}, s36, v{resid_src(R,l,hf)}",
                   f"v_lshlrev_b32 v{U+2}, 16, v{resid_src(R+10,l,hf)}", f"v_and_b32 v{U+3}, s36, v{resid_src(R+10,l,hf)}",
                   f"v_add_f32 v{z}, v{z}, v{U+2}", f"v_add_f32 v{z+1}, v{z+1}, v{U+3}"]
    sq = Queue(k, [[x] for x in rs])
    nx = lambda: sum(1 for t in vm.ops if isinstance(t, tuple))
    for i in range(14):
        vm.wait(lambda t: t == ("X", i))
        if RSLOOP and i == RSLOOP + 7: k("s_mov_b32 s36, 0xffff0000")
        if i == 0: k.stamp("step0")
        n = 0
        for j in range(4):
            for l in range(5):
                c = v(ACC + 20*j + 4*l, 4)
                k(f"v_mfma_f32_16x16x32_bf16 {c}, {wreg(i,l)}, {v(XR + 16*(i % NS) + 4*j,4)}, {c if i else 0}")
                n += 1
                if n % 5 == 3 and len(q) and nx() < 4*(i + NS): q.pop()
                if RSLOOP:
                    if n == 10 and RSLOOP <= i <= RSLOOP + 5: rq.pop()
                    if i >= RSLOOP + 8 and n % 4 != 0: sq.pop()
                elif n % 5 == 3 and not len(q): rq.pop()
    k.stamp("main5")
    for j in range(1, 4):
        k(f"s_add_u32 s37, s10, {j}"); k("s_and_b32 s37, s37, 3"); k("s_mul_i32 s37, s37, 15360")
        k(f"s_add_u32 s37, s37, {(j-1)*5120}")
        k(f"v_add_u32 v{5+j}, s37, v4")
    for j in range(1, 4):
        for l in range(5):
            k(f"ds_write_b128 v{5+j}, {v(ACC + 20*j + 4*l,4)} offset:{1024*l}")
    k("s_mul_i32 s37, s10, 15360")
    k("v_add_u32 v9, s37, v4")
    if not RSLOOP:
        rq.flush(); vm.wait(lambda t: t == "R"); k("s_mov_b32 s36, 0xffff0000")
    sq.flush()
    for i in range(10): k(f"v_pk_add_f32 {v(ACC+2*i,2)}, {v(ACC+2*i,2)}, {v(RS+2*i,2)}")
    k(f"s_lshl_b32 s37, s{TBG}, 4")
    k("v_add_u32 v6, s37, v2"); k("v_mul_u32_u24 v6, 1280, v6"); k("v_lshl_add_u32 v6, v3, 4, v6")
    k(f"s_lshr_b32 s37, s{FB}, 1"); k("s_lshl_b32 s37, s37, 6")
    k(f"s_lshr_b32 s38, s{FB+4}, 1"); k("s_lshl_b32 s38, s38, 6"); k(f"s_lshl_b32 s39, s{ODD}, 3"); k("s_add_u32 s38, s38, s39")
    k("s_waitcnt lgkmcnt(0)")
    k("s_barrier")
    P = 36; PK = 100
    for j in range(3):
        for l in range(5):
            k(f"ds_read_b128 {v(P + 20*j + 4*l,4)}, v9 offset:{j*5120 + 1024*l}")
    for j in range(3):
        k(f"s_waitcnt lgkmcnt({10 - 5*j})")
        for i in range(10): k(f"v_pk_add_f32 {v(ACC+2*i,2)}, {v(ACC+2*i,2)}, {v(P+20*j+2*i,2)}")
    for i in range(10): k(f"v_cvt_pk_bf16_f32 v{PK+i}, v{ACC+2*i}, v{ACC+2*i+1}")
    k(f"buffer_store_dwordx4 {v(PK,4)}, v6, s[20:23], s37 offen{OUTSC}")
    k(f"buffer_store_dwordx4 {v(PK+4,4)}, v6, s[20:23], s37 offen offset:64{OUTSC}")
    k(f"buffer_store_dwordx2 {v(PK+8,2)}, v6, s[20:23], s38 offen{OUTSC}")
```

```python
from ph_common import *
import ph_common as pc
import p2, p3, p4, p5

LDS = p4.P4_LDS
C2, C3, C4 = CNT, CNT + 64*128, CNT + 128*128
C0, C1, CPA, CPB = CNT + 192*128, CNT + 232*128, CNT + 240*128, CNT + 241*128
FLG = None
FALL = CNT + 242*128
C1D = CNT + 256*128
S1DIRECT = False
TOUCH = 0
SPIN_LIMIT = 200000
SG, SG2 = 84, 85
NFOLLOW = 0
WGAP = 6
QEARLY = True
QWARM = False
WSTART = 2
NWLOOP = 36
NWA = 48
PFSTART = 1
PFGAP = 6
DRAIN_LOADS = 10
MID = (99, 99, 16)
ONLY = None
CPY = 4160
WREG = 4608 + 2*CPY
CONVL = 92160
KVL = 17408
KVO = 2*KVL

def atomic_signal(k, offset_code, lab, target, flag_code=None, first=False):
    if target is None:
        k("s_cmp_lg_u32 s10, 0"); k(f"s_cbranch_scc1 {lab}")
        if first: wait_init(k)
        for ln in offset_code: k(ln)
        k("v_mov_b32 v5, 0"); k("v_mov_b32 v6, 1")
        k("s_mov_b64 exec, 1")
        k(f"buffer_atomic_add v6, v5, s[12:15], s{SG} offen sc1")
        k("s_mov_b64 exec, -1")
        k.L.append(lab + ":")
        return
    k("s_cmp_lg_u32 s10, 0"); k(f"s_cbranch_scc1 {lab}")
    if first: wait_init(k)
    for ln in offset_code: k(ln)
    k("v_mov_b32 v5, 0"); k("v_mov_b32 v6, 1")
    k("s_mov_b64 exec, 1")
    k(f"buffer_atomic_add v6, v5, s[12:15], s{SG} offen sc0 sc1")
    for ln in (flag_code or [f"s_add_u32 s{SG}, s{SG}, {FLG}"]): k(ln)
    k("s_waitcnt vmcnt(0)")
    k.stamp("atom%d" % target + lab[-2:])
    k(f"v_cmp_eq_u32 vcc, {target - 1}, v6")
    k("v_mov_b32 v6, 1")
    k("s_and_b64 exec, exec, vcc")
    k(f"s_cbranch_execz {lab}_x")
    k(f"buffer_store_dword v6, v5, s[12:15], s{SG} offen sc1")
    k.L.append(lab + "_x:")
    k("s_mov_b64 exec, -1")
    k.L.append(lab + ":")

def signal(k, vm, nq, offset_code, target, flag_code=None, first=False):
    lab = k.lab(k.uniq("sig"))
    if nq: nq.pop(DRAIN_LOADS)
    if vm: vm.wait(lambda t: t == "S")
    else: k("s_waitcnt vmcnt(0)")
    k.stamp("drained%d" % k._n)
    if first:
        l2 = k.lab(k.uniq("fi"))
        k("s_cmp_lg_u32 s10, 0"); k(f"s_cbranch_scc1 {l2}")
        wait_init(k)
        k.L.append(l2 + ":")
    k("s_barrier")
    atomic_signal(k, offset_code, lab, target, flag_code, False)

def poll(k, addr_code, target_reg_code, va=5, vd=6, vt=7):
    lab = k.lab(k.uniq("pl")); loop = lab + "_l"
    for ln in addr_code + target_reg_code: k(ln)
    k(f"s_mov_b32 s{SG2}, 0")
    k.L.append(loop + ":")
    k(f"buffer_load_dword v{vd}, v{va}, s[12:15], 0 offen sc1")
    k(f"s_add_u32 s{SG2}, s{SG2}, 1")
    k("s_waitcnt vmcnt(0)")
    k(f"v_cmp_gt_u32 vcc, v{vt}, v{vd}")
    k(f"s_cmp_gt_u32 s{SG2}, {SPIN_LIMIT}"); k(f"s_cbranch_scc1 {lab}")
    k(f"s_cbranch_vccnz {loop}")
    k.L.append(lab + ":")

def wait_counters(k, nq, addr_code, target_code, all_waves_drain, before_barrier=None, mid=0):
    lab = k.lab(k.uniq("wt"))
    if nq: nq.pop(mid)
    k("s_cmp_lg_u32 s10, 0"); k(f"s_cbranch_scc1 {lab}")
    k.stamp("prepoll" + lab[-2:])
    poll(k, addr_code, target_code)
    k.stamp("polled" + lab[-2:])
    k.L.append(lab + ":")
    if nq: nq.flush()
    if all_waves_drain: k("s_waitcnt vmcnt(0)")
    if before_barrier: before_barrier(k)
    k("s_barrier")

def cpa_sample(): return [f"v_mov_b32 v220, {FALL + 8*128}", "buffer_load_dword v219, v220, s[12:15], 0 offen sc1"]
def cpa_check(k):
    ok = k.lab(k.uniq("cpaok"))
    k("v_cmp_eq_u32 vcc, 0, v219"); k(f"s_cbranch_vccz {ok}")
    poll(k, [f"v_mov_b32 v5, {FALL + 8*128}"], ["v_mov_b32 v7, 1"])
    k.L.append(ok + ":")

def shard_addr(base): return ["v_and_b32 v5, 7, v1", "v_lshlrev_b32 v5, 7, v5", f"v_add_u32 v5, {base}, v5"]
def own_shard(base): return [f"s_and_b32 s{SG}, s2, 7", f"s_lshl_b32 s{SG}, s{SG}, 7", f"s_add_u32 s{SG}, s{SG}, {base}"]

def init_srd(k):
    k("s_mov_b32 s74, 256"); k("s_mov_b32 s75, 0x20000")

def wait_init(k):
    lab = k.lab(k.uniq("in")); loop = lab + "_l"
    k("v_mov_b32 v5, 0"); k(f"s_mov_b32 s{SG2}, 0")
    k.L.append(loop + ":")
    k("buffer_load_dword v6, v5, s[72:75], 0 offen sc1")
    k(f"s_add_u32 s{SG2}, s{SG2}, 1")
    k("s_waitcnt vmcnt(0)")
    k("v_cmp_eq_u32 vcc, 0, v6")
    k(f"s_cmp_gt_u32 s{SG2}, {SPIN_LIMIT}"); k(f"s_cbranch_scc1 {lab}")
    k(f"s_cbranch_vccnz {loop}")
    k.L.append(lab + ":")

def vm_after(vm):
    return vm

def kv_wait_touch(k):
    a_, b_, c_ = k.lab("kvt0"), k.lab("kvt1"), k.lab("kvt2")
    k("s_cmp_lt_u32 s2, 8"); k(f"s_cbranch_scc1 {a_}")
    k("s_waitcnt vmcnt(1)"); k(f"s_branch {c_}")
    k.L.append(a_ + ":")
    k("s_cmp_eq_u32 s10, 3"); k(f"s_cbranch_scc1 {b_}")
    k("s_waitcnt vmcnt(4)"); k(f"s_branch {c_}")
    k.L.append(b_ + ":")
    k("s_waitcnt vmcnt(8)")
    k.L.append(c_ + ":")

def page_touch(k):
    lab = k.lab("notouch")
    k("s_cmp_ge_u32 s2, 8"); k(f"s_cbranch_scc1 {lab}")
    k(f"s_mov_b32 s26, {TOUCH}"); k("v_mul_lo_u32 v179, v1, s26")
    k("s_cmp_eq_u32 s10, 3"); k(f"s_cbranch_scc1 {k.lab('touch3')}")
    k(f"s_mul_i32 s27, s10, {192*TOUCH}")
    for j in range(3):
        k("buffer_load_dword v186, v179, s[12:15], s27 offen"); k(f"s_add_u32 s27, s27, {64*TOUCH}")
    k(f"s_branch {lab}")
    k.label("touch3")
    k("buffer_load_dword v186, v179, s[16:19], 0 offen"); k("buffer_load_dword v186, v179, s[20:23], 0 offen")
    k("s_mov_b32 s87x, 0".replace("s87x", "s27"))
    for lo, n in ((42, MB), (76, D*D*2), (78, D*D*2), (80, D*F*2), (82, D*F*2)):
        k(f"s_mov_b32 s48, s{lo}"); k(f"s_mov_b32 s49, s{lo+1}"); k(f"s_mov_b32 s50, {n}"); k("s_mov_b32 s51, 0x20000")
        k("buffer_load_dword v186, v179, s[48:51], 0 offen")
    k.L.append(lab + ":")

def kv_issue(k, vm):
    k("s_sub_u32 s29, s2, 160"); k("s_cmp_lt_u32 s29, 78"); k("s_cselect_b32 s29, 2, 1")
    for j in range(2):
        k(f"s_add_u32 s26, s2, {82*j}")
        k("s_mul_hi_u32 s27, s26, 0x1999999a"); k("s_mul_i32 s28, s27, 10"); k("s_sub_u32 s28, s26, s28")
        k(f"s_lshl_b32 s{30+2*j}, s27, 6"); k(f"s_lshl_b32 s{31+2*j}, s28, 6")
    k("v_lshrrev_b32 v5, 3, v0"); k("v_and_b32 v6, 7, v0"); k("v_lshlrev_b32 v6, 4, v6")
    k("s_waitcnt lgkmcnt(0)")
    k.srd(48, 36, MB); k.srd(52, 38, MB); k.srd(56, 40, D*8)
    k("s_lshl_b32 s26, s10, 10"); k("s_mov_b32 s27, 40960")
    for j in range(2):
        b = j*KVL
        if j == 1: k("s_cmp_lt_u32 s29, 2"); k(f"s_cbranch_scc1 {k.lab('kv1')}")
        k(f"v_add_u32 v{8+j}, s{30+2*j}, v5"); k(f"v_mul_u32_u24 v{8+j}, 1280, v{8+j}")
        k(f"s_lshl_b32 s28, s{31+2*j}, 1"); k(f"v_add3_u32 v{8+j}, v{8+j}, v6, s28")
        k(f"v_subrev_u32 v{10+j}, 3840, v{8+j}")
        G = [[f"s_add_u32 m0, s26, {b}", "s_nop 0", f"buffer_load_dwordx4 v{10+j}, s[48:51], 0 offen lds"],
             [f"s_add_u32 m0, s26, {b + 4096}", f"v_add_u32 v7, 40960, v{10+j}", "buffer_load_dwordx4 v7, s[48:51], 0 offen lds"],
             [f"s_add_u32 m0, s26, {b + 9216}", "s_nop 0", f"buffer_load_dwordx4 v{8+j}, s[52:55], 0 offen lds"],
             [f"s_add_u32 m0, s26, {b + 13312}", "s_nop 0", f"buffer_load_dwordx4 v{8+j}, s[52:55], s27 offen lds"],
             [f"s_mov_b32 m0, {b + 8192}", "v_lshrrev_b32 v7, 3, v1", f"v_add_u32 v7, s{30+2*j}, v7", "v_mul_u32_u24 v7, 1280, v7",
              "v_and_b32 v18, 7, v1", "v_lshlrev_b32 v18, 4, v18", f"s_lshl_b32 s28, s{31+2*j}, 1", "v_add3_u32 v7, v7, v18, s28",
              "v_add_u32 v7, 78080, v7", "buffer_load_dwordx4 v7, s[48:51], 0 offen lds"],
             [f"v_add_u32 v{16+j}, s{31+2*j}, v1", f"v_lshlrev_b32 v{16+j}, 3, v{16+j}", f"buffer_load_dwordx2 {v(12+2*j,2)}, v{16+j}, s[56:59], 0 offen"]]
        for g in G:
            if j == 0: vm.issue(g, "kv")
            else:
                for ln in g: k(ln)
    k.label("kv1")

def kv_compute(k):
    k("v_and_b32 v10, 15, v1"); k("v_lshrrev_b32 v11, 2, v10"); k("s_lshl_b32 s42, s10, 4"); k("v_add_u32 v11, s42, v11")
    k("v_lshlrev_b32 v11, 7, v11"); k("v_and_b32 v10, 3, v10"); k("v_lshlrev_b32 v10, 3, v10"); k("v_lshlrev_b32 v16, 5, v3")
    k("v_add3_u32 v11, v11, v10, v16")
    k("s_mov_b32 s45, 0"); k("s_mov_b32 s46, 0xffff0000"); k(f"s_mov_b32 s47, {KVO}")
    k(".p2align 3")
    k.label("kvloop")
    k("v_mul_u32_u24 v9, 144, v1"); k("s_lshl_b32 s43, s10, 5"); k(f"s_sub_u32 s43, {KVO + 96}, s43"); k("v_add_u32 v9, s43, v9")
    KR = 16; VR = 26; KF = 38
    for i in range(5): k(f"ds_read_b64_tr_b16 {v(KR+2*i,2)}, v11 offset:{512*i}")
    for i in range(4): k(f"ds_read_b64_tr_b16 {v(VR+2*i,2)}, v11 offset:{9216+512*i}")
    k("v_lshlrev_b32 v34, 16, v12"); k("v_and_b32 v35, s46, v12"); k("v_lshlrev_b32 v36, 16, v13"); k("v_and_b32 v37, s46, v13")
    k("s_waitcnt lgkmcnt(4)")
    for i in range(10):
        k(f"v_lshlrev_b32 v{KF+2*i}, 16, v{KR+i}"); k(f"v_and_b32 v{KF+2*i+1}, s46, v{KR+i}")
    k("s_waitcnt lgkmcnt(0)")
    OUTR = 58
    for half in (1, 0):
        for pr in range(4):
            es = (8*half + 7 - 2*pr, 8*half + 6 - 2*pr)
            for j, e in enumerate(es):
                t = 16 + j
                k(f"v_mul_f32 v{t}, v34, v{KF+e+3}"); k(f"v_fmac_f32 v{t}, v35, v{KF+e+2}")
                k(f"v_fmac_f32 v{t}, v36, v{KF+e+1}"); k(f"v_fmac_f32 v{t}, v37, v{KF+e}")
                vr = VR + e//2
                if e % 2 == 0: k(f"v_lshlrev_b32 v{18+j}, 16, v{vr}")
                else: k(f"v_and_b32 v{18+j}, s46, v{vr}")
                k(f"v_mul_f32 v{t}, v{t}, v{18+j}")
            k(f"v_cvt_pk_bf16_f32 v{OUTR+pr}, v16, v17")
        k(f"ds_write_b128 v9, {v(OUTR,4)} offset:{16*(1-half)}")
        OUTR = 20
    k("v_lshrrev_b32 v5, 3, v1"); k("v_add_u32 v5, s42, v5"); k("v_and_b32 v6, 7, v1"); k("v_lshlrev_b32 v6, 4, v6")
    k("v_mul_u32_u24 v7, 144, v5"); k(f"v_add3_u32 v7, v7, v6, s47")
    k("v_add_u32 v5, s31, v5"); k("v_lshlrev_b32 v5, 12, v5"); k("v_add_u32 v5, v5, v6")
    k("s_sub_u32 s43, 1984, s30"); k("s_lshl_b32 s43, s43, 1"); k(f"s_add_u32 s43, s43, {UR}"); k("s_add_u32 s44, s43, 32768")
    k("s_waitcnt lgkmcnt(0)")
    k("s_barrier")
    k("ds_read_b128 v[16:19], v7"); k("ds_read_b128 v[20:23], v7 offset:1152")
    k("s_waitcnt lgkmcnt(1)")
    k("buffer_store_dwordx4 v[16:19], v5, s[12:15], s43 offen sc1")
    k("s_waitcnt lgkmcnt(0)")
    k("buffer_store_dwordx4 v[20:23], v5, s[12:15], s44 offen sc1")
    k("s_add_u32 s45, s45, 1"); k("s_cmp_ge_u32 s45, s29"); k(f"s_cbranch_scc1 {k.lab('kvexit')}")
    k("s_waitcnt vmcnt(4)")
    k("s_barrier")
    k("s_mov_b32 s30, s32"); k("s_mov_b32 s31, s33")
    k("v_mov_b32 v12, v14"); k("v_mov_b32 v13, v15"); k(f"v_add_u32 v11, {KVL}, v11")
    k(f"s_branch {k.lab('kvloop')}")
    k.label("kvexit")

HB = 128; E = 168
def conv_h_issue(k, vm):
    k("s_lshl_b32 s83, s2, 2"); k("s_add_u32 s83, s83, s10")
    k("s_lshl_b32 s35, s83, 12")
    k(f"s_mul_i32 s82, s10, {WREG}"); k(f"s_add_u32 s82, s82, {CONVL}")
    k("v_subrev_u32 v5, 32, v4"); k("v_add_u32 v6, 16, v5")
    k("s_lshl_b32 s28, s83, 1"); k("v_mov_b32 v19, s28")
    k("s_add_u32 s76, s76, s35"); k("s_addc_u32 s77, s77, 0")
    k("s_mov_b32 s78, 4096"); k("s_mov_b32 s79, 0x20000")
    for q in range(5):
        vm.issue([f"buffer_load_dwordx4 {v(HB+8*q,4)}, v5, s[76:79], 0 offen"], ("h", q))
        vm.issue([f"buffer_load_dword v{HB+8*q+4}, v6, s[76:79], 0 offen"] + (["v_add_u32 v5, 1024, v5", "v_add_u32 v6, 1024, v6"] if q < 4 else []), ("h", q))
    k("v_subrev_u32 v5, 32, v4")
    vm.issue(["s_add_u32 m0, s82, 4608", "s_nop 0", "buffer_load_dwordx4 v5, s[76:79], 0 offen lds"], "h0")
    k("s_add_u32 m0, s82, %d" % (4608 + 1024)); k("v_add_u32 v5, 1024, v5")
    for q in range(3): vm.issue([f"buffer_load_dwordx4 v5, s[76:79], 0 offen offset:{1024*q} lds"], "h0")
    k("s_add_u32 m0, s82, %d" % (4608 + 4096)); k("v_add_u32 v5, 3072, v5")
    vm.issue(["s_mov_b64 exec, 15", "buffer_load_dwordx4 v5, s[76:79], 0 offen lds", "s_mov_b64 exec, -1"], "h0")
    k("s_mov_b32 s44, s80"); k("s_mov_b32 s45, s81"); k(f"s_mov_b32 s46, {D*2}"); k("s_mov_b32 s47, 0x20000")
    vm.issue(["buffer_load_ushort v176, v19, s[44:47], 0 offen"], "D")

def conv_h_copy1(k):
    k("s_add_u32 s42, s82, %d" % (4608 + CPY)); k("v_add_u32 v5, s42, v4")
    for q in range(5):
        x = HB + 8*q
        if q == 4: k("s_mov_b64 exec, 15")
        for i in range(4): k(f"v_alignbit_b32 v{E+4*(q%2)+i}, v{x+i+1}, v{x+i}, 16")
        k(f"ds_write_b128 v5, {v(E+4*(q%2),4)} offset:{1024*q}")
    k("s_mov_b64 exec, -1")

def conv_main(k, prefetch_items, wloop):
    vm = VM(k)
    k(f"s_lshl_b32 s35, s83, 12"); k(f"s_add_u32 s36, s35, {UR}")
    k("s_mov_b32 m0, s82"); k("s_nop 0")
    for j in range(4): vm.issue([f"buffer_load_dwordx4 v4, s[12:15], s36 offen offset:{1024*j} sc1 lds"], "ur")
    k("v_mov_b32 v8, 0"); k("v_mov_b32 v9, 0"); k("v_lshlrev_b32 v7, 3, v1"); k("v_add_u32 v7, s82, v7")
    k("ds_write_b64 v7, v[8:9] offset:4096")
    k("v_add_u32 v13, 1, v2"); k("v_and_b32 v14, 1, v13"); k(f"v_mul_u32_u24 v12, {CPY}, v14")
    k("v_sub_u32 v13, v13, v14"); k("v_lshlrev_b32 v13, 1, v13"); k("v_lshl_add_u32 v13, v3, 4, v13")
    k("s_add_u32 s38, s82, 4608"); k("v_add3_u32 v12, v12, v13, s38")
    for j in range(1, 4): k(f"v_add_u32 v{103+j}, {1024*j}, v12")
    k("v_lshlrev_b32 v13, 5, v2"); k("v_lshlrev_b32 v14, 4, v3"); k("v_sub_u32 v13, v14, v13")
    k("s_add_u32 s39, s82, 480"); k("v_add_u32 v13, s39, v13")
    AP = 100
    k("v_sub_u32 v16, 15, v2"); k("v_lshrrev_b32 v17, 3, v16"); k("v_and_b32 v16, 7, v16")
    k("v_and_b32 v18, 1, v16"); k("v_lshlrev_b32 v18, 4, v18"); k("v_lshlrev_b32 v18, v18, v176")
    k("v_cmp_eq_u32 vcc, v17, v3"); k("v_cndmask_b32 v18, 0, v18, vcc"); k("v_lshrrev_b32 v16, 1, v16")
    for r in range(4):
        k(f"v_cmp_eq_u32 vcc, {r}, v16"); k(f"v_cndmask_b32 v{AP+r}, 0, v18, vcc")
    ACC = 16; A0 = 48; A1 = 112; B0 = 144; B1 = 176
    AR = (12, 104, 105, 106)
    def loads(A, B, rho):
        L = []
        for d in range(8): L.append(f"ds_read_b128 {v(B+4*d,4)}, v13 offset:{64*rho + 512*(7-d)}")
        for m in range(8):
            o = 128*(m % 2) + 16*rho
            L.append(f"ds_read2_b32 {v(A+4*m,2)}, v{AR[m//2]} offset0:{o} offset1:{o+1}")
            L.append(f"ds_read2_b32 {v(A+4*m+2,2)}, v{AR[m//2]} offset0:{o+2} offset1:{o+3}")
        return L
    pq = TQ(vm, prefetch_items)
    vm.wait(lambda t: t == "ur", " lgkmcnt(0)")
    k.stamp("ur")
    for ln in loads(A0, B0, 0): k(ln)
    k("s_waitcnt lgkmcnt(0)")
    for t in range(8): k(f"v_mfma_f32_16x16x32_bf16 {v(ACC+4*t,4)}, {v(AP,4)}, {v(B0+4*t,4)}, 0")
    pairs = [(m, d) for m in range(8) for d in range(8 - m)]
    for rho in range(8):
        A, B = (A0, B0) if rho % 2 == 0 else (A1, B1)
        An, Bn = (A1, B1) if rho % 2 == 0 else (A0, B0)
        nxt = loads(An, Bn, rho + 1) if rho < 7 else []
        if wloop:
            if rho == WSTART - 1: vm.issue(cpa_sample(), "cpa")
            if rho == WSTART:
                pq.flush(); vm.wait(lambda t: t == "cpa"); cpa_check(k); pq.items = list(wloop)
        elif rho == 7: pq.flush(); vm.issue(cpa_sample(), "cpa")
        for idx, (m, d) in enumerate(pairs):
            k(f"v_mfma_f32_16x16x32_bf16 {v(ACC+4*(m+d),4)}, {v(A+4*m,4)}, {v(B+4*d,4)}, {v(ACC+4*(m+d),4)}")
            if idx < len(nxt): k(nxt[idx])
            if rho >= PFSTART and idx % (PFGAP if (rho < WSTART or not wloop) else WGAP) == 1: pq.pop()
        k("s_waitcnt lgkmcnt(0)")
    pq.flush()
    k.stamp("loop")
    k("v_lshlrev_b32 v14, 5, v2"); k("v_lshl_add_u32 v14, v3, 3, v14"); k("v_add_u32 v14, s82, v14")
    for t in range(8):
        k(f"v_cvt_pk_bf16_f32 v{A0+2*t}, v{ACC+4*t}, v{ACC+4*t+1}"); k(f"v_cvt_pk_bf16_f32 v{A0+2*t+1}, v{ACC+4*t+2}, v{ACC+4*t+3}")
        k(f"ds_write_b64 v14, {v(A0+2*t,2)} offset:{512*t}")
    k("v_add_u32 v15, s82, v4")
    k("s_waitcnt lgkmcnt(0)")
    for j in range(4): k(f"ds_read_b128 {v(B0+4*j,4)}, v15 offset:{1024*j}")
    k(f"s_add_u32 s36, s35, {YT}")
    for j in range(4):
        k(f"s_waitcnt lgkmcnt({3-j})")
        vm.issue([f"buffer_store_dwordx4 {v(B0+4*j,4)}, v4, s[12:15], s36 offen offset:{1024*j} sc1"], "S")
    return vm, pq

def wtask_issue(k, tag, ldsbase):
    k("s_mov_b32 s51, 0x20000")
    k("s_lshl_b32 s34, s10, 14"); k(f"s_add_u32 s34, s34, {ldsbase}")
    k("v_lshrrev_b32 v5, 3, v1"); k("v_and_b32 v6, 7, v1"); k("v_lshlrev_b32 v6, 4, v6")
    k("s_lshl_b32 s47, s41, 5"); k("v_add_u32 v5, s47, v5"); k("v_mul_lo_u32 v5, v5, s40")
    k("s_lshl_b32 s47, s42, 7"); k("v_add3_u32 v5, v5, v6, s47")
    k("s_lshl_b32 s52, s40, 3"); k("s_lshl_b32 s53, s43, 2"); k("s_mov_b32 s54, s34")
    k.label("wld" + tag)
    k("s_mov_b32 m0, s54"); k("s_sub_u32 s53, s53, 1")
    k("buffer_load_dwordx4 v5, s[48:51], 0 offen lds")
    k("v_add_u32 v5, s52, v5"); k("s_add_u32 s54, s54, 1024")
    k("s_cmp_lg_u32 s53, 0"); k(f"s_cbranch_scc1 {k.lab('wld' + tag)}")

def wtask_finish(k, tag, nxt):
    k("v_lshlrev_b32 v5, 10, v3"); k("v_bfe_u32 v6, v1, 2, 2"); k("v_lshl_add_u32 v5, v6, 7, v5")
    k("v_and_b32 v6, 3, v1"); k("v_lshl_add_u32 v5, v6, 4, v5"); k("v_add_u32 v5, s34, v5")
    k("s_lshl_b32 s47, s42, 2"); k("s_mul_i32 s47, s47, s45"); k("s_add_u32 s47, s47, s41"); k("s_lshl_b32 s47, s47, 10")
    k("s_add_u32 s47, s47, s44"); k("s_lshl_b32 s55, s45, 10")
    for r in range(4): k(f"v_mov_b32 v{24+r}, 0")
    k("s_mov_b32 s52, 0x3f803f80"); k("s_mov_b32 s53, 0")
    k.stamp("wiss" + tag)
    k("s_waitcnt vmcnt(0)")
    k.stamp("wld" + tag)
    k.label("wtr" + tag)
    for t in range(4):
        o = 64*(t//2) + 8*(t % 2)
        k(f"ds_read_b64_tr_b16 {v(8+4*t,2)}, v5 offset:{o}"); k(f"ds_read_b64_tr_b16 {v(10+4*t,2)}, v5 offset:{o+512}")
    k("v_add_u32 v5, 4096, v5"); k("s_add_u32 s53, s53, 1")
    k("s_mov_b32 s54, s47")
    for t in range(4):
        k(f"s_waitcnt lgkmcnt({6 - 2*t})")
        k(f"buffer_store_dwordx4 {v(8+4*t,4)}, v4, s[12:15], s54 offen sc1")
        if t < 3: k("s_add_u32 s54, s54, s55")
    for r in range(4):
        for t in range(4): k(f"v_dot2_f32_bf16 v{24+t}, v{8+4*t+r}, s52, v{24+t}")
    k("s_add_u32 s47, s47, 1024")
    k("s_cmp_lt_u32 s53, s43"); k(f"s_cbranch_scc1 {k.lab('wtr' + tag)}")
    k("s_cmp_ge_u32 s46, 5"); k(f"s_cbranch_scc1 {nxt}")
    for t in range(4): k(f"v_mov_b32 v{28+t}, v{24+t}")
    for t in range(4): k(f"v_permlane32_swap_b32 v{24+t}, v{28+t}")
    for t in range(4): k(f"v_add_f32 v{24+t}, v{24+t}, v{28+t}")
    for t in range(4): k(f"v_mov_b32 v{28+t}, v{24+t}")
    for t in range(4): k(f"v_permlane16_swap_b32 v{24+t}, v{28+t}")
    for t in range(4): k(f"v_add_f32 v{24+t}, v{24+t}, v{28+t}")
    k(f"s_mul_i32 s47, s46, {F*4}"); k("s_lshl_b32 s52, s42, 8"); k("s_add_u32 s47, s47, s52"); k(f"s_add_u32 s47, s47, {CS3}")
    k("v_lshlrev_b32 v6, 2, v2")
    k("s_mov_b64 exec, 0xffff")
    for t in range(4): k(f"buffer_store_dword v{24+t}, v6, s[12:15], s47 offen offset:{64*t} sc1")
    k("s_mov_b64 exec, -1")
    k(f"s_branch {nxt}")

def w1_params(k):
    k("s_sub_u32 s35, s2, 242"); k("s_lshl_b32 s35, s35, 2"); k("s_add_u32 s35, s35, s10")
    k("s_mov_b32 s48, s76"); k("s_mov_b32 s49, s77")
    k(f"s_mov_b32 s50, {D*D*2}"); k("s_mov_b32 s40, 1280"); k(f"s_mov_b32 s44, {W1T}"); k("s_mov_b32 s45, 20"); k("s_mov_b32 s46, 5")
    k("s_mul_hi_u32 s41, s35, 0x1999999a"); k("s_mul_i32 s42, s41, 10"); k("s_sub_u32 s42, s35, s42"); k("s_mov_b32 s43, 4"); k("s_lshl_b32 s41, s41, 2")

def prep_part(k, pre_items_setup):
    if QWARM:
        k("s_sub_u32 s33, s2, 160"); k("s_cmp_ge_u32 s33, 64"); k(f"s_cbranch_scc1 {k.lab('noq')}")
        k("s_cmp_eq_u32 s10, 0"); k(f"s_cbranch_scc1 {k.lab('noq')}")
        k("s_mul_i32 s33, s33, 3"); k("s_add_u32 s33, s33, s10"); k("s_sub_u32 s33, s33, 1"); k("s_mul_i32 s33, s33, 14336")
        for i in range(14):
            k(f"buffer_load_dwordx4 v[32:35], v4, s[16:19], s33 offen offset:{1024*(i%4)}")
            if i % 4 == 3: k("s_add_u32 s33, s33, 4096")
    k.label("noq")
    k.label("roundB")
    qitems, witems = pre_items_setup()
    k("s_sub_u32 s33, s2, 160"); k("s_lshl_b32 s33, s33, 2"); k("s_add_u32 s33, s33, s10")
    k("s_mov_b32 s43, 0")
    k("s_cmp_ge_u32 s33, 325"); k(f"s_cbranch_scc1 {k.lab('noB')}")
    k("s_mov_b32 s46, 5"); k("s_mov_b32 s43, 4")
    k("s_cmp_ge_u32 s33, 50"); k(f"s_cbranch_scc1 {k.lab('pw3')}")
    k("s_mov_b32 s48, s78"); k("s_mov_b32 s49, s79"); k(f"s_mov_b32 s50, {D*D*2}"); k("s_mov_b32 s40, 1280"); k(f"s_mov_b32 s44, {W2T}"); k("s_mov_b32 s45, 20")
    k("s_mul_hi_u32 s41, s33, 0x1999999a"); k("s_mul_i32 s42, s41, 10"); k("s_sub_u32 s42, s33, s42"); k("s_lshl_b32 s41, s41, 2")
    k(f"s_branch {k.lab('wtB')}")
    k.label("pw3")
    k("s_cmp_ge_u32 s33, 185"); k(f"s_cbranch_scc1 {k.lab('pw4')}")
    k("s_sub_u32 s35, s33, 50")
    k("s_mov_b32 s48, s80"); k("s_mov_b32 s49, s81"); k(f"s_mov_b32 s50, {D*F*2}"); k(f"s_mov_b32 s40, {F*2}"); k(f"s_mov_b32 s44, {W3T}"); k("s_mov_b32 s45, 20")
    k("s_mul_hi_u32 s46, s35, 0x97b425f"); k("s_mul_i32 s42, s46, 27"); k("s_sub_u32 s42, s35, s42"); k("s_lshl_b32 s41, s46, 2")
    k(f"s_branch {k.lab('wtB')}")
    k.label("pw4")
    k("s_sub_u32 s35, s33, 185")
    k("s_mov_b32 s48, s82"); k("s_mov_b32 s49, s83"); k(f"s_mov_b32 s50, {D*F*2}"); k("s_mov_b32 s40, 1280"); k(f"s_mov_b32 s44, {W4T}"); k("s_mov_b32 s45, 54")
    k("s_mul_hi_u32 s41, s35, 0x1999999a"); k("s_mul_i32 s42, s41, 10"); k("s_sub_u32 s42, s35, s42")
    k("s_cmp_eq_u32 s41, 13"); k("s_cselect_b32 s43, 2, 4"); k("s_lshl_b32 s41, s41, 2")
    k.label("wtB")
    wtask_issue(k, "B", 45056)
    k.label("noB")
    for g, t in qitems:
        for ln in g: k(ln)
    for ln in cpa_sample(): k(ln)
    doneB = k.lab("doneB")
    k("s_cmp_eq_u32 s43, 0"); k(f"s_cbranch_scc1 {doneB}")
    wtask_finish(k, "B", doneB)
    k.L.append(doneB + ":")
    k.stamp("doneB")
    signal(k, None, None, [f"s_mov_b32 s{SG}, {CPB}"], 96, [f"s_mov_b32 s{SG}, {FALL + 9*128}"])
    p2.p2_qstats(k, lambda: None)
    cpa_check(k)
    return witems

def mega():
    pc.SC = " sc1"; pc.SS = " sc1"
    k = Kern("block_kernel", vgpr=256, agpr=256, sgpr=96)
    k.only = ONLY
    k("s_cmp_ge_u32 s2, 256"); k(f"s_cbranch_scc1 {k.lab('end')}")
    k.stamp_begin()
    k(f"s_load_dwordx8 s[36:43], s[0:1], {A_K}")
    k(f"s_load_dwordx2 s[44:45], s[0:1], {A_D}")
    k(f"s_load_dwordx8 s[76:83], s[0:1], {B_W1}")
    k(f"s_load_dwordx2 s[72:73], s[0:1], {DBG}")
    prologue(k)
    pre_items_setup = lambda: (p2.p2_pre_setup(k), p2.p2_pre_items(k))[1]
    def common_setup():
        p2.p2_setup(k); p3.p35_setup(k, 26)
        k.srd(12, 4, WS_END); k.srd(16, 8, MB); k.srd(20, 6, MB)
        init_srd(k)
    k("s_cmp_lt_u32 s2, 242"); k(f"s_cbranch_scc1 {k.lab('kvwg')}")
    k("s_waitcnt lgkmcnt(0)")
    common_setup()
    k("s_cmp_eq_u32 s2, 255"); k(f"s_cbranch_scc1 {k.lab('zero')}")
    k(f"s_branch {k.lab('w1only')}")
    k.label("kvwg")
    vm = VM(k)
    kv_issue(k, vm)
    common_setup()
    if TOUCH: page_touch(k)
    k("s_cmp_ge_u32 s2, 160"); k(f"s_cbranch_scc1 {k.lab('keepw')}")
    k("s_mov_b32 s76, s42"); k("s_mov_b32 s77, s43"); k("s_mov_b32 s80, s44"); k("s_mov_b32 s81, s45")
    k.label("keepw")
    vm.issue(code_prefetch_group(k, k.lab("code0"), k.lab("end"), "z", 180, sreg=26), "pf")
    k.label("code0")
    k.stamp("kvissued")
    k("s_cmp_lt_u32 s29, 2"); k(f"s_cbranch_scc1 {k.lab('kvw1')}")
    k("s_waitcnt vmcnt(7)")
    k(f"s_branch {k.lab('kvw2')}")
    k.label("kvw1")
    if TOUCH: k("s_waitcnt vmcnt(8)") if False else kv_wait_touch(k)
    else: vm.wait(lambda t: t == "kv")
    k.label("kvw2")
    k("s_barrier")
    k.stamp("kvin")
    k("v_mov_b32 v178, 0")
    k("buffer_load_dword v177, v178, s[72:75], 0 offen sc1")
    vmh = VM(k)
    k("s_cmp_ge_u32 s2, 160"); k(f"s_cbranch_scc1 {k.lab('noh')}")
    conv_h_issue(k, vmh)
    k.label("noh")
    kv_compute(k)
    k.stamp("kvdone")
    k("s_waitcnt vmcnt(0)")
    k.stamp("kvdrain")
    ok = k.lab("initok")
    k("v_cmp_eq_u32 vcc, 0, v177"); k(f"s_cbranch_vccz {ok}")
    wait_init(k)
    k.L.append(ok + ":")
    k("s_barrier")
    tile_cnt = lambda add: [f"s_add_u32 s84, s2, {add}", "s_mul_hi_u32 s85, s84, 0x1999999a", "s_mul_i32 s28, s85, 10", "s_sub_u32 s84, s84, s28",
                            "s_lshl_b32 s84, s84, 2", "s_and_b32 s85, s85, 3", "s_add_u32 s84, s84, s85", "s_lshl_b32 s84, s84, 7", f"s_add_u32 s84, s84, {C0}"]
    atomic_signal(k, tile_cnt(0), k.lab("sigc0"), None)
    k("s_cmp_lt_u32 s29, 2"); k(f"s_cbranch_scc1 {k.lab('sigc0b')}")
    atomic_signal(k, tile_cnt(82), k.lab("sigc0c"), None)
    k.label("sigc0b")
    k.stamp("kvsig")
    k("s_cmp_ge_u32 s2, 160"); k(f"s_cbranch_scc1 {k.lab('prep')}")
    conv_h_copy1(k)
    qitems, witems = pre_items_setup()
    if QEARLY:
        for g, t in qitems:
            for ln in g: k(ln)
        qitems = []
    wait_counters(k, None, ["s_lshr_b32 s84, s2, 4", "s_lshl_b32 s84, s84, 9", f"s_add_u32 s84, s84, {C0}", "v_and_b32 v5, 3, v1", "v_lshlrev_b32 v5, 7, v5", "v_add_u32 v5, s84, v5"],
                  ["v_mov_b32 v7, 8"], False)
    k.stamp("s0")
    vm, pq = conv_main(k, qitems, witems[:NWLOOP])
    k.stamp("convdone")
    lab = k.lab("sigc1")
    p2.p2_qstats(k, (lambda: None) if QEARLY else (lambda: vm.wait(lambda t: t == "q")))
    vm.wait(lambda t: t == "S"); k("s_barrier")
    cpa_check(k)
    if S1DIRECT:
        atomic_signal(k, [f"s_lshr_b32 s{SG}, s2, 3", f"s_lshl_b32 s{SG}, s{SG}, 7", f"s_add_u32 s{SG}, s{SG}, {C1D}"], lab, None)
    else:
        atomic_signal(k, own_shard(C1), lab, 20, [f"s_and_b32 s{SG}, s2, 7", f"s_lshl_b32 s{SG}, s{SG}, 7", f"s_add_u32 s{SG}, s{SG}, {FALL}"])
    k(f"s_branch {k.lab('wconv') if NWLOOP else k.lab('wfirst')}")
    k.label("w1only")
    w1_params(k)
    doneA = k.lab("doneA")
    k("s_cmp_ge_u32 s35, 50"); k(f"s_cbranch_scc1 {doneA}")
    wtask_issue(k, "A", 0)
    wtask_finish(k, "A", doneA)
    k.L.append(doneA + ":")
    k.stamp("doneA")
    signal(k, None, None, [f"s_mov_b32 s{SG}, {CPA}"], 13, [f"s_mov_b32 s{SG}, {FALL + 8*128}"], first=True)
    k(f"s_branch {k.lab('prep')}")
    k.label("zero")
    k("v_mov_b32 v8, 0"); k("v_mov_b32 v9, 0"); k("v_mov_b32 v10, 0"); k("v_mov_b32 v11, 0")
    k("v_lshlrev_b32 v5, 4, v0"); k(f"s_mov_b32 s35, {CNT}")
    for j in range(9):
        k("buffer_store_dwordx4 v[8:11], v5, s[12:15], s35 offen sc1"); k("s_add_u32 s35, s35, 4096")
    k("s_waitcnt vmcnt(0)")
    k("s_barrier")
    k("v_mov_b32 v5, 0"); k("v_mov_b32 v6, 1")
    k("s_cmp_lg_u32 s10, 0"); k(f"s_cbranch_scc1 {k.lab('prep')}")
    k("s_mov_b64 exec, 1")
    k("buffer_store_dword v6, v5, s[72:75], 0 offen sc1")
    k("s_mov_b64 exec, -1")
    k.label("prep")
    witems = prep_part(k, pre_items_setup)
    k.label("wfirst")
    k.stamp("cpa")
    for g, t in witems[:NWLOOP]:
        for ln in g: k(ln)
    k.label("wconv")
    for g, t in witems[NWLOOP:max(NWA, NWLOOP)]:
        for ln in g: k(ln)
    p3.p3_pre_setup(k)
    if S1DIRECT:
        wait_counters(k, None, ["v_min_u32 v5, 19, v1", "v_lshlrev_b32 v5, 7, v5", f"v_add_u32 v5, {C1D}, v5", f"v_mov_b32 v6, {FALL + 9*128}",
                                "v_cmp_lt_u32 vcc, 19, v1", "v_cndmask_b32 v5, v5, v6, vcc"], ["v_mov_b32 v7, 8", "v_cndmask_b32 v7, v7, 1, vcc"], False)
    else:
        wait_counters(k, None, ["v_min_u32 v5, 9, v1", "v_lshlrev_b32 v5, 7, v5", f"v_add_u32 v5, {FALL}, v5"], ["v_mov_b32 v7, 1"], False)
    k.stamp("s1")
    early = [(g, "E") for g in p3.p3_pre_early(k)]
    vm, nq = p2.p2_main(k, witems[max(NWA, NWLOOP):], [(code_prefetch_group(k, k.lab('ph3'), k.lab('ph4'), 'a', 136), "pf")], p3.p3_pre_late, early)
    k.stamp("p2done")
    signal(k, vm, nq, [f"s_lshl_b32 s{SG}, s{p2.TT}, 7", f"s_add_u32 s{SG}, s{SG}, {C2}"], None)
    k.label("ph3")
    p4.p4_setup(k); p4.p4_pre_setup(k)
    wait_counters(k, nq, [f"s_lshl_b32 s{SG}, s{p3.T64}, 1", f"s_sub_u32 s{SG}, s{SG}, 1", "v_and_b32 v5, 3, v1", f"v_add_u32 v5, s{SG}, v5",
                          "v_and_b32 v5, 63, v5", "v_lshlrev_b32 v5, 7, v5", f"v_add_u32 v5, {C2}, v5"], ["v_mov_b32 v7, 4"], True, mid=MID[0])
    k.stamp("s2")
    early = [(g, "E") for g in p4.p4_pre_early(k)]
    vm, nq = p3.p3_main(k, [(code_prefetch_group(k, k.lab('ph4'), k.lab('ph5'), 'b', 184), "pf")], p4.p4_pre_late, early)
    k.stamp("p3done")
    signal(k, vm, nq, [f"s_lshr_b32 s{SG}, s{p3.T64}, 1", f"s_lshl_b32 s{SG}, s{SG}, 2", f"s_lshr_b32 s{SG2}, s{p3.FC}, 1", f"s_add_u32 s{SG}, s{SG}, s{SG2}",
                          f"s_lshl_b32 s{SG}, s{SG}, 7", f"s_add_u32 s{SG}, s{SG}, {C3}"], None)
    k.label("ph4")
    p5.p5_pre_setup(k)
    wait_counters(k, nq, [f"s_lshl_b32 s{SG}, s{p4.T128}, 9", f"s_add_u32 s{SG}, s{SG}, {C3}", "v_and_b32 v5, 3, v1", "v_lshlrev_b32 v5, 7, v5", f"v_add_u32 v5, s{SG}, v5"], ["v_mov_b32 v7, 4"],
                  True, p4.p4_cs_table, mid=MID[1])
    k.stamp("s3")
    early = [(g, "E") for g in p5.p5_pre_early(k)]
    vm, nq = p4.p4_main(k, [(code_prefetch_group(k, k.lab('ph5'), k.lab('end'), 'c', 88), "pf")], p5.p5_pre_late, early,
                        follow=[(g, "F") for g in p5.p5_pre_late(k)[:NFOLLOW]], nfollow=NFOLLOW)
    k.stamp("p4done")
    signal(k, vm, nq, [f"s_lshl_b32 s{SG}, s{p4.T128}, 2", f"s_lshr_b32 s{SG2}, s{p4.COL}, 2", f"s_add_u32 s{SG}, s{SG}, s{SG2}",
                          f"s_lshl_b32 s{SG}, s{SG}, 7", f"s_add_u32 s{SG}, s{SG}, {C4}"], None)
    k.label("ph5")
    wait_counters(k, nq, [f"s_lshr_b32 s{SG}, s{p3.T64}, 1", f"s_lshl_b32 s{SG}, s{SG}, 9", f"s_add_u32 s{SG}, s{SG}, {C4}", "v_and_b32 v5, 3, v1", "v_lshlrev_b32 v5, 7, v5", f"v_add_u32 v5, s{SG}, v5"],
                  ["v_mov_b32 v7, 4"], False, mid=MID[2])
    k.stamp("s4")
    p5.p5_main(k)
    k.stamp_flush(4, STAMP)
    k.label("end"); k("s_endpgm")
    pc.SC = ""; pc.SS = ""
    return k
```

```python
from ph_common import *
import ph_common as pc
import p2, p3, p4, p5

LDS = p4.P4_LDS
C2, C3, C4 = CNT, CNT + 64*128, CNT + 128*128
C0, C1, CPA, CPB = CNT + 192*128, CNT + 232*128, CNT + 240*128, CNT + 241*128
FLG = None
FALL = CNT + 242*128
C1D = CNT + 256*128
S1DIRECT = False
TOUCH = 0
CODEFIRST = True
SPIN_LIMIT = 200000
SG, SG2 = 84, 85
NFOLLOW = 0
WGAP = 6
QEARLY = True
QWARM = False
WSTART = 2
NWLOOP = 36
NWA = 48
PFSTART = 1
PFGAP = 6
DRAIN_LOADS = 10
MID = (99, 99, 16)
ONLY = None
CPY = 4160
WREG = 4608 + 2*CPY
CONVL = 92160
KVL = 17408
KVO = 2*KVL

def atomic_signal(k, offset_code, lab, target, flag_code=None, first=False):
    if target is None:
        k("s_cmp_lg_u32 s10, 0"); k(f"s_cbranch_scc1 {lab}")
        if first: wait_init(k)
        for ln in offset_code: k(ln)
        k("v_mov_b32 v5, 0"); k("v_mov_b32 v6, 1")
        k("s_mov_b64 exec, 1")
        k(f"buffer_atomic_add v6, v5, s[12:15], s{SG} offen sc1")
        k("s_mov_b64 exec, -1")
        k.L.append(lab + ":")
        return
    k("s_cmp_lg_u32 s10, 0"); k(f"s_cbranch_scc1 {lab}")
    if first: wait_init(k)
    for ln in offset_code: k(ln)
    k("v_mov_b32 v5, 0"); k("v_mov_b32 v6, 1")
    k("s_mov_b64 exec, 1")
    k(f"buffer_atomic_add v6, v5, s[12:15], s{SG} offen sc0 sc1")
    for ln in (flag_code or [f"s_add_u32 s{SG}, s{SG}, {FLG}"]): k(ln)
    k("s_waitcnt vmcnt(0)")
    k.stamp("atom%d" % target + lab[-2:])
    k(f"v_cmp_eq_u32 vcc, {target - 1}, v6")
    k("v_mov_b32 v6, 1")
    k("s_and_b64 exec, exec, vcc")
    k(f"s_cbranch_execz {lab}_x")
    k(f"buffer_store_dword v6, v5, s[12:15], s{SG} offen sc1")
    k.L.append(lab + "_x:")
    k("s_mov_b64 exec, -1")
    k.L.append(lab + ":")

def signal(k, vm, nq, offset_code, target, flag_code=None, first=False):
    lab = k.lab(k.uniq("sig"))
    if nq: nq.pop(DRAIN_LOADS)
    if vm: vm.wait(lambda t: t == "S")
    else: k("s_waitcnt vmcnt(0)")
    k.stamp("drained%d" % k._n)
    if first:
        l2 = k.lab(k.uniq("fi"))
        k("s_cmp_lg_u32 s10, 0"); k(f"s_cbranch_scc1 {l2}")
        wait_init(k)
        k.L.append(l2 + ":")
    k("s_barrier")
    atomic_signal(k, offset_code, lab, target, flag_code, False)

def poll(k, addr_code, target_reg_code, va=5, vd=6, vt=7):
    lab = k.lab(k.uniq("pl")); loop = lab + "_l"
    for ln in addr_code + target_reg_code: k(ln)
    k(f"s_mov_b32 s{SG2}, 0")
    k.L.append(loop + ":")
    k(f"buffer_load_dword v{vd}, v{va}, s[12:15], 0 offen sc1")
    k(f"s_add_u32 s{SG2}, s{SG2}, 1")
    k("s_waitcnt vmcnt(0)")
    k(f"v_cmp_gt_u32 vcc, v{vt}, v{vd}")
    k(f"s_cmp_gt_u32 s{SG2}, {SPIN_LIMIT}"); k(f"s_cbranch_scc1 {lab}")
    k(f"s_cbranch_vccnz {loop}")
    k.L.append(lab + ":")

def wait_counters(k, nq, addr_code, target_code, all_waves_drain, before_barrier=None, mid=0):
    lab = k.lab(k.uniq("wt"))
    if nq: nq.pop(mid)
    k("s_cmp_lg_u32 s10, 0"); k(f"s_cbranch_scc1 {lab}")
    k.stamp("prepoll" + lab[-2:])
    poll(k, addr_code, target_code)
    k.stamp("polled" + lab[-2:])
    k.L.append(lab + ":")
    if nq: nq.flush()
    if all_waves_drain: k("s_waitcnt vmcnt(0)")
    if before_barrier: before_barrier(k)
    k("s_barrier")

def cpa_sample(): return [f"v_mov_b32 v220, {FALL + 8*128}", "buffer_load_dword v219, v220, s[12:15], 0 offen sc1"]
def cpa_check(k):
    ok = k.lab(k.uniq("cpaok"))
    k("v_cmp_eq_u32 vcc, 0, v219"); k(f"s_cbranch_vccz {ok}")
    poll(k, [f"v_mov_b32 v5, {FALL + 8*128}"], ["v_mov_b32 v7, 1"])
    k.L.append(ok + ":")

def shard_addr(base): return ["v_and_b32 v5, 7, v1", "v_lshlrev_b32 v5, 7, v5", f"v_add_u32 v5, {base}, v5"]
def own_shard(base): return [f"s_and_b32 s{SG}, s2, 7", f"s_lshl_b32 s{SG}, s{SG}, 7", f"s_add_u32 s{SG}, s{SG}, {base}"]

def init_srd(k):
    k("s_mov_b32 s74, 256"); k("s_mov_b32 s75, 0x20000")

def wait_init(k):
    lab = k.lab(k.uniq("in")); loop = lab + "_l"
    k("v_mov_b32 v5, 0"); k(f"s_mov_b32 s{SG2}, 0")
    k.L.append(loop + ":")
    k("buffer_load_dword v6, v5, s[72:75], 0 offen sc1")
    k(f"s_add_u32 s{SG2}, s{SG2}, 1")
    k("s_waitcnt vmcnt(0)")
    k("v_cmp_eq_u32 vcc, 0, v6")
    k(f"s_cmp_gt_u32 s{SG2}, {SPIN_LIMIT}"); k(f"s_cbranch_scc1 {lab}")
    k(f"s_cbranch_vccnz {loop}")
    k.L.append(lab + ":")

def vm_after(vm):
    return vm

def kv_wait_touch(k):
    a_, b_, c_ = k.lab("kvt0"), k.lab("kvt1"), k.lab("kvt2")
    k("s_cmp_lt_u32 s2, 8"); k(f"s_cbranch_scc1 {a_}")
    k("s_waitcnt vmcnt(1)"); k(f"s_branch {c_}")
    k.L.append(a_ + ":")
    k("s_cmp_eq_u32 s10, 3"); k(f"s_cbranch_scc1 {b_}")
    k("s_waitcnt vmcnt(4)"); k(f"s_branch {c_}")
    k.L.append(b_ + ":")
    k("s_waitcnt vmcnt(8)")
    k.L.append(c_ + ":")

def page_touch(k):
    lab = k.lab("notouch")
    k("s_cmp_ge_u32 s2, 8"); k(f"s_cbranch_scc1 {lab}")
    k(f"s_mov_b32 s26, {TOUCH}"); k("v_mul_lo_u32 v179, v1, s26")
    k("s_cmp_eq_u32 s10, 3"); k(f"s_cbranch_scc1 {k.lab('touch3')}")
    k(f"s_mul_i32 s27, s10, {192*TOUCH}")
    for j in range(3):
        k("buffer_load_dword v186, v179, s[12:15], s27 offen"); k(f"s_add_u32 s27, s27, {64*TOUCH}")
    k(f"s_branch {lab}")
    k.label("touch3")
    k("buffer_load_dword v186, v179, s[16:19], 0 offen"); k("buffer_load_dword v186, v179, s[20:23], 0 offen")
    k("s_mov_b32 s87x, 0".replace("s87x", "s27"))
    for lo, n in ((42, MB), (76, D*D*2), (78, D*D*2), (80, D*F*2), (82, D*F*2)):
        k(f"s_mov_b32 s48, s{lo}"); k(f"s_mov_b32 s49, s{lo+1}"); k(f"s_mov_b32 s50, {n}"); k("s_mov_b32 s51, 0x20000")
        k("buffer_load_dword v186, v179, s[48:51], 0 offen")
    k.L.append(lab + ":")

def kv_issue(k, vm):
    k("s_sub_u32 s29, s2, 160"); k("s_cmp_lt_u32 s29, 78"); k("s_cselect_b32 s29, 2, 1")
    for j in range(2):
        k(f"s_add_u32 s26, s2, {82*j}")
        k("s_mul_hi_u32 s27, s26, 0x1999999a"); k("s_mul_i32 s28, s27, 10"); k("s_sub_u32 s28, s26, s28")
        k(f"s_lshl_b32 s{30+2*j}, s27, 6"); k(f"s_lshl_b32 s{31+2*j}, s28, 6")
    k("v_lshrrev_b32 v5, 3, v0"); k("v_and_b32 v6, 7, v0"); k("v_lshlrev_b32 v6, 4, v6")
    k("s_waitcnt lgkmcnt(0)")
    k.srd(48, 36, MB); k.srd(52, 38, MB); k.srd(56, 40, D*8)
    k("s_lshl_b32 s26, s10, 10"); k("s_mov_b32 s27, 40960")
    for j in range(2):
        b = j*KVL
        if j == 1: k("s_cmp_lt_u32 s29, 2"); k(f"s_cbranch_scc1 {k.lab('kv1')}")
        k(f"v_add_u32 v{8+j}, s{30+2*j}, v5"); k(f"v_mul_u32_u24 v{8+j}, 1280, v{8+j}")
        k(f"s_lshl_b32 s28, s{31+2*j}, 1"); k(f"v_add3_u32 v{8+j}, v{8+j}, v6, s28")
        k(f"v_subrev_u32 v{10+j}, 3840, v{8+j}")
        G = [[f"s_add_u32 m0, s26, {b}", "s_nop 0", f"buffer_load_dwordx4 v{10+j}, s[48:51], 0 offen lds"],
             [f"s_add_u32 m0, s26, {b + 4096}", f"v_add_u32 v7, 40960, v{10+j}", "buffer_load_dwordx4 v7, s[48:51], 0 offen lds"],
             [f"s_add_u32 m0, s26, {b + 9216}", "s_nop 0", f"buffer_load_dwordx4 v{8+j}, s[52:55], 0 offen lds"],
             [f"s_add_u32 m0, s26, {b + 13312}", "s_nop 0", f"buffer_load_dwordx4 v{8+j}, s[52:55], s27 offen lds"],
             [f"s_mov_b32 m0, {b + 8192}", "v_lshrrev_b32 v7, 3, v1", f"v_add_u32 v7, s{30+2*j}, v7", "v_mul_u32_u24 v7, 1280, v7",
              "v_and_b32 v18, 7, v1", "v_lshlrev_b32 v18, 4, v18", f"s_lshl_b32 s28, s{31+2*j}, 1", "v_add3_u32 v7, v7, v18, s28",
              "v_add_u32 v7, 78080, v7", "buffer_load_dwordx4 v7, s[48:51], 0 offen lds"],
             [f"v_add_u32 v{16+j}, s{31+2*j}, v1", f"v_lshlrev_b32 v{16+j}, 3, v{16+j}", f"buffer_load_dwordx2 {v(12+2*j,2)}, v{16+j}, s[56:59], 0 offen"]]
        for g in G:
            if j == 0: vm.issue(g, "kv")
            else:
                for ln in g: k(ln)
    k.label("kv1")

def kv_compute(k):
    k("v_and_b32 v10, 15, v1"); k("v_lshrrev_b32 v11, 2, v10"); k("s_lshl_b32 s42, s10, 4"); k("v_add_u32 v11, s42, v11")
    k("v_lshlrev_b32 v11, 7, v11"); k("v_and_b32 v10, 3, v10"); k("v_lshlrev_b32 v10, 3, v10"); k("v_lshlrev_b32 v16, 5, v3")
    k("v_add3_u32 v11, v11, v10, v16")
    k("s_mov_b32 s45, 0"); k("s_mov_b32 s46, 0xffff0000"); k(f"s_mov_b32 s47, {KVO}")
    k(".p2align 3")
    k.label("kvloop")
    k("v_mul_u32_u24 v9, 144, v1"); k("s_lshl_b32 s43, s10, 5"); k(f"s_sub_u32 s43, {KVO + 96}, s43"); k("v_add_u32 v9, s43, v9")
    KR = 16; VR = 26; KF = 38
    for i in range(5): k(f"ds_read_b64_tr_b16 {v(KR+2*i,2)}, v11 offset:{512*i}")
    for i in range(4): k(f"ds_read_b64_tr_b16 {v(VR+2*i,2)}, v11 offset:{9216+512*i}")
    k("v_lshlrev_b32 v34, 16, v12"); k("v_and_b32 v35, s46, v12"); k("v_lshlrev_b32 v36, 16, v13"); k("v_and_b32 v37, s46, v13")
    k("s_waitcnt lgkmcnt(4)")
    for i in range(10):
        k(f"v_lshlrev_b32 v{KF+2*i}, 16, v{KR+i}"); k(f"v_and_b32 v{KF+2*i+1}, s46, v{KR+i}")
    k("s_waitcnt lgkmcnt(0)")
    OUTR = 58
    for half in (1, 0):
        for pr in range(4):
            es = (8*half + 7 - 2*pr, 8*half + 6 - 2*pr)
            for j, e in enumerate(es):
                t = 16 + j
                k(f"v_mul_f32 v{t}, v34, v{KF+e+3}"); k(f"v_fmac_f32 v{t}, v35, v{KF+e+2}")
                k(f"v_fmac_f32 v{t}, v36, v{KF+e+1}"); k(f"v_fmac_f32 v{t}, v37, v{KF+e}")
                vr = VR + e//2
                if e % 2 == 0: k(f"v_lshlrev_b32 v{18+j}, 16, v{vr}")
                else: k(f"v_and_b32 v{18+j}, s46, v{vr}")
                k(f"v_mul_f32 v{t}, v{t}, v{18+j}")
            k(f"v_cvt_pk_bf16_f32 v{OUTR+pr}, v16, v17")
        k(f"ds_write_b128 v9, {v(OUTR,4)} offset:{16*(1-half)}")
        OUTR = 20
    k("v_lshrrev_b32 v5, 3, v1"); k("v_add_u32 v5, s42, v5"); k("v_and_b32 v6, 7, v1"); k("v_lshlrev_b32 v6, 4, v6")
    k("v_mul_u32_u24 v7, 144, v5"); k(f"v_add3_u32 v7, v7, v6, s47")
    k("v_add_u32 v5, s31, v5"); k("v_lshlrev_b32 v5, 12, v5"); k("v_add_u32 v5, v5, v6")
    k("s_sub_u32 s43, 1984, s30"); k("s_lshl_b32 s43, s43, 1"); k(f"s_add_u32 s43, s43, {UR}"); k("s_add_u32 s44, s43, 32768")
    k("s_waitcnt lgkmcnt(0)")
    k("s_barrier")
    k("ds_read_b128 v[16:19], v7"); k("ds_read_b128 v[20:23], v7 offset:1152")
    k("s_waitcnt lgkmcnt(1)")
    k("buffer_store_dwordx4 v[16:19], v5, s[12:15], s43 offen sc1")
    k("s_waitcnt lgkmcnt(0)")
    k("buffer_store_dwordx4 v[20:23], v5, s[12:15], s44 offen sc1")
    k("s_add_u32 s45, s45, 1"); k("s_cmp_ge_u32 s45, s29"); k(f"s_cbranch_scc1 {k.lab('kvexit')}")
    k(f"s_waitcnt vmcnt({3 if CODEFIRST else 4})")
    k("s_barrier")
    k("s_mov_b32 s30, s32"); k("s_mov_b32 s31, s33")
    k("v_mov_b32 v12, v14"); k("v_mov_b32 v13, v15"); k(f"v_add_u32 v11, {KVL}, v11")
    k(f"s_branch {k.lab('kvloop')}")
    k.label("kvexit")

HB = 128; E = 168
def conv_h_issue(k, vm):
    k("s_lshl_b32 s83, s2, 2"); k("s_add_u32 s83, s83, s10")
    k("s_lshl_b32 s35, s83, 12")
    k(f"s_mul_i32 s82, s10, {WREG}"); k(f"s_add_u32 s82, s82, {CONVL}")
    k("v_subrev_u32 v5, 32, v4"); k("v_add_u32 v6, 16, v5")
    k("s_lshl_b32 s28, s83, 1"); k("v_mov_b32 v19, s28")
    k("s_add_u32 s76, s76, s35"); k("s_addc_u32 s77, s77, 0")
    k("s_mov_b32 s78, 4096"); k("s_mov_b32 s79, 0x20000")
    for q in range(5):
        vm.issue([f"buffer_load_dwordx4 {v(HB+8*q,4)}, v5, s[76:79], 0 offen"], ("h", q))
        vm.issue([f"buffer_load_dword v{HB+8*q+4}, v6, s[76:79], 0 offen"] + (["v_add_u32 v5, 1024, v5", "v_add_u32 v6, 1024, v6"] if q < 4 else []), ("h", q))
    k("v_subrev_u32 v5, 32, v4")
    vm.issue(["s_add_u32 m0, s82, 4608", "s_nop 0", "buffer_load_dwordx4 v5, s[76:79], 0 offen lds"], "h0")
    k("s_add_u32 m0, s82, %d" % (4608 + 1024)); k("v_add_u32 v5, 1024, v5")
    for q in range(3): vm.issue([f"buffer_load_dwordx4 v5, s[76:79], 0 offen offset:{1024*q} lds"], "h0")
    k("s_add_u32 m0, s82, %d" % (4608 + 4096)); k("v_add_u32 v5, 3072, v5")
    vm.issue(["s_mov_b64 exec, 15", "buffer_load_dwordx4 v5, s[76:79], 0 offen lds", "s_mov_b64 exec, -1"], "h0")
    k("s_mov_b32 s44, s80"); k("s_mov_b32 s45, s81"); k(f"s_mov_b32 s46, {D*2}"); k("s_mov_b32 s47, 0x20000")
    vm.issue(["buffer_load_ushort v176, v19, s[44:47], 0 offen"], "D")

def conv_h_copy1(k):
    k("s_add_u32 s42, s82, %d" % (4608 + CPY)); k("v_add_u32 v5, s42, v4")
    for q in range(5):
        x = HB + 8*q
        if q == 4: k("s_mov_b64 exec, 15")
        for i in range(4): k(f"v_alignbit_b32 v{E+4*(q%2)+i}, v{x+i+1}, v{x+i}, 16")
        k(f"ds_write_b128 v5, {v(E+4*(q%2),4)} offset:{1024*q}")
    k("s_mov_b64 exec, -1")

def conv_main(k, prefetch_items, wloop):
    vm = VM(k)
    k(f"s_lshl_b32 s35, s83, 12"); k(f"s_add_u32 s36, s35, {UR}")
    k("s_mov_b32 m0, s82"); k("s_nop 0")
    for j in range(4): vm.issue([f"buffer_load_dwordx4 v4, s[12:15], s36 offen offset:{1024*j} sc1 lds"], "ur")
    k("v_mov_b32 v8, 0"); k("v_mov_b32 v9, 0"); k("v_lshlrev_b32 v7, 3, v1"); k("v_add_u32 v7, s82, v7")
    k("ds_write_b64 v7, v[8:9] offset:4096")
    k("v_add_u32 v13, 1, v2"); k("v_and_b32 v14, 1, v13"); k(f"v_mul_u32_u24 v12, {CPY}, v14")
    k("v_sub_u32 v13, v13, v14"); k("v_lshlrev_b32 v13, 1, v13"); k("v_lshl_add_u32 v13, v3, 4, v13")
    k("s_add_u32 s38, s82, 4608"); k("v_add3_u32 v12, v12, v13, s38")
    for j in range(1, 4): k(f"v_add_u32 v{103+j}, {1024*j}, v12")
    k("v_lshlrev_b32 v13, 5, v2"); k("v_lshlrev_b32 v14, 4, v3"); k("v_sub_u32 v13, v14, v13")
    k("s_add_u32 s39, s82, 480"); k("v_add_u32 v13, s39, v13")
    AP = 100
    k("v_sub_u32 v16, 15, v2"); k("v_lshrrev_b32 v17, 3, v16"); k("v_and_b32 v16, 7, v16")
    k("v_and_b32 v18, 1, v16"); k("v_lshlrev_b32 v18, 4, v18"); k("v_lshlrev_b32 v18, v18, v176")
    k("v_cmp_eq_u32 vcc, v17, v3"); k("v_cndmask_b32 v18, 0, v18, vcc"); k("v_lshrrev_b32 v16, 1, v16")
    for r in range(4):
        k(f"v_cmp_eq_u32 vcc, {r}, v16"); k(f"v_cndmask_b32 v{AP+r}, 0, v18, vcc")
    ACC = 16; A0 = 48; A1 = 112; B0 = 144; B1 = 176
    AR = (12, 104, 105, 106)
    def loads(A, B, rho):
        L = []
        for d in range(8): L.append(f"ds_read_b128 {v(B+4*d,4)}, v13 offset:{64*rho + 512*(7-d)}")
        for m in range(8):
            o = 128*(m % 2) + 16*rho
            L.append(f"ds_read2_b32 {v(A+4*m,2)}, v{AR[m//2]} offset0:{o} offset1:{o+1}")
            L.append(f"ds_read2_b32 {v(A+4*m+2,2)}, v{AR[m//2]} offset0:{o+2} offset1:{o+3}")
        return L
    pq = TQ(vm, prefetch_items)
    vm.wait(lambda t: t == "ur", " lgkmcnt(0)")
    k.stamp("ur")
    for ln in loads(A0, B0, 0): k(ln)
    k("s_waitcnt lgkmcnt(0)")
    for t in range(8): k(f"v_mfma_f32_16x16x32_bf16 {v(ACC+4*t,4)}, {v(AP,4)}, {v(B0+4*t,4)}, 0")
    pairs = [(m, d) for m in range(8) for d in range(8 - m)]
    for rho in range(8):
        A, B = (A0, B0) if rho % 2 == 0 else (A1, B1)
        An, Bn = (A1, B1) if rho % 2 == 0 else (A0, B0)
        nxt = loads(An, Bn, rho + 1) if rho < 7 else []
        if wloop:
            if rho == WSTART - 1: vm.issue(cpa_sample(), "cpa")
            if rho == WSTART:
                pq.flush(); vm.wait(lambda t: t == "cpa"); cpa_check(k); pq.items = list(wloop)
        elif rho == 7: pq.flush(); vm.issue(cpa_sample(), "cpa")
        for idx, (m, d) in enumerate(pairs):
            k(f"v_mfma_f32_16x16x32_bf16 {v(ACC+4*(m+d),4)}, {v(A+4*m,4)}, {v(B+4*d,4)}, {v(ACC+4*(m+d),4)}")
            if idx < len(nxt): k(nxt[idx])
            if rho >= PFSTART and idx % (PFGAP if (rho < WSTART or not wloop) else WGAP) == 1: pq.pop()
        k("s_waitcnt lgkmcnt(0)")
    pq.flush()
    k.stamp("loop")
    k("v_lshlrev_b32 v14, 5, v2"); k("v_lshl_add_u32 v14, v3, 3, v14"); k("v_add_u32 v14, s82, v14")
    for t in range(8):
        k(f"v_cvt_pk_bf16_f32 v{A0+2*t}, v{ACC+4*t}, v{ACC+4*t+1}"); k(f"v_cvt_pk_bf16_f32 v{A0+2*t+1}, v{ACC+4*t+2}, v{ACC+4*t+3}")
        k(f"ds_write_b64 v14, {v(A0+2*t,2)} offset:{512*t}")
    k("v_add_u32 v15, s82, v4")
    k("s_waitcnt lgkmcnt(0)")
    for j in range(4): k(f"ds_read_b128 {v(B0+4*j,4)}, v15 offset:{1024*j}")
    k(f"s_add_u32 s36, s35, {YT}")
    for j in range(4):
        k(f"s_waitcnt lgkmcnt({3-j})")
        vm.issue([f"buffer_store_dwordx4 {v(B0+4*j,4)}, v4, s[12:15], s36 offen offset:{1024*j} sc1"], "S")
    return vm, pq

def wtask_issue(k, tag, ldsbase):
    k("s_mov_b32 s51, 0x20000")
    k("s_lshl_b32 s34, s10, 14"); k(f"s_add_u32 s34, s34, {ldsbase}")
    k("v_lshrrev_b32 v5, 3, v1"); k("v_and_b32 v6, 7, v1"); k("v_lshlrev_b32 v6, 4, v6")
    k("s_lshl_b32 s47, s41, 5"); k("v_add_u32 v5, s47, v5"); k("v_mul_lo_u32 v5, v5, s40")
    k("s_lshl_b32 s47, s42, 7"); k("v_add3_u32 v5, v5, v6, s47")
    k("s_lshl_b32 s52, s40, 3"); k("s_lshl_b32 s53, s43, 2"); k("s_mov_b32 s54, s34")
    k.label("wld" + tag)
    k("s_mov_b32 m0, s54"); k("s_sub_u32 s53, s53, 1")
    k("buffer_load_dwordx4 v5, s[48:51], 0 offen lds")
    k("v_add_u32 v5, s52, v5"); k("s_add_u32 s54, s54, 1024")
    k("s_cmp_lg_u32 s53, 0"); k(f"s_cbranch_scc1 {k.lab('wld' + tag)}")

def wtask_finish(k, tag, nxt):
    k("v_lshlrev_b32 v5, 10, v3"); k("v_bfe_u32 v6, v1, 2, 2"); k("v_lshl_add_u32 v5, v6, 7, v5")
    k("v_and_b32 v6, 3, v1"); k("v_lshl_add_u32 v5, v6, 4, v5"); k("v_add_u32 v5, s34, v5")
    k("s_lshl_b32 s47, s42, 2"); k("s_mul_i32 s47, s47, s45"); k("s_add_u32 s47, s47, s41"); k("s_lshl_b32 s47, s47, 10")
    k("s_add_u32 s47, s47, s44"); k("s_lshl_b32 s55, s45, 10")
    for r in range(4): k(f"v_mov_b32 v{24+r}, 0")
    k("s_mov_b32 s52, 0x3f803f80"); k("s_mov_b32 s53, 0")
    k.stamp("wiss" + tag)
    k("s_waitcnt vmcnt(0)")
    k.stamp("wld" + tag)
    k.label("wtr" + tag)
    for t in range(4):
        o = 64*(t//2) + 8*(t % 2)
        k(f"ds_read_b64_tr_b16 {v(8+4*t,2)}, v5 offset:{o}"); k(f"ds_read_b64_tr_b16 {v(10+4*t,2)}, v5 offset:{o+512}")
    k("v_add_u32 v5, 4096, v5"); k("s_add_u32 s53, s53, 1")
    k("s_mov_b32 s54, s47")
    for t in range(4):
        k(f"s_waitcnt lgkmcnt({6 - 2*t})")
        k(f"buffer_store_dwordx4 {v(8+4*t,4)}, v4, s[12:15], s54 offen sc1")
        if t < 3: k("s_add_u32 s54, s54, s55")
    for r in range(4):
        for t in range(4): k(f"v_dot2_f32_bf16 v{24+t}, v{8+4*t+r}, s52, v{24+t}")
    k("s_add_u32 s47, s47, 1024")
    k("s_cmp_lt_u32 s53, s43"); k(f"s_cbranch_scc1 {k.lab('wtr' + tag)}")
    k("s_cmp_ge_u32 s46, 5"); k(f"s_cbranch_scc1 {nxt}")
    for t in range(4): k(f"v_mov_b32 v{28+t}, v{24+t}")
    for t in range(4): k(f"v_permlane32_swap_b32 v{24+t}, v{28+t}")
    for t in range(4): k(f"v_add_f32 v{24+t}, v{24+t}, v{28+t}")
    for t in range(4): k(f"v_mov_b32 v{28+t}, v{24+t}")
    for t in range(4): k(f"v_permlane16_swap_b32 v{24+t}, v{28+t}")
    for t in range(4): k(f"v_add_f32 v{24+t}, v{24+t}, v{28+t}")
    k(f"s_mul_i32 s47, s46, {F*4}"); k("s_lshl_b32 s52, s42, 8"); k("s_add_u32 s47, s47, s52"); k(f"s_add_u32 s47, s47, {CS3}")
    k("v_lshlrev_b32 v6, 2, v2")
    k("s_mov_b64 exec, 0xffff")
    for t in range(4): k(f"buffer_store_dword v{24+t}, v6, s[12:15], s47 offen offset:{64*t} sc1")
    k("s_mov_b64 exec, -1")
    k(f"s_branch {nxt}")

def w1_params(k):
    k("s_sub_u32 s35, s2, 242"); k("s_lshl_b32 s35, s35, 2"); k("s_add_u32 s35, s35, s10")
    k("s_mov_b32 s48, s76"); k("s_mov_b32 s49, s77")
    k(f"s_mov_b32 s50, {D*D*2}"); k("s_mov_b32 s40, 1280"); k(f"s_mov_b32 s44, {W1T}"); k("s_mov_b32 s45, 20"); k("s_mov_b32 s46, 5")
    k("s_mul_hi_u32 s41, s35, 0x1999999a"); k("s_mul_i32 s42, s41, 10"); k("s_sub_u32 s42, s35, s42"); k("s_mov_b32 s43, 4"); k("s_lshl_b32 s41, s41, 2")

def prep_part(k, pre_items_setup):
    if QWARM:
        k("s_sub_u32 s33, s2, 160"); k("s_cmp_ge_u32 s33, 64"); k(f"s_cbranch_scc1 {k.lab('noq')}")
        k("s_cmp_eq_u32 s10, 0"); k(f"s_cbranch_scc1 {k.lab('noq')}")
        k("s_mul_i32 s33, s33, 3"); k("s_add_u32 s33, s33, s10"); k("s_sub_u32 s33, s33, 1"); k("s_mul_i32 s33, s33, 14336")
        for i in range(14):
            k(f"buffer_load_dwordx4 v[32:35], v4, s[16:19], s33 offen offset:{1024*(i%4)}")
            if i % 4 == 3: k("s_add_u32 s33, s33, 4096")
    k.label("noq")
    k.label("roundB")
    qitems, witems = pre_items_setup()
    k("s_sub_u32 s33, s2, 160"); k("s_lshl_b32 s33, s33, 2"); k("s_add_u32 s33, s33, s10")
    k("s_mov_b32 s43, 0")
    k("s_cmp_ge_u32 s33, 325"); k(f"s_cbranch_scc1 {k.lab('noB')}")
    k("s_mov_b32 s46, 5"); k("s_mov_b32 s43, 4")
    k("s_cmp_ge_u32 s33, 50"); k(f"s_cbranch_scc1 {k.lab('pw3')}")
    k("s_mov_b32 s48, s78"); k("s_mov_b32 s49, s79"); k(f"s_mov_b32 s50, {D*D*2}"); k("s_mov_b32 s40, 1280"); k(f"s_mov_b32 s44, {W2T}"); k("s_mov_b32 s45, 20")
    k("s_mul_hi_u32 s41, s33, 0x1999999a"); k("s_mul_i32 s42, s41, 10"); k("s_sub_u32 s42, s33, s42"); k("s_lshl_b32 s41, s41, 2")
    k(f"s_branch {k.lab('wtB')}")
    k.label("pw3")
    k("s_cmp_ge_u32 s33, 185"); k(f"s_cbranch_scc1 {k.lab('pw4')}")
    k("s_sub_u32 s35, s33, 50")
    k("s_mov_b32 s48, s80"); k("s_mov_b32 s49, s81"); k(f"s_mov_b32 s50, {D*F*2}"); k(f"s_mov_b32 s40, {F*2}"); k(f"s_mov_b32 s44, {W3T}"); k("s_mov_b32 s45, 20")
    k("s_mul_hi_u32 s46, s35, 0x97b425f"); k("s_mul_i32 s42, s46, 27"); k("s_sub_u32 s42, s35, s42"); k("s_lshl_b32 s41, s46, 2")
    k(f"s_branch {k.lab('wtB')}")
    k.label("pw4")
    k("s_sub_u32 s35, s33, 185")
    k("s_mov_b32 s48, s82"); k("s_mov_b32 s49, s83"); k(f"s_mov_b32 s50, {D*F*2}"); k("s_mov_b32 s40, 1280"); k(f"s_mov_b32 s44, {W4T}"); k("s_mov_b32 s45, 54")
    k("s_mul_hi_u32 s41, s35, 0x1999999a"); k("s_mul_i32 s42, s41, 10"); k("s_sub_u32 s42, s35, s42")
    k("s_cmp_eq_u32 s41, 13"); k("s_cselect_b32 s43, 2, 4"); k("s_lshl_b32 s41, s41, 2")
    k.label("wtB")
    wtask_issue(k, "B", 45056)
    k.label("noB")
    for g, t in qitems:
        for ln in g: k(ln)
    for ln in cpa_sample(): k(ln)
    doneB = k.lab("doneB")
    k("s_cmp_eq_u32 s43, 0"); k(f"s_cbranch_scc1 {doneB}")
    wtask_finish(k, "B", doneB)
    k.L.append(doneB + ":")
    k.stamp("doneB")
    signal(k, None, None, [f"s_mov_b32 s{SG}, {CPB}"], 96, [f"s_mov_b32 s{SG}, {FALL + 9*128}"])
    p2.p2_qstats(k, lambda: None)
    cpa_check(k)
    return witems

def mega():
    pc.SC = " sc1"; pc.SS = " sc1"
    k = Kern("block_kernel", vgpr=256, agpr=256, sgpr=96)
    k.only = ONLY
    k("s_cmp_ge_u32 s2, 256"); k(f"s_cbranch_scc1 {k.lab('end')}")
    k.stamp_begin()
    if CODEFIRST:
        for ln in code_prefetch_group(k, None, k.lab("end"), "z", 180, sreg=26): k(ln.replace("@U@", "0"))
    k(f"s_load_dwordx8 s[36:43], s[0:1], {A_K}")
    k(f"s_load_dwordx2 s[44:45], s[0:1], {A_D}")
    k(f"s_load_dwordx8 s[76:83], s[0:1], {B_W1}")
    k(f"s_load_dwordx2 s[72:73], s[0:1], {DBG}")
    prologue(k)
    pre_items_setup = lambda: (p2.p2_pre_setup(k), p2.p2_pre_items(k))[1]
    def common_setup():
        p2.p2_setup(k); p3.p35_setup(k, 26)
        k.srd(12, 4, WS_END); k.srd(16, 8, MB); k.srd(20, 6, MB)
        init_srd(k)
    k("s_cmp_ge_u32 s2, 242"); k(f"s_cbranch_scc1 {k.lab('special')}")
    vm = VM(k)
    kv_issue(k, vm)
    common_setup()
    if TOUCH: page_touch(k)
    k("s_cmp_ge_u32 s2, 160"); k(f"s_cbranch_scc1 {k.lab('keepw')}")
    k("s_mov_b32 s76, s42"); k("s_mov_b32 s77, s43"); k("s_mov_b32 s80, s44"); k("s_mov_b32 s81, s45")
    k.label("keepw")
    if not CODEFIRST:
        vm.issue(code_prefetch_group(k, k.lab("code0"), k.lab("end"), "z", 180, sreg=26), "pf")
        k.label("code0")
    k.stamp("kvissued")
    k("s_cmp_lt_u32 s29, 2"); k(f"s_cbranch_scc1 {k.lab('kvw1')}")
    k(f"s_waitcnt vmcnt({6 if CODEFIRST else 7})")
    k(f"s_branch {k.lab('kvw2')}")
    k.label("kvw1")
    if TOUCH: k("s_waitcnt vmcnt(8)") if False else kv_wait_touch(k)
    elif CODEFIRST: k("s_waitcnt vmcnt(0)")
    else: vm.wait(lambda t: t == "kv")
    k.label("kvw2")
    k("s_barrier")
    k.stamp("kvin")
    k("v_mov_b32 v178, 0")
    k("buffer_load_dword v177, v178, s[72:75], 0 offen sc1")
    vmh = VM(k)
    k("s_cmp_ge_u32 s2, 160"); k(f"s_cbranch_scc1 {k.lab('noh')}")
    conv_h_issue(k, vmh)
    k.label("noh")
    kv_compute(k)
    k.stamp("kvdone")
    k("s_waitcnt vmcnt(0)")
    k.stamp("kvdrain")
    ok = k.lab("initok")
    k("v_cmp_eq_u32 vcc, 0, v177"); k(f"s_cbranch_vccz {ok}")
    wait_init(k)
    k.L.append(ok + ":")
    k("s_barrier")
    tile_cnt = lambda add: [f"s_add_u32 s84, s2, {add}", "s_mul_hi_u32 s85, s84, 0x1999999a", "s_mul_i32 s28, s85, 10", "s_sub_u32 s84, s84, s28",
                            "s_lshl_b32 s84, s84, 2", "s_and_b32 s85, s85, 3", "s_add_u32 s84, s84, s85", "s_lshl_b32 s84, s84, 7", f"s_add_u32 s84, s84, {C0}"]
    atomic_signal(k, tile_cnt(0), k.lab("sigc0"), None)
    k("s_cmp_lt_u32 s29, 2"); k(f"s_cbranch_scc1 {k.lab('sigc0b')}")
    atomic_signal(k, tile_cnt(82), k.lab("sigc0c"), None)
    k.label("sigc0b")
    k.stamp("kvsig")
    k("s_cmp_ge_u32 s2, 160"); k(f"s_cbranch_scc1 {k.lab('prep')}")
    conv_h_copy1(k)
    qitems, witems = pre_items_setup()
    if QEARLY:
        for g, t in qitems:
            for ln in g: k(ln)
        qitems = []
    wait_counters(k, None, ["s_lshr_b32 s84, s2, 4", "s_lshl_b32 s84, s84, 9", f"s_add_u32 s84, s84, {C0}", "v_and_b32 v5, 3, v1", "v_lshlrev_b32 v5, 7, v5", "v_add_u32 v5, s84, v5"],
                  ["v_mov_b32 v7, 8"], False)
    k.stamp("s0")
    vm, pq = conv_main(k, qitems, witems[:NWLOOP])
    k.stamp("convdone")
    lab = k.lab("sigc1")
    p2.p2_qstats(k, (lambda: None) if QEARLY else (lambda: vm.wait(lambda t: t == "q")))
    vm.wait(lambda t: t == "S"); k("s_barrier")
    cpa_check(k)
    if S1DIRECT:
        atomic_signal(k, [f"s_lshr_b32 s{SG}, s2, 3", f"s_lshl_b32 s{SG}, s{SG}, 7", f"s_add_u32 s{SG}, s{SG}, {C1D}"], lab, None)
    else:
        atomic_signal(k, own_shard(C1), lab, 20, [f"s_and_b32 s{SG}, s2, 7", f"s_lshl_b32 s{SG}, s{SG}, 7", f"s_add_u32 s{SG}, s{SG}, {FALL}"])
    k(f"s_branch {k.lab('wconv') if NWLOOP else k.lab('wfirst')}")
    k.label("special")
    k("s_waitcnt lgkmcnt(0)")
    common_setup()
    k("s_cmp_eq_u32 s2, 255"); k(f"s_cbranch_scc1 {k.lab('zero')}")
    k.label("w1only")
    w1_params(k)
    doneA = k.lab("doneA")
    k("s_cmp_ge_u32 s35, 50"); k(f"s_cbranch_scc1 {doneA}")
    wtask_issue(k, "A", 0)
    wtask_finish(k, "A", doneA)
    k.L.append(doneA + ":")
    k.stamp("doneA")
    signal(k, None, None, [f"s_mov_b32 s{SG}, {CPA}"], 13, [f"s_mov_b32 s{SG}, {FALL + 8*128}"], first=True)
    k(f"s_branch {k.lab('prep')}")
    k.label("zero")
    k("v_mov_b32 v8, 0"); k("v_mov_b32 v9, 0"); k("v_mov_b32 v10, 0"); k("v_mov_b32 v11, 0")
    k("v_lshlrev_b32 v5, 4, v0"); k(f"s_mov_b32 s35, {CNT}")
    for j in range(9):
        k("buffer_store_dwordx4 v[8:11], v5, s[12:15], s35 offen sc1"); k("s_add_u32 s35, s35, 4096")
    k("s_waitcnt vmcnt(0)")
    k("s_barrier")
    k("v_mov_b32 v5, 0"); k("v_mov_b32 v6, 1")
    k("s_cmp_lg_u32 s10, 0"); k(f"s_cbranch_scc1 {k.lab('prep')}")
    k("s_mov_b64 exec, 1")
    k("buffer_store_dword v6, v5, s[72:75], 0 offen sc1")
    k("s_mov_b64 exec, -1")
    k.label("prep")
    witems = prep_part(k, pre_items_setup)
    k.label("wfirst")
    k.stamp("cpa")
    for g, t in witems[:NWLOOP]:
        for ln in g: k(ln)
    k.label("wconv")
    for g, t in witems[NWLOOP:max(NWA, NWLOOP)]:
        for ln in g: k(ln)
    p3.p3_pre_setup(k)
    if S1DIRECT:
        wait_counters(k, None, ["v_min_u32 v5, 19, v1", "v_lshlrev_b32 v5, 7, v5", f"v_add_u32 v5, {C1D}, v5", f"v_mov_b32 v6, {FALL + 9*128}",
                                "v_cmp_lt_u32 vcc, 19, v1", "v_cndmask_b32 v5, v5, v6, vcc"], ["v_mov_b32 v7, 8", "v_cndmask_b32 v7, v7, 1, vcc"], False)
    else:
        wait_counters(k, None, ["v_min_u32 v5, 9, v1", "v_lshlrev_b32 v5, 7, v5", f"v_add_u32 v5, {FALL}, v5"], ["v_mov_b32 v7, 1"], False)
    k.stamp("s1")
    early = [(g, "E") for g in p3.p3_pre_early(k)]
    vm, nq = p2.p2_main(k, witems[max(NWA, NWLOOP):], [(code_prefetch_group(k, k.lab('ph3'), k.lab('ph4'), 'a', 136), "pf")], p3.p3_pre_late, early)
    k.stamp("p2done")
    signal(k, vm, nq, [f"s_lshl_b32 s{SG}, s{p2.TT}, 7", f"s_add_u32 s{SG}, s{SG}, {C2}"], None)
    k.label("ph3")
    p4.p4_setup(k); p4.p4_pre_setup(k)
    wait_counters(k, nq, [f"s_lshl_b32 s{SG}, s{p3.T64}, 1", f"s_sub_u32 s{SG}, s{SG}, 1", "v_and_b32 v5, 3, v1", f"v_add_u32 v5, s{SG}, v5",
                          "v_and_b32 v5, 63, v5", "v_lshlrev_b32 v5, 7, v5", f"v_add_u32 v5, {C2}, v5"], ["v_mov_b32 v7, 4"], True, mid=MID[0])
    k.stamp("s2")
    early = [(g, "E") for g in p4.p4_pre_early(k)]
    vm, nq = p3.p3_main(k, [(code_prefetch_group(k, k.lab('ph4'), k.lab('ph5'), 'b', 184), "pf")], p4.p4_pre_late, early)
    k.stamp("p3done")
    signal(k, vm, nq, [f"s_lshr_b32 s{SG}, s{p3.T64}, 1", f"s_lshl_b32 s{SG}, s{SG}, 2", f"s_lshr_b32 s{SG2}, s{p3.FC}, 1", f"s_add_u32 s{SG}, s{SG}, s{SG2}",
                          f"s_lshl_b32 s{SG}, s{SG}, 7", f"s_add_u32 s{SG}, s{SG}, {C3}"], None)
    k.label("ph4")
    p5.p5_pre_setup(k)
    wait_counters(k, nq, [f"s_lshl_b32 s{SG}, s{p4.T128}, 9", f"s_add_u32 s{SG}, s{SG}, {C3}", "v_and_b32 v5, 3, v1", "v_lshlrev_b32 v5, 7, v5", f"v_add_u32 v5, s{SG}, v5"], ["v_mov_b32 v7, 4"],
                  True, p4.p4_cs_table, mid=MID[1])
    k.stamp("s3")
    early = [(g, "E") for g in p5.p5_pre_early(k)]
    vm, nq = p4.p4_main(k, [(code_prefetch_group(k, k.lab('ph5'), k.lab('end'), 'c', 88), "pf")], p5.p5_pre_late, early,
                        follow=[(g, "F") for g in p5.p5_pre_late(k)[:NFOLLOW]], nfollow=NFOLLOW)
    k.stamp("p4done")
    signal(k, vm, nq, [f"s_lshl_b32 s{SG}, s{p4.T128}, 2", f"s_lshr_b32 s{SG2}, s{p4.COL}, 2", f"s_add_u32 s{SG}, s{SG}, s{SG2}",
                          f"s_lshl_b32 s{SG}, s{SG}, 7", f"s_add_u32 s{SG}, s{SG}, {C4}"], None)
    k.label("ph5")
    wait_counters(k, nq, [f"s_lshr_b32 s{SG}, s{p3.T64}, 1", f"s_lshl_b32 s{SG}, s{SG}, 9", f"s_add_u32 s{SG}, s{SG}, {C4}", "v_and_b32 v5, 3, v1", "v_lshlrev_b32 v5, 7, v5", f"v_add_u32 v5, s{SG}, v5"],
                  ["v_mov_b32 v7, 4"], False, mid=MID[2])
    k.stamp("s4")
    p5.p5_main(k)
    k.stamp_flush(4, STAMP)
    k.label("end"); k("s_endpgm")
    pc.SC = ""; pc.SS = ""
    return k
```

```python
from ph_common import *
import ph_common as pc
import p2, p3, p4, p5

LDS = p4.P4_LDS
C2, C3, C4 = CNT, CNT + 64*128, CNT + 128*128
C0, C1, CPA, CPB = CNT + 192*128, CNT + 232*128, CNT + 240*128, CNT + 241*128
FLG = None
FALL = CNT + 242*128
C1D = CNT + 256*128
S1DIRECT = False
TOUCH = 0
PF_ALL = True
PF_JIT = True
CODEFIRST = False
SPIN_LIMIT = 200000
SG, SG2 = 84, 85
NFOLLOW = 0
WGAP = 6
QEARLY = True
QWARM = False
WSTART = 2
NWLOOP = 36
NWA = 48
PFSTART = 1
PFGAP = 6
DRAIN_LOADS = 10
MID = (99, 99, 16)
ONLY = None
CPY = 4160
WREG = 4608 + 2*CPY
CONVL = 92160
KVL = 17408
KVO = 2*KVL

def atomic_signal(k, offset_code, lab, target, flag_code=None, first=False):
    if target is None:
        k("s_cmp_lg_u32 s10, 0"); k(f"s_cbranch_scc1 {lab}")
        if first: wait_init(k)
        for ln in offset_code: k(ln)
        k("v_mov_b32 v5, 0"); k("v_mov_b32 v6, 1")
        k("s_mov_b64 exec, 1")
        k(f"buffer_atomic_add v6, v5, s[12:15], s{SG} offen sc1")
        k("s_mov_b64 exec, -1")
        k.L.append(lab + ":")
        return
    k("s_cmp_lg_u32 s10, 0"); k(f"s_cbranch_scc1 {lab}")
    if first: wait_init(k)
    for ln in offset_code: k(ln)
    k("v_mov_b32 v5, 0"); k("v_mov_b32 v6, 1")
    k("s_mov_b64 exec, 1")
    k(f"buffer_atomic_add v6, v5, s[12:15], s{SG} offen sc0 sc1")
    for ln in (flag_code or [f"s_add_u32 s{SG}, s{SG}, {FLG}"]): k(ln)
    k("s_waitcnt vmcnt(0)")
    k.stamp("atom%d" % target + lab[-2:])
    k(f"v_cmp_eq_u32 vcc, {target - 1}, v6")
    k("v_mov_b32 v6, 1")
    k("s_and_b64 exec, exec, vcc")
    k(f"s_cbranch_execz {lab}_x")
    k(f"buffer_store_dword v6, v5, s[12:15], s{SG} offen sc1")
    k.L.append(lab + "_x:")
    k("s_mov_b64 exec, -1")
    k.L.append(lab + ":")

def signal(k, vm, nq, offset_code, target, flag_code=None, first=False):
    lab = k.lab(k.uniq("sig"))
    if nq: nq.pop(DRAIN_LOADS)
    if vm: vm.wait(lambda t: t == "S")
    else: k("s_waitcnt vmcnt(0)")
    k.stamp("drained%d" % k._n)
    if first:
        l2 = k.lab(k.uniq("fi"))
        k("s_cmp_lg_u32 s10, 0"); k(f"s_cbranch_scc1 {l2}")
        wait_init(k)
        k.L.append(l2 + ":")
    k("s_barrier")
    atomic_signal(k, offset_code, lab, target, flag_code, False)

def poll(k, addr_code, target_reg_code, va=5, vd=6, vt=7):
    lab = k.lab(k.uniq("pl")); loop = lab + "_l"
    for ln in addr_code + target_reg_code: k(ln)
    k(f"s_mov_b32 s{SG2}, 0")
    k.L.append(loop + ":")
    k(f"buffer_load_dword v{vd}, v{va}, s[12:15], 0 offen sc1")
    k(f"s_add_u32 s{SG2}, s{SG2}, 1")
    k("s_waitcnt vmcnt(0)")
    k(f"v_cmp_gt_u32 vcc, v{vt}, v{vd}")
    k(f"s_cmp_gt_u32 s{SG2}, {SPIN_LIMIT}"); k(f"s_cbranch_scc1 {lab}")
    k(f"s_cbranch_vccnz {loop}")
    k.L.append(lab + ":")

def wait_counters(k, nq, addr_code, target_code, all_waves_drain, before_barrier=None, mid=0):
    lab = k.lab(k.uniq("wt"))
    if nq: nq.pop(mid)
    k("s_cmp_lg_u32 s10, 0"); k(f"s_cbranch_scc1 {lab}")
    k.stamp("prepoll" + lab[-2:])
    poll(k, addr_code, target_code)
    k.stamp("polled" + lab[-2:])
    k.L.append(lab + ":")
    if nq: nq.flush()
    if all_waves_drain: k("s_waitcnt vmcnt(0)")
    if before_barrier: before_barrier(k)
    k("s_barrier")

def cpa_sample(): return [f"v_mov_b32 v220, {FALL + 8*128}", "buffer_load_dword v219, v220, s[12:15], 0 offen sc1"]
def cpa_check(k):
    ok = k.lab(k.uniq("cpaok"))
    k("v_cmp_eq_u32 vcc, 0, v219"); k(f"s_cbranch_vccz {ok}")
    poll(k, [f"v_mov_b32 v5, {FALL + 8*128}"], ["v_mov_b32 v7, 1"])
    k.L.append(ok + ":")

def shard_addr(base): return ["v_and_b32 v5, 7, v1", "v_lshlrev_b32 v5, 7, v5", f"v_add_u32 v5, {base}, v5"]
def own_shard(base): return [f"s_and_b32 s{SG}, s2, 7", f"s_lshl_b32 s{SG}, s{SG}, 7", f"s_add_u32 s{SG}, s{SG}, {base}"]

def init_srd(k):
    k("s_mov_b32 s74, 256"); k("s_mov_b32 s75, 0x20000")

def wait_init(k):
    lab = k.lab(k.uniq("in")); loop = lab + "_l"
    k("v_mov_b32 v5, 0"); k(f"s_mov_b32 s{SG2}, 0")
    k.L.append(loop + ":")
    k("buffer_load_dword v6, v5, s[72:75], 0 offen sc1")
    k(f"s_add_u32 s{SG2}, s{SG2}, 1")
    k("s_waitcnt vmcnt(0)")
    k("v_cmp_eq_u32 vcc, 0, v6")
    k(f"s_cmp_gt_u32 s{SG2}, {SPIN_LIMIT}"); k(f"s_cbranch_scc1 {lab}")
    k(f"s_cbranch_vccnz {loop}")
    k.L.append(lab + ":")

def vm_after(vm):
    return vm

def kv_wait_touch(k):
    a_, b_, c_ = k.lab("kvt0"), k.lab("kvt1"), k.lab("kvt2")
    k("s_cmp_lt_u32 s2, 8"); k(f"s_cbranch_scc1 {a_}")
    k("s_waitcnt vmcnt(1)"); k(f"s_branch {c_}")
    k.L.append(a_ + ":")
    k("s_cmp_eq_u32 s10, 3"); k(f"s_cbranch_scc1 {b_}")
    k("s_waitcnt vmcnt(4)"); k(f"s_branch {c_}")
    k.L.append(b_ + ":")
    k("s_waitcnt vmcnt(8)")
    k.L.append(c_ + ":")

def page_touch(k):
    lab = k.lab("notouch")
    k("s_cmp_ge_u32 s2, 8"); k(f"s_cbranch_scc1 {lab}")
    k(f"s_mov_b32 s26, {TOUCH}"); k("v_mul_lo_u32 v179, v1, s26")
    k("s_cmp_eq_u32 s10, 3"); k(f"s_cbranch_scc1 {k.lab('touch3')}")
    k(f"s_mul_i32 s27, s10, {192*TOUCH}")
    for j in range(3):
        k("buffer_load_dword v186, v179, s[12:15], s27 offen"); k(f"s_add_u32 s27, s27, {64*TOUCH}")
    k(f"s_branch {lab}")
    k.label("touch3")
    k("buffer_load_dword v186, v179, s[16:19], 0 offen"); k("buffer_load_dword v186, v179, s[20:23], 0 offen")
    k("s_mov_b32 s87x, 0".replace("s87x", "s27"))
    for lo, n in ((42, MB), (76, D*D*2), (78, D*D*2), (80, D*F*2), (82, D*F*2)):
        k(f"s_mov_b32 s48, s{lo}"); k(f"s_mov_b32 s49, s{lo+1}"); k(f"s_mov_b32 s50, {n}"); k("s_mov_b32 s51, 0x20000")
        k("buffer_load_dword v186, v179, s[48:51], 0 offen")
    k.L.append(lab + ":")

def kv_issue(k, vm):
    k("s_sub_u32 s29, s2, 160"); k("s_cmp_lt_u32 s29, 78"); k("s_cselect_b32 s29, 2, 1")
    for j in range(2):
        k(f"s_add_u32 s26, s2, {82*j}")
        k("s_mul_hi_u32 s27, s26, 0x1999999a"); k("s_mul_i32 s28, s27, 10"); k("s_sub_u32 s28, s26, s28")
        k(f"s_lshl_b32 s{30+2*j}, s27, 6"); k(f"s_lshl_b32 s{31+2*j}, s28, 6")
    k("v_lshrrev_b32 v5, 3, v0"); k("v_and_b32 v6, 7, v0"); k("v_lshlrev_b32 v6, 4, v6")
    k("s_waitcnt lgkmcnt(0)")
    k.srd(48, 36, MB); k.srd(52, 38, MB); k.srd(56, 40, D*8)
    k("s_lshl_b32 s26, s10, 10"); k("s_mov_b32 s27, 40960")
    for j in range(2):
        b = j*KVL
        if j == 1: k("s_cmp_lt_u32 s29, 2"); k(f"s_cbranch_scc1 {k.lab('kv1')}")
        k(f"v_add_u32 v{8+j}, s{30+2*j}, v5"); k(f"v_mul_u32_u24 v{8+j}, 1280, v{8+j}")
        k(f"s_lshl_b32 s28, s{31+2*j}, 1"); k(f"v_add3_u32 v{8+j}, v{8+j}, v6, s28")
        k(f"v_subrev_u32 v{10+j}, 3840, v{8+j}")
        G = [[f"s_add_u32 m0, s26, {b}", "s_nop 0", f"buffer_load_dwordx4 v{10+j}, s[48:51], 0 offen lds"],
             [f"s_add_u32 m0, s26, {b + 4096}", f"v_add_u32 v7, 40960, v{10+j}", "buffer_load_dwordx4 v7, s[48:51], 0 offen lds"],
             [f"s_add_u32 m0, s26, {b + 9216}", "s_nop 0", f"buffer_load_dwordx4 v{8+j}, s[52:55], 0 offen lds"],
             [f"s_add_u32 m0, s26, {b + 13312}", "s_nop 0", f"buffer_load_dwordx4 v{8+j}, s[52:55], s27 offen lds"],
             [f"s_mov_b32 m0, {b + 8192}", "v_lshrrev_b32 v7, 3, v1", f"v_add_u32 v7, s{30+2*j}, v7", "v_mul_u32_u24 v7, 1280, v7",
              "v_and_b32 v18, 7, v1", "v_lshlrev_b32 v18, 4, v18", f"s_lshl_b32 s28, s{31+2*j}, 1", "v_add3_u32 v7, v7, v18, s28",
              "v_add_u32 v7, 78080, v7", "buffer_load_dwordx4 v7, s[48:51], 0 offen lds"],
             [f"v_add_u32 v{16+j}, s{31+2*j}, v1", f"v_lshlrev_b32 v{16+j}, 3, v{16+j}", f"buffer_load_dwordx2 {v(12+2*j,2)}, v{16+j}, s[56:59], 0 offen"]]
        for g in G:
            if j == 0: vm.issue(g, "kv")
            else:
                for ln in g: k(ln)
    k.label("kv1")

def kv_compute(k):
    k("v_and_b32 v10, 15, v1"); k("v_lshrrev_b32 v11, 2, v10"); k("s_lshl_b32 s42, s10, 4"); k("v_add_u32 v11, s42, v11")
    k("v_lshlrev_b32 v11, 7, v11"); k("v_and_b32 v10, 3, v10"); k("v_lshlrev_b32 v10, 3, v10"); k("v_lshlrev_b32 v16, 5, v3")
    k("v_add3_u32 v11, v11, v10, v16")
    k("s_mov_b32 s45, 0"); k("s_mov_b32 s46, 0xffff0000"); k(f"s_mov_b32 s47, {KVO}")
    k(".p2align 3")
    k.label("kvloop")
    k("v_mul_u32_u24 v9, 144, v1"); k("s_lshl_b32 s43, s10, 5"); k(f"s_sub_u32 s43, {KVO + 96}, s43"); k("v_add_u32 v9, s43, v9")
    KR = 16; VR = 26; KF = 38
    for i in range(5): k(f"ds_read_b64_tr_b16 {v(KR+2*i,2)}, v11 offset:{512*i}")
    for i in range(4): k(f"ds_read_b64_tr_b16 {v(VR+2*i,2)}, v11 offset:{9216+512*i}")
    k("v_lshlrev_b32 v34, 16, v12"); k("v_and_b32 v35, s46, v12"); k("v_lshlrev_b32 v36, 16, v13"); k("v_and_b32 v37, s46, v13")
    k("s_waitcnt lgkmcnt(4)")
    for i in range(10):
        k(f"v_lshlrev_b32 v{KF+2*i}, 16, v{KR+i}"); k(f"v_and_b32 v{KF+2*i+1}, s46, v{KR+i}")
    k("s_waitcnt lgkmcnt(0)")
    OUTR = 58
    for half in (1, 0):
        for pr in range(4):
            es = (8*half + 7 - 2*pr, 8*half + 6 - 2*pr)
            for j, e in enumerate(es):
                t = 16 + j
                k(f"v_mul_f32 v{t}, v34, v{KF+e+3}"); k(f"v_fmac_f32 v{t}, v35, v{KF+e+2}")
                k(f"v_fmac_f32 v{t}, v36, v{KF+e+1}"); k(f"v_fmac_f32 v{t}, v37, v{KF+e}")
                vr = VR + e//2
                if e % 2 == 0: k(f"v_lshlrev_b32 v{18+j}, 16, v{vr}")
                else: k(f"v_and_b32 v{18+j}, s46, v{vr}")
                k(f"v_mul_f32 v{t}, v{t}, v{18+j}")
            k(f"v_cvt_pk_bf16_f32 v{OUTR+pr}, v16, v17")
        k(f"ds_write_b128 v9, {v(OUTR,4)} offset:{16*(1-half)}")
        OUTR = 20
    k("v_lshrrev_b32 v5, 3, v1"); k("v_add_u32 v5, s42, v5"); k("v_and_b32 v6, 7, v1"); k("v_lshlrev_b32 v6, 4, v6")
    k("v_mul_u32_u24 v7, 144, v5"); k(f"v_add3_u32 v7, v7, v6, s47")
    k("v_add_u32 v5, s31, v5"); k("v_lshlrev_b32 v5, 12, v5"); k("v_add_u32 v5, v5, v6")
    k("s_sub_u32 s43, 1984, s30"); k("s_lshl_b32 s43, s43, 1"); k(f"s_add_u32 s43, s43, {UR}"); k("s_add_u32 s44, s43, 32768")
    k("s_waitcnt lgkmcnt(0)")
    k("s_barrier")
    k("ds_read_b128 v[16:19], v7"); k("ds_read_b128 v[20:23], v7 offset:1152")
    k("s_waitcnt lgkmcnt(1)")
    k("buffer_store_dwordx4 v[16:19], v5, s[12:15], s43 offen sc1")
    k("s_waitcnt lgkmcnt(0)")
    k("buffer_store_dwordx4 v[20:23], v5, s[12:15], s44 offen sc1")
    k("s_add_u32 s45, s45, 1"); k("s_cmp_ge_u32 s45, s29"); k(f"s_cbranch_scc1 {k.lab('kvexit')}")
    k(f"s_waitcnt vmcnt({3 if CODEFIRST else 4})")
    k("s_barrier")
    k("s_mov_b32 s30, s32"); k("s_mov_b32 s31, s33")
    k("v_mov_b32 v12, v14"); k("v_mov_b32 v13, v15"); k(f"v_add_u32 v11, {KVL}, v11")
    k(f"s_branch {k.lab('kvloop')}")
    k.label("kvexit")

HB = 128; E = 168
def conv_h_issue(k, vm):
    k("s_lshl_b32 s83, s2, 2"); k("s_add_u32 s83, s83, s10")
    k("s_lshl_b32 s35, s83, 12")
    k(f"s_mul_i32 s82, s10, {WREG}"); k(f"s_add_u32 s82, s82, {CONVL}")
    k("v_subrev_u32 v5, 32, v4"); k("v_add_u32 v6, 16, v5")
    k("s_lshl_b32 s28, s83, 1"); k("v_mov_b32 v19, s28")
    k("s_add_u32 s76, s76, s35"); k("s_addc_u32 s77, s77, 0")
    k("s_mov_b32 s78, 4096"); k("s_mov_b32 s79, 0x20000")
    for q in range(5):
        vm.issue([f"buffer_load_dwordx4 {v(HB+8*q,4)}, v5, s[76:79], 0 offen"], ("h", q))
        vm.issue([f"buffer_load_dword v{HB+8*q+4}, v6, s[76:79], 0 offen"] + (["v_add_u32 v5, 1024, v5", "v_add_u32 v6, 1024, v6"] if q < 4 else []), ("h", q))
    k("v_subrev_u32 v5, 32, v4")
    vm.issue(["s_add_u32 m0, s82, 4608", "s_nop 0", "buffer_load_dwordx4 v5, s[76:79], 0 offen lds"], "h0")
    k("s_add_u32 m0, s82, %d" % (4608 + 1024)); k("v_add_u32 v5, 1024, v5")
    for q in range(3): vm.issue([f"buffer_load_dwordx4 v5, s[76:79], 0 offen offset:{1024*q} lds"], "h0")
    k("s_add_u32 m0, s82, %d" % (4608 + 4096)); k("v_add_u32 v5, 3072, v5")
    vm.issue(["s_mov_b64 exec, 15", "buffer_load_dwordx4 v5, s[76:79], 0 offen lds", "s_mov_b64 exec, -1"], "h0")
    k("s_mov_b32 s44, s80"); k("s_mov_b32 s45, s81"); k(f"s_mov_b32 s46, {D*2}"); k("s_mov_b32 s47, 0x20000")
    vm.issue(["buffer_load_ushort v176, v19, s[44:47], 0 offen"], "D")

def conv_h_copy1(k):
    k("s_add_u32 s42, s82, %d" % (4608 + CPY)); k("v_add_u32 v5, s42, v4")
    for q in range(5):
        x = HB + 8*q
        if q == 4: k("s_mov_b64 exec, 15")
        for i in range(4): k(f"v_alignbit_b32 v{E+4*(q%2)+i}, v{x+i+1}, v{x+i}, 16")
        k(f"ds_write_b128 v5, {v(E+4*(q%2),4)} offset:{1024*q}")
    k("s_mov_b64 exec, -1")

def conv_main(k, prefetch_items, wloop):
    vm = VM(k)
    k(f"s_lshl_b32 s35, s83, 12"); k(f"s_add_u32 s36, s35, {UR}")
    k("s_mov_b32 m0, s82"); k("s_nop 0")
    for j in range(4): vm.issue([f"buffer_load_dwordx4 v4, s[12:15], s36 offen offset:{1024*j} sc1 lds"], "ur")
    k("v_mov_b32 v8, 0"); k("v_mov_b32 v9, 0"); k("v_lshlrev_b32 v7, 3, v1"); k("v_add_u32 v7, s82, v7")
    k("ds_write_b64 v7, v[8:9] offset:4096")
    k("v_add_u32 v13, 1, v2"); k("v_and_b32 v14, 1, v13"); k(f"v_mul_u32_u24 v12, {CPY}, v14")
    k("v_sub_u32 v13, v13, v14"); k("v_lshlrev_b32 v13, 1, v13"); k("v_lshl_add_u32 v13, v3, 4, v13")
    k("s_add_u32 s38, s82, 4608"); k("v_add3_u32 v12, v12, v13, s38")
    for j in range(1, 4): k(f"v_add_u32 v{103+j}, {1024*j}, v12")
    k("v_lshlrev_b32 v13, 5, v2"); k("v_lshlrev_b32 v14, 4, v3"); k("v_sub_u32 v13, v14, v13")
    k("s_add_u32 s39, s82, 480"); k("v_add_u32 v13, s39, v13")
    AP = 100
    k("v_sub_u32 v16, 15, v2"); k("v_lshrrev_b32 v17, 3, v16"); k("v_and_b32 v16, 7, v16")
    k("v_and_b32 v18, 1, v16"); k("v_lshlrev_b32 v18, 4, v18"); k("v_lshlrev_b32 v18, v18, v176")
    k("v_cmp_eq_u32 vcc, v17, v3"); k("v_cndmask_b32 v18, 0, v18, vcc"); k("v_lshrrev_b32 v16, 1, v16")
    for r in range(4):
        k(f"v_cmp_eq_u32 vcc, {r}, v16"); k(f"v_cndmask_b32 v{AP+r}, 0, v18, vcc")
    ACC = 16; A0 = 48; A1 = 112; B0 = 144; B1 = 176
    AR = (12, 104, 105, 106)
    def loads(A, B, rho):
        L = []
        for d in range(8): L.append(f"ds_read_b128 {v(B+4*d,4)}, v13 offset:{64*rho + 512*(7-d)}")
        for m in range(8):
            o = 128*(m % 2) + 16*rho
            L.append(f"ds_read2_b32 {v(A+4*m,2)}, v{AR[m//2]} offset0:{o} offset1:{o+1}")
            L.append(f"ds_read2_b32 {v(A+4*m+2,2)}, v{AR[m//2]} offset0:{o+2} offset1:{o+3}")
        return L
    pq = TQ(vm, prefetch_items)
    vm.wait(lambda t: t == "ur", " lgkmcnt(0)")
    k.stamp("ur")
    for ln in loads(A0, B0, 0): k(ln)
    k("s_waitcnt lgkmcnt(0)")
    for t in range(8): k(f"v_mfma_f32_16x16x32_bf16 {v(ACC+4*t,4)}, {v(AP,4)}, {v(B0+4*t,4)}, 0")
    pairs = [(m, d) for m in range(8) for d in range(8 - m)]
    for rho in range(8):
        A, B = (A0, B0) if rho % 2 == 0 else (A1, B1)
        An, Bn = (A1, B1) if rho % 2 == 0 else (A0, B0)
        nxt = loads(An, Bn, rho + 1) if rho < 7 else []
        if wloop:
            if rho == WSTART - 1: vm.issue(cpa_sample(), "cpa")
            if rho == WSTART:
                pq.flush(); vm.wait(lambda t: t == "cpa"); cpa_check(k); pq.items = list(wloop)
        elif rho == 7: pq.flush(); vm.issue(cpa_sample(), "cpa")
        for idx, (m, d) in enumerate(pairs):
            k(f"v_mfma_f32_16x16x32_bf16 {v(ACC+4*(m+d),4)}, {v(A+4*m,4)}, {v(B+4*d,4)}, {v(ACC+4*(m+d),4)}")
            if idx < len(nxt): k(nxt[idx])
            if rho >= PFSTART and idx % (PFGAP if (rho < WSTART or not wloop) else WGAP) == 1: pq.pop()
        k("s_waitcnt lgkmcnt(0)")
    pq.flush()
    k.stamp("loop")
    k("v_lshlrev_b32 v14, 5, v2"); k("v_lshl_add_u32 v14, v3, 3, v14"); k("v_add_u32 v14, s82, v14")
    for t in range(8):
        k(f"v_cvt_pk_bf16_f32 v{A0+2*t}, v{ACC+4*t}, v{ACC+4*t+1}"); k(f"v_cvt_pk_bf16_f32 v{A0+2*t+1}, v{ACC+4*t+2}, v{ACC+4*t+3}")
        k(f"ds_write_b64 v14, {v(A0+2*t,2)} offset:{512*t}")
    k("v_add_u32 v15, s82, v4")
    k("s_waitcnt lgkmcnt(0)")
    for j in range(4): k(f"ds_read_b128 {v(B0+4*j,4)}, v15 offset:{1024*j}")
    k(f"s_add_u32 s36, s35, {YT}")
    for j in range(4):
        k(f"s_waitcnt lgkmcnt({3-j})")
        vm.issue([f"buffer_store_dwordx4 {v(B0+4*j,4)}, v4, s[12:15], s36 offen offset:{1024*j} sc1"], "S")
    return vm, pq

def wtask_issue(k, tag, ldsbase):
    k("s_mov_b32 s51, 0x20000")
    k("s_lshl_b32 s34, s10, 14"); k(f"s_add_u32 s34, s34, {ldsbase}")
    k("v_lshrrev_b32 v5, 3, v1"); k("v_and_b32 v6, 7, v1"); k("v_lshlrev_b32 v6, 4, v6")
    k("s_lshl_b32 s47, s41, 5"); k("v_add_u32 v5, s47, v5"); k("v_mul_lo_u32 v5, v5, s40")
    k("s_lshl_b32 s47, s42, 7"); k("v_add3_u32 v5, v5, v6, s47")
    k("s_lshl_b32 s52, s40, 3"); k("s_lshl_b32 s53, s43, 2"); k("s_mov_b32 s54, s34")
    k.label("wld" + tag)
    k("s_mov_b32 m0, s54"); k("s_sub_u32 s53, s53, 1")
    k("buffer_load_dwordx4 v5, s[48:51], 0 offen lds")
    k("v_add_u32 v5, s52, v5"); k("s_add_u32 s54, s54, 1024")
    k("s_cmp_lg_u32 s53, 0"); k(f"s_cbranch_scc1 {k.lab('wld' + tag)}")

def wtask_finish(k, tag, nxt):
    k("v_lshlrev_b32 v5, 10, v3"); k("v_bfe_u32 v6, v1, 2, 2"); k("v_lshl_add_u32 v5, v6, 7, v5")
    k("v_and_b32 v6, 3, v1"); k("v_lshl_add_u32 v5, v6, 4, v5"); k("v_add_u32 v5, s34, v5")
    k("s_lshl_b32 s47, s42, 2"); k("s_mul_i32 s47, s47, s45"); k("s_add_u32 s47, s47, s41"); k("s_lshl_b32 s47, s47, 10")
    k("s_add_u32 s47, s47, s44"); k("s_lshl_b32 s55, s45, 10")
    for r in range(4): k(f"v_mov_b32 v{24+r}, 0")
    k("s_mov_b32 s52, 0x3f803f80"); k("s_mov_b32 s53, 0")
    k.stamp("wiss" + tag)
    k("s_waitcnt vmcnt(0)")
    k.stamp("wld" + tag)
    k.label("wtr" + tag)
    for t in range(4):
        o = 64*(t//2) + 8*(t % 2)
        k(f"ds_read_b64_tr_b16 {v(8+4*t,2)}, v5 offset:{o}"); k(f"ds_read_b64_tr_b16 {v(10+4*t,2)}, v5 offset:{o+512}")
    k("v_add_u32 v5, 4096, v5"); k("s_add_u32 s53, s53, 1")
    k("s_mov_b32 s54, s47")
    for t in range(4):
        k(f"s_waitcnt lgkmcnt({6 - 2*t})")
        k(f"buffer_store_dwordx4 {v(8+4*t,4)}, v4, s[12:15], s54 offen sc1")
        if t < 3: k("s_add_u32 s54, s54, s55")
    for r in range(4):
        for t in range(4): k(f"v_dot2_f32_bf16 v{24+t}, v{8+4*t+r}, s52, v{24+t}")
    k("s_add_u32 s47, s47, 1024")
    k("s_cmp_lt_u32 s53, s43"); k(f"s_cbranch_scc1 {k.lab('wtr' + tag)}")
    k("s_cmp_ge_u32 s46, 5"); k(f"s_cbranch_scc1 {nxt}")
    for t in range(4): k(f"v_mov_b32 v{28+t}, v{24+t}")
    for t in range(4): k(f"v_permlane32_swap_b32 v{24+t}, v{28+t}")
    for t in range(4): k(f"v_add_f32 v{24+t}, v{24+t}, v{28+t}")
    for t in range(4): k(f"v_mov_b32 v{28+t}, v{24+t}")
    for t in range(4): k(f"v_permlane16_swap_b32 v{24+t}, v{28+t}")
    for t in range(4): k(f"v_add_f32 v{24+t}, v{24+t}, v{28+t}")
    k(f"s_mul_i32 s47, s46, {F*4}"); k("s_lshl_b32 s52, s42, 8"); k("s_add_u32 s47, s47, s52"); k(f"s_add_u32 s47, s47, {CS3}")
    k("v_lshlrev_b32 v6, 2, v2")
    k("s_mov_b64 exec, 0xffff")
    for t in range(4): k(f"buffer_store_dword v{24+t}, v6, s[12:15], s47 offen offset:{64*t} sc1")
    k("s_mov_b64 exec, -1")
    k(f"s_branch {nxt}")

def w1_params(k):
    k("s_sub_u32 s35, s2, 242"); k("s_lshl_b32 s35, s35, 2"); k("s_add_u32 s35, s35, s10")
    k("s_mov_b32 s48, s76"); k("s_mov_b32 s49, s77")
    k(f"s_mov_b32 s50, {D*D*2}"); k("s_mov_b32 s40, 1280"); k(f"s_mov_b32 s44, {W1T}"); k("s_mov_b32 s45, 20"); k("s_mov_b32 s46, 5")
    k("s_mul_hi_u32 s41, s35, 0x1999999a"); k("s_mul_i32 s42, s41, 10"); k("s_sub_u32 s42, s35, s42"); k("s_mov_b32 s43, 4"); k("s_lshl_b32 s41, s41, 2")

def prep_part(k, pre_items_setup):
    if QWARM:
        k("s_sub_u32 s33, s2, 160"); k("s_cmp_ge_u32 s33, 64"); k(f"s_cbranch_scc1 {k.lab('noq')}")
        k("s_cmp_eq_u32 s10, 0"); k(f"s_cbranch_scc1 {k.lab('noq')}")
        k("s_mul_i32 s33, s33, 3"); k("s_add_u32 s33, s33, s10"); k("s_sub_u32 s33, s33, 1"); k("s_mul_i32 s33, s33, 14336")
        for i in range(14):
            k(f"buffer_load_dwordx4 v[32:35], v4, s[16:19], s33 offen offset:{1024*(i%4)}")
            if i % 4 == 3: k("s_add_u32 s33, s33, 4096")
    k.label("noq")
    k.label("roundB")
    qitems, witems = pre_items_setup()
    k("s_sub_u32 s33, s2, 160"); k("s_lshl_b32 s33, s33, 2"); k("s_add_u32 s33, s33, s10")
    k("s_mov_b32 s43, 0")
    k("s_cmp_ge_u32 s33, 325"); k(f"s_cbranch_scc1 {k.lab('noB')}")
    k("s_mov_b32 s46, 5"); k("s_mov_b32 s43, 4")
    k("s_cmp_ge_u32 s33, 50"); k(f"s_cbranch_scc1 {k.lab('pw3')}")
    k("s_mov_b32 s48, s78"); k("s_mov_b32 s49, s79"); k(f"s_mov_b32 s50, {D*D*2}"); k("s_mov_b32 s40, 1280"); k(f"s_mov_b32 s44, {W2T}"); k("s_mov_b32 s45, 20")
    k("s_mul_hi_u32 s41, s33, 0x1999999a"); k("s_mul_i32 s42, s41, 10"); k("s_sub_u32 s42, s33, s42"); k("s_lshl_b32 s41, s41, 2")
    k(f"s_branch {k.lab('wtB')}")
    k.label("pw3")
    k("s_cmp_ge_u32 s33, 185"); k(f"s_cbranch_scc1 {k.lab('pw4')}")
    k("s_sub_u32 s35, s33, 50")
    k("s_mov_b32 s48, s80"); k("s_mov_b32 s49, s81"); k(f"s_mov_b32 s50, {D*F*2}"); k(f"s_mov_b32 s40, {F*2}"); k(f"s_mov_b32 s44, {W3T}"); k("s_mov_b32 s45, 20")
    k("s_mul_hi_u32 s46, s35, 0x97b425f"); k("s_mul_i32 s42, s46, 27"); k("s_sub_u32 s42, s35, s42"); k("s_lshl_b32 s41, s46, 2")
    k(f"s_branch {k.lab('wtB')}")
    k.label("pw4")
    k("s_sub_u32 s35, s33, 185")
    k("s_mov_b32 s48, s82"); k("s_mov_b32 s49, s83"); k(f"s_mov_b32 s50, {D*F*2}"); k("s_mov_b32 s40, 1280"); k(f"s_mov_b32 s44, {W4T}"); k("s_mov_b32 s45, 54")
    k("s_mul_hi_u32 s41, s35, 0x1999999a"); k("s_mul_i32 s42, s41, 10"); k("s_sub_u32 s42, s35, s42")
    k("s_cmp_eq_u32 s41, 13"); k("s_cselect_b32 s43, 2, 4"); k("s_lshl_b32 s41, s41, 2")
    k.label("wtB")
    wtask_issue(k, "B", 45056)
    k.label("noB")
    for g, t in qitems:
        for ln in g: k(ln)
    for ln in cpa_sample(): k(ln)
    doneB = k.lab("doneB")
    k("s_cmp_eq_u32 s43, 0"); k(f"s_cbranch_scc1 {doneB}")
    wtask_finish(k, "B", doneB)
    k.L.append(doneB + ":")
    k.stamp("doneB")
    signal(k, None, None, [f"s_mov_b32 s{SG}, {CPB}"], 96, [f"s_mov_b32 s{SG}, {FALL + 9*128}"])
    p2.p2_qstats(k, lambda: None)
    cpa_check(k)
    return witems

def mega():
    pc.SC = " sc1"; pc.SS = " sc1"
    k = Kern("block_kernel", vgpr=256, agpr=256, sgpr=96)
    k.only = ONLY
    k("s_cmp_ge_u32 s2, 256"); k(f"s_cbranch_scc1 {k.lab('end')}")
    k.stamp_begin()
    if CODEFIRST:
        for ln in code_prefetch_group(k, None, k.lab("end"), "z", 180, sreg=26): k(ln.replace("@U@", "0"))
    k(f"s_load_dwordx8 s[36:43], s[0:1], {A_K}")
    k(f"s_load_dwordx2 s[44:45], s[0:1], {A_D}")
    k(f"s_load_dwordx8 s[76:83], s[0:1], {B_W1}")
    k(f"s_load_dwordx2 s[72:73], s[0:1], {DBG}")
    prologue(k)
    pre_items_setup = lambda: (p2.p2_pre_setup(k), p2.p2_pre_items(k))[1]
    def common_setup():
        p2.p2_setup(k); p3.p35_setup(k, 26)
        k.srd(12, 4, WS_END); k.srd(16, 8, MB); k.srd(20, 6, MB)
        init_srd(k)
    k("s_cmp_ge_u32 s2, 242"); k(f"s_cbranch_scc1 {k.lab('special')}")
    vm = VM(k)
    kv_issue(k, vm)
    common_setup()
    if TOUCH: page_touch(k)
    k("s_cmp_ge_u32 s2, 160"); k(f"s_cbranch_scc1 {k.lab('keepw')}")
    k("s_mov_b32 s76, s42"); k("s_mov_b32 s77, s43"); k("s_mov_b32 s80, s44"); k("s_mov_b32 s81, s45")
    k.label("keepw")
    if not CODEFIRST:
        if PF_ALL: vm.issue(code_prefetch_group(k, k.lab("code0"), k.lab("end"), "z", 180, sreg=26), "pf")
        else: vm.issue(["v_mov_b32 v180, 0", "buffer_load_dword v182, v180, s[16:19], 0 offen"], "pf")
        k.label("code0")
    k.stamp("kvissued")
    k("s_cmp_lt_u32 s29, 2"); k(f"s_cbranch_scc1 {k.lab('kvw1')}")
    k(f"s_waitcnt vmcnt({6 if CODEFIRST else 7})")
    k(f"s_branch {k.lab('kvw2')}")
    k.label("kvw1")
    if TOUCH: k("s_waitcnt vmcnt(8)") if False else kv_wait_touch(k)
    elif CODEFIRST: k("s_waitcnt vmcnt(0)")
    else: vm.wait(lambda t: t == "kv")
    k.label("kvw2")
    k("s_barrier")
    k.stamp("kvin")
    k("v_mov_b32 v178, 0")
    k("buffer_load_dword v177, v178, s[72:75], 0 offen sc1")
    vmh = VM(k)
    k("s_cmp_ge_u32 s2, 160"); k(f"s_cbranch_scc1 {k.lab('noh')}")
    conv_h_issue(k, vmh)
    k.label("noh")
    kv_compute(k)
    k.stamp("kvdone")
    k("s_waitcnt vmcnt(0)")
    k.stamp("kvdrain")
    ok = k.lab("initok")
    k("v_cmp_eq_u32 vcc, 0, v177"); k(f"s_cbranch_vccz {ok}")
    wait_init(k)
    k.L.append(ok + ":")
    k("s_barrier")
    tile_cnt = lambda add: [f"s_add_u32 s84, s2, {add}", "s_mul_hi_u32 s85, s84, 0x1999999a", "s_mul_i32 s28, s85, 10", "s_sub_u32 s84, s84, s28",
                            "s_lshl_b32 s84, s84, 2", "s_and_b32 s85, s85, 3", "s_add_u32 s84, s84, s85", "s_lshl_b32 s84, s84, 7", f"s_add_u32 s84, s84, {C0}"]
    atomic_signal(k, tile_cnt(0), k.lab("sigc0"), None)
    k("s_cmp_lt_u32 s29, 2"); k(f"s_cbranch_scc1 {k.lab('sigc0b')}")
    atomic_signal(k, tile_cnt(82), k.lab("sigc0c"), None)
    k.label("sigc0b")
    k.stamp("kvsig")
    k("s_cmp_ge_u32 s2, 160"); k(f"s_cbranch_scc1 {k.lab('prep')}")
    conv_h_copy1(k)
    qitems, witems = pre_items_setup()
    if QEARLY:
        for g, t in qitems:
            for ln in g: k(ln)
        qitems = []
    wait_counters(k, None, ["s_lshr_b32 s84, s2, 4", "s_lshl_b32 s84, s84, 9", f"s_add_u32 s84, s84, {C0}", "v_and_b32 v5, 3, v1", "v_lshlrev_b32 v5, 7, v5", "v_add_u32 v5, s84, v5"],
                  ["v_mov_b32 v7, 8"], False)
    k.stamp("s0")
    vm, pq = conv_main(k, qitems, witems[:NWLOOP])
    k.stamp("convdone")
    lab = k.lab("sigc1")
    p2.p2_qstats(k, (lambda: None) if QEARLY else (lambda: vm.wait(lambda t: t == "q")))
    vm.wait(lambda t: t == "S"); k("s_barrier")
    cpa_check(k)
    if S1DIRECT:
        atomic_signal(k, [f"s_lshr_b32 s{SG}, s2, 3", f"s_lshl_b32 s{SG}, s{SG}, 7", f"s_add_u32 s{SG}, s{SG}, {C1D}"], lab, None)
    else:
        atomic_signal(k, own_shard(C1), lab, 20, [f"s_and_b32 s{SG}, s2, 7", f"s_lshl_b32 s{SG}, s{SG}, 7", f"s_add_u32 s{SG}, s{SG}, {FALL}"])
    k(f"s_branch {k.lab('wconv') if NWLOOP else k.lab('wfirst')}")
    k.label("special")
    k("s_waitcnt lgkmcnt(0)")
    common_setup()
    k("s_cmp_eq_u32 s2, 255"); k(f"s_cbranch_scc1 {k.lab('zero')}")
    k.label("w1only")
    w1_params(k)
    doneA = k.lab("doneA")
    k("s_cmp_ge_u32 s35, 50"); k(f"s_cbranch_scc1 {doneA}")
    wtask_issue(k, "A", 0)
    wtask_finish(k, "A", doneA)
    k.L.append(doneA + ":")
    k.stamp("doneA")
    signal(k, None, None, [f"s_mov_b32 s{SG}, {CPA}"], 13, [f"s_mov_b32 s{SG}, {FALL + 8*128}"], first=True)
    k(f"s_branch {k.lab('prep')}")
    k.label("zero")
    k("v_mov_b32 v8, 0"); k("v_mov_b32 v9, 0"); k("v_mov_b32 v10, 0"); k("v_mov_b32 v11, 0")
    k("v_lshlrev_b32 v5, 4, v0"); k(f"s_mov_b32 s35, {CNT}")
    for j in range(9):
        k("buffer_store_dwordx4 v[8:11], v5, s[12:15], s35 offen sc1"); k("s_add_u32 s35, s35, 4096")
    k("s_waitcnt vmcnt(0)")
    k("s_barrier")
    k("v_mov_b32 v5, 0"); k("v_mov_b32 v6, 1")
    k("s_cmp_lg_u32 s10, 0"); k(f"s_cbranch_scc1 {k.lab('prep')}")
    k("s_mov_b64 exec, 1")
    k("buffer_store_dword v6, v5, s[72:75], 0 offen sc1")
    k("s_mov_b64 exec, -1")
    k.label("prep")
    witems = prep_part(k, pre_items_setup)
    k.label("wfirst")
    k.stamp("cpa")
    for g, t in witems[:NWLOOP]:
        for ln in g: k(ln)
    k.label("wconv")
    for g, t in witems[NWLOOP:max(NWA, NWLOOP)]:
        for ln in g: k(ln)
    p3.p3_pre_setup(k)
    if S1DIRECT:
        wait_counters(k, None, ["v_min_u32 v5, 19, v1", "v_lshlrev_b32 v5, 7, v5", f"v_add_u32 v5, {C1D}, v5", f"v_mov_b32 v6, {FALL + 9*128}",
                                "v_cmp_lt_u32 vcc, 19, v1", "v_cndmask_b32 v5, v5, v6, vcc"], ["v_mov_b32 v7, 8", "v_cndmask_b32 v7, v7, 1, vcc"], False)
    else:
        wait_counters(k, None, ["v_min_u32 v5, 9, v1", "v_lshlrev_b32 v5, 7, v5", f"v_add_u32 v5, {FALL}, v5"], ["v_mov_b32 v7, 1"], False)
    k.stamp("s1")
    early = [(g, "E") for g in p3.p3_pre_early(k)]
    vm, nq = p2.p2_main(k, witems[max(NWA, NWLOOP):], ([(code_prefetch_group(k, k.lab('ph3'), k.lab('ph4'), 'a', 136), "pf")] if PF_JIT else []), p3.p3_pre_late, early)
    k.stamp("p2done")
    signal(k, vm, nq, [f"s_lshl_b32 s{SG}, s{p2.TT}, 7", f"s_add_u32 s{SG}, s{SG}, {C2}"], None)
    k.label("ph3")
    p4.p4_setup(k); p4.p4_pre_setup(k)
    wait_counters(k, nq, [f"s_lshl_b32 s{SG}, s{p3.T64}, 1", f"s_sub_u32 s{SG}, s{SG}, 1", "v_and_b32 v5, 3, v1", f"v_add_u32 v5, s{SG}, v5",
                          "v_and_b32 v5, 63, v5", "v_lshlrev_b32 v5, 7, v5", f"v_add_u32 v5, {C2}, v5"], ["v_mov_b32 v7, 4"], True, mid=MID[0])
    k.stamp("s2")
    early = [(g, "E") for g in p4.p4_pre_early(k)]
    vm, nq = p3.p3_main(k, ([(code_prefetch_group(k, k.lab('ph4'), k.lab('ph5'), 'b', 184), "pf")] if PF_JIT else []), p4.p4_pre_late, early)
    k.stamp("p3done")
    signal(k, vm, nq, [f"s_lshr_b32 s{SG}, s{p3.T64}, 1", f"s_lshl_b32 s{SG}, s{SG}, 2", f"s_lshr_b32 s{SG2}, s{p3.FC}, 1", f"s_add_u32 s{SG}, s{SG}, s{SG2}",
                          f"s_lshl_b32 s{SG}, s{SG}, 7", f"s_add_u32 s{SG}, s{SG}, {C3}"], None)
    k.label("ph4")
    p5.p5_pre_setup(k)
    wait_counters(k, nq, [f"s_lshl_b32 s{SG}, s{p4.T128}, 9", f"s_add_u32 s{SG}, s{SG}, {C3}", "v_and_b32 v5, 3, v1", "v_lshlrev_b32 v5, 7, v5", f"v_add_u32 v5, s{SG}, v5"], ["v_mov_b32 v7, 4"],
                  True, p4.p4_cs_table, mid=MID[1])
    k.stamp("s3")
    early = [(g, "E") for g in p5.p5_pre_early(k)]
    vm, nq = p4.p4_main(k, ([(code_prefetch_group(k, k.lab('ph5'), k.lab('end'), 'c', 88), "pf")] if PF_JIT else []), p5.p5_pre_late, early,
                        follow=[(g, "F") for g in p5.p5_pre_late(k)[:NFOLLOW]], nfollow=NFOLLOW)
    k.stamp("p4done")
    signal(k, vm, nq, [f"s_lshl_b32 s{SG}, s{p4.T128}, 2", f"s_lshr_b32 s{SG2}, s{p4.COL}, 2", f"s_add_u32 s{SG}, s{SG}, s{SG2}",
                          f"s_lshl_b32 s{SG}, s{SG}, 7", f"s_add_u32 s{SG}, s{SG}, {C4}"], None)
    k.label("ph5")
    wait_counters(k, nq, [f"s_lshr_b32 s{SG}, s{p3.T64}, 1", f"s_lshl_b32 s{SG}, s{SG}, 9", f"s_add_u32 s{SG}, s{SG}, {C4}", "v_and_b32 v5, 3, v1", "v_lshlrev_b32 v5, 7, v5", f"v_add_u32 v5, s{SG}, v5"],
                  ["v_mov_b32 v7, 4"], False, mid=MID[2])
    k.stamp("s4")
    p5.p5_main(k)
    k.stamp_flush(4, STAMP)
    k.label("end"); k("s_endpgm")
    pc.SC = ""; pc.SS = ""
    return k
```

```python
from ph_common import *
import ph_common as pc
import p2, p3, p4, p5

LDS = p4.P4_LDS
C2, C3, C4 = CNT, CNT + 64*128, CNT + 128*128
C0, C1, CPA, CPB = CNT + 192*128, CNT + 232*128, CNT + 240*128, CNT + 241*128
FLG = None
FALL = CNT + 242*128
C1D = CNT + 256*128
S1DIRECT = False
TOUCH = 0
PF_ALL = True
PF_JIT = True
CODEFIRST = False
SPIN_LIMIT = 200000
SG, SG2 = 84, 85
NFOLLOW = 0
WGAP = 6
BGATE = False
HLATE = False
QEARLY = True
QWARM = False
WSTART = 2
NWLOOP = 36
NWA = 48
PFSTART = 1
PFGAP = 6
DRAIN_LOADS = 10
MID = (99, 99, 16)
ONLY = None
CPY = 4160
WREG = 4608 + 2*CPY
CONVL = 92160
KVL = 17408
KVO = 2*KVL

def atomic_signal(k, offset_code, lab, target, flag_code=None, first=False):
    if target is None:
        k("s_cmp_lg_u32 s10, 0"); k(f"s_cbranch_scc1 {lab}")
        if first: wait_init(k)
        for ln in offset_code: k(ln)
        k("v_mov_b32 v5, 0"); k("v_mov_b32 v6, 1")
        k("s_mov_b64 exec, 1")
        k(f"buffer_atomic_add v6, v5, s[12:15], s{SG} offen sc1")
        k("s_mov_b64 exec, -1")
        k.L.append(lab + ":")
        return
    k("s_cmp_lg_u32 s10, 0"); k(f"s_cbranch_scc1 {lab}")
    if first: wait_init(k)
    for ln in offset_code: k(ln)
    k("v_mov_b32 v5, 0"); k("v_mov_b32 v6, 1")
    k("s_mov_b64 exec, 1")
    k(f"buffer_atomic_add v6, v5, s[12:15], s{SG} offen sc0 sc1")
    for ln in (flag_code or [f"s_add_u32 s{SG}, s{SG}, {FLG}"]): k(ln)
    k("s_waitcnt vmcnt(0)")
    k.stamp("atom%d" % target + lab[-2:])
    k(f"v_cmp_eq_u32 vcc, {target - 1}, v6")
    k("v_mov_b32 v6, 1")
    k("s_and_b64 exec, exec, vcc")
    k(f"s_cbranch_execz {lab}_x")
    k(f"buffer_store_dword v6, v5, s[12:15], s{SG} offen sc1")
    k.L.append(lab + "_x:")
    k("s_mov_b64 exec, -1")
    k.L.append(lab + ":")

def signal(k, vm, nq, offset_code, target, flag_code=None, first=False):
    lab = k.lab(k.uniq("sig"))
    if nq: nq.pop(DRAIN_LOADS)
    if vm: vm.wait(lambda t: t == "S")
    else: k("s_waitcnt vmcnt(0)")
    k.stamp("drained%d" % k._n)
    if first:
        l2 = k.lab(k.uniq("fi"))
        k("s_cmp_lg_u32 s10, 0"); k(f"s_cbranch_scc1 {l2}")
        wait_init(k)
        k.L.append(l2 + ":")
    k("s_barrier")
    atomic_signal(k, offset_code, lab, target, flag_code, False)

def poll(k, addr_code, target_reg_code, va=5, vd=6, vt=7):
    lab = k.lab(k.uniq("pl")); loop = lab + "_l"
    for ln in addr_code + target_reg_code: k(ln)
    k(f"s_mov_b32 s{SG2}, 0")
    k.L.append(loop + ":")
    k(f"buffer_load_dword v{vd}, v{va}, s[12:15], 0 offen sc1")
    k(f"s_add_u32 s{SG2}, s{SG2}, 1")
    k("s_waitcnt vmcnt(0)")
    k(f"v_cmp_gt_u32 vcc, v{vt}, v{vd}")
    k(f"s_cmp_gt_u32 s{SG2}, {SPIN_LIMIT}"); k(f"s_cbranch_scc1 {lab}")
    k(f"s_cbranch_vccnz {loop}")
    k.L.append(lab + ":")

def wait_counters(k, nq, addr_code, target_code, all_waves_drain, before_barrier=None, mid=0):
    lab = k.lab(k.uniq("wt"))
    if nq: nq.pop(mid)
    k("s_cmp_lg_u32 s10, 0"); k(f"s_cbranch_scc1 {lab}")
    k.stamp("prepoll" + lab[-2:])
    poll(k, addr_code, target_code)
    k.stamp("polled" + lab[-2:])
    k.L.append(lab + ":")
    if nq: nq.flush()
    if all_waves_drain: k("s_waitcnt vmcnt(0)")
    if before_barrier: before_barrier(k)
    k("s_barrier")

def cpa_sample(): return [f"v_mov_b32 v220, {FALL + 8*128}", "buffer_load_dword v219, v220, s[12:15], 0 offen sc1"]
def cpa_check(k):
    ok = k.lab(k.uniq("cpaok"))
    k("v_cmp_eq_u32 vcc, 0, v219"); k(f"s_cbranch_vccz {ok}")
    poll(k, [f"v_mov_b32 v5, {FALL + 8*128}"], ["v_mov_b32 v7, 1"])
    k.L.append(ok + ":")

def shard_addr(base): return ["v_and_b32 v5, 7, v1", "v_lshlrev_b32 v5, 7, v5", f"v_add_u32 v5, {base}, v5"]
def own_shard(base): return [f"s_and_b32 s{SG}, s2, 7", f"s_lshl_b32 s{SG}, s{SG}, 7", f"s_add_u32 s{SG}, s{SG}, {base}"]

def init_srd(k):
    k("s_mov_b32 s74, 256"); k("s_mov_b32 s75, 0x20000")

def wait_init(k):
    lab = k.lab(k.uniq("in")); loop = lab + "_l"
    k("v_mov_b32 v5, 0"); k(f"s_mov_b32 s{SG2}, 0")
    k.L.append(loop + ":")
    k("buffer_load_dword v6, v5, s[72:75], 0 offen sc1")
    k(f"s_add_u32 s{SG2}, s{SG2}, 1")
    k("s_waitcnt vmcnt(0)")
    k("v_cmp_eq_u32 vcc, 0, v6")
    k(f"s_cmp_gt_u32 s{SG2}, {SPIN_LIMIT}"); k(f"s_cbranch_scc1 {lab}")
    k(f"s_cbranch_vccnz {loop}")
    k.L.append(lab + ":")

def vm_after(vm):
    return vm

def kv_wait_touch(k):
    a_, b_, c_ = k.lab("kvt0"), k.lab("kvt1"), k.lab("kvt2")
    k("s_cmp_lt_u32 s2, 8"); k(f"s_cbranch_scc1 {a_}")
    k("s_waitcnt vmcnt(1)"); k(f"s_branch {c_}")
    k.L.append(a_ + ":")
    k("s_cmp_eq_u32 s10, 3"); k(f"s_cbranch_scc1 {b_}")
    k("s_waitcnt vmcnt(4)"); k(f"s_branch {c_}")
    k.L.append(b_ + ":")
    k("s_waitcnt vmcnt(8)")
    k.L.append(c_ + ":")

def page_touch(k):
    lab = k.lab("notouch")
    k("s_cmp_ge_u32 s2, 8"); k(f"s_cbranch_scc1 {lab}")
    k(f"s_mov_b32 s26, {TOUCH}"); k("v_mul_lo_u32 v179, v1, s26")
    k("s_cmp_eq_u32 s10, 3"); k(f"s_cbranch_scc1 {k.lab('touch3')}")
    k(f"s_mul_i32 s27, s10, {192*TOUCH}")
    for j in range(3):
        k("buffer_load_dword v186, v179, s[12:15], s27 offen"); k(f"s_add_u32 s27, s27, {64*TOUCH}")
    k(f"s_branch {lab}")
    k.label("touch3")
    k("buffer_load_dword v186, v179, s[16:19], 0 offen"); k("buffer_load_dword v186, v179, s[20:23], 0 offen")
    k("s_mov_b32 s87x, 0".replace("s87x", "s27"))
    for lo, n in ((42, MB), (76, D*D*2), (78, D*D*2), (80, D*F*2), (82, D*F*2)):
        k(f"s_mov_b32 s48, s{lo}"); k(f"s_mov_b32 s49, s{lo+1}"); k(f"s_mov_b32 s50, {n}"); k("s_mov_b32 s51, 0x20000")
        k("buffer_load_dword v186, v179, s[48:51], 0 offen")
    k.L.append(lab + ":")

def kv_issue(k, vm):
    k("s_sub_u32 s29, s2, 160"); k("s_cmp_lt_u32 s29, 78"); k("s_cselect_b32 s29, 2, 1")
    for j in range(2):
        k(f"s_add_u32 s26, s2, {82*j}")
        k("s_mul_hi_u32 s27, s26, 0x1999999a"); k("s_mul_i32 s28, s27, 10"); k("s_sub_u32 s28, s26, s28")
        k(f"s_lshl_b32 s{30+2*j}, s27, 6"); k(f"s_lshl_b32 s{31+2*j}, s28, 6")
    k("v_lshrrev_b32 v5, 3, v0"); k("v_and_b32 v6, 7, v0"); k("v_lshlrev_b32 v6, 4, v6")
    k("s_waitcnt lgkmcnt(0)")
    k.srd(48, 36, MB); k.srd(52, 38, MB); k.srd(56, 40, D*8)
    k("s_lshl_b32 s26, s10, 10"); k("s_mov_b32 s27, 40960")
    for j in range(2):
        b = j*KVL
        if j == 1: k("s_cmp_lt_u32 s29, 2"); k(f"s_cbranch_scc1 {k.lab('kv1')}")
        k(f"v_add_u32 v{8+j}, s{30+2*j}, v5"); k(f"v_mul_u32_u24 v{8+j}, 1280, v{8+j}")
        k(f"s_lshl_b32 s28, s{31+2*j}, 1"); k(f"v_add3_u32 v{8+j}, v{8+j}, v6, s28")
        k(f"v_subrev_u32 v{10+j}, 3840, v{8+j}")
        G = [[f"s_add_u32 m0, s26, {b}", "s_nop 0", f"buffer_load_dwordx4 v{10+j}, s[48:51], 0 offen lds"],
             [f"s_add_u32 m0, s26, {b + 4096}", f"v_add_u32 v7, 40960, v{10+j}", "buffer_load_dwordx4 v7, s[48:51], 0 offen lds"],
             [f"s_add_u32 m0, s26, {b + 9216}", "s_nop 0", f"buffer_load_dwordx4 v{8+j}, s[52:55], 0 offen lds"],
             [f"s_add_u32 m0, s26, {b + 13312}", "s_nop 0", f"buffer_load_dwordx4 v{8+j}, s[52:55], s27 offen lds"],
             [f"s_mov_b32 m0, {b + 8192}", "v_lshrrev_b32 v7, 3, v1", f"v_add_u32 v7, s{30+2*j}, v7", "v_mul_u32_u24 v7, 1280, v7",
              "v_and_b32 v18, 7, v1", "v_lshlrev_b32 v18, 4, v18", f"s_lshl_b32 s28, s{31+2*j}, 1", "v_add3_u32 v7, v7, v18, s28",
              "v_add_u32 v7, 78080, v7", "buffer_load_dwordx4 v7, s[48:51], 0 offen lds"],
             [f"v_add_u32 v{16+j}, s{31+2*j}, v1", f"v_lshlrev_b32 v{16+j}, 3, v{16+j}", f"buffer_load_dwordx2 {v(12+2*j,2)}, v{16+j}, s[56:59], 0 offen"]]
        for g in G:
            if j == 0: vm.issue(g, "kv")
            else:
                for ln in g: k(ln)
    k.label("kv1")

def kv_compute(k):
    k("v_and_b32 v10, 15, v1"); k("v_lshrrev_b32 v11, 2, v10"); k("s_lshl_b32 s42, s10, 4"); k("v_add_u32 v11, s42, v11")
    k("v_lshlrev_b32 v11, 7, v11"); k("v_and_b32 v10, 3, v10"); k("v_lshlrev_b32 v10, 3, v10"); k("v_lshlrev_b32 v16, 5, v3")
    k("v_add3_u32 v11, v11, v10, v16")
    k("s_mov_b32 s45, 0"); k("s_mov_b32 s46, 0xffff0000"); k(f"s_mov_b32 s47, {KVO}")
    k(".p2align 3")
    k.label("kvloop")
    k("v_mul_u32_u24 v9, 144, v1"); k("s_lshl_b32 s43, s10, 5"); k(f"s_sub_u32 s43, {KVO + 96}, s43"); k("v_add_u32 v9, s43, v9")
    KR = 16; VR = 26; KF = 38
    for i in range(5): k(f"ds_read_b64_tr_b16 {v(KR+2*i,2)}, v11 offset:{512*i}")
    for i in range(4): k(f"ds_read_b64_tr_b16 {v(VR+2*i,2)}, v11 offset:{9216+512*i}")
    k("v_lshlrev_b32 v34, 16, v12"); k("v_and_b32 v35, s46, v12"); k("v_lshlrev_b32 v36, 16, v13"); k("v_and_b32 v37, s46, v13")
    k("s_waitcnt lgkmcnt(4)")
    for i in range(10):
        k(f"v_lshlrev_b32 v{KF+2*i}, 16, v{KR+i}"); k(f"v_and_b32 v{KF+2*i+1}, s46, v{KR+i}")
    k("s_waitcnt lgkmcnt(0)")
    OUTR = 58
    for half in (1, 0):
        for pr in range(4):
            es = (8*half + 7 - 2*pr, 8*half + 6 - 2*pr)
            for j, e in enumerate(es):
                t = 16 + j
                k(f"v_mul_f32 v{t}, v34, v{KF+e+3}"); k(f"v_fmac_f32 v{t}, v35, v{KF+e+2}")
                k(f"v_fmac_f32 v{t}, v36, v{KF+e+1}"); k(f"v_fmac_f32 v{t}, v37, v{KF+e}")
                vr = VR + e//2
                if e % 2 == 0: k(f"v_lshlrev_b32 v{18+j}, 16, v{vr}")
                else: k(f"v_and_b32 v{18+j}, s46, v{vr}")
                k(f"v_mul_f32 v{t}, v{t}, v{18+j}")
            k(f"v_cvt_pk_bf16_f32 v{OUTR+pr}, v16, v17")
        k(f"ds_write_b128 v9, {v(OUTR,4)} offset:{16*(1-half)}")
        OUTR = 20
    k("v_lshrrev_b32 v5, 3, v1"); k("v_add_u32 v5, s42, v5"); k("v_and_b32 v6, 7, v1"); k("v_lshlrev_b32 v6, 4, v6")
    k("v_mul_u32_u24 v7, 144, v5"); k(f"v_add3_u32 v7, v7, v6, s47")
    k("v_add_u32 v5, s31, v5"); k("v_lshlrev_b32 v5, 12, v5"); k("v_add_u32 v5, v5, v6")
    k("s_sub_u32 s43, 1984, s30"); k("s_lshl_b32 s43, s43, 1"); k(f"s_add_u32 s43, s43, {UR}"); k("s_add_u32 s44, s43, 32768")
    k("s_waitcnt lgkmcnt(0)")
    k("s_barrier")
    k("ds_read_b128 v[16:19], v7"); k("ds_read_b128 v[20:23], v7 offset:1152")
    k("s_waitcnt lgkmcnt(1)")
    k("buffer_store_dwordx4 v[16:19], v5, s[12:15], s43 offen sc1")
    k("s_waitcnt lgkmcnt(0)")
    k("buffer_store_dwordx4 v[20:23], v5, s[12:15], s44 offen sc1")
    k("s_add_u32 s45, s45, 1"); k("s_cmp_ge_u32 s45, s29"); k(f"s_cbranch_scc1 {k.lab('kvexit')}")
    k(f"s_waitcnt vmcnt({3 if CODEFIRST else 4})")
    k("s_barrier")
    k("s_mov_b32 s30, s32"); k("s_mov_b32 s31, s33")
    k("v_mov_b32 v12, v14"); k("v_mov_b32 v13, v15"); k(f"v_add_u32 v11, {KVL}, v11")
    k(f"s_branch {k.lab('kvloop')}")
    k.label("kvexit")

HB = 128; E = 168
def conv_h_issue(k, vm):
    k("s_lshl_b32 s83, s2, 2"); k("s_add_u32 s83, s83, s10")
    k("s_lshl_b32 s35, s83, 12")
    k(f"s_mul_i32 s82, s10, {WREG}"); k(f"s_add_u32 s82, s82, {CONVL}")
    k("v_subrev_u32 v5, 32, v4"); k("v_add_u32 v6, 16, v5")
    k("s_lshl_b32 s28, s83, 1"); k("v_mov_b32 v19, s28")
    k("s_add_u32 s76, s76, s35"); k("s_addc_u32 s77, s77, 0")
    k("s_mov_b32 s78, 4096"); k("s_mov_b32 s79, 0x20000")
    for q in range(5):
        vm.issue([f"buffer_load_dwordx4 {v(HB+8*q,4)}, v5, s[76:79], 0 offen"], ("h", q))
        vm.issue([f"buffer_load_dword v{HB+8*q+4}, v6, s[76:79], 0 offen"] + (["v_add_u32 v5, 1024, v5", "v_add_u32 v6, 1024, v6"] if q < 4 else []), ("h", q))
    k("v_subrev_u32 v5, 32, v4")
    vm.issue(["s_add_u32 m0, s82, 4608", "s_nop 0", "buffer_load_dwordx4 v5, s[76:79], 0 offen lds"], "h0")
    k("s_add_u32 m0, s82, %d" % (4608 + 1024)); k("v_add_u32 v5, 1024, v5")
    for q in range(3): vm.issue([f"buffer_load_dwordx4 v5, s[76:79], 0 offen offset:{1024*q} lds"], "h0")
    k("s_add_u32 m0, s82, %d" % (4608 + 4096)); k("v_add_u32 v5, 3072, v5")
    vm.issue(["s_mov_b64 exec, 15", "buffer_load_dwordx4 v5, s[76:79], 0 offen lds", "s_mov_b64 exec, -1"], "h0")
    k("s_mov_b32 s44, s80"); k("s_mov_b32 s45, s81"); k(f"s_mov_b32 s46, {D*2}"); k("s_mov_b32 s47, 0x20000")
    vm.issue(["buffer_load_ushort v176, v19, s[44:47], 0 offen"], "D")

def conv_h_copy1(k):
    k("s_add_u32 s42, s82, %d" % (4608 + CPY)); k("v_add_u32 v5, s42, v4")
    for q in range(5):
        x = HB + 8*q
        if q == 4: k("s_mov_b64 exec, 15")
        for i in range(4): k(f"v_alignbit_b32 v{E+4*(q%2)+i}, v{x+i+1}, v{x+i}, 16")
        k(f"ds_write_b128 v5, {v(E+4*(q%2),4)} offset:{1024*q}")
    k("s_mov_b64 exec, -1")

def conv_main(k, prefetch_items, wloop, q0):
    vm = VM(k)
    k(f"s_lshl_b32 s35, s83, 12"); k(f"s_add_u32 s36, s35, {UR}")
    k("s_mov_b32 m0, s82"); k("s_nop 0")
    for j in range(4): vm.issue([f"buffer_load_dwordx4 v4, s[12:15], s36 offen offset:{1024*j} sc1 lds"], "ur")
    k("v_mov_b32 v8, 0"); k("v_mov_b32 v9, 0"); k("v_lshlrev_b32 v7, 3, v1"); k("v_add_u32 v7, s82, v7")
    k("ds_write_b64 v7, v[8:9] offset:4096")
    k("v_add_u32 v13, 1, v2"); k("v_and_b32 v14, 1, v13"); k(f"v_mul_u32_u24 v12, {CPY}, v14")
    k("v_sub_u32 v13, v13, v14"); k("v_lshlrev_b32 v13, 1, v13"); k("v_lshl_add_u32 v13, v3, 4, v13")
    k("s_add_u32 s38, s82, 4608"); k("v_add3_u32 v12, v12, v13, s38")
    for j in range(1, 4): k(f"v_add_u32 v{103+j}, {1024*j}, v12")
    k("v_lshlrev_b32 v13, 5, v2"); k("v_lshlrev_b32 v14, 4, v3"); k("v_sub_u32 v13, v14, v13")
    k("s_add_u32 s39, s82, 480"); k("v_add_u32 v13, s39, v13")
    AP = 100
    k("v_sub_u32 v16, 15, v2"); k("v_lshrrev_b32 v17, 3, v16"); k("v_and_b32 v16, 7, v16")
    k("v_and_b32 v18, 1, v16"); k("v_lshlrev_b32 v18, 4, v18"); k("v_lshlrev_b32 v18, v18, v176")
    k("v_cmp_eq_u32 vcc, v17, v3"); k("v_cndmask_b32 v18, 0, v18, vcc"); k("v_lshrrev_b32 v16, 1, v16")
    for r in range(4):
        k(f"v_cmp_eq_u32 vcc, {r}, v16"); k(f"v_cndmask_b32 v{AP+r}, 0, v18, vcc")
    ACC = 16; A0 = 48; A1 = 112; B0 = 144; B1 = 176
    AR = (12, 104, 105, 106)
    def loads(A, B, rho):
        L = []
        for d in range(8): L.append(f"ds_read_b128 {v(B+4*d,4)}, v13 offset:{64*rho + 512*(7-d)}")
        for m in range(8):
            o = 128*(m % 2) + 16*rho
            L.append(f"ds_read2_b32 {v(A+4*m,2)}, v{AR[m//2]} offset0:{o} offset1:{o+1}")
            L.append(f"ds_read2_b32 {v(A+4*m+2,2)}, v{AR[m//2]} offset0:{o+2} offset1:{o+3}")
        return L
    pq = TQ(vm, prefetch_items)
    if q0:
        l0, l1 = k.lab("q0a"), k.lab("q0b")
        k("s_cmp_lg_u32 s10, 0"); k(f"s_cbranch_scc1 {l0}")
        for g, t in q0:
            for ln in g: k(ln)
        k(f"s_waitcnt vmcnt({len(q0)}) lgkmcnt(0)"); k(f"s_branch {l1}")
        k.L.append(l0 + ":")
        k("s_waitcnt vmcnt(0) lgkmcnt(0)")
        k.L.append(l1 + ":")
    else:
        vm.wait(lambda t: t == "ur", " lgkmcnt(0)")
    k.stamp("ur")
    for ln in loads(A0, B0, 0): k(ln)
    k("s_waitcnt lgkmcnt(0)")
    for t in range(8): k(f"v_mfma_f32_16x16x32_bf16 {v(ACC+4*t,4)}, {v(AP,4)}, {v(B0+4*t,4)}, 0")
    pairs = [(m, d) for m in range(8) for d in range(8 - m)]
    for rho in range(8):
        A, B = (A0, B0) if rho % 2 == 0 else (A1, B1)
        An, Bn = (A1, B1) if rho % 2 == 0 else (A0, B0)
        nxt = loads(An, Bn, rho + 1) if rho < 7 else []
        if wloop:
            if rho == WSTART - 1: vm.issue(cpa_sample(), "cpa")
            if rho == WSTART:
                pq.flush(); vm.wait(lambda t: t == "cpa"); cpa_check(k); pq.items = list(wloop)
        elif rho == 7: pq.flush(); vm.issue(cpa_sample(), "cpa")
        for idx, (m, d) in enumerate(pairs):
            k(f"v_mfma_f32_16x16x32_bf16 {v(ACC+4*(m+d),4)}, {v(A+4*m,4)}, {v(B+4*d,4)}, {v(ACC+4*(m+d),4)}")
            if idx < len(nxt): k(nxt[idx])
            if rho >= PFSTART and idx % (PFGAP if (rho < WSTART or not wloop) else WGAP) == 1: pq.pop()
        k("s_waitcnt lgkmcnt(0)")
    pq.flush()
    k.stamp("loop")
    k("v_lshlrev_b32 v14, 5, v2"); k("v_lshl_add_u32 v14, v3, 3, v14"); k("v_add_u32 v14, s82, v14")
    for t in range(8):
        k(f"v_cvt_pk_bf16_f32 v{A0+2*t}, v{ACC+4*t}, v{ACC+4*t+1}"); k(f"v_cvt_pk_bf16_f32 v{A0+2*t+1}, v{ACC+4*t+2}, v{ACC+4*t+3}")
        k(f"ds_write_b64 v14, {v(A0+2*t,2)} offset:{512*t}")
    k("v_add_u32 v15, s82, v4")
    k("s_waitcnt lgkmcnt(0)")
    for j in range(4): k(f"ds_read_b128 {v(B0+4*j,4)}, v15 offset:{1024*j}")
    k(f"s_add_u32 s36, s35, {YT}")
    for j in range(4):
        k(f"s_waitcnt lgkmcnt({3-j})")
        vm.issue([f"buffer_store_dwordx4 {v(B0+4*j,4)}, v4, s[12:15], s36 offen offset:{1024*j} sc1"], "S")
    return vm, pq

def wtask_issue(k, tag, ldsbase):
    k("s_mov_b32 s51, 0x20000")
    k("s_lshl_b32 s34, s10, 14"); k(f"s_add_u32 s34, s34, {ldsbase}")
    k("v_lshrrev_b32 v5, 3, v1"); k("v_and_b32 v6, 7, v1"); k("v_lshlrev_b32 v6, 4, v6")
    k("s_lshl_b32 s47, s41, 5"); k("v_add_u32 v5, s47, v5"); k("v_mul_lo_u32 v5, v5, s40")
    k("s_lshl_b32 s47, s42, 7"); k("v_add3_u32 v5, v5, v6, s47")
    k("s_lshl_b32 s52, s40, 3"); k("s_lshl_b32 s53, s43, 2"); k("s_mov_b32 s54, s34")
    k.label("wld" + tag)
    k("s_mov_b32 m0, s54"); k("s_sub_u32 s53, s53, 1")
    k("buffer_load_dwordx4 v5, s[48:51], 0 offen lds")
    k("v_add_u32 v5, s52, v5"); k("s_add_u32 s54, s54, 1024")
    k("s_cmp_lg_u32 s53, 0"); k(f"s_cbranch_scc1 {k.lab('wld' + tag)}")

def wtask_finish(k, tag, nxt):
    k("v_lshlrev_b32 v5, 10, v3"); k("v_bfe_u32 v6, v1, 2, 2"); k("v_lshl_add_u32 v5, v6, 7, v5")
    k("v_and_b32 v6, 3, v1"); k("v_lshl_add_u32 v5, v6, 4, v5"); k("v_add_u32 v5, s34, v5")
    k("s_lshl_b32 s47, s42, 2"); k("s_mul_i32 s47, s47, s45"); k("s_add_u32 s47, s47, s41"); k("s_lshl_b32 s47, s47, 10")
    k("s_add_u32 s47, s47, s44"); k("s_lshl_b32 s55, s45, 10")
    for r in range(4): k(f"v_mov_b32 v{24+r}, 0")
    k("s_mov_b32 s52, 0x3f803f80"); k("s_mov_b32 s53, 0")
    k.stamp("wiss" + tag)
    k("s_waitcnt vmcnt(0)")
    k.stamp("wld" + tag)
    k.label("wtr" + tag)
    for t in range(4):
        o = 64*(t//2) + 8*(t % 2)
        k(f"ds_read_b64_tr_b16 {v(8+4*t,2)}, v5 offset:{o}"); k(f"ds_read_b64_tr_b16 {v(10+4*t,2)}, v5 offset:{o+512}")
    k("v_add_u32 v5, 4096, v5"); k("s_add_u32 s53, s53, 1")
    k("s_mov_b32 s54, s47")
    for t in range(4):
        k(f"s_waitcnt lgkmcnt({6 - 2*t})")
        k(f"buffer_store_dwordx4 {v(8+4*t,4)}, v4, s[12:15], s54 offen sc1")
        if t < 3: k("s_add_u32 s54, s54, s55")
    for r in range(4):
        for t in range(4): k(f"v_dot2_f32_bf16 v{24+t}, v{8+4*t+r}, s52, v{24+t}")
    k("s_add_u32 s47, s47, 1024")
    k("s_cmp_lt_u32 s53, s43"); k(f"s_cbranch_scc1 {k.lab('wtr' + tag)}")
    k("s_cmp_ge_u32 s46, 5"); k(f"s_cbranch_scc1 {nxt}")
    for t in range(4): k(f"v_mov_b32 v{28+t}, v{24+t}")
    for t in range(4): k(f"v_permlane32_swap_b32 v{24+t}, v{28+t}")
    for t in range(4): k(f"v_add_f32 v{24+t}, v{24+t}, v{28+t}")
    for t in range(4): k(f"v_mov_b32 v{28+t}, v{24+t}")
    for t in range(4): k(f"v_permlane16_swap_b32 v{24+t}, v{28+t}")
    for t in range(4): k(f"v_add_f32 v{24+t}, v{24+t}, v{28+t}")
    k(f"s_mul_i32 s47, s46, {F*4}"); k("s_lshl_b32 s52, s42, 8"); k("s_add_u32 s47, s47, s52"); k(f"s_add_u32 s47, s47, {CS3}")
    k("v_lshlrev_b32 v6, 2, v2")
    k("s_mov_b64 exec, 0xffff")
    for t in range(4): k(f"buffer_store_dword v{24+t}, v6, s[12:15], s47 offen offset:{64*t} sc1")
    k("s_mov_b64 exec, -1")
    k(f"s_branch {nxt}")

def w1_params(k):
    k("s_sub_u32 s35, s2, 242"); k("s_lshl_b32 s35, s35, 2"); k("s_add_u32 s35, s35, s10")
    k("s_mov_b32 s48, s76"); k("s_mov_b32 s49, s77")
    k(f"s_mov_b32 s50, {D*D*2}"); k("s_mov_b32 s40, 1280"); k(f"s_mov_b32 s44, {W1T}"); k("s_mov_b32 s45, 20"); k("s_mov_b32 s46, 5")
    k("s_mul_hi_u32 s41, s35, 0x1999999a"); k("s_mul_i32 s42, s41, 10"); k("s_sub_u32 s42, s35, s42"); k("s_mov_b32 s43, 4"); k("s_lshl_b32 s41, s41, 2")

def prep_part(k, pre_items_setup):
    if QWARM:
        k("s_sub_u32 s33, s2, 160"); k("s_cmp_ge_u32 s33, 64"); k(f"s_cbranch_scc1 {k.lab('noq')}")
        k("s_cmp_eq_u32 s10, 0"); k(f"s_cbranch_scc1 {k.lab('noq')}")
        k("s_mul_i32 s33, s33, 3"); k("s_add_u32 s33, s33, s10"); k("s_sub_u32 s33, s33, 1"); k("s_mul_i32 s33, s33, 14336")
        for i in range(14):
            k(f"buffer_load_dwordx4 v[32:35], v4, s[16:19], s33 offen offset:{1024*(i%4)}")
            if i % 4 == 3: k("s_add_u32 s33, s33, 4096")
    k.label("noq")
    k.label("roundB")
    if BGATE:
        wait_counters(k, None, ["s_mul_hi_u32 s84, s2, 0x1999999a", "s_mul_i32 s84, s84, 10", "s_sub_u32 s84, s2, s84", "s_lshl_b32 s84, s84, 9",
                                f"s_add_u32 s84, s84, {C0}", "v_and_b32 v5, 3, v1", "v_lshlrev_b32 v5, 7, v5", "v_add_u32 v5, s84, v5"], ["v_mov_b32 v7, 8"], False)
    qitems, witems = pre_items_setup()
    k("s_sub_u32 s33, s2, 160"); k("s_lshl_b32 s33, s33, 2"); k("s_add_u32 s33, s33, s10")
    k("s_mov_b32 s43, 0")
    k("s_cmp_ge_u32 s33, 325"); k(f"s_cbranch_scc1 {k.lab('noB')}")
    k("s_mov_b32 s46, 5"); k("s_mov_b32 s43, 4")
    k("s_cmp_ge_u32 s33, 50"); k(f"s_cbranch_scc1 {k.lab('pw3')}")
    k("s_mov_b32 s48, s78"); k("s_mov_b32 s49, s79"); k(f"s_mov_b32 s50, {D*D*2}"); k("s_mov_b32 s40, 1280"); k(f"s_mov_b32 s44, {W2T}"); k("s_mov_b32 s45, 20")
    k("s_mul_hi_u32 s41, s33, 0x1999999a"); k("s_mul_i32 s42, s41, 10"); k("s_sub_u32 s42, s33, s42"); k("s_lshl_b32 s41, s41, 2")
    k(f"s_branch {k.lab('wtB')}")
    k.label("pw3")
    k("s_cmp_ge_u32 s33, 185"); k(f"s_cbranch_scc1 {k.lab('pw4')}")
    k("s_sub_u32 s35, s33, 50")
    k("s_mov_b32 s48, s80"); k("s_mov_b32 s49, s81"); k(f"s_mov_b32 s50, {D*F*2}"); k(f"s_mov_b32 s40, {F*2}"); k(f"s_mov_b32 s44, {W3T}"); k("s_mov_b32 s45, 20")
    k("s_mul_hi_u32 s46, s35, 0x97b425f"); k("s_mul_i32 s42, s46, 27"); k("s_sub_u32 s42, s35, s42"); k("s_lshl_b32 s41, s46, 2")
    k(f"s_branch {k.lab('wtB')}")
    k.label("pw4")
    k("s_sub_u32 s35, s33, 185")
    k("s_mov_b32 s48, s82"); k("s_mov_b32 s49, s83"); k(f"s_mov_b32 s50, {D*F*2}"); k("s_mov_b32 s40, 1280"); k(f"s_mov_b32 s44, {W4T}"); k("s_mov_b32 s45, 54")
    k("s_mul_hi_u32 s41, s35, 0x1999999a"); k("s_mul_i32 s42, s41, 10"); k("s_sub_u32 s42, s35, s42")
    k("s_cmp_eq_u32 s41, 13"); k("s_cselect_b32 s43, 2, 4"); k("s_lshl_b32 s41, s41, 2")
    k.label("wtB")
    wtask_issue(k, "B", 45056)
    k.label("noB")
    for g, t in qitems:
        for ln in g: k(ln)
    for ln in cpa_sample(): k(ln)
    doneB = k.lab("doneB")
    k("s_cmp_eq_u32 s43, 0"); k(f"s_cbranch_scc1 {doneB}")
    wtask_finish(k, "B", doneB)
    k.L.append(doneB + ":")
    k.stamp("doneB")
    signal(k, None, None, [f"s_mov_b32 s{SG}, {CPB}"], 96, [f"s_mov_b32 s{SG}, {FALL + 9*128}"])
    p2.p2_qstats(k, lambda: None)
    cpa_check(k)
    return witems

def mega():
    pc.SC = " sc1"; pc.SS = " sc1"
    k = Kern("block_kernel", vgpr=256, agpr=256, sgpr=96)
    k.only = ONLY
    k("s_cmp_ge_u32 s2, 256"); k(f"s_cbranch_scc1 {k.lab('end')}")
    k.stamp_begin()
    if CODEFIRST:
        for ln in code_prefetch_group(k, None, k.lab("end"), "z", 180, sreg=26): k(ln.replace("@U@", "0"))
    k(f"s_load_dwordx8 s[36:43], s[0:1], {A_K}")
    k(f"s_load_dwordx2 s[44:45], s[0:1], {A_D}")
    k(f"s_load_dwordx8 s[76:83], s[0:1], {B_W1}")
    k(f"s_load_dwordx2 s[72:73], s[0:1], {DBG}")
    prologue(k)
    pre_items_setup = lambda: (p2.p2_pre_setup(k), p2.p2_pre_items(k))[1]
    def common_setup():
        p2.p2_setup(k); p3.p35_setup(k, 26)
        k.srd(12, 4, WS_END); k.srd(16, 8, MB); k.srd(20, 6, MB)
        init_srd(k)
    k("s_cmp_ge_u32 s2, 242"); k(f"s_cbranch_scc1 {k.lab('special')}")
    vm = VM(k)
    kv_issue(k, vm)
    common_setup()
    if TOUCH: page_touch(k)
    k("s_cmp_ge_u32 s2, 160"); k(f"s_cbranch_scc1 {k.lab('keepw')}")
    k("s_mov_b32 s76, s42"); k("s_mov_b32 s77, s43"); k("s_mov_b32 s80, s44"); k("s_mov_b32 s81, s45")
    k.label("keepw")
    if not CODEFIRST:
        if PF_ALL: vm.issue(code_prefetch_group(k, k.lab("code0"), k.lab("end"), "z", 180, sreg=26), "pf")
        else: vm.issue(["v_mov_b32 v180, 0", "buffer_load_dword v182, v180, s[16:19], 0 offen"], "pf")
        k.label("code0")
    k.stamp("kvissued")
    k("s_cmp_lt_u32 s29, 2"); k(f"s_cbranch_scc1 {k.lab('kvw1')}")
    k(f"s_waitcnt vmcnt({6 if CODEFIRST else 7})")
    k(f"s_branch {k.lab('kvw2')}")
    k.label("kvw1")
    if TOUCH: k("s_waitcnt vmcnt(8)") if False else kv_wait_touch(k)
    elif CODEFIRST: k("s_waitcnt vmcnt(0)")
    else: vm.wait(lambda t: t == "kv")
    k.label("kvw2")
    k("s_barrier")
    k.stamp("kvin")
    k("v_mov_b32 v178, 0")
    k("buffer_load_dword v177, v178, s[72:75], 0 offen sc1")
    vmh = VM(k)
    if not HLATE:
        k("s_cmp_ge_u32 s2, 160"); k(f"s_cbranch_scc1 {k.lab('noh')}")
        conv_h_issue(k, vmh)
        k.label("noh")
    kv_compute(k)
    k.stamp("kvdone")
    k("s_waitcnt vmcnt(0)")
    k.stamp("kvdrain")
    ok = k.lab("initok")
    k("v_cmp_eq_u32 vcc, 0, v177"); k(f"s_cbranch_vccz {ok}")
    wait_init(k)
    k.L.append(ok + ":")
    k("s_barrier")
    tile_cnt = lambda add: [f"s_add_u32 s84, s2, {add}", "s_mul_hi_u32 s85, s84, 0x1999999a", "s_mul_i32 s28, s85, 10", "s_sub_u32 s84, s84, s28",
                            "s_lshl_b32 s84, s84, 2", "s_and_b32 s85, s85, 3", "s_add_u32 s84, s84, s85", "s_lshl_b32 s84, s84, 7", f"s_add_u32 s84, s84, {C0}"]
    atomic_signal(k, tile_cnt(0), k.lab("sigc0"), None)
    k("s_cmp_lt_u32 s29, 2"); k(f"s_cbranch_scc1 {k.lab('sigc0b')}")
    atomic_signal(k, tile_cnt(82), k.lab("sigc0c"), None)
    k.label("sigc0b")
    k.stamp("kvsig")
    k("s_cmp_ge_u32 s2, 160"); k(f"s_cbranch_scc1 {k.lab('prep')}")
    if HLATE: conv_h_issue(k, vmh)
    qitems, witems = pre_items_setup()
    q0 = []
    if QEARLY:
        k("s_cmp_eq_u32 s10, 0"); k(f"s_cbranch_scc1 {k.lab('noq0')}")
        k("s_sub_u32 s36, s10, 1"); k("s_mul_i32 s36, s36, 3")
        k("s_add_u32 s37, s36, 3"); k("s_min_u32 s37, s37, 8")
        k(f"s_lshl_b32 s38, s{p2.TT}, 5")
        k.label("qgrp")
        k("s_lshl_b32 s39, s36, 2"); k("v_add_u32 v8, s39, v3")
        k("v_and_b32 v9, 15, v8"); k("v_xor_b32 v9, v9, v2")
        k("v_add_u32 v8, s38, v8"); k("v_mul_u32_u24 v8, 1280, v8"); k("v_lshl_add_u32 v8, v9, 4, v8")
        k("s_mul_i32 s39, s36, 5120")
        for m in range(5):
            k(f"s_add_u32 m0, s39, {p2.QL + 768*m}"); k("s_nop 0")
            k(f"buffer_load_dwordx4 v8, s[16:19], 0 offen offset:{256*m} lds")
        k("s_add_u32 s36, s36, 1"); k("s_cmp_lt_u32 s36, s37"); k(f"s_cbranch_scc1 {k.lab('qgrp')}")
        k.label("noq0")
        qitems = []
    if HLATE: k("s_waitcnt vmcnt(0)")
    conv_h_copy1(k)
    wait_counters(k, None, ["s_lshr_b32 s84, s2, 4", "s_lshl_b32 s84, s84, 9", f"s_add_u32 s84, s84, {C0}", "v_and_b32 v5, 3, v1", "v_lshlrev_b32 v5, 7, v5", "v_add_u32 v5, s84, v5"],
                  ["v_mov_b32 v7, 8"], False)
    k.stamp("s0")
    vm, pq = conv_main(k, qitems, witems[:NWLOOP], q0)
    k.stamp("convdone")
    lab = k.lab("sigc1")
    p2.p2_qstats(k, (lambda: None) if QEARLY else (lambda: vm.wait(lambda t: t == "q")))
    vm.wait(lambda t: t == "S"); k("s_barrier")
    cpa_check(k)
    if S1DIRECT:
        atomic_signal(k, [f"s_lshr_b32 s{SG}, s2, 3", f"s_lshl_b32 s{SG}, s{SG}, 7", f"s_add_u32 s{SG}, s{SG}, {C1D}"], lab, None)
    else:
        atomic_signal(k, own_shard(C1), lab, 20, [f"s_and_b32 s{SG}, s2, 7", f"s_lshl_b32 s{SG}, s{SG}, 7", f"s_add_u32 s{SG}, s{SG}, {FALL}"])
    k(f"s_branch {k.lab('wconv') if NWLOOP else k.lab('wfirst')}")
    k.label("special")
    k("s_waitcnt lgkmcnt(0)")
    common_setup()
    k("s_cmp_eq_u32 s2, 255"); k(f"s_cbranch_scc1 {k.lab('zero')}")
    k.label("w1only")
    w1_params(k)
    doneA = k.lab("doneA")
    k("s_cmp_ge_u32 s35, 50"); k(f"s_cbranch_scc1 {doneA}")
    wtask_issue(k, "A", 0)
    wtask_finish(k, "A", doneA)
    k.L.append(doneA + ":")
    k.stamp("doneA")
    signal(k, None, None, [f"s_mov_b32 s{SG}, {CPA}"], 13, [f"s_mov_b32 s{SG}, {FALL + 8*128}"], first=True)
    k(f"s_branch {k.lab('prep')}")
    k.label("zero")
    k("v_mov_b32 v8, 0"); k("v_mov_b32 v9, 0"); k("v_mov_b32 v10, 0"); k("v_mov_b32 v11, 0")
    k("v_lshlrev_b32 v5, 4, v0"); k(f"s_mov_b32 s35, {CNT}")
    for j in range(9):
        k("buffer_store_dwordx4 v[8:11], v5, s[12:15], s35 offen sc1"); k("s_add_u32 s35, s35, 4096")
    k("s_waitcnt vmcnt(0)")
    k("s_barrier")
    k("v_mov_b32 v5, 0"); k("v_mov_b32 v6, 1")
    k("s_cmp_lg_u32 s10, 0"); k(f"s_cbranch_scc1 {k.lab('prep')}")
    k("s_mov_b64 exec, 1")
    k("buffer_store_dword v6, v5, s[72:75], 0 offen sc1")
    k("s_mov_b64 exec, -1")
    k.label("prep")
    witems = prep_part(k, pre_items_setup)
    k.label("wfirst")
    k.stamp("cpa")
    for g, t in witems[:NWLOOP]:
        for ln in g: k(ln)
    k.label("wconv")
    for g, t in witems[NWLOOP:max(NWA, NWLOOP)]:
        for ln in g: k(ln)
    p3.p3_pre_setup(k)
    if S1DIRECT:
        wait_counters(k, None, ["v_min_u32 v5, 19, v1", "v_lshlrev_b32 v5, 7, v5", f"v_add_u32 v5, {C1D}, v5", f"v_mov_b32 v6, {FALL + 9*128}",
                                "v_cmp_lt_u32 vcc, 19, v1", "v_cndmask_b32 v5, v5, v6, vcc"], ["v_mov_b32 v7, 8", "v_cndmask_b32 v7, v7, 1, vcc"], False)
    else:
        wait_counters(k, None, ["v_min_u32 v5, 9, v1", "v_lshlrev_b32 v5, 7, v5", f"v_add_u32 v5, {FALL}, v5"], ["v_mov_b32 v7, 1"], False)
    k.stamp("s1")
    early = [(g, "E") for g in p3.p3_pre_early(k)]
    vm, nq = p2.p2_main(k, witems[max(NWA, NWLOOP):], ([(code_prefetch_group(k, k.lab('ph3'), k.lab('ph4'), 'a', 136), "pf")] if PF_JIT else []), p3.p3_pre_late, early)
    k.stamp("p2done")
    signal(k, vm, nq, [f"s_lshl_b32 s{SG}, s{p2.TT}, 7", f"s_add_u32 s{SG}, s{SG}, {C2}"], None)
    k.label("ph3")
    p4.p4_setup(k); p4.p4_pre_setup(k)
    wait_counters(k, nq, [f"s_lshl_b32 s{SG}, s{p3.T64}, 1", f"s_sub_u32 s{SG}, s{SG}, 1", "v_and_b32 v5, 3, v1", f"v_add_u32 v5, s{SG}, v5",
                          "v_and_b32 v5, 63, v5", "v_lshlrev_b32 v5, 7, v5", f"v_add_u32 v5, {C2}, v5"], ["v_mov_b32 v7, 4"], True, mid=MID[0])
    k.stamp("s2")
    early = [(g, "E") for g in p4.p4_pre_early(k)]
    vm, nq = p3.p3_main(k, ([(code_prefetch_group(k, k.lab('ph4'), k.lab('ph5'), 'b', 184), "pf")] if PF_JIT else []), p4.p4_pre_late, early)
    k.stamp("p3done")
    signal(k, vm, nq, [f"s_lshr_b32 s{SG}, s{p3.T64}, 1", f"s_lshl_b32 s{SG}, s{SG}, 2", f"s_lshr_b32 s{SG2}, s{p3.FC}, 1", f"s_add_u32 s{SG}, s{SG}, s{SG2}",
                          f"s_lshl_b32 s{SG}, s{SG}, 7", f"s_add_u32 s{SG}, s{SG}, {C3}"], None)
    k.label("ph4")
    p5.p5_pre_setup(k)
    wait_counters(k, nq, [f"s_lshl_b32 s{SG}, s{p4.T128}, 9", f"s_add_u32 s{SG}, s{SG}, {C3}", "v_and_b32 v5, 3, v1", "v_lshlrev_b32 v5, 7, v5", f"v_add_u32 v5, s{SG}, v5"], ["v_mov_b32 v7, 4"],
                  True, p4.p4_cs_table, mid=MID[1])
    k.stamp("s3")
    early = [(g, "E") for g in p5.p5_pre_early(k)]
    vm, nq = p4.p4_main(k, ([(code_prefetch_group(k, k.lab('ph5'), k.lab('end'), 'c', 88), "pf")] if PF_JIT else []), p5.p5_pre_late, early,
                        follow=[(g, "F") for g in p5.p5_pre_late(k)[:NFOLLOW]], nfollow=NFOLLOW)
    k.stamp("p4done")
    signal(k, vm, nq, [f"s_lshl_b32 s{SG}, s{p4.T128}, 2", f"s_lshr_b32 s{SG2}, s{p4.COL}, 2", f"s_add_u32 s{SG}, s{SG}, s{SG2}",
                          f"s_lshl_b32 s{SG}, s{SG}, 7", f"s_add_u32 s{SG}, s{SG}, {C4}"], None)
    k.label("ph5")
    wait_counters(k, nq, [f"s_lshr_b32 s{SG}, s{p3.T64}, 1", f"s_lshl_b32 s{SG}, s{SG}, 9", f"s_add_u32 s{SG}, s{SG}, {C4}", "v_and_b32 v5, 3, v1", "v_lshlrev_b32 v5, 7, v5", f"v_add_u32 v5, s{SG}, v5"],
                  ["v_mov_b32 v7, 4"], False, mid=MID[2])
    k.stamp("s4")
    p5.p5_main(k)
    k.stamp_flush(4, STAMP)
    k.label("end"); k("s_endpgm")
    pc.SC = ""; pc.SS = ""
    return k
```

```python
from ph_common import *
import ph_common as pc
import p2, p3, p4, p5

LDS = p4.P4_LDS
C2, C3, C4 = CNT, CNT + 64*128, CNT + 128*128
C0, C1, CPA, CPB = CNT + 192*128, CNT + 232*128, CNT + 240*128, CNT + 241*128
FLG = None
FALL = CNT + 242*128
C1D = CNT + 256*128
S1DIRECT = False
TOUCH = 0
PF_ALL = True
PF_JIT = True
CODEFIRST = False
SPIN_LIMIT = 200000
SG, SG2 = 84, 85
NFOLLOW = 0
WGAP = 6
BGATE = False
HEARLY = False
NPRE = [0]
PREFALL = 0
HLATE = False
QEARLY = True
QWARM = False
WSTART = 2
NWLOOP = 36
NWA = 48
PFSTART = 1
PFGAP = 6
DRAIN_LOADS = 10
MID = (99, 99, 16)
ONLY = None
CPY = 4160
WREG = 4608 + 2*CPY
CONVL = 92160
KVL = 17408
KVO = 2*KVL

def atomic_signal(k, offset_code, lab, target, flag_code=None, first=False):
    if target is None:
        k("s_cmp_lg_u32 s10, 0"); k(f"s_cbranch_scc1 {lab}")
        if first: wait_init(k)
        for ln in offset_code: k(ln)
        k("v_mov_b32 v5, 0"); k("v_mov_b32 v6, 1")
        k("s_mov_b64 exec, 1")
        k(f"buffer_atomic_add v6, v5, s[12:15], s{SG} offen sc1")
        k("s_mov_b64 exec, -1")
        k.L.append(lab + ":")
        return
    k("s_cmp_lg_u32 s10, 0"); k(f"s_cbranch_scc1 {lab}")
    if first: wait_init(k)
    for ln in offset_code: k(ln)
    k("v_mov_b32 v5, 0"); k("v_mov_b32 v6, 1")
    k("s_mov_b64 exec, 1")
    k(f"buffer_atomic_add v6, v5, s[12:15], s{SG} offen sc0 sc1")
    for ln in (flag_code or [f"s_add_u32 s{SG}, s{SG}, {FLG}"]): k(ln)
    k("s_waitcnt vmcnt(0)")
    k.stamp("atom%d" % target + lab[-2:])
    k(f"v_cmp_eq_u32 vcc, {target - 1}, v6")
    k("v_mov_b32 v6, 1")
    k("s_and_b64 exec, exec, vcc")
    k(f"s_cbranch_execz {lab}_x")
    k(f"buffer_store_dword v6, v5, s[12:15], s{SG} offen sc1")
    k.L.append(lab + "_x:")
    k("s_mov_b64 exec, -1")
    k.L.append(lab + ":")

def signal(k, vm, nq, offset_code, target, flag_code=None, first=False):
    lab = k.lab(k.uniq("sig"))
    if nq: nq.pop(DRAIN_LOADS)
    if vm: vm.wait(lambda t: t == "S")
    else: k("s_waitcnt vmcnt(0)")
    k.stamp("drained%d" % k._n)
    if first:
        l2 = k.lab(k.uniq("fi"))
        k("s_cmp_lg_u32 s10, 0"); k(f"s_cbranch_scc1 {l2}")
        wait_init(k)
        k.L.append(l2 + ":")
    k("s_barrier")
    atomic_signal(k, offset_code, lab, target, flag_code, False)

def poll(k, addr_code, target_reg_code, va=5, vd=6, vt=7):
    lab = k.lab(k.uniq("pl")); loop = lab + "_l"
    for ln in addr_code + target_reg_code: k(ln)
    k(f"s_mov_b32 s{SG2}, 0")
    k.L.append(loop + ":")
    k(f"buffer_load_dword v{vd}, v{va}, s[12:15], 0 offen sc1")
    k(f"s_add_u32 s{SG2}, s{SG2}, 1")
    k("s_waitcnt vmcnt(0)")
    k(f"v_cmp_gt_u32 vcc, v{vt}, v{vd}")
    k(f"s_cmp_gt_u32 s{SG2}, {SPIN_LIMIT}"); k(f"s_cbranch_scc1 {lab}")
    k(f"s_cbranch_vccnz {loop}")
    k.L.append(lab + ":")

def wait_counters(k, nq, addr_code, target_code, all_waves_drain, before_barrier=None, mid=0):
    lab = k.lab(k.uniq("wt"))
    if nq: nq.pop(mid)
    k("s_cmp_lg_u32 s10, 0"); k(f"s_cbranch_scc1 {lab}")
    k.stamp("prepoll" + lab[-2:])
    poll(k, addr_code, target_code)
    k.stamp("polled" + lab[-2:])
    k.L.append(lab + ":")
    if nq: nq.flush()
    if all_waves_drain: k("s_waitcnt vmcnt(0)")
    if before_barrier: before_barrier(k)
    k("s_barrier")

def cpa_sample(): return [f"v_mov_b32 v220, {FALL + 8*128}", "buffer_load_dword v219, v220, s[12:15], 0 offen sc1"]
def cpa_check(k):
    ok = k.lab(k.uniq("cpaok"))
    k("v_cmp_eq_u32 vcc, 0, v219"); k(f"s_cbranch_vccz {ok}")
    poll(k, [f"v_mov_b32 v5, {FALL + 8*128}"], ["v_mov_b32 v7, 1"])
    k.L.append(ok + ":")

def shard_addr(base): return ["v_and_b32 v5, 7, v1", "v_lshlrev_b32 v5, 7, v5", f"v_add_u32 v5, {base}, v5"]
def own_shard(base): return [f"s_and_b32 s{SG}, s2, 7", f"s_lshl_b32 s{SG}, s{SG}, 7", f"s_add_u32 s{SG}, s{SG}, {base}"]

def init_srd(k):
    k("s_mov_b32 s74, 256"); k("s_mov_b32 s75, 0x20000")

def wait_init(k):
    lab = k.lab(k.uniq("in")); loop = lab + "_l"
    k("v_mov_b32 v5, 0"); k(f"s_mov_b32 s{SG2}, 0")
    k.L.append(loop + ":")
    k("buffer_load_dword v6, v5, s[72:75], 0 offen sc1")
    k(f"s_add_u32 s{SG2}, s{SG2}, 1")
    k("s_waitcnt vmcnt(0)")
    k("v_cmp_eq_u32 vcc, 0, v6")
    k(f"s_cmp_gt_u32 s{SG2}, {SPIN_LIMIT}"); k(f"s_cbranch_scc1 {lab}")
    k(f"s_cbranch_vccnz {loop}")
    k.L.append(lab + ":")

def vm_after(vm):
    return vm

def kv_wait_touch(k):
    a_, b_, c_ = k.lab("kvt0"), k.lab("kvt1"), k.lab("kvt2")
    k("s_cmp_lt_u32 s2, 8"); k(f"s_cbranch_scc1 {a_}")
    k("s_waitcnt vmcnt(1)"); k(f"s_branch {c_}")
    k.L.append(a_ + ":")
    k("s_cmp_eq_u32 s10, 3"); k(f"s_cbranch_scc1 {b_}")
    k("s_waitcnt vmcnt(4)"); k(f"s_branch {c_}")
    k.L.append(b_ + ":")
    k("s_waitcnt vmcnt(8)")
    k.L.append(c_ + ":")

def page_touch(k):
    lab = k.lab("notouch")
    k("s_cmp_ge_u32 s2, 8"); k(f"s_cbranch_scc1 {lab}")
    k(f"s_mov_b32 s26, {TOUCH}"); k("v_mul_lo_u32 v179, v1, s26")
    k("s_cmp_eq_u32 s10, 3"); k(f"s_cbranch_scc1 {k.lab('touch3')}")
    k(f"s_mul_i32 s27, s10, {192*TOUCH}")
    for j in range(3):
        k("buffer_load_dword v186, v179, s[12:15], s27 offen"); k(f"s_add_u32 s27, s27, {64*TOUCH}")
    k(f"s_branch {lab}")
    k.label("touch3")
    k("buffer_load_dword v186, v179, s[16:19], 0 offen"); k("buffer_load_dword v186, v179, s[20:23], 0 offen")
    k("s_mov_b32 s87x, 0".replace("s87x", "s27"))
    for lo, n in ((42, MB), (76, D*D*2), (78, D*D*2), (80, D*F*2), (82, D*F*2)):
        k(f"s_mov_b32 s48, s{lo}"); k(f"s_mov_b32 s49, s{lo+1}"); k(f"s_mov_b32 s50, {n}"); k("s_mov_b32 s51, 0x20000")
        k("buffer_load_dword v186, v179, s[48:51], 0 offen")
    k.L.append(lab + ":")

def kv_issue(k, vm):
    k("s_sub_u32 s29, s2, 160"); k("s_cmp_lt_u32 s29, 78"); k("s_cselect_b32 s29, 2, 1")
    for j in range(2):
        k(f"s_add_u32 s26, s2, {82*j}")
        k("s_mul_hi_u32 s27, s26, 0x1999999a"); k("s_mul_i32 s28, s27, 10"); k("s_sub_u32 s28, s26, s28")
        k(f"s_lshl_b32 s{30+2*j}, s27, 6"); k(f"s_lshl_b32 s{31+2*j}, s28, 6")
    k("v_lshrrev_b32 v5, 3, v0"); k("v_and_b32 v6, 7, v0"); k("v_lshlrev_b32 v6, 4, v6")
    k("s_waitcnt lgkmcnt(0)")
    k.srd(48, 36, MB); k.srd(52, 38, MB); k.srd(56, 40, D*8)
    k("s_lshl_b32 s26, s10, 10"); k("s_mov_b32 s27, 40960")
    for j in range(2):
        b = j*KVL
        if j == 1: k("s_cmp_lt_u32 s29, 2"); k(f"s_cbranch_scc1 {k.lab('kv1')}")
        k(f"v_add_u32 v{8+j}, s{30+2*j}, v5"); k(f"v_mul_u32_u24 v{8+j}, 1280, v{8+j}")
        k(f"s_lshl_b32 s28, s{31+2*j}, 1"); k(f"v_add3_u32 v{8+j}, v{8+j}, v6, s28")
        k(f"v_subrev_u32 v{10+j}, 3840, v{8+j}")
        G = [[f"s_add_u32 m0, s26, {b}", "s_nop 0", f"buffer_load_dwordx4 v{10+j}, s[48:51], 0 offen lds"],
             [f"s_add_u32 m0, s26, {b + 4096}", f"v_add_u32 v7, 40960, v{10+j}", "buffer_load_dwordx4 v7, s[48:51], 0 offen lds"],
             [f"s_add_u32 m0, s26, {b + 9216}", "s_nop 0", f"buffer_load_dwordx4 v{8+j}, s[52:55], 0 offen lds"],
             [f"s_add_u32 m0, s26, {b + 13312}", "s_nop 0", f"buffer_load_dwordx4 v{8+j}, s[52:55], s27 offen lds"],
             [f"s_mov_b32 m0, {b + 8192}", "v_lshrrev_b32 v7, 3, v1", f"v_add_u32 v7, s{30+2*j}, v7", "v_mul_u32_u24 v7, 1280, v7",
              "v_and_b32 v18, 7, v1", "v_lshlrev_b32 v18, 4, v18", f"s_lshl_b32 s28, s{31+2*j}, 1", "v_add3_u32 v7, v7, v18, s28",
              "v_add_u32 v7, 78080, v7", "buffer_load_dwordx4 v7, s[48:51], 0 offen lds"],
             [f"v_add_u32 v{16+j}, s{31+2*j}, v1", f"v_lshlrev_b32 v{16+j}, 3, v{16+j}", f"buffer_load_dwordx2 {v(12+2*j,2)}, v{16+j}, s[56:59], 0 offen"]]
        for g in G:
            if j == 0: vm.issue(g, "kv")
            else:
                for ln in g: k(ln)
    k.label("kv1")

def kv_compute(k):
    k("v_and_b32 v10, 15, v1"); k("v_lshrrev_b32 v11, 2, v10"); k("s_lshl_b32 s42, s10, 4"); k("v_add_u32 v11, s42, v11")
    k("v_lshlrev_b32 v11, 7, v11"); k("v_and_b32 v10, 3, v10"); k("v_lshlrev_b32 v10, 3, v10"); k("v_lshlrev_b32 v16, 5, v3")
    k("v_add3_u32 v11, v11, v10, v16")
    k("s_mov_b32 s45, 0"); k("s_mov_b32 s46, 0xffff0000"); k(f"s_mov_b32 s47, {KVO}")
    k(".p2align 3")
    k.label("kvloop")
    k("v_mul_u32_u24 v9, 144, v1"); k("s_lshl_b32 s43, s10, 5"); k(f"s_sub_u32 s43, {KVO + 96}, s43"); k("v_add_u32 v9, s43, v9")
    KR = 16; VR = 26; KF = 38
    for i in range(5): k(f"ds_read_b64_tr_b16 {v(KR+2*i,2)}, v11 offset:{512*i}")
    for i in range(4): k(f"ds_read_b64_tr_b16 {v(VR+2*i,2)}, v11 offset:{9216+512*i}")
    k("v_lshlrev_b32 v34, 16, v12"); k("v_and_b32 v35, s46, v12"); k("v_lshlrev_b32 v36, 16, v13"); k("v_and_b32 v37, s46, v13")
    k("s_waitcnt lgkmcnt(4)")
    for i in range(10):
        k(f"v_lshlrev_b32 v{KF+2*i}, 16, v{KR+i}"); k(f"v_and_b32 v{KF+2*i+1}, s46, v{KR+i}")
    k("s_waitcnt lgkmcnt(0)")
    OUTR = 58
    for half in (1, 0):
        for pr in range(4):
            es = (8*half + 7 - 2*pr, 8*half + 6 - 2*pr)
            for j, e in enumerate(es):
                t = 16 + j
                k(f"v_mul_f32 v{t}, v34, v{KF+e+3}"); k(f"v_fmac_f32 v{t}, v35, v{KF+e+2}")
                k(f"v_fmac_f32 v{t}, v36, v{KF+e+1}"); k(f"v_fmac_f32 v{t}, v37, v{KF+e}")
                vr = VR + e//2
                if e % 2 == 0: k(f"v_lshlrev_b32 v{18+j}, 16, v{vr}")
                else: k(f"v_and_b32 v{18+j}, s46, v{vr}")
                k(f"v_mul_f32 v{t}, v{t}, v{18+j}")
            k(f"v_cvt_pk_bf16_f32 v{OUTR+pr}, v16, v17")
        k(f"ds_write_b128 v9, {v(OUTR,4)} offset:{16*(1-half)}")
        OUTR = 20
    k("v_lshrrev_b32 v5, 3, v1"); k("v_add_u32 v5, s42, v5"); k("v_and_b32 v6, 7, v1"); k("v_lshlrev_b32 v6, 4, v6")
    k("v_mul_u32_u24 v7, 144, v5"); k(f"v_add3_u32 v7, v7, v6, s47")
    k("v_add_u32 v5, s31, v5"); k("v_lshlrev_b32 v5, 12, v5"); k("v_add_u32 v5, v5, v6")
    k("s_sub_u32 s43, 1984, s30"); k("s_lshl_b32 s43, s43, 1"); k(f"s_add_u32 s43, s43, {UR}"); k("s_add_u32 s44, s43, 32768")
    k("s_waitcnt lgkmcnt(0)")
    k("s_barrier")
    k("ds_read_b128 v[16:19], v7"); k("ds_read_b128 v[20:23], v7 offset:1152")
    k("s_waitcnt lgkmcnt(1)")
    k("buffer_store_dwordx4 v[16:19], v5, s[12:15], s43 offen sc1")
    k("s_waitcnt lgkmcnt(0)")
    k("buffer_store_dwordx4 v[20:23], v5, s[12:15], s44 offen sc1")
    k("s_add_u32 s45, s45, 1"); k("s_cmp_ge_u32 s45, s29"); k(f"s_cbranch_scc1 {k.lab('kvexit')}")
    k(f"s_waitcnt vmcnt({(3 if CODEFIRST else 4) + NPRE[0]})")
    k("s_barrier")
    k("s_mov_b32 s30, s32"); k("s_mov_b32 s31, s33")
    k("v_mov_b32 v12, v14"); k("v_mov_b32 v13, v15"); k(f"v_add_u32 v11, {KVL}, v11")
    k(f"s_branch {k.lab('kvloop')}")
    k.label("kvexit")

HB = 128; E = 168
def conv_h_issue(k, vm):
    k("s_lshl_b32 s83, s2, 2"); k("s_add_u32 s83, s83, s10")
    k("s_lshl_b32 s35, s83, 12")
    k(f"s_mul_i32 s82, s10, {WREG}"); k(f"s_add_u32 s82, s82, {CONVL}")
    k("v_subrev_u32 v5, 32, v4"); k("v_add_u32 v6, 16, v5")
    k("s_lshl_b32 s28, s83, 1"); k("v_mov_b32 v19, s28")
    k("s_add_u32 s76, s76, s35"); k("s_addc_u32 s77, s77, 0")
    k("s_mov_b32 s78, 4096"); k("s_mov_b32 s79, 0x20000")
    for q in range(5):
        vm.issue([f"buffer_load_dwordx4 {v(HB+8*q,4)}, v5, s[76:79], 0 offen"], ("h", q))
        vm.issue([f"buffer_load_dword v{HB+8*q+4}, v6, s[76:79], 0 offen"] + (["v_add_u32 v5, 1024, v5", "v_add_u32 v6, 1024, v6"] if q < 4 else []), ("h", q))
    k("v_subrev_u32 v5, 32, v4")
    vm.issue(["s_add_u32 m0, s82, 4608", "s_nop 0", "buffer_load_dwordx4 v5, s[76:79], 0 offen lds"], "h0")
    k("s_add_u32 m0, s82, %d" % (4608 + 1024)); k("v_add_u32 v5, 1024, v5")
    for q in range(3): vm.issue([f"buffer_load_dwordx4 v5, s[76:79], 0 offen offset:{1024*q} lds"], "h0")
    k("s_add_u32 m0, s82, %d" % (4608 + 4096)); k("v_add_u32 v5, 3072, v5")
    vm.issue(["s_mov_b64 exec, 15", "buffer_load_dwordx4 v5, s[76:79], 0 offen lds", "s_mov_b64 exec, -1"], "h0")
    k("s_mov_b32 s44, s80"); k("s_mov_b32 s45, s81"); k(f"s_mov_b32 s46, {D*2}"); k("s_mov_b32 s47, 0x20000")
    vm.issue(["buffer_load_ushort v176, v19, s[44:47], 0 offen"], "D")

def conv_h_copy1(k):
    k("s_add_u32 s42, s82, %d" % (4608 + CPY)); k("v_add_u32 v5, s42, v4")
    for q in range(5):
        x = HB + 8*q
        if q == 4: k("s_mov_b64 exec, 15")
        for i in range(4): k(f"v_alignbit_b32 v{E+4*(q%2)+i}, v{x+i+1}, v{x+i}, 16")
        k(f"ds_write_b128 v5, {v(E+4*(q%2),4)} offset:{1024*q}")
    k("s_mov_b64 exec, -1")

def conv_main(k, prefetch_items, wloop, q0):
    vm = VM(k)
    k(f"s_lshl_b32 s35, s83, 12"); k(f"s_add_u32 s36, s35, {UR}")
    k("s_mov_b32 m0, s82"); k("s_nop 0")
    for j in range(4): vm.issue([f"buffer_load_dwordx4 v4, s[12:15], s36 offen offset:{1024*j} sc1 lds"], "ur")
    k("v_mov_b32 v8, 0"); k("v_mov_b32 v9, 0"); k("v_lshlrev_b32 v7, 3, v1"); k("v_add_u32 v7, s82, v7")
    k("ds_write_b64 v7, v[8:9] offset:4096")
    k("v_add_u32 v13, 1, v2"); k("v_and_b32 v14, 1, v13"); k(f"v_mul_u32_u24 v12, {CPY}, v14")
    k("v_sub_u32 v13, v13, v14"); k("v_lshlrev_b32 v13, 1, v13"); k("v_lshl_add_u32 v13, v3, 4, v13")
    k("s_add_u32 s38, s82, 4608"); k("v_add3_u32 v12, v12, v13, s38")
    for j in range(1, 4): k(f"v_add_u32 v{103+j}, {1024*j}, v12")
    k("v_lshlrev_b32 v13, 5, v2"); k("v_lshlrev_b32 v14, 4, v3"); k("v_sub_u32 v13, v14, v13")
    k("s_add_u32 s39, s82, 480"); k("v_add_u32 v13, s39, v13")
    AP = 100
    k("v_sub_u32 v16, 15, v2"); k("v_lshrrev_b32 v17, 3, v16"); k("v_and_b32 v16, 7, v16")
    k("v_and_b32 v18, 1, v16"); k("v_lshlrev_b32 v18, 4, v18"); k("v_lshlrev_b32 v18, v18, v176")
    k("v_cmp_eq_u32 vcc, v17, v3"); k("v_cndmask_b32 v18, 0, v18, vcc"); k("v_lshrrev_b32 v16, 1, v16")
    for r in range(4):
        k(f"v_cmp_eq_u32 vcc, {r}, v16"); k(f"v_cndmask_b32 v{AP+r}, 0, v18, vcc")
    ACC = 16; A0 = 48; A1 = 112; B0 = 144; B1 = 176
    AR = (12, 104, 105, 106)
    def loads(A, B, rho):
        L = []
        for d in range(8): L.append(f"ds_read_b128 {v(B+4*d,4)}, v13 offset:{64*rho + 512*(7-d)}")
        for m in range(8):
            o = 128*(m % 2) + 16*rho
            L.append(f"ds_read2_b32 {v(A+4*m,2)}, v{AR[m//2]} offset0:{o} offset1:{o+1}")
            L.append(f"ds_read2_b32 {v(A+4*m+2,2)}, v{AR[m//2]} offset0:{o+2} offset1:{o+3}")
        return L
    pq = TQ(vm, prefetch_items)
    if q0:
        l0, l1 = k.lab("q0a"), k.lab("q0b")
        k("s_cmp_lg_u32 s10, 0"); k(f"s_cbranch_scc1 {l0}")
        for g, t in q0:
            for ln in g: k(ln)
        k(f"s_waitcnt vmcnt({len(q0)}) lgkmcnt(0)"); k(f"s_branch {l1}")
        k.L.append(l0 + ":")
        k("s_waitcnt vmcnt(0) lgkmcnt(0)")
        k.L.append(l1 + ":")
    else:
        vm.wait(lambda t: t == "ur", " lgkmcnt(0)")
    k.stamp("ur")
    for ln in loads(A0, B0, 0): k(ln)
    k("s_waitcnt lgkmcnt(0)")
    for t in range(8): k(f"v_mfma_f32_16x16x32_bf16 {v(ACC+4*t,4)}, {v(AP,4)}, {v(B0+4*t,4)}, 0")
    pairs = [(m, d) for m in range(8) for d in range(8 - m)]
    for rho in range(8):
        A, B = (A0, B0) if rho % 2 == 0 else (A1, B1)
        An, Bn = (A1, B1) if rho % 2 == 0 else (A0, B0)
        nxt = loads(An, Bn, rho + 1) if rho < 7 else []
        if wloop:
            if rho == WSTART - 1: vm.issue(cpa_sample(), "cpa")
            if rho == WSTART:
                pq.flush(); vm.wait(lambda t: t == "cpa"); cpa_check(k); pq.items = list(wloop)
        elif rho == 7: pq.flush(); vm.issue(cpa_sample(), "cpa")
        for idx, (m, d) in enumerate(pairs):
            k(f"v_mfma_f32_16x16x32_bf16 {v(ACC+4*(m+d),4)}, {v(A+4*m,4)}, {v(B+4*d,4)}, {v(ACC+4*(m+d),4)}")
            if idx < len(nxt): k(nxt[idx])
            if rho >= PFSTART and idx % (PFGAP if (rho < WSTART or not wloop) else WGAP) == 1: pq.pop()
        k("s_waitcnt lgkmcnt(0)")
    pq.flush()
    k.stamp("loop")
    k("v_lshlrev_b32 v14, 5, v2"); k("v_lshl_add_u32 v14, v3, 3, v14"); k("v_add_u32 v14, s82, v14")
    for t in range(8):
        k(f"v_cvt_pk_bf16_f32 v{A0+2*t}, v{ACC+4*t}, v{ACC+4*t+1}"); k(f"v_cvt_pk_bf16_f32 v{A0+2*t+1}, v{ACC+4*t+2}, v{ACC+4*t+3}")
        k(f"ds_write_b64 v14, {v(A0+2*t,2)} offset:{512*t}")
    k("v_add_u32 v15, s82, v4")
    k("s_waitcnt lgkmcnt(0)")
    for j in range(4): k(f"ds_read_b128 {v(B0+4*j,4)}, v15 offset:{1024*j}")
    k(f"s_add_u32 s36, s35, {YT}")
    for j in range(4):
        k(f"s_waitcnt lgkmcnt({3-j})")
        vm.issue([f"buffer_store_dwordx4 {v(B0+4*j,4)}, v4, s[12:15], s36 offen offset:{1024*j} sc1"], "S")
    return vm, pq

def wtask_issue(k, tag, ldsbase):
    k("s_mov_b32 s51, 0x20000")
    k("s_lshl_b32 s34, s10, 14"); k(f"s_add_u32 s34, s34, {ldsbase}")
    k("v_lshrrev_b32 v5, 3, v1"); k("v_and_b32 v6, 7, v1"); k("v_lshlrev_b32 v6, 4, v6")
    k("s_lshl_b32 s47, s41, 5"); k("v_add_u32 v5, s47, v5"); k("v_mul_lo_u32 v5, v5, s40")
    k("s_lshl_b32 s47, s42, 7"); k("v_add3_u32 v5, v5, v6, s47")
    k("s_lshl_b32 s52, s40, 3"); k("s_lshl_b32 s53, s43, 2"); k("s_mov_b32 s54, s34")
    k.label("wld" + tag)
    k("s_mov_b32 m0, s54"); k("s_sub_u32 s53, s53, 1")
    k("buffer_load_dwordx4 v5, s[48:51], 0 offen lds")
    k("v_add_u32 v5, s52, v5"); k("s_add_u32 s54, s54, 1024")
    k("s_cmp_lg_u32 s53, 0"); k(f"s_cbranch_scc1 {k.lab('wld' + tag)}")

def wtask_finish(k, tag, nxt):
    k("v_lshlrev_b32 v5, 10, v3"); k("v_bfe_u32 v6, v1, 2, 2"); k("v_lshl_add_u32 v5, v6, 7, v5")
    k("v_and_b32 v6, 3, v1"); k("v_lshl_add_u32 v5, v6, 4, v5"); k("v_add_u32 v5, s34, v5")
    k("s_lshl_b32 s47, s42, 2"); k("s_mul_i32 s47, s47, s45"); k("s_add_u32 s47, s47, s41"); k("s_lshl_b32 s47, s47, 10")
    k("s_add_u32 s47, s47, s44"); k("s_lshl_b32 s55, s45, 10")
    for r in range(4): k(f"v_mov_b32 v{24+r}, 0")
    k("s_mov_b32 s52, 0x3f803f80"); k("s_mov_b32 s53, 0")
    k.stamp("wiss" + tag)
    k("s_waitcnt vmcnt(0)")
    k.stamp("wld" + tag)
    k.label("wtr" + tag)
    for t in range(4):
        o = 64*(t//2) + 8*(t % 2)
        k(f"ds_read_b64_tr_b16 {v(8+4*t,2)}, v5 offset:{o}"); k(f"ds_read_b64_tr_b16 {v(10+4*t,2)}, v5 offset:{o+512}")
    k("v_add_u32 v5, 4096, v5"); k("s_add_u32 s53, s53, 1")
    k("s_mov_b32 s54, s47")
    for t in range(4):
        k(f"s_waitcnt lgkmcnt({6 - 2*t})")
        k(f"buffer_store_dwordx4 {v(8+4*t,4)}, v4, s[12:15], s54 offen sc1")
        if t < 3: k("s_add_u32 s54, s54, s55")
    for r in range(4):
        for t in range(4): k(f"v_dot2_f32_bf16 v{24+t}, v{8+4*t+r}, s52, v{24+t}")
    k("s_add_u32 s47, s47, 1024")
    k("s_cmp_lt_u32 s53, s43"); k(f"s_cbranch_scc1 {k.lab('wtr' + tag)}")
    k("s_cmp_ge_u32 s46, 5"); k(f"s_cbranch_scc1 {nxt}")
    for t in range(4): k(f"v_mov_b32 v{28+t}, v{24+t}")
    for t in range(4): k(f"v_permlane32_swap_b32 v{24+t}, v{28+t}")
    for t in range(4): k(f"v_add_f32 v{24+t}, v{24+t}, v{28+t}")
    for t in range(4): k(f"v_mov_b32 v{28+t}, v{24+t}")
    for t in range(4): k(f"v_permlane16_swap_b32 v{24+t}, v{28+t}")
    for t in range(4): k(f"v_add_f32 v{24+t}, v{24+t}, v{28+t}")
    k(f"s_mul_i32 s47, s46, {F*4}"); k("s_lshl_b32 s52, s42, 8"); k("s_add_u32 s47, s47, s52"); k(f"s_add_u32 s47, s47, {CS3}")
    k("v_lshlrev_b32 v6, 2, v2")
    k("s_mov_b64 exec, 0xffff")
    for t in range(4): k(f"buffer_store_dword v{24+t}, v6, s[12:15], s47 offen offset:{64*t} sc1")
    k("s_mov_b64 exec, -1")
    k(f"s_branch {nxt}")

def w1_params(k):
    k("s_sub_u32 s35, s2, 242"); k("s_lshl_b32 s35, s35, 2"); k("s_add_u32 s35, s35, s10")
    k("s_mov_b32 s48, s76"); k("s_mov_b32 s49, s77")
    k(f"s_mov_b32 s50, {D*D*2}"); k("s_mov_b32 s40, 1280"); k(f"s_mov_b32 s44, {W1T}"); k("s_mov_b32 s45, 20"); k("s_mov_b32 s46, 5")
    k("s_mul_hi_u32 s41, s35, 0x1999999a"); k("s_mul_i32 s42, s41, 10"); k("s_sub_u32 s42, s35, s42"); k("s_mov_b32 s43, 4"); k("s_lshl_b32 s41, s41, 2")

def prep_part(k, pre_items_setup):
    if QWARM:
        k("s_sub_u32 s33, s2, 160"); k("s_cmp_ge_u32 s33, 64"); k(f"s_cbranch_scc1 {k.lab('noq')}")
        k("s_cmp_eq_u32 s10, 0"); k(f"s_cbranch_scc1 {k.lab('noq')}")
        k("s_mul_i32 s33, s33, 3"); k("s_add_u32 s33, s33, s10"); k("s_sub_u32 s33, s33, 1"); k("s_mul_i32 s33, s33, 14336")
        for i in range(14):
            k(f"buffer_load_dwordx4 v[32:35], v4, s[16:19], s33 offen offset:{1024*(i%4)}")
            if i % 4 == 3: k("s_add_u32 s33, s33, 4096")
    k.label("noq")
    k.label("roundB")
    if BGATE:
        wait_counters(k, None, ["s_mul_hi_u32 s84, s2, 0x1999999a", "s_mul_i32 s84, s84, 10", "s_sub_u32 s84, s2, s84", "s_lshl_b32 s84, s84, 9",
                                f"s_add_u32 s84, s84, {C0}", "v_and_b32 v5, 3, v1", "v_lshlrev_b32 v5, 7, v5", "v_add_u32 v5, s84, v5"], ["v_mov_b32 v7, 8"], False)
    qitems, witems = pre_items_setup()
    k("s_sub_u32 s33, s2, 160"); k("s_lshl_b32 s33, s33, 2"); k("s_add_u32 s33, s33, s10")
    k("s_mov_b32 s43, 0")
    k("s_cmp_ge_u32 s33, 325"); k(f"s_cbranch_scc1 {k.lab('noB')}")
    k("s_mov_b32 s46, 5"); k("s_mov_b32 s43, 4")
    k("s_cmp_ge_u32 s33, 50"); k(f"s_cbranch_scc1 {k.lab('pw3')}")
    k("s_mov_b32 s48, s78"); k("s_mov_b32 s49, s79"); k(f"s_mov_b32 s50, {D*D*2}"); k("s_mov_b32 s40, 1280"); k(f"s_mov_b32 s44, {W2T}"); k("s_mov_b32 s45, 20")
    k("s_mul_hi_u32 s41, s33, 0x1999999a"); k("s_mul_i32 s42, s41, 10"); k("s_sub_u32 s42, s33, s42"); k("s_lshl_b32 s41, s41, 2")
    k(f"s_branch {k.lab('wtB')}")
    k.label("pw3")
    k("s_cmp_ge_u32 s33, 185"); k(f"s_cbranch_scc1 {k.lab('pw4')}")
    k("s_sub_u32 s35, s33, 50")
    k("s_mov_b32 s48, s80"); k("s_mov_b32 s49, s81"); k(f"s_mov_b32 s50, {D*F*2}"); k(f"s_mov_b32 s40, {F*2}"); k(f"s_mov_b32 s44, {W3T}"); k("s_mov_b32 s45, 20")
    k("s_mul_hi_u32 s46, s35, 0x97b425f"); k("s_mul_i32 s42, s46, 27"); k("s_sub_u32 s42, s35, s42"); k("s_lshl_b32 s41, s46, 2")
    k(f"s_branch {k.lab('wtB')}")
    k.label("pw4")
    k("s_sub_u32 s35, s33, 185")
    k("s_mov_b32 s48, s82"); k("s_mov_b32 s49, s83"); k(f"s_mov_b32 s50, {D*F*2}"); k("s_mov_b32 s40, 1280"); k(f"s_mov_b32 s44, {W4T}"); k("s_mov_b32 s45, 54")
    k("s_mul_hi_u32 s41, s35, 0x1999999a"); k("s_mul_i32 s42, s41, 10"); k("s_sub_u32 s42, s35, s42")
    k("s_cmp_eq_u32 s41, 13"); k("s_cselect_b32 s43, 2, 4"); k("s_lshl_b32 s41, s41, 2")
    k.label("wtB")
    wtask_issue(k, "B", 45056)
    k.label("noB")
    for g, t in qitems:
        for ln in g: k(ln)
    for ln in cpa_sample(): k(ln)
    doneB = k.lab("doneB")
    k("s_cmp_eq_u32 s43, 0"); k(f"s_cbranch_scc1 {doneB}")
    wtask_finish(k, "B", doneB)
    k.L.append(doneB + ":")
    k.stamp("doneB")
    signal(k, None, None, [f"s_mov_b32 s{SG}, {CPB}"], 96, [f"s_mov_b32 s{SG}, {FALL + 9*128}"])
    p2.p2_qstats(k, lambda: None)
    cpa_check(k)
    return witems

def mega():
    pc.SC = " sc1"; pc.SS = " sc1"
    k = Kern("block_kernel", vgpr=256, agpr=256, sgpr=96)
    k.only = ONLY
    k("s_cmp_ge_u32 s2, 256"); k(f"s_cbranch_scc1 {k.lab('end')}")
    k.stamp_begin()
    if CODEFIRST:
        for ln in code_prefetch_group(k, None, k.lab("end"), "z", 180, sreg=26): k(ln.replace("@U@", "0"))
    k(f"s_load_dwordx8 s[36:43], s[0:1], {A_K}")
    k(f"s_load_dwordx2 s[44:45], s[0:1], {A_D}")
    k(f"s_load_dwordx8 s[76:83], s[0:1], {B_W1}")
    k(f"s_load_dwordx2 s[72:73], s[0:1], {DBG}")
    prologue(k)
    pre_items_setup = lambda: (p2.p2_pre_setup(k), p2.p2_pre_items(k))[1]
    def common_setup():
        p2.p2_setup(k); p3.p35_setup(k, 26)
        k.srd(12, 4, WS_END); k.srd(16, 8, MB); k.srd(20, 6, MB)
        init_srd(k)
    k("s_cmp_ge_u32 s2, 242"); k(f"s_cbranch_scc1 {k.lab('special')}")
    vm = VM(k)
    kv_issue(k, vm)
    common_setup()
    if TOUCH: page_touch(k)
    npre = 0
    if PREFALL:
        k("s_lshl_b32 s26, s2, 2"); k("s_add_u32 s26, s26, s10")
        for ptr, nbytes, conv_only in (((42, MB, 0)), ((8, MB, 0)), ((78, D*D*2, 0)), ((80, D*F*2, 0)), ((82, D*F*2, 0))):
            per = -(-nbytes // 968 // 1024 * 1024 // 1024) if False else (nbytes // 968 + 1023) // 1024
            k(f"s_mul_i32 s27, s26, {per*1024}")
            k(f"s_mov_b32 s48, s{ptr}"); k(f"s_mov_b32 s49, s{ptr+1}"); k(f"s_mov_b32 s50, {nbytes}"); k("s_mov_b32 s51, 0x20000")
            for j in range(per):
                k(f"buffer_load_dwordx4 v[184:187], v4, s[48:51], s27 offen offset:{1024*j}"); npre += 1
    k("s_cmp_ge_u32 s2, 160"); k(f"s_cbranch_scc1 {k.lab('keepw')}")
    k("s_mov_b32 s76, s42"); k("s_mov_b32 s77, s43"); k("s_mov_b32 s80, s44"); k("s_mov_b32 s81, s45")
    k.label("keepw")
    if not CODEFIRST:
        if PF_ALL: vm.issue(code_prefetch_group(k, k.lab("code0"), k.lab("end"), "z", 180, sreg=26), "pf")
        else: vm.issue(["v_mov_b32 v180, 0", "buffer_load_dword v182, v180, s[16:19], 0 offen"], "pf")
        k.label("code0")
    nh = 0
    if HEARLY:
        k("s_cmp_ge_u32 s2, 160"); k(f"s_cbranch_scc1 {k.lab('noh0')}")
        conv_h_issue(k, VM(k))
        k.label("noh0")
        nh = 17
    k.stamp("kvissued")
    k("s_cmp_lt_u32 s29, 2"); k(f"s_cbranch_scc1 {k.lab('kvw1')}")
    k(f"s_waitcnt vmcnt({(6 if CODEFIRST else 7) + npre})")
    k(f"s_branch {k.lab('kvw2')}")
    k.label("kvw1")
    if TOUCH: k("s_waitcnt vmcnt(8)") if False else kv_wait_touch(k)
    elif CODEFIRST: k("s_waitcnt vmcnt(0)")
    elif HEARLY:
        k("s_cmp_ge_u32 s2, 160"); k(f"s_cbranch_scc1 {k.lab('kvw3')}")
        k(f"s_waitcnt vmcnt({1 + npre + nh})"); k(f"s_branch {k.lab('kvw2')}")
        k.label("kvw3")
        k(f"s_waitcnt vmcnt({1 + npre})")
    else: k(f"s_waitcnt vmcnt({1 + npre})")
    k.label("kvw2")
    k("s_barrier")
    k.stamp("kvin")
    k("v_mov_b32 v178, 0")
    k("buffer_load_dword v177, v178, s[72:75], 0 offen sc1")
    vmh = VM(k)
    if not HLATE and not HEARLY:
        k("s_cmp_ge_u32 s2, 160"); k(f"s_cbranch_scc1 {k.lab('noh')}")
        conv_h_issue(k, vmh)
        k.label("noh")
    NPRE[0] = npre
    kv_compute(k)
    k.stamp("kvdone")
    k("s_waitcnt vmcnt(0)")
    k.stamp("kvdrain")
    ok = k.lab("initok")
    k("v_cmp_eq_u32 vcc, 0, v177"); k(f"s_cbranch_vccz {ok}")
    wait_init(k)
    k.L.append(ok + ":")
    k("s_barrier")
    tile_cnt = lambda add: [f"s_add_u32 s84, s2, {add}", "s_mul_hi_u32 s85, s84, 0x1999999a", "s_mul_i32 s28, s85, 10", "s_sub_u32 s84, s84, s28",
                            "s_lshl_b32 s84, s84, 2", "s_and_b32 s85, s85, 3", "s_add_u32 s84, s84, s85", "s_lshl_b32 s84, s84, 7", f"s_add_u32 s84, s84, {C0}"]
    atomic_signal(k, tile_cnt(0), k.lab("sigc0"), None)
    k("s_cmp_lt_u32 s29, 2"); k(f"s_cbranch_scc1 {k.lab('sigc0b')}")
    atomic_signal(k, tile_cnt(82), k.lab("sigc0c"), None)
    k.label("sigc0b")
    k.stamp("kvsig")
    k("s_cmp_ge_u32 s2, 160"); k(f"s_cbranch_scc1 {k.lab('prep')}")
    if HLATE: conv_h_issue(k, vmh)
    qitems, witems = pre_items_setup()
    q0 = []
    if QEARLY:
        k("s_cmp_eq_u32 s10, 0"); k(f"s_cbranch_scc1 {k.lab('noq0')}")
        k("s_sub_u32 s36, s10, 1"); k("s_mul_i32 s36, s36, 3")
        k("s_add_u32 s37, s36, 3"); k("s_min_u32 s37, s37, 8")
        k(f"s_lshl_b32 s38, s{p2.TT}, 5")
        k.label("qgrp")
        k("s_lshl_b32 s39, s36, 2"); k("v_add_u32 v8, s39, v3")
        k("v_and_b32 v9, 15, v8"); k("v_xor_b32 v9, v9, v2")
        k("v_add_u32 v8, s38, v8"); k("v_mul_u32_u24 v8, 1280, v8"); k("v_lshl_add_u32 v8, v9, 4, v8")
        k("s_mul_i32 s39, s36, 5120")
        for m in range(5):
            k(f"s_add_u32 m0, s39, {p2.QL + 768*m}"); k("s_nop 0")
            k(f"buffer_load_dwordx4 v8, s[16:19], 0 offen offset:{256*m} lds")
        k("s_add_u32 s36, s36, 1"); k("s_cmp_lt_u32 s36, s37"); k(f"s_cbranch_scc1 {k.lab('qgrp')}")
        k.label("noq0")
        qitems = []
    if HLATE: k("s_waitcnt vmcnt(0)")
    conv_h_copy1(k)
    wait_counters(k, None, ["s_lshr_b32 s84, s2, 4", "s_lshl_b32 s84, s84, 9", f"s_add_u32 s84, s84, {C0}", "v_and_b32 v5, 3, v1", "v_lshlrev_b32 v5, 7, v5", "v_add_u32 v5, s84, v5"],
                  ["v_mov_b32 v7, 8"], False)
    k.stamp("s0")
    vm, pq = conv_main(k, qitems, witems[:NWLOOP], q0)
    k.stamp("convdone")
    lab = k.lab("sigc1")
    p2.p2_qstats(k, (lambda: None) if QEARLY else (lambda: vm.wait(lambda t: t == "q")))
    vm.wait(lambda t: t == "S"); k("s_barrier")
    cpa_check(k)
    if S1DIRECT:
        atomic_signal(k, [f"s_lshr_b32 s{SG}, s2, 3", f"s_lshl_b32 s{SG}, s{SG}, 7", f"s_add_u32 s{SG}, s{SG}, {C1D}"], lab, None)
    else:
        atomic_signal(k, own_shard(C1), lab, 20, [f"s_and_b32 s{SG}, s2, 7", f"s_lshl_b32 s{SG}, s{SG}, 7", f"s_add_u32 s{SG}, s{SG}, {FALL}"])
    k(f"s_branch {k.lab('wconv') if NWLOOP else k.lab('wfirst')}")
    k.label("special")
    k("s_waitcnt lgkmcnt(0)")
    common_setup()
    k("s_cmp_eq_u32 s2, 255"); k(f"s_cbranch_scc1 {k.lab('zero')}")
    k.label("w1only")
    w1_params(k)
    doneA = k.lab("doneA")
    k("s_cmp_ge_u32 s35, 50"); k(f"s_cbranch_scc1 {doneA}")
    wtask_issue(k, "A", 0)
    wtask_finish(k, "A", doneA)
    k.L.append(doneA + ":")
    k.stamp("doneA")
    signal(k, None, None, [f"s_mov_b32 s{SG}, {CPA}"], 13, [f"s_mov_b32 s{SG}, {FALL + 8*128}"], first=True)
    k(f"s_branch {k.lab('prep')}")
    k.label("zero")
    k("v_mov_b32 v8, 0"); k("v_mov_b32 v9, 0"); k("v_mov_b32 v10, 0"); k("v_mov_b32 v11, 0")
    k("v_lshlrev_b32 v5, 4, v0"); k(f"s_mov_b32 s35, {CNT}")
    for j in range(9):
        k("buffer_store_dwordx4 v[8:11], v5, s[12:15], s35 offen sc1"); k("s_add_u32 s35, s35, 4096")
    k("s_waitcnt vmcnt(0)")
    k("s_barrier")
    k("v_mov_b32 v5, 0"); k("v_mov_b32 v6, 1")
    k("s_cmp_lg_u32 s10, 0"); k(f"s_cbranch_scc1 {k.lab('prep')}")
    k("s_mov_b64 exec, 1")
    k("buffer_store_dword v6, v5, s[72:75], 0 offen sc1")
    k("s_mov_b64 exec, -1")
    k.label("prep")
    witems = prep_part(k, pre_items_setup)
    k.label("wfirst")
    k.stamp("cpa")
    for g, t in witems[:NWLOOP]:
        for ln in g: k(ln)
    k.label("wconv")
    for g, t in witems[NWLOOP:max(NWA, NWLOOP)]:
        for ln in g: k(ln)
    p3.p3_pre_setup(k)
    if S1DIRECT:
        wait_counters(k, None, ["v_min_u32 v5, 19, v1", "v_lshlrev_b32 v5, 7, v5", f"v_add_u32 v5, {C1D}, v5", f"v_mov_b32 v6, {FALL + 9*128}",
                                "v_cmp_lt_u32 vcc, 19, v1", "v_cndmask_b32 v5, v5, v6, vcc"], ["v_mov_b32 v7, 8", "v_cndmask_b32 v7, v7, 1, vcc"], False)
    else:
        wait_counters(k, None, ["v_min_u32 v5, 9, v1", "v_lshlrev_b32 v5, 7, v5", f"v_add_u32 v5, {FALL}, v5"], ["v_mov_b32 v7, 1"], False)
    k.stamp("s1")
    early = [(g, "E") for g in p3.p3_pre_early(k)]
    vm, nq = p2.p2_main(k, witems[max(NWA, NWLOOP):], ([(code_prefetch_group(k, k.lab('ph3'), k.lab('ph4'), 'a', 136), "pf")] if PF_JIT else []), p3.p3_pre_late, early)
    k.stamp("p2done")
    signal(k, vm, nq, [f"s_lshl_b32 s{SG}, s{p2.TT}, 7", f"s_add_u32 s{SG}, s{SG}, {C2}"], None)
    k.label("ph3")
    p4.p4_setup(k); p4.p4_pre_setup(k)
    wait_counters(k, nq, [f"s_lshl_b32 s{SG}, s{p3.T64}, 1", f"s_sub_u32 s{SG}, s{SG}, 1", "v_and_b32 v5, 3, v1", f"v_add_u32 v5, s{SG}, v5",
                          "v_and_b32 v5, 63, v5", "v_lshlrev_b32 v5, 7, v5", f"v_add_u32 v5, {C2}, v5"], ["v_mov_b32 v7, 4"], True, mid=MID[0])
    k.stamp("s2")
    early = [(g, "E") for g in p4.p4_pre_early(k)]
    vm, nq = p3.p3_main(k, ([(code_prefetch_group(k, k.lab('ph4'), k.lab('ph5'), 'b', 184), "pf")] if PF_JIT else []), p4.p4_pre_late, early)
    k.stamp("p3done")
    signal(k, vm, nq, [f"s_lshr_b32 s{SG}, s{p3.T64}, 1", f"s_lshl_b32 s{SG}, s{SG}, 2", f"s_lshr_b32 s{SG2}, s{p3.FC}, 1", f"s_add_u32 s{SG}, s{SG}, s{SG2}",
                          f"s_lshl_b32 s{SG}, s{SG}, 7", f"s_add_u32 s{SG}, s{SG}, {C3}"], None)
    k.label("ph4")
    p5.p5_pre_setup(k)
    wait_counters(k, nq, [f"s_lshl_b32 s{SG}, s{p4.T128}, 9", f"s_add_u32 s{SG}, s{SG}, {C3}", "v_and_b32 v5, 3, v1", "v_lshlrev_b32 v5, 7, v5", f"v_add_u32 v5, s{SG}, v5"], ["v_mov_b32 v7, 4"],
                  True, p4.p4_cs_table, mid=MID[1])
    k.stamp("s3")
    early = [(g, "E") for g in p5.p5_pre_early(k)]
    vm, nq = p4.p4_main(k, ([(code_prefetch_group(k, k.lab('ph5'), k.lab('end'), 'c', 88), "pf")] if PF_JIT else []), p5.p5_pre_late, early,
                        follow=[(g, "F") for g in p5.p5_pre_late(k)[:NFOLLOW]], nfollow=NFOLLOW)
    k.stamp("p4done")
    signal(k, vm, nq, [f"s_lshl_b32 s{SG}, s{p4.T128}, 2", f"s_lshr_b32 s{SG2}, s{p4.COL}, 2", f"s_add_u32 s{SG}, s{SG}, s{SG2}",
                          f"s_lshl_b32 s{SG}, s{SG}, 7", f"s_add_u32 s{SG}, s{SG}, {C4}"], None)
    k.label("ph5")
    wait_counters(k, nq, [f"s_lshr_b32 s{SG}, s{p3.T64}, 1", f"s_lshl_b32 s{SG}, s{SG}, 9", f"s_add_u32 s{SG}, s{SG}, {C4}", "v_and_b32 v5, 3, v1", "v_lshlrev_b32 v5, 7, v5", f"v_add_u32 v5, s{SG}, v5"],
                  ["v_mov_b32 v7, 4"], False, mid=MID[2])
    k.stamp("s4")
    p5.p5_main(k)
    k.stamp_flush(4, STAMP)
    k.label("end"); k("s_endpgm")
    pc.SC = ""; pc.SS = ""
    return k
```

```python
from ph_common import *
import ph_common as pc
import p2, p3, p4, p5

LDS = p4.P4_LDS + 1024
C2, C3, C4 = CNT, CNT + 64*128, CNT + 128*128
C0, C1, CPA, CPB = CNT + 192*128, CNT + 232*128, CNT + 240*128, CNT + 241*128
FLG = None
FALL = CNT + 242*128
C1D = CNT + 256*128
S1DIRECT = False
TOUCH = 0
PF_ALL = True
PF_JIT = False
CODEFIRST = False
SPIN_LIMIT = 200000
SG, SG2 = 84, 85
NFOLLOW = 0
WGAP = 6
BGATE = False
HEARLY = False
NPRE = [0]
PREFALL = 0
HLATE = False
QEARLY = True
QWARM = False
WSTART = 2
NWLOOP = 36
NWA = 48
PFSTART = 1
PFGAP = 6
DRAIN_LOADS = 10
MID = (99, 99, 16)
ONLY = None
CPY = 4160
WREG = 4608 + 2*CPY
CONVL = 92160
KVL = 17408
YOL = 45056
KVO = 2*KVL

def atomic_signal(k, offset_code, lab, target, flag_code=None, first=False):
    if target is None:
        k("s_cmp_lg_u32 s10, 0"); k(f"s_cbranch_scc1 {lab}")
        if first: wait_init(k)
        for ln in offset_code: k(ln)
        k("v_mov_b32 v5, 0"); k("v_mov_b32 v6, 1")
        k("s_mov_b64 exec, 1")
        k(f"buffer_atomic_add v6, v5, s[12:15], s{SG} offen sc1")
        k("s_mov_b64 exec, -1")
        k.L.append(lab + ":")
        return
    k("s_cmp_lg_u32 s10, 0"); k(f"s_cbranch_scc1 {lab}")
    if first: wait_init(k)
    for ln in offset_code: k(ln)
    k("v_mov_b32 v5, 0"); k("v_mov_b32 v6, 1")
    k("s_mov_b64 exec, 1")
    k(f"buffer_atomic_add v6, v5, s[12:15], s{SG} offen sc0 sc1")
    for ln in (flag_code or [f"s_add_u32 s{SG}, s{SG}, {FLG}"]): k(ln)
    k("s_waitcnt vmcnt(0)")
    k.stamp("atom%d" % target + lab[-2:])
    k(f"v_cmp_eq_u32 vcc, {target - 1}, v6")
    k("v_mov_b32 v6, 1")
    k("s_and_b64 exec, exec, vcc")
    k(f"s_cbranch_execz {lab}_x")
    k(f"buffer_store_dword v6, v5, s[12:15], s{SG} offen sc1")
    k.L.append(lab + "_x:")
    k("s_mov_b64 exec, -1")
    k.L.append(lab + ":")

def signal(k, vm, nq, offset_code, target, flag_code=None, first=False):
    lab = k.lab(k.uniq("sig"))
    if nq: nq.pop(DRAIN_LOADS)
    if vm: vm.wait(lambda t: t == "S")
    else: k("s_waitcnt vmcnt(0)")
    k.stamp("drained%d" % k._n)
    if first:
        l2 = k.lab(k.uniq("fi"))
        k("s_cmp_lg_u32 s10, 0"); k(f"s_cbranch_scc1 {l2}")
        wait_init(k)
        k.L.append(l2 + ":")
    k("s_barrier")
    atomic_signal(k, offset_code, lab, target, flag_code, False)

def poll(k, addr_code, target_reg_code, va=5, vd=6, vt=7):
    lab = k.lab(k.uniq("pl")); loop = lab + "_l"
    for ln in addr_code + target_reg_code: k(ln)
    k(f"s_mov_b32 s{SG2}, 0")
    k.L.append(loop + ":")
    k(f"buffer_load_dword v{vd}, v{va}, s[12:15], 0 offen sc1")
    k(f"s_add_u32 s{SG2}, s{SG2}, 1")
    k("s_waitcnt vmcnt(0)")
    k(f"v_cmp_gt_u32 vcc, v{vt}, v{vd}")
    k(f"s_cmp_gt_u32 s{SG2}, {SPIN_LIMIT}"); k(f"s_cbranch_scc1 {lab}")
    k(f"s_cbranch_vccnz {loop}")
    k.L.append(lab + ":")

def wait_counters(k, nq, addr_code, target_code, all_waves_drain, before_barrier=None, mid=0):
    lab = k.lab(k.uniq("wt"))
    if nq: nq.pop(mid)
    k("s_cmp_lg_u32 s10, 0"); k(f"s_cbranch_scc1 {lab}")
    k.stamp("prepoll" + lab[-2:])
    poll(k, addr_code, target_code)
    k.stamp("polled" + lab[-2:])
    k.L.append(lab + ":")
    if nq: nq.flush()
    if all_waves_drain: k("s_waitcnt vmcnt(0)")
    if before_barrier: before_barrier(k)
    k("s_barrier")

def cpa_sample(): return [f"v_mov_b32 v220, {FALL + 8*128}", "buffer_load_dword v219, v220, s[12:15], 0 offen sc1"]
def cpa_check(k):
    ok = k.lab(k.uniq("cpaok"))
    k("v_cmp_eq_u32 vcc, 0, v219"); k(f"s_cbranch_vccz {ok}")
    poll(k, [f"v_mov_b32 v5, {FALL + 8*128}"], ["v_mov_b32 v7, 1"])
    k.L.append(ok + ":")

def shard_addr(base): return ["v_and_b32 v5, 7, v1", "v_lshlrev_b32 v5, 7, v5", f"v_add_u32 v5, {base}, v5"]
def own_shard(base): return [f"s_and_b32 s{SG}, s2, 7", f"s_lshl_b32 s{SG}, s{SG}, 7", f"s_add_u32 s{SG}, s{SG}, {base}"]

def init_srd(k):
    k("s_mov_b32 s74, 256"); k("s_mov_b32 s75, 0x20000")

def wait_init(k):
    lab = k.lab(k.uniq("in")); loop = lab + "_l"
    k("v_mov_b32 v5, 0"); k(f"s_mov_b32 s{SG2}, 0")
    k.L.append(loop + ":")
    k("buffer_load_dword v6, v5, s[72:75], 0 offen sc1")
    k(f"s_add_u32 s{SG2}, s{SG2}, 1")
    k("s_waitcnt vmcnt(0)")
    k("v_cmp_eq_u32 vcc, 0, v6")
    k(f"s_cmp_gt_u32 s{SG2}, {SPIN_LIMIT}"); k(f"s_cbranch_scc1 {lab}")
    k(f"s_cbranch_vccnz {loop}")
    k.L.append(lab + ":")

def vm_after(vm):
    return vm

def kv_wait_touch(k):
    a_, b_, c_ = k.lab("kvt0"), k.lab("kvt1"), k.lab("kvt2")
    k("s_cmp_lt_u32 s2, 8"); k(f"s_cbranch_scc1 {a_}")
    k("s_waitcnt vmcnt(1)"); k(f"s_branch {c_}")
    k.L.append(a_ + ":")
    k("s_cmp_eq_u32 s10, 3"); k(f"s_cbranch_scc1 {b_}")
    k("s_waitcnt vmcnt(4)"); k(f"s_branch {c_}")
    k.L.append(b_ + ":")
    k("s_waitcnt vmcnt(8)")
    k.L.append(c_ + ":")

def page_touch(k):
    lab = k.lab("notouch")
    k("s_cmp_ge_u32 s2, 8"); k(f"s_cbranch_scc1 {lab}")
    k(f"s_mov_b32 s26, {TOUCH}"); k("v_mul_lo_u32 v179, v1, s26")
    k("s_cmp_eq_u32 s10, 3"); k(f"s_cbranch_scc1 {k.lab('touch3')}")
    k(f"s_mul_i32 s27, s10, {192*TOUCH}")
    for j in range(3):
        k("buffer_load_dword v186, v179, s[12:15], s27 offen"); k(f"s_add_u32 s27, s27, {64*TOUCH}")
    k(f"s_branch {lab}")
    k.label("touch3")
    k("buffer_load_dword v186, v179, s[16:19], 0 offen"); k("buffer_load_dword v186, v179, s[20:23], 0 offen")
    k("s_mov_b32 s87x, 0".replace("s87x", "s27"))
    for lo, n in ((42, MB), (76, D*D*2), (78, D*D*2), (80, D*F*2), (82, D*F*2)):
        k(f"s_mov_b32 s48, s{lo}"); k(f"s_mov_b32 s49, s{lo+1}"); k(f"s_mov_b32 s50, {n}"); k("s_mov_b32 s51, 0x20000")
        k("buffer_load_dword v186, v179, s[48:51], 0 offen")
    k.L.append(lab + ":")

def kv_issue(k, vm):
    k("s_sub_u32 s29, s2, 160"); k("s_cmp_lt_u32 s29, 78"); k("s_cselect_b32 s29, 2, 1")
    for j in range(2):
        k(f"s_add_u32 s26, s2, {82*j}")
        k("s_mul_hi_u32 s27, s26, 0x1999999a"); k("s_mul_i32 s28, s27, 10"); k("s_sub_u32 s28, s26, s28")
        k(f"s_lshl_b32 s{30+2*j}, s27, 6"); k(f"s_lshl_b32 s{31+2*j}, s28, 6")
    k("v_lshrrev_b32 v5, 3, v0"); k("v_and_b32 v6, 7, v0"); k("v_lshlrev_b32 v6, 4, v6")
    k("s_waitcnt lgkmcnt(0)")
    k.srd(48, 36, MB); k.srd(52, 38, MB); k.srd(56, 40, D*8)
    k("s_lshl_b32 s26, s10, 10"); k("s_mov_b32 s27, 40960")
    for j in range(2):
        b = j*KVL
        if j == 1: k("s_cmp_lt_u32 s29, 2"); k(f"s_cbranch_scc1 {k.lab('kv1')}")
        k(f"v_add_u32 v{8+j}, s{30+2*j}, v5"); k(f"v_mul_u32_u24 v{8+j}, 1280, v{8+j}")
        k(f"s_lshl_b32 s28, s{31+2*j}, 1"); k(f"v_add3_u32 v{8+j}, v{8+j}, v6, s28")
        k(f"v_subrev_u32 v{10+j}, 3840, v{8+j}")
        G = [[f"s_add_u32 m0, s26, {b}", "s_nop 0", f"buffer_load_dwordx4 v{10+j}, s[48:51], 0 offen lds"],
             [f"s_add_u32 m0, s26, {b + 4096}", f"v_add_u32 v7, 40960, v{10+j}", "buffer_load_dwordx4 v7, s[48:51], 0 offen lds"],
             [f"s_add_u32 m0, s26, {b + 9216}", "s_nop 0", f"buffer_load_dwordx4 v{8+j}, s[52:55], 0 offen lds"],
             [f"s_add_u32 m0, s26, {b + 13312}", "s_nop 0", f"buffer_load_dwordx4 v{8+j}, s[52:55], s27 offen lds"],
             [f"s_mov_b32 m0, {b + 8192}", "v_lshrrev_b32 v7, 3, v1", f"v_add_u32 v7, s{30+2*j}, v7", "v_mul_u32_u24 v7, 1280, v7",
              "v_and_b32 v18, 7, v1", "v_lshlrev_b32 v18, 4, v18", f"s_lshl_b32 s28, s{31+2*j}, 1", "v_add3_u32 v7, v7, v18, s28",
              "v_add_u32 v7, 78080, v7", "buffer_load_dwordx4 v7, s[48:51], 0 offen lds"],
             [f"v_add_u32 v{16+j}, s{31+2*j}, v1", f"v_lshlrev_b32 v{16+j}, 3, v{16+j}", f"buffer_load_dwordx2 {v(12+2*j,2)}, v{16+j}, s[56:59], 0 offen"]]
        for g in G:
            if j == 0: vm.issue(g, "kv")
            else:
                for ln in g: k(ln)
    k.label("kv1")

def kv_compute(k):
    k("v_and_b32 v10, 15, v1"); k("v_lshrrev_b32 v11, 2, v10"); k("s_lshl_b32 s42, s10, 4"); k("v_add_u32 v11, s42, v11")
    k("v_lshlrev_b32 v11, 7, v11"); k("v_and_b32 v10, 3, v10"); k("v_lshlrev_b32 v10, 3, v10"); k("v_lshlrev_b32 v16, 5, v3")
    k("v_add3_u32 v11, v11, v10, v16")
    k("s_mov_b32 s45, 0"); k("s_mov_b32 s46, 0xffff0000"); k(f"s_mov_b32 s47, {KVO}")
    k(".p2align 3")
    k.label("kvloop")
    k("v_mul_u32_u24 v9, 144, v1"); k("s_lshl_b32 s43, s10, 5"); k(f"s_sub_u32 s43, {KVO + 96}, s43"); k("v_add_u32 v9, s43, v9")
    KR = 16; VR = 26; KF = 38
    for i in range(5): k(f"ds_read_b64_tr_b16 {v(KR+2*i,2)}, v11 offset:{512*i}")
    for i in range(4): k(f"ds_read_b64_tr_b16 {v(VR+2*i,2)}, v11 offset:{9216+512*i}")
    k("v_lshlrev_b32 v34, 16, v12"); k("v_and_b32 v35, s46, v12"); k("v_lshlrev_b32 v36, 16, v13"); k("v_and_b32 v37, s46, v13")
    k("s_waitcnt lgkmcnt(4)")
    for i in range(10):
        k(f"v_lshlrev_b32 v{KF+2*i}, 16, v{KR+i}"); k(f"v_and_b32 v{KF+2*i+1}, s46, v{KR+i}")
    k("s_waitcnt lgkmcnt(0)")
    OUTR = 58
    for half in (1, 0):
        for pr in range(4):
            es = (8*half + 7 - 2*pr, 8*half + 6 - 2*pr)
            for j, e in enumerate(es):
                t = 16 + j
                k(f"v_mul_f32 v{t}, v34, v{KF+e+3}"); k(f"v_fmac_f32 v{t}, v35, v{KF+e+2}")
                k(f"v_fmac_f32 v{t}, v36, v{KF+e+1}"); k(f"v_fmac_f32 v{t}, v37, v{KF+e}")
                vr = VR + e//2
                if e % 2 == 0: k(f"v_lshlrev_b32 v{18+j}, 16, v{vr}")
                else: k(f"v_and_b32 v{18+j}, s46, v{vr}")
                k(f"v_mul_f32 v{t}, v{t}, v{18+j}")
            k(f"v_cvt_pk_bf16_f32 v{OUTR+pr}, v16, v17")
        k(f"ds_write_b128 v9, {v(OUTR,4)} offset:{16*(1-half)}")
        OUTR = 20
    k("v_lshrrev_b32 v5, 3, v1"); k("v_add_u32 v5, s42, v5"); k("v_and_b32 v6, 7, v1"); k("v_lshlrev_b32 v6, 4, v6")
    k("v_mul_u32_u24 v7, 144, v5"); k(f"v_add3_u32 v7, v7, v6, s47")
    k("v_add_u32 v5, s31, v5"); k("v_lshlrev_b32 v5, 12, v5"); k("v_add_u32 v5, v5, v6")
    k("s_sub_u32 s43, 1984, s30"); k("s_lshl_b32 s43, s43, 1"); k(f"s_add_u32 s43, s43, {UR}"); k("s_add_u32 s44, s43, 32768")
    k("s_waitcnt lgkmcnt(0)")
    k("s_barrier")
    k("ds_read_b128 v[16:19], v7"); k("ds_read_b128 v[20:23], v7 offset:1152")
    k("s_waitcnt lgkmcnt(1)")
    k("buffer_store_dwordx4 v[16:19], v5, s[12:15], s43 offen sc1")
    k("s_waitcnt lgkmcnt(0)")
    k("buffer_store_dwordx4 v[20:23], v5, s[12:15], s44 offen sc1")
    k("s_add_u32 s45, s45, 1"); k("s_cmp_ge_u32 s45, s29"); k(f"s_cbranch_scc1 {k.lab('kvexit')}")
    k(f"s_waitcnt vmcnt({(3 if CODEFIRST else 4) + NPRE[0]})")
    k("s_barrier")
    k("s_mov_b32 s30, s32"); k("s_mov_b32 s31, s33")
    k("v_mov_b32 v12, v14"); k("v_mov_b32 v13, v15"); k(f"v_add_u32 v11, {KVL}, v11")
    k(f"s_branch {k.lab('kvloop')}")
    k.label("kvexit")

HB = 128; E = 168
def conv_h_issue(k, vm):
    k("s_lshl_b32 s83, s2, 2"); k("s_add_u32 s83, s83, s10")
    k("s_lshl_b32 s35, s83, 12")
    k(f"s_mul_i32 s82, s10, {WREG}"); k(f"s_add_u32 s82, s82, {CONVL}")
    k("v_subrev_u32 v5, 32, v4"); k("v_add_u32 v6, 16, v5")
    k("s_lshl_b32 s28, s83, 1"); k("v_mov_b32 v19, s28")
    k("s_add_u32 s76, s76, s35"); k("s_addc_u32 s77, s77, 0")
    k("s_mov_b32 s78, 4096"); k("s_mov_b32 s79, 0x20000")
    for q in range(5):
        vm.issue([f"buffer_load_dwordx4 {v(HB+8*q,4)}, v5, s[76:79], 0 offen"], ("h", q))
        vm.issue([f"buffer_load_dword v{HB+8*q+4}, v6, s[76:79], 0 offen"] + (["v_add_u32 v5, 1024, v5", "v_add_u32 v6, 1024, v6"] if q < 4 else []), ("h", q))
    k("v_subrev_u32 v5, 32, v4")
    vm.issue(["s_add_u32 m0, s82, 4608", "s_nop 0", "buffer_load_dwordx4 v5, s[76:79], 0 offen lds"], "h0")
    k("s_add_u32 m0, s82, %d" % (4608 + 1024)); k("v_add_u32 v5, 1024, v5")
    for q in range(3): vm.issue([f"buffer_load_dwordx4 v5, s[76:79], 0 offen offset:{1024*q} lds"], "h0")
    k("s_add_u32 m0, s82, %d" % (4608 + 4096)); k("v_add_u32 v5, 3072, v5")
    vm.issue(["s_mov_b64 exec, 15", "buffer_load_dwordx4 v5, s[76:79], 0 offen lds", "s_mov_b64 exec, -1"], "h0")
    k("s_mov_b32 s44, s80"); k("s_mov_b32 s45, s81"); k(f"s_mov_b32 s46, {D*2}"); k("s_mov_b32 s47, 0x20000")
    vm.issue(["buffer_load_ushort v176, v19, s[44:47], 0 offen"], "D")

def conv_h_copy1(k):
    k("s_add_u32 s42, s82, %d" % (4608 + CPY)); k("v_add_u32 v5, s42, v4")
    for q in range(5):
        x = HB + 8*q
        if q == 4: k("s_mov_b64 exec, 15")
        for i in range(4): k(f"v_alignbit_b32 v{E+4*(q%2)+i}, v{x+i+1}, v{x+i}, 16")
        k(f"ds_write_b128 v5, {v(E+4*(q%2),4)} offset:{1024*q}")
    k("s_mov_b64 exec, -1")

def conv_main(k, prefetch_items, wloop, q0):
    vm = VM(k)
    k(f"s_lshl_b32 s35, s83, 12"); k(f"s_add_u32 s36, s35, {UR}")
    k("s_mov_b32 m0, s82"); k("s_nop 0")
    for j in range(4): vm.issue([f"buffer_load_dwordx4 v4, s[12:15], s36 offen offset:{1024*j} sc1 lds"], "ur")
    k("v_mov_b32 v8, 0"); k("v_mov_b32 v9, 0"); k("v_lshlrev_b32 v7, 3, v1"); k("v_add_u32 v7, s82, v7")
    k("ds_write_b64 v7, v[8:9] offset:4096")
    k("v_add_u32 v13, 1, v2"); k("v_and_b32 v14, 1, v13"); k(f"v_mul_u32_u24 v12, {CPY}, v14")
    k("v_sub_u32 v13, v13, v14"); k("v_lshlrev_b32 v13, 1, v13"); k("v_lshl_add_u32 v13, v3, 4, v13")
    k("s_add_u32 s38, s82, 4608"); k("v_add3_u32 v12, v12, v13, s38")
    for j in range(1, 4): k(f"v_add_u32 v{103+j}, {1024*j}, v12")
    k("v_lshlrev_b32 v13, 5, v2"); k("v_lshlrev_b32 v14, 4, v3"); k("v_sub_u32 v13, v14, v13")
    k("s_add_u32 s39, s82, 480"); k("v_add_u32 v13, s39, v13")
    AP = 100
    k("v_sub_u32 v16, 15, v2"); k("v_lshrrev_b32 v17, 3, v16"); k("v_and_b32 v16, 7, v16")
    k("v_and_b32 v18, 1, v16"); k("v_lshlrev_b32 v18, 4, v18"); k("v_lshlrev_b32 v18, v18, v176")
    k("v_cmp_eq_u32 vcc, v17, v3"); k("v_cndmask_b32 v18, 0, v18, vcc"); k("v_lshrrev_b32 v16, 1, v16")
    for r in range(4):
        k(f"v_cmp_eq_u32 vcc, {r}, v16"); k(f"v_cndmask_b32 v{AP+r}, 0, v18, vcc")
    ACC = 16; A0 = 48; A1 = 112; B0 = 144; B1 = 176
    AR = (12, 104, 105, 106)
    def loads(A, B, rho):
        L = []
        for d in range(8): L.append(f"ds_read_b128 {v(B+4*d,4)}, v13 offset:{64*rho + 512*(7-d)}")
        for m in range(8):
            o = 128*(m % 2) + 16*rho
            L.append(f"ds_read2_b32 {v(A+4*m,2)}, v{AR[m//2]} offset0:{o} offset1:{o+1}")
            L.append(f"ds_read2_b32 {v(A+4*m+2,2)}, v{AR[m//2]} offset0:{o+2} offset1:{o+3}")
        return L
    pq = TQ(vm, prefetch_items)
    if q0:
        l0, l1 = k.lab("q0a"), k.lab("q0b")
        k("s_cmp_lg_u32 s10, 0"); k(f"s_cbranch_scc1 {l0}")
        for g, t in q0:
            for ln in g: k(ln)
        k(f"s_waitcnt vmcnt({len(q0)}) lgkmcnt(0)"); k(f"s_branch {l1}")
        k.L.append(l0 + ":")
        k("s_waitcnt vmcnt(0) lgkmcnt(0)")
        k.L.append(l1 + ":")
    else:
        vm.wait(lambda t: t == "ur", " lgkmcnt(0)")
    k.stamp("ur")
    for ln in loads(A0, B0, 0): k(ln)
    k("s_waitcnt lgkmcnt(0)")
    for t in range(8): k(f"v_mfma_f32_16x16x32_bf16 {v(ACC+4*t,4)}, {v(AP,4)}, {v(B0+4*t,4)}, 0")
    pairs = [(m, d) for m in range(8) for d in range(8 - m)]
    for rho in range(8):
        A, B = (A0, B0) if rho % 2 == 0 else (A1, B1)
        An, Bn = (A1, B1) if rho % 2 == 0 else (A0, B0)
        nxt = loads(An, Bn, rho + 1) if rho < 7 else []
        if wloop:
            if rho == WSTART - 1: vm.issue(cpa_sample(), "cpa")
            if rho == WSTART:
                pq.flush(); vm.wait(lambda t: t == "cpa"); cpa_check(k); pq.items = list(wloop)
        elif rho == 7: pq.flush(); vm.issue(cpa_sample(), "cpa")
        for idx, (m, d) in enumerate(pairs):
            k(f"v_mfma_f32_16x16x32_bf16 {v(ACC+4*(m+d),4)}, {v(A+4*m,4)}, {v(B+4*d,4)}, {v(ACC+4*(m+d),4)}")
            if idx < len(nxt): k(nxt[idx])
            if rho >= PFSTART and idx % (PFGAP if (rho < WSTART or not wloop) else WGAP) == 1: pq.pop()
        k("s_waitcnt lgkmcnt(0)")
    pq.flush()
    k.stamp("loop")
    k("v_lshrrev_b32 v14, 1, v2"); k("v_mul_u32_u24 v14, 272, v14"); k("v_and_b32 v15, 1, v2"); k("v_lshl_add_u32 v14, v15, 5, v14")
    k("v_lshl_add_u32 v14, v3, 3, v14"); k("s_lshl_b32 s36, s10, 6"); k(f"s_add_u32 s36, s36, {YOL}"); k("v_add_u32 v14, s36, v14")
    for t in range(8):
        k(f"v_cvt_pk_bf16_f32 v{A0+2*t}, v{ACC+4*t}, v{ACC+4*t+1}"); k(f"v_cvt_pk_bf16_f32 v{A0+2*t+1}, v{ACC+4*t+2}, v{ACC+4*t+3}")
        k(f"ds_write_b64 v14, {v(A0+2*t,2)} offset:{8*272*t}")
    k("s_lshl_b32 s36, s10, 4"); k("v_add_u32 v15, s36, v3")
    k("v_mul_u32_u24 v16, 272, v15"); k("v_lshl_add_u32 v16, v2, 4, v16"); k(f"v_add_u32 v16, {YOL}, v16")
    k("v_mul_u32_u24 v15, 40960, v15"); k("v_lshl_add_u32 v15, v2, 4, v15")
    k("s_lshl_b32 s36, s2, 8"); k(f"s_add_u32 s36, s36, {YT}")
    k("s_waitcnt lgkmcnt(0)")
    k("s_barrier")
    for j in range(4): k(f"ds_read_b128 {v(B0+4*j,4)}, v16 offset:{4*272*j}")
    for j in range(4):
        k(f"s_waitcnt lgkmcnt({3-j})")
        vm.issue([f"buffer_store_dwordx4 {v(B0+4*j,4)}, v15, s[12:15], s36 offen sc1"] + (["s_add_u32 s36, s36, 163840"] if j < 3 else []), "S")
    return vm, pq

def wtask_issue(k, tag, ldsbase):
    k("s_mov_b32 s51, 0x20000")
    k("s_lshl_b32 s34, s10, 14"); k(f"s_add_u32 s34, s34, {ldsbase}")
    k("v_lshrrev_b32 v5, 3, v1"); k("v_and_b32 v6, 7, v1"); k("v_lshlrev_b32 v6, 4, v6")
    k("s_lshl_b32 s47, s41, 5"); k("v_add_u32 v5, s47, v5"); k("v_mul_lo_u32 v5, v5, s40")
    k("s_lshl_b32 s47, s42, 7"); k("v_add3_u32 v5, v5, v6, s47")
    k("s_lshl_b32 s52, s40, 3"); k("s_lshl_b32 s53, s43, 2"); k("s_mov_b32 s54, s34")
    k.label("wld" + tag)
    k("s_mov_b32 m0, s54"); k("s_sub_u32 s53, s53, 1")
    k("buffer_load_dwordx4 v5, s[48:51], 0 offen lds")
    k("v_add_u32 v5, s52, v5"); k("s_add_u32 s54, s54, 1024")
    k("s_cmp_lg_u32 s53, 0"); k(f"s_cbranch_scc1 {k.lab('wld' + tag)}")

def wtask_finish(k, tag, nxt):
    k("v_lshlrev_b32 v5, 10, v3"); k("v_bfe_u32 v6, v1, 2, 2"); k("v_lshl_add_u32 v5, v6, 7, v5")
    k("v_and_b32 v6, 3, v1"); k("v_lshl_add_u32 v5, v6, 4, v5"); k("v_add_u32 v5, s34, v5")
    k("s_lshl_b32 s47, s42, 2"); k("s_mul_i32 s47, s47, s45"); k("s_add_u32 s47, s47, s41"); k("s_lshl_b32 s47, s47, 10")
    k("s_add_u32 s47, s47, s44"); k("s_lshl_b32 s55, s45, 10")
    for r in range(4): k(f"v_mov_b32 v{24+r}, 0")
    k("s_mov_b32 s52, 0x3f803f80"); k("s_mov_b32 s53, 0")
    k.stamp("wiss" + tag)
    k("s_waitcnt vmcnt(0)")
    k.stamp("wld" + tag)
    k.label("wtr" + tag)
    for t in range(4):
        o = 64*(t//2) + 8*(t % 2)
        k(f"ds_read_b64_tr_b16 {v(8+4*t,2)}, v5 offset:{o}"); k(f"ds_read_b64_tr_b16 {v(10+4*t,2)}, v5 offset:{o+512}")
    k("v_add_u32 v5, 4096, v5"); k("s_add_u32 s53, s53, 1")
    k("s_mov_b32 s54, s47")
    for t in range(4):
        k(f"s_waitcnt lgkmcnt({6 - 2*t})")
        k(f"buffer_store_dwordx4 {v(8+4*t,4)}, v4, s[12:15], s54 offen sc1")
        if t < 3: k("s_add_u32 s54, s54, s55")
    for r in range(4):
        for t in range(4): k(f"v_dot2_f32_bf16 v{24+t}, v{8+4*t+r}, s52, v{24+t}")
    k("s_add_u32 s47, s47, 1024")
    k("s_cmp_lt_u32 s53, s43"); k(f"s_cbranch_scc1 {k.lab('wtr' + tag)}")
    k("s_cmp_ge_u32 s46, 5"); k(f"s_cbranch_scc1 {nxt}")
    for t in range(4): k(f"v_mov_b32 v{28+t}, v{24+t}")
    for t in range(4): k(f"v_permlane32_swap_b32 v{24+t}, v{28+t}")
    for t in range(4): k(f"v_add_f32 v{24+t}, v{24+t}, v{28+t}")
    for t in range(4): k(f"v_mov_b32 v{28+t}, v{24+t}")
    for t in range(4): k(f"v_permlane16_swap_b32 v{24+t}, v{28+t}")
    for t in range(4): k(f"v_add_f32 v{24+t}, v{24+t}, v{28+t}")
    k(f"s_mul_i32 s47, s46, {F*4}"); k("s_lshl_b32 s52, s42, 8"); k("s_add_u32 s47, s47, s52"); k(f"s_add_u32 s47, s47, {CS3}")
    k("v_lshlrev_b32 v6, 2, v2")
    k("s_mov_b64 exec, 0xffff")
    for t in range(4): k(f"buffer_store_dword v{24+t}, v6, s[12:15], s47 offen offset:{64*t} sc1")
    k("s_mov_b64 exec, -1")
    k(f"s_branch {nxt}")

def w1_params(k):
    k("s_sub_u32 s35, s2, 242"); k("s_lshl_b32 s35, s35, 2"); k("s_add_u32 s35, s35, s10")
    k("s_mov_b32 s48, s76"); k("s_mov_b32 s49, s77")
    k(f"s_mov_b32 s50, {D*D*2}"); k("s_mov_b32 s40, 1280"); k(f"s_mov_b32 s44, {W1T}"); k("s_mov_b32 s45, 20"); k("s_mov_b32 s46, 5")
    k("s_mul_hi_u32 s41, s35, 0x1999999a"); k("s_mul_i32 s42, s41, 10"); k("s_sub_u32 s42, s35, s42"); k("s_mov_b32 s43, 4"); k("s_lshl_b32 s41, s41, 2")

def prep_part(k, pre_items_setup):
    if QWARM:
        k("s_sub_u32 s33, s2, 160"); k("s_cmp_ge_u32 s33, 64"); k(f"s_cbranch_scc1 {k.lab('noq')}")
        k("s_cmp_eq_u32 s10, 0"); k(f"s_cbranch_scc1 {k.lab('noq')}")
        k("s_mul_i32 s33, s33, 3"); k("s_add_u32 s33, s33, s10"); k("s_sub_u32 s33, s33, 1"); k("s_mul_i32 s33, s33, 14336")
        for i in range(14):
            k(f"buffer_load_dwordx4 v[32:35], v4, s[16:19], s33 offen offset:{1024*(i%4)}")
            if i % 4 == 3: k("s_add_u32 s33, s33, 4096")
    k.label("noq")
    k.label("roundB")
    if BGATE:
        wait_counters(k, None, ["s_mul_hi_u32 s84, s2, 0x1999999a", "s_mul_i32 s84, s84, 10", "s_sub_u32 s84, s2, s84", "s_lshl_b32 s84, s84, 9",
                                f"s_add_u32 s84, s84, {C0}", "v_and_b32 v5, 3, v1", "v_lshlrev_b32 v5, 7, v5", "v_add_u32 v5, s84, v5"], ["v_mov_b32 v7, 8"], False)
    qitems, witems = pre_items_setup()
    k("s_sub_u32 s33, s2, 160"); k("s_lshl_b32 s33, s33, 2"); k("s_add_u32 s33, s33, s10")
    k("s_mov_b32 s43, 0")
    k("s_cmp_ge_u32 s33, 325"); k(f"s_cbranch_scc1 {k.lab('noB')}")
    k("s_mov_b32 s46, 5"); k("s_mov_b32 s43, 4")
    k("s_cmp_ge_u32 s33, 50"); k(f"s_cbranch_scc1 {k.lab('pw3')}")
    k("s_mov_b32 s48, s78"); k("s_mov_b32 s49, s79"); k(f"s_mov_b32 s50, {D*D*2}"); k("s_mov_b32 s40, 1280"); k(f"s_mov_b32 s44, {W2T}"); k("s_mov_b32 s45, 20")
    k("s_mul_hi_u32 s41, s33, 0x1999999a"); k("s_mul_i32 s42, s41, 10"); k("s_sub_u32 s42, s33, s42"); k("s_lshl_b32 s41, s41, 2")
    k(f"s_branch {k.lab('wtB')}")
    k.label("pw3")
    k("s_cmp_ge_u32 s33, 185"); k(f"s_cbranch_scc1 {k.lab('pw4')}")
    k("s_sub_u32 s35, s33, 50")
    k("s_mov_b32 s48, s80"); k("s_mov_b32 s49, s81"); k(f"s_mov_b32 s50, {D*F*2}"); k(f"s_mov_b32 s40, {F*2}"); k(f"s_mov_b32 s44, {W3T}"); k("s_mov_b32 s45, 20")
    k("s_mul_hi_u32 s46, s35, 0x97b425f"); k("s_mul_i32 s42, s46, 27"); k("s_sub_u32 s42, s35, s42"); k("s_lshl_b32 s41, s46, 2")
    k(f"s_branch {k.lab('wtB')}")
    k.label("pw4")
    k("s_sub_u32 s35, s33, 185")
    k("s_mov_b32 s48, s82"); k("s_mov_b32 s49, s83"); k(f"s_mov_b32 s50, {D*F*2}"); k("s_mov_b32 s40, 1280"); k(f"s_mov_b32 s44, {W4T}"); k("s_mov_b32 s45, 54")
    k("s_mul_hi_u32 s41, s35, 0x1999999a"); k("s_mul_i32 s42, s41, 10"); k("s_sub_u32 s42, s35, s42")
    k("s_cmp_eq_u32 s41, 13"); k("s_cselect_b32 s43, 2, 4"); k("s_lshl_b32 s41, s41, 2")
    k.label("wtB")
    wtask_issue(k, "B", 45056)
    k.label("noB")
    for g, t in qitems:
        for ln in g: k(ln)
    for ln in cpa_sample(): k(ln)
    doneB = k.lab("doneB")
    k("s_cmp_eq_u32 s43, 0"); k(f"s_cbranch_scc1 {doneB}")
    wtask_finish(k, "B", doneB)
    k.L.append(doneB + ":")
    k.stamp("doneB")
    signal(k, None, None, [f"s_mov_b32 s{SG}, {CPB}"], 96, [f"s_mov_b32 s{SG}, {FALL + 9*128}"])
    p2.p2_qstats(k, lambda: None)
    cpa_check(k)
    return witems

def mega():
    pc.SC = " sc1"; pc.SS = " sc1"
    k = Kern("block_kernel", vgpr=256, agpr=256, sgpr=96)
    k.only = ONLY
    k("s_cmp_ge_u32 s2, 256"); k(f"s_cbranch_scc1 {k.lab('end')}")
    k.stamp_begin()
    if CODEFIRST:
        for ln in code_prefetch_group(k, None, k.lab("end"), "z", 180, sreg=26): k(ln.replace("@U@", "0"))
    k(f"s_load_dwordx8 s[36:43], s[0:1], {A_K}")
    k(f"s_load_dwordx2 s[44:45], s[0:1], {A_D}")
    k(f"s_load_dwordx8 s[76:83], s[0:1], {B_W1}")
    k(f"s_load_dwordx2 s[72:73], s[0:1], {DBG}")
    prologue(k)
    pre_items_setup = lambda: (p2.p2_pre_setup(k), p2.p2_pre_items(k))[1]
    def common_setup():
        p2.p2_setup(k); p3.p35_setup(k, 26)
        k.srd(12, 4, WS_END); k.srd(16, 8, MB); k.srd(20, 6, MB)
        init_srd(k)
    k("s_cmp_ge_u32 s2, 242"); k(f"s_cbranch_scc1 {k.lab('special')}")
    vm = VM(k)
    kv_issue(k, vm)
    common_setup()
    if TOUCH: page_touch(k)
    npre = 0
    if PREFALL:
        k("s_lshl_b32 s26, s2, 2"); k("s_add_u32 s26, s26, s10")
        for ptr, nbytes, conv_only in (((42, MB, 0)), ((8, MB, 0)), ((78, D*D*2, 0)), ((80, D*F*2, 0)), ((82, D*F*2, 0))):
            per = -(-nbytes // 968 // 1024 * 1024 // 1024) if False else (nbytes // 968 + 1023) // 1024
            k(f"s_mul_i32 s27, s26, {per*1024}")
            k(f"s_mov_b32 s48, s{ptr}"); k(f"s_mov_b32 s49, s{ptr+1}"); k(f"s_mov_b32 s50, {nbytes}"); k("s_mov_b32 s51, 0x20000")
            for j in range(per):
                k(f"buffer_load_dwordx4 v[184:187], v4, s[48:51], s27 offen offset:{1024*j}"); npre += 1
    k("s_cmp_ge_u32 s2, 160"); k(f"s_cbranch_scc1 {k.lab('keepw')}")
    k("s_mov_b32 s76, s42"); k("s_mov_b32 s77, s43"); k("s_mov_b32 s80, s44"); k("s_mov_b32 s81, s45")
    k.label("keepw")
    if not CODEFIRST:
        if PF_ALL: vm.issue(code_prefetch_group(k, k.lab("code0"), k.lab("end"), "z", 180, sreg=26), "pf")
        else: vm.issue(["v_mov_b32 v180, 0", "buffer_load_dword v182, v180, s[16:19], 0 offen"], "pf")
        k.label("code0")
    nh = 0
    if HEARLY:
        k("s_cmp_ge_u32 s2, 160"); k(f"s_cbranch_scc1 {k.lab('noh0')}")
        conv_h_issue(k, VM(k))
        k.label("noh0")
        nh = 17
    k.stamp("kvissued")
    k("s_cmp_lt_u32 s29, 2"); k(f"s_cbranch_scc1 {k.lab('kvw1')}")
    k(f"s_waitcnt vmcnt({(6 if CODEFIRST else 7) + npre})")
    k(f"s_branch {k.lab('kvw2')}")
    k.label("kvw1")
    if TOUCH: k("s_waitcnt vmcnt(8)") if False else kv_wait_touch(k)
    elif CODEFIRST: k("s_waitcnt vmcnt(0)")
    elif HEARLY:
        k("s_cmp_ge_u32 s2, 160"); k(f"s_cbranch_scc1 {k.lab('kvw3')}")
        k(f"s_waitcnt vmcnt({1 + npre + nh})"); k(f"s_branch {k.lab('kvw2')}")
        k.label("kvw3")
        k(f"s_waitcnt vmcnt({1 + npre})")
    else: k(f"s_waitcnt vmcnt({1 + npre})")
    k.label("kvw2")
    k("s_barrier")
    k.stamp("kvin")
    k("v_mov_b32 v178, 0")
    k("buffer_load_dword v177, v178, s[72:75], 0 offen sc1")
    vmh = VM(k)
    if not HLATE and not HEARLY:
        k("s_cmp_ge_u32 s2, 160"); k(f"s_cbranch_scc1 {k.lab('noh')}")
        conv_h_issue(k, vmh)
        k.label("noh")
    NPRE[0] = npre
    kv_compute(k)
    k.stamp("kvdone")
    k("s_waitcnt vmcnt(0)")
    k.stamp("kvdrain")
    ok = k.lab("initok")
    k("v_cmp_eq_u32 vcc, 0, v177"); k(f"s_cbranch_vccz {ok}")
    wait_init(k)
    k.L.append(ok + ":")
    k("s_barrier")
    tile_cnt = lambda add: [f"s_add_u32 s84, s2, {add}", "s_mul_hi_u32 s85, s84, 0x1999999a", "s_mul_i32 s28, s85, 10", "s_sub_u32 s84, s84, s28",
                            "s_lshl_b32 s84, s84, 2", "s_and_b32 s85, s85, 3", "s_add_u32 s84, s84, s85", "s_lshl_b32 s84, s84, 7", f"s_add_u32 s84, s84, {C0}"]
    atomic_signal(k, tile_cnt(0), k.lab("sigc0"), None)
    k("s_cmp_lt_u32 s29, 2"); k(f"s_cbranch_scc1 {k.lab('sigc0b')}")
    atomic_signal(k, tile_cnt(82), k.lab("sigc0c"), None)
    k.label("sigc0b")
    k.stamp("kvsig")
    k("s_cmp_ge_u32 s2, 160"); k(f"s_cbranch_scc1 {k.lab('prep')}")
    if HLATE: conv_h_issue(k, vmh)
    qitems, witems = pre_items_setup()
    q0 = []
    if QEARLY:
        k("s_cmp_eq_u32 s10, 0"); k(f"s_cbranch_scc1 {k.lab('noq0')}")
        k("s_sub_u32 s36, s10, 1"); k("s_mul_i32 s36, s36, 3")
        k("s_add_u32 s37, s36, 3"); k("s_min_u32 s37, s37, 8")
        k(f"s_lshl_b32 s38, s{p2.TT}, 5")
        k.label("qgrp")
        k("s_lshl_b32 s39, s36, 2"); k("v_add_u32 v8, s39, v3")
        k("v_and_b32 v9, 15, v8"); k("v_xor_b32 v9, v9, v2")
        k("v_add_u32 v8, s38, v8"); k("v_mul_u32_u24 v8, 1280, v8"); k("v_lshl_add_u32 v8, v9, 4, v8")
        k("s_mul_i32 s39, s36, 5120")
        for m in range(5):
            k(f"s_add_u32 m0, s39, {p2.QL + 768*m}"); k("s_nop 0")
            k(f"buffer_load_dwordx4 v8, s[16:19], 0 offen offset:{256*m} lds")
        k("s_add_u32 s36, s36, 1"); k("s_cmp_lt_u32 s36, s37"); k(f"s_cbranch_scc1 {k.lab('qgrp')}")
        k.label("noq0")
        qitems = []
    if HLATE: k("s_waitcnt vmcnt(0)")
    conv_h_copy1(k)
    wait_counters(k, None, ["s_lshr_b32 s84, s2, 4", "s_lshl_b32 s84, s84, 9", f"s_add_u32 s84, s84, {C0}", "v_and_b32 v5, 3, v1", "v_lshlrev_b32 v5, 7, v5", "v_add_u32 v5, s84, v5"],
                  ["v_mov_b32 v7, 8"], False)
    k.stamp("s0")
    vm, pq = conv_main(k, qitems, witems[:NWLOOP], q0)
    k.stamp("convdone")
    lab = k.lab("sigc1")
    p2.p2_qstats(k, (lambda: None) if QEARLY else (lambda: vm.wait(lambda t: t == "q")))
    vm.wait(lambda t: t == "S"); k("s_barrier")
    cpa_check(k)
    if S1DIRECT:
        atomic_signal(k, [f"s_lshr_b32 s{SG}, s2, 3", f"s_lshl_b32 s{SG}, s{SG}, 7", f"s_add_u32 s{SG}, s{SG}, {C1D}"], lab, None)
    else:
        atomic_signal(k, own_shard(C1), lab, 20, [f"s_and_b32 s{SG}, s2, 7", f"s_lshl_b32 s{SG}, s{SG}, 7", f"s_add_u32 s{SG}, s{SG}, {FALL}"])
    k(f"s_branch {k.lab('wconv') if NWLOOP else k.lab('wfirst')}")
    k.label("special")
    k("s_waitcnt lgkmcnt(0)")
    common_setup()
    k("s_cmp_eq_u32 s2, 255"); k(f"s_cbranch_scc1 {k.lab('zero')}")
    k.label("w1only")
    w1_params(k)
    doneA = k.lab("doneA")
    k("s_cmp_ge_u32 s35, 50"); k(f"s_cbranch_scc1 {doneA}")
    wtask_issue(k, "A", 0)
    wtask_finish(k, "A", doneA)
    k.L.append(doneA + ":")
    k.stamp("doneA")
    signal(k, None, None, [f"s_mov_b32 s{SG}, {CPA}"], 13, [f"s_mov_b32 s{SG}, {FALL + 8*128}"], first=True)
    k(f"s_branch {k.lab('prep')}")
    k.label("zero")
    k("v_mov_b32 v8, 0"); k("v_mov_b32 v9, 0"); k("v_mov_b32 v10, 0"); k("v_mov_b32 v11, 0")
    k("v_lshlrev_b32 v5, 4, v0"); k(f"s_mov_b32 s35, {CNT}")
    for j in range(9):
        k("buffer_store_dwordx4 v[8:11], v5, s[12:15], s35 offen sc1"); k("s_add_u32 s35, s35, 4096")
    k("s_waitcnt vmcnt(0)")
    k("s_barrier")
    k("v_mov_b32 v5, 0"); k("v_mov_b32 v6, 1")
    k("s_cmp_lg_u32 s10, 0"); k(f"s_cbranch_scc1 {k.lab('prep')}")
    k("s_mov_b64 exec, 1")
    k("buffer_store_dword v6, v5, s[72:75], 0 offen sc1")
    k("s_mov_b64 exec, -1")
    k.label("prep")
    witems = prep_part(k, pre_items_setup)
    k.label("wfirst")
    k.stamp("cpa")
    for g, t in witems[:NWLOOP]:
        for ln in g: k(ln)
    k.label("wconv")
    for g, t in witems[NWLOOP:max(NWA, NWLOOP)]:
        for ln in g: k(ln)
    p3.p3_pre_setup(k)
    if S1DIRECT:
        wait_counters(k, None, ["v_min_u32 v5, 19, v1", "v_lshlrev_b32 v5, 7, v5", f"v_add_u32 v5, {C1D}, v5", f"v_mov_b32 v6, {FALL + 9*128}",
                                "v_cmp_lt_u32 vcc, 19, v1", "v_cndmask_b32 v5, v5, v6, vcc"], ["v_mov_b32 v7, 8", "v_cndmask_b32 v7, v7, 1, vcc"], False)
    else:
        wait_counters(k, None, ["v_min_u32 v5, 9, v1", "v_lshlrev_b32 v5, 7, v5", f"v_add_u32 v5, {FALL}, v5"], ["v_mov_b32 v7, 1"], False)
    k.stamp("s1")
    early = [(g, "E") for g in p3.p3_pre_early(k)]
    vm, nq = p2.p2_main(k, witems[max(NWA, NWLOOP):], ([(code_prefetch_group(k, k.lab('ph3'), k.lab('ph4'), 'a', 136), "pf")] if PF_JIT else []), p3.p3_pre_late, early)
    k.stamp("p2done")
    signal(k, vm, nq, [f"s_lshl_b32 s{SG}, s{p2.TT}, 7", f"s_add_u32 s{SG}, s{SG}, {C2}"], None)
    k.label("ph3")
    p4.p4_setup(k); p4.p4_pre_setup(k)
    wait_counters(k, nq, [f"s_lshl_b32 s{SG}, s{p3.T64}, 1", f"s_sub_u32 s{SG}, s{SG}, 1", "v_and_b32 v5, 3, v1", f"v_add_u32 v5, s{SG}, v5",
                          "v_and_b32 v5, 63, v5", "v_lshlrev_b32 v5, 7, v5", f"v_add_u32 v5, {C2}, v5"], ["v_mov_b32 v7, 4"], True, mid=MID[0])
    k.stamp("s2")
    early = [(g, "E") for g in p4.p4_pre_early(k)]
    vm, nq = p3.p3_main(k, ([(code_prefetch_group(k, k.lab('ph4'), k.lab('ph5'), 'b', 184), "pf")] if PF_JIT else []), p4.p4_pre_late, early)
    k.stamp("p3done")
    signal(k, vm, nq, [f"s_lshr_b32 s{SG}, s{p3.T64}, 1", f"s_lshl_b32 s{SG}, s{SG}, 2", f"s_lshr_b32 s{SG2}, s{p3.FC}, 1", f"s_add_u32 s{SG}, s{SG}, s{SG2}",
                          f"s_lshl_b32 s{SG}, s{SG}, 7", f"s_add_u32 s{SG}, s{SG}, {C3}"], None)
    k.label("ph4")
    p5.p5_pre_setup(k)
    wait_counters(k, nq, [f"s_lshl_b32 s{SG}, s{p4.T128}, 9", f"s_add_u32 s{SG}, s{SG}, {C3}", "v_and_b32 v5, 3, v1", "v_lshlrev_b32 v5, 7, v5", f"v_add_u32 v5, s{SG}, v5"], ["v_mov_b32 v7, 4"],
                  True, p4.p4_cs_table, mid=MID[1])
    k.stamp("s3")
    early = [(g, "E") for g in p5.p5_pre_early(k)]
    vm, nq = p4.p4_main(k, ([(code_prefetch_group(k, k.lab('ph5'), k.lab('end'), 'c', 88), "pf")] if PF_JIT else []), p5.p5_pre_late, early,
                        follow=[(g, "F") for g in p5.p5_pre_late(k)[:NFOLLOW]], nfollow=NFOLLOW)
    k.stamp("p4done")
    signal(k, vm, nq, [f"s_lshl_b32 s{SG}, s{p4.T128}, 2", f"s_lshr_b32 s{SG2}, s{p4.COL}, 2", f"s_add_u32 s{SG}, s{SG}, s{SG2}",
                          f"s_lshl_b32 s{SG}, s{SG}, 7", f"s_add_u32 s{SG}, s{SG}, {C4}"], None)
    k.label("ph5")
    wait_counters(k, nq, [f"s_lshr_b32 s{SG}, s{p3.T64}, 1", f"s_lshl_b32 s{SG}, s{SG}, 9", f"s_add_u32 s{SG}, s{SG}, {C4}", "v_and_b32 v5, 3, v1", "v_lshlrev_b32 v5, 7, v5", f"v_add_u32 v5, s{SG}, v5"],
                  ["v_mov_b32 v7, 4"], False, mid=MID[2])
    k.stamp("s4")
    p5.p5_main(k)
    k.stamp_flush(4, STAMP)
    k.label("end"); k("s_endpgm")
    pc.SC = ""; pc.SS = ""
    return k
```

```python
from ph_common import *
import ph_common as pc

NFIRST = 8
QL = 0; YL = 40960; STL = 81920; XL = 0
P2_LDS = 82944
TT, FQ = 24, 25

def p2_setup(k):
    k(f"s_and_b32 s{TT}, s2, 63"); k(f"s_lshr_b32 s{FQ}, s2, 6")

def p2_w_items(k):
    k(f"s_mul_i32 s26, s{FQ}, 10"); k("s_lshl_b32 s27, s10, 1"); k("s_add_u32 s26, s26, s27"); k("s_mul_i32 s26, s26, 20480")
    k(f"s_add_u32 s26, s26, {W1T}")
    k(f"s_mul_i32 s27, s{FQ}, 10"); k("s_lshr_b32 s28, s10, 1"); k("s_add_u32 s27, s27, s28"); k("s_add_u32 s27, s27, 8")
    k("s_mul_i32 s27, s27, 20480"); k(f"s_add_u32 s27, s27, {W1T}")
    k("s_add_u32 s28, s26, 20480")
    items = []
    for kb in range(20):
        for t in range(3):
            base = (26, 28, 27)[t]
            pre = [f"s_add_u32 s{base}, s{base}, 4096"] if (kb and kb % 4 == 0) else []
            items.append((pre + [f"buffer_load_dwordx4 {a((t*20+kb)*4,4)}, v4, s[12:15], s{base} offen offset:{1024*(kb%4)} sc1"], ("W", kb)))
    return items

QA = 212

def p2_pre_setup(k):
    k("s_lshl_b32 s34, s10, 3")
    k("v_add_u32 v8, s34, v3"); k("v_and_b32 v9, 15, v8"); k("v_xor_b32 v9, v9, v2")
    k(f"s_lshl_b32 s29, s{TT}, 5")
    k("v_add_u32 v10, s29, v8"); k("v_mul_u32_u24 v10, 1280, v10")
    k("v_xor_b32 v11, 4, v9")
    k(f"v_lshl_add_u32 v{QA}, v9, 4, v10"); k(f"v_lshl_add_u32 v{QA+1}, v11, 4, v10"); k(f"v_add_u32 v{QA+1}, 5120, v{QA+1}")

def p2_pre_items(k):
    items = []
    for a_ in range(2):
        for m in range(5):
            items.append(([f"s_mul_i32 s84, s10, 10240", f"s_add_u32 m0, s84, {QL + a_*5120 + 768*m}", "s_nop 0",
                           f"buffer_load_dwordx4 v{QA+a_}, s[16:19], 0 offen offset:{256*m} lds"], "q"))
    return items, p2_w_items(k)

QREG = 32

def stats_exchange(k, T):
    k("v_lshlrev_b32 v10, 4, v2"); k("v_lshl_add_u32 v11, v3, 2, v10"); k("s_lshl_b32 s37, s10, 8"); k(f"s_add_u32 s37, s37, {STL}")
    k("v_permlane32_swap_b32 v22, v26"); k("v_permlane32_swap_b32 v24, v28")
    k("v_add_u32 v11, s37, v11"); k(f"v_add_u32 v10, {STL}, v10")
    k("v_add_f32 v22, v22, v26"); k("v_add_f32 v24, v24, v28")
    k("v_permlane16_swap_b32 v22, v24")
    k("v_add_f32 v22, v22, v24")
    k("ds_write_b32 v11, v22")
    k("s_waitcnt lgkmcnt(0)")
    k("s_barrier")
    for w in range(4): k(f"ds_read_b128 {v(T+4*w,4)}, v10 offset:{256*w}")
    k("s_waitcnt lgkmcnt(0)")
    k(f"v_pk_add_f32 {v(T,2)}, {v(T,2)}, {v(T+4,2)}"); k(f"v_pk_add_f32 {v(T+2,2)}, {v(T+2,2)}, {v(T+6,2)}")
    k(f"v_pk_add_f32 {v(T+8,2)}, {v(T+8,2)}, {v(T+12,2)}"); k(f"v_pk_add_f32 {v(T+10,2)}, {v(T+10,2)}, {v(T+14,2)}")
    k(f"v_pk_add_f32 {v(T,2)}, {v(T,2)}, {v(T+8,2)}"); k(f"v_pk_add_f32 {v(T+2,2)}, {v(T+2,2)}, {v(T+10,2)}")

def p2_q_addresses(k):
    k("v_lshrrev_b32 v10, 2, v2"); k("v_mul_u32_u24 v10, 5120, v10")
    k("v_and_b32 v11, 3, v2"); k("v_lshl_add_u32 v10, v11, 8, v10")
    k("v_xor_b32 v11, v3, v2")
    k("s_mul_i32 s36, s10, 5")
    for i in range(5):
        k(f"s_add_u32 s37, s36, {i}")
        k("s_and_b32 s38, s37, 3"); k("s_lshl_b32 s38, s38, 2")
        k("s_lshr_b32 s37, s37, 2"); k("s_lshl_b32 s37, s37, 10")
        k(f"v_xor_b32 v{16+i}, s38, v11"); k(f"v_lshlrev_b32 v{16+i}, 4, v{16+i}"); k(f"v_add3_u32 v{16+i}, v{16+i}, v10, s37")

def p2_qstats(k, wait_q):
    p2_q_addresses(k)
    wait_q()
    k("s_barrier")
    for tb in range(2):
        for i in range(5): k(f"ds_read_b128 {v(QREG+4*(tb*5+i),4)}, v{16+i} offset:{QL + tb*20480}")
    for r in (22, 24, 26, 28): k(f"v_mov_b32 v{r}, 0")
    k("s_mov_b32 s38, 0x3f803f80")
    for tb in range(2):
        k(f"s_waitcnt lgkmcnt({5 - 5*tb})")
        for r in range(20):
            x = QREG + 20*tb + r
            k(f"v_dot2_f32_bf16 v{22+4*tb}, v{x}, s38, v{22+4*tb}"); k(f"v_dot2_f32_bf16 v{24+4*tb}, v{x}, v{x}, v{24+4*tb}")
    T = 192
    stats_exchange(k, T)
    k(f"s_mov_b32 s52, {f2u(1.0/640)}"); k(f"s_mov_b32 s53, {f2u(1e-5)}")
    L = [[], []]
    for tb in range(2):
        t = T + 2*tb; o = QA + 2 + 2*tb
        L[tb] = [f"v_mul_f32 v{t}, s52, v{t}", f"v_mul_f32 v{t+1}, s52, v{t+1}", f"v_fma_f32 v{t+1}, -v{t}, v{t}, v{t+1}",
                 f"v_max_f32 v{t+1}, 0, v{t+1}", f"v_add_f32 v{t+1}, s53, v{t+1}", f"v_rsq_f32 v{o}, v{t+1}", f"v_mul_f32 v{o+1}, -v{t}, v{o}"]
    for ln in interleave(*L): k(ln)

def p2_y_loads(k, vm):
    k("s_mul_i32 s32, s10, 10240"); k(f"s_add_u32 s33, s32, {YL}")
    k(f"s_mul_i32 s31, s{TT}, 40960"); k("s_add_u32 s31, s31, s32"); k(f"s_add_u32 s31, s31, {YT}")
    for grp in range(3):
        for i in range(4 if grp < 2 else 2):
            pre = [f"s_add_u32 m0, s33, {4096*grp}", "s_add_u32 s31, s31, 4096" if grp else "s_nop 0"] if i == 0 else []
            vm.issue(pre + [f"buffer_load_dwordx4 v4, s[12:15], s31 offen offset:{1024*i} sc1 lds"], "y")

def p2_main(k, wrest, tail, after_gemm, early=None):
    sc = pc.SC; ss = pc.SS
    vm = VM(k)
    p2_y_loads(k, vm)
    wq = TQ(vm, wrest)
    k(f"s_lshl_b32 s29, s{TT}, 5")
    k("v_bfe_u32 v10, v1, 2, 2"); k("v_lshl_add_u32 v10, v3, 3, v10"); k("v_lshlrev_b32 v10, 6, v10")
    k("v_and_b32 v11, 3, v1"); k("v_lshl_add_u32 v10, v11, 3, v10")
    k("v_add_u32 v21, s33, v10")
    k(f"s_and_b32 s37, s{FQ}, 1"); k("s_lshl_b32 s37, s37, 1"); k("s_sub_u32 s37, 1, s37")
    k(f"s_lshr_b32 s38, s{FQ}, 1"); k("s_lshl_b32 s37, s37, s38"); k("s_add_u32 s37, s37, s29")
    k(f"s_mul_i32 s39, s{FQ}, 5")
    k("v_lshlrev_b32 v11, 8, v3")
    k("s_add_u32 s46, s39, s10"); k("s_lshl_b32 s46, s46, 10"); k(f"s_add_u32 s46, s46, {HS}")
    k("s_add_u32 s47, s39, 4"); k("s_lshl_b32 s47, s47, 10"); k(f"s_add_u32 s47, s47, {HS}")
    k("s_lshr_b32 s38, s10, 1"); k("s_lshl_b32 s38, s38, 3"); k("s_add_u32 s47, s47, s38")
    k("s_and_b32 s38, s10, 1"); k("s_lshl_b32 s38, s38, 4")
    for dst, add, base, mask in ((240, "0", "s46", 40), (241, "16", "s46", 42), (242, "s38", "s47", 44)):
        k("v_add_u32 v10, s37, v2")
        if add != "0": k(f"v_add_u32 v10, {add}, v10")
        k(f"v_cmp_le_u32 s[{mask}:{mask+1}], s48, v10") if False else None
        k("v_cmp_le_u32 vcc, 0x800, v10"); k(f"s_mov_b64 s[{mask}:{mask+1}], vcc")
        k("v_and_b32 v10, 0x7ff, v10"); k("v_lshrrev_b32 v22, 4, v10"); k("v_mul_u32_u24 v22, 20480, v22")
        k("v_and_b32 v10, 15, v10"); k("v_lshl_add_u32 v10, v10, 4, v11")
        k(f"v_add3_u32 v{dst}, v10, v22, {base}")
    k(f"s_mov_b32 s50, {f2u(GELU_C0)}"); k(f"s_mov_b32 s51, {f2u(GELU_C1)}")
    k(f"s_mov_b32 s52, {f2u(1.0/640)}"); k(f"s_mov_b32 s53, {f2u(1e-5)}"); k("s_mov_b32 s54, 0xffff0000")
    k.stamp("issued")
    vm.wait(lambda t: t == "y")
    k("s_barrier")
    k.stamp("loaded")
    Q = 32; Y = 72; H = 112; T = 192
    def reads(tb, i):
        f = tb*5 + i
        return [f"ds_read_b64_tr_b16 {v(Y+4*f,2)}, v21 offset:{2048*i + 32*tb}",
                f"ds_read_b64_tr_b16 {v(Y+4*f+2,2)}, v21 offset:{2048*i + 256 + 32*tb}"]
    frs = [(tb, i) for tb in range(2) for i in range(5)]
    for fr in frs[:4]:
        for ln in reads(*fr): k(ln)
    for r in range(22, 30): k(f"v_mov_b32 v{r}, 0")
    step = 0
    for fi, (tb, i) in enumerate(frs):
        f = tb*5 + i
        k(f"s_waitcnt lgkmcnt({2*(min(len(frs), fi + 4) - fi - 1)})")
        if fi + 4 < len(frs):
            for ln in reads(*frs[fi + 4]): k(ln)
        ab = QA + 2 + 2*tb
        for r in range(4):
            h = H + 8*f + 2*r; qq = T + 4*(r % 2); yy = qq + 2
            k(f"v_lshlrev_b32 v{qq}, 16, v{Q+4*f+r}"); k(f"v_and_b32 v{qq+1}, s54, v{Q+4*f+r}")
            k(f"v_lshlrev_b32 v{yy}, 16, v{Y+4*f+r}"); k(f"v_and_b32 v{yy+1}, s54, v{Y+4*f+r}")
            k(f"v_pk_fma_f32 {v(h,2)}, {v(qq,2)}, {v(ab,2)}, {v(ab,2)} op_sel:[0,0,1] op_sel_hi:[1,0,1]")
            k(f"v_pk_fma_f32 {v(h,2)}, {v(h,2)}, {v(yy,2)}, {v(qq,2)}")
            k(f"v_pk_add_f32 {v(22+4*tb,2)}, {v(22+4*tb,2)}, {v(h,2)}")
            k(f"v_pk_fma_f32 {v(24+4*tb,2)}, {v(h,2)}, {v(h,2)}, {v(24+4*tb,2)}")
            step += 1
            if step % 2 == 0: wq.pop()
    pass
    k.stamp("p15")
    for b in (22, 24, 26, 28): k(f"v_add_f32 v{b}, v{b}, v{b+1}")
    stats_exchange(k, T)
    L = [[], []]
    for tb in range(2):
        t = T + 2*tb; b = 22 + 4*tb; x = T + 8 + 4*tb
        L[tb] = [f"v_mul_f32 v{t}, s52, v{t}", f"v_mul_f32 v{t+1}, s52, v{t+1}", f"v_fma_f32 v{t+1}, -v{t}, v{t}, v{t+1}",
                 f"v_max_f32 v{t+1}, 0, v{t+1}", f"v_add_f32 v{x}, s53, v{t+1}", f"v_rsq_f32 v{b}, v{x}",
                 f"v_mul_f32 v{b+1}, -v{t}, v{b}", f"v_mul_f32 v{x}, v{b}, v{b}", f"v_fma_f32 v{x}, v{x}, v{t+1}, s53",
                 f"v_rsq_f32 v{b+2}, v{x}"] + gelu_scale_consts(b+2, 244 + 2*tb, 248 + tb, 50, 51)
    for ln in interleave(*L): k(ln)
    pass
    k.stamp("stats")
    k("s_mul_i32 s37, s10, 5120"); k("v_add_u32 v11, s37, v4")
    n = 0
    for fi, (tb, i) in enumerate(frs):
        f = tb*5 + i; b = 22 + 4*tb
        for r in range(4):
            h = H + 8*f + 2*r; t = T + 2*(r % 2)
            k(f"v_pk_fma_f32 {v(t,2)}, {v(h,2)}, {v(b,2)}, {v(b,2)} op_sel:[0,0,1] op_sel_hi:[1,0,1]")
            k(f"v_cvt_pk_bf16_f32 v{Q+4*f+r}, v{t}, v{t+1}")
        k(f"ds_write_b128 v11, {v(Q+4*f,4)} offset:{XL + tb*20480 + 1024*i}")
        wq.pop()
    k(f"s_lshl_b32 s37, s{TT}, 1"); k("s_mul_i32 s37, s37, 20"); k("s_mul_i32 s38, s10, 5"); k("s_add_u32 s37, s37, s38"); k("s_lshl_b32 s37, s37, 10")
    for q4 in range(4):
        tb = q4 & 1
        if q4 < 3: k(f"s_cmp_lg_u32 s{FQ}, {q4}"); k(f"s_cbranch_scc1 {k.lab('st%d' % (q4+1))}")
        k(f"s_add_u32 s38, s37, {(XB if q4 < 2 else HT) + tb*20480}"); k("s_add_u32 s39, s38, 4096")
        for i in range(5):
            f = tb*5 + i; src = Q + 4*f
            if q4 >= 2:
                src = Y + 4*i
                for r in range(4): k(f"v_cvt_pk_bf16_f32 v{src+r}, v{H+8*f+2*r}, v{H+8*f+2*r+1}")
            k(f"buffer_store_dwordx4 {v(src,4)}, v4, s[12:15], s{39 if i==4 else 38} offen offset:{1024*i if i<4 else 0}{ss}")
        if q4 < 3: k(f"s_branch {k.lab('stdone')}"); k.label('st%d' % (q4+1))
    k.label("stdone")
    vm.ops += ["S"] * 5
    k("s_waitcnt lgkmcnt(0)")
    k("s_barrier")
    pass
    k.stamp("xchg")
    ACC = 112; BF = 192
    k("s_and_b32 s37, s10, 1"); k("s_mul_i32 s37, s37, 20480"); k("v_add_u32 v10, s37, v4")
    def breads(kb):
        b = BF + 12*(kb % 4)
        return [f"ds_read_b128 {v(b,4)}, v4 offset:{XL + 1024*kb}", f"ds_read_b128 {v(b+4,4)}, v4 offset:{XL + 20480 + 1024*kb}",
                f"ds_read_b128 {v(b+8,4)}, v10 offset:{XL + 1024*kb}"]
    for kb in range(3):
        for ln in breads(kb): k(ln)
    wq.flush()
    tq = TQ(vm, (early or []) + (tail or []))
    for kb in range(20):
        b = BF + 12*(kb % 4); nb = min(20, kb + 3) - kb - 1
        if any(t == ("W", kb) for t in vm.ops): vm.wait(lambda t: t == ("W", kb), f" lgkmcnt({3*nb})")
        else: k(f"s_waitcnt lgkmcnt({3*nb})")
        nx = breads(kb + 3) if kb + 3 < 20 else []
        def mf(tile, t, breg):
            c = v(ACC + 4*tile, 4)
            k(f"v_mfma_f32_16x16x32_bf16 {c}, {a((t*20+kb)*4,4)}, {v(breg,4)}, {c if kb else 0}")
        mf(0, 0, b)
        if nx: k(nx[0])
        mf(1, 1, b)
        if nx: k(nx[1])
        mf(2, 0, b + 4)
        if nx: k(nx[2])
        mf(3, 1, b + 4)
        tq.pop()
        mf(4, 2, b + 8)
    tq.flush()
    k.stamp("gemm2")
    k("s_barrier")
    nq = TQ(vm, [(g, "N") for g in after_gemm(k)])
    k("s_bitcmp1_b32 s10, 0"); k("s_cselect_b64 s[56:57], -1, 0")
    k("v_cndmask_b32 v250, v244, v246, s[56:57]"); k("v_cndmask_b32 v251, v245, v247, s[56:57]"); k("v_cndmask_b32 v252, v248, v249, s[56:57]")
    PK = 40
    streams = []
    for tile in range(5):
        ab = (244, 244, 246, 246, 250)[tile]; ir = (248, 248, 249, 249, 252)[tile]; L = []
        for hf in range(2):
            L += gelu_fold(ACC + 4*tile + 2*hf, 64 + 2*tile, PK + 2*tile + hf, ab, ir)
        streams.append(L)
    for n, ln in enumerate(interleave(*streams)):
        k(ln)
    for tb in range(2):
        t0 = PK + 4*tb
        for r in range(4): k(f"v_cndmask_b32_e64 v{t0+r}, v{t0+r}, 0, s[{40+2*tb}:{41+2*tb}]")
        vm.issue([f"buffer_store_dwordx4 {v(t0,4)}, v{240+tb}, s[12:15], 0 offen{ss}"], "S")
    for r in range(2): k(f"v_cndmask_b32_e64 v{PK+8+r}, v{PK+8+r}, 0, s[44:45]")
    vm.issue([f"buffer_store_dwordx2 {v(PK+8,2)}, v242, s[12:15], 0 offen{ss}"], "S")
    return vm, nq

def w2_l2_items(k, sbase=82):
    k(f"s_bfe_u32 s{sbase}, s2, 0x10002"); k(f"s_mul_i32 s{sbase}, s{sbase}, {20*20480}")
    k(f"s_lshr_b32 s{sbase+1}, s2, 3"); k(f"s_lshl_b32 s{sbase+1}, s{sbase+1}, 2"); k(f"s_add_u32 s{sbase+1}, s{sbase+1}, s10")
    k(f"s_lshl_b32 s{sbase+1}, s{sbase+1}, 12"); k(f"s_add_u32 s{sbase}, s{sbase}, s{sbase+1}"); k(f"s_add_u32 s{sbase}, s{sbase}, {W2T}")
    return [([f"buffer_load_dwordx4 v[132:135], v4, s[12:15], s{sbase} offen offset:{1024*i}"], "pf") for i in range(4)]
```

```python
import re

def v(a, n=1): return f"v{a}" if n == 1 else f"v[{a}:{a+n-1}]"
def a(x, n=1): return f"a{x}" if n == 1 else f"a[{x}:{x+n-1}]"
def s(a_, n=1): return f"s{a_}" if n == 1 else f"s[{a_}:{a_+n-1}]"

_REG = re.compile(r"(?<![\w.])([vas])(?:(\d+)\b|\[(\d+):(\d+)\])")

def regs_in(text):
    out = []
    for m in _REG.finditer(text):
        k = m.group(1)
        if m.group(2) is not None:
            out.append((k, int(m.group(2)), int(m.group(2))))
        else:
            out.append((k, int(m.group(3)), int(m.group(4))))
    return out

def expand(rs):
    o = set()
    for k, lo, hi in rs:
        for i in range(lo, hi + 1): o.add((k, i))
    return o

TRANS = ("v_exp_f32", "v_log_f32", "v_rcp_f32", "v_rsq_f32", "v_sqrt_f32", "v_sin_f32", "v_cos_f32", "v_rcp_iflag_f32")

class Ins:
    __slots__ = ("text", "op", "kind", "defs", "uses", "srcc", "sdefs", "raw", "dpp", "wide_store", "vccdef", "vccuse", "m0def", "m0use", "label", "target", "states", "execdef")
    def __init__(self, text):
        self.text = text
        t = text.split(";")[0].strip()
        self.raw = t
        self.label = None; self.target = None
        self.defs = set(); self.uses = set(); self.srcc = set(); self.sdefs = set()
        self.dpp = False; self.wide_store = False; self.vccdef = False; self.vccuse = False
        self.m0def = False; self.m0use = False; self.states = 1; self.execdef = False
        if t.endswith(":") and " " not in t:
            self.kind = "label"; self.label = t[:-1]; self.op = ""; self.states = 0; return
        if not t or t.startswith("."):
            self.kind = "dir"; self.op = ""; self.states = 0; return
        parts = t.split(None, 1)
        self.op = op = parts[0]
        rest = parts[1] if len(parts) > 1 else ""
        ops = [x.strip() for x in self._split(rest)]
        if op == "s_nop":
            self.kind = "nop"; self.states = int(ops[0], 0) + 1; return
        if op.startswith("s_cbranch") or op == "s_branch":
            self.kind = "branch"; self.target = ops[0]; return
        if op.startswith("v_mfma"):
            self.kind = "mfma"
            self.defs = expand(regs_in(ops[0]))
            self.uses = expand(regs_in(ops[1])) | expand(regs_in(ops[2]))
            self.srcc = expand(regs_in(ops[3]))
            return
        if op.startswith("v_"):
            self.kind = "trans" if op.replace("_e32", "").replace("_e64", "") in TRANS else "valu"
            self.dpp = ("dpp" in op) or ("row_" in rest) or ("quad_perm" in rest) or ("wave_" in rest) or ("row_bcast" in rest)
            if op.startswith("v_cmp"):
                d = ops[0]
                if d == "vcc": self.vccdef = True
                else: self.sdefs = expand(regs_in(d))
                for o in ops[1:]: self.uses |= expand(regs_in(o))
                if op.startswith("v_cmpx"): self.execdef = True
                return
            if op.startswith("v_readfirstlane") or op.startswith("v_readlane"):
                self.sdefs = expand(regs_in(ops[0]))
                for o in ops[1:]: self.uses |= expand(regs_in(o))
                self.kind = "readlane"
                return
            if op.startswith("v_swap"):
                self.defs = expand(regs_in(ops[0])) | expand(regs_in(ops[1]))
                self.uses = set(self.defs)
                return
            if op.startswith("v_permlane") and "swap" in op:
                self.defs = expand(regs_in(ops[0])) | expand(regs_in(ops[1]))
                self.uses = set(self.defs)
                self.kind = "permlane"
                return
            self.defs = expand(regs_in(ops[0]))
            k = 1
            if "_co_" in op or op.startswith("v_div_scale") or op.startswith("v_mad_u64") or op.startswith("v_mad_i64"):
                if ops[1] == "vcc": self.vccdef = True
                else: self.sdefs = expand(regs_in(ops[1]))
                k = 2
            for o in ops[k:]:
                self.uses |= expand(regs_in(o))
                if o == "vcc": self.vccuse = True
            if op.startswith("v_cndmask") and len(ops) == 3: self.vccuse = True
            if op.startswith("v_fmac") or op.startswith("v_mac") or op.startswith("v_pk_fmac") or op.startswith("v_dot2c") or op.startswith("v_writelane"):
                self.uses |= self.defs
            if "op_sel" in rest and "pk_" not in op: pass
            return
        if op.startswith("buffer_") or op.startswith("global_"):
            self.kind = "vmem"
            allr = expand(regs_in(rest))
            if "lds" in rest.split():
                self.m0use = True; self.uses = allr
            elif "_load" in op:
                self.defs = expand(regs_in(ops[0]))
                for o in ops[1:]: self.uses |= expand(regs_in(o))
            elif "atomic" in op:
                self.uses = allr
                if "sc0" in rest.split(): self.defs = expand(regs_in(ops[0]))
            else:
                self.uses = allr
                if "x4" in op or "x3" in op:
                    if op.startswith("buffer_"): self.wide_store = expand(regs_in(ops[0]))
                    else: self.wide_store = expand(regs_in(ops[1]))
            return
        if op.startswith("ds_"):
            self.kind = "ds"
            if op.startswith("ds_read") or op.startswith("ds_bpermute") or op.startswith("ds_permute") or op.startswith("ds_swizzle"):
                self.defs = expand(regs_in(ops[0]))
                for o in ops[1:]: self.uses |= expand(regs_in(o))
            else:
                self.uses = expand(regs_in(rest))
            return
        if op.startswith("s_"):
            self.kind = "salu"
            if op.startswith("s_cmp") or op in ("s_waitcnt", "s_barrier", "s_endpgm", "s_setprio", "s_sleep"):
                for o in ops: self.uses |= expand(regs_in(o))
                return
            if ops:
                d = ops[0]
                if d == "m0": self.m0def = True
                elif d == "exec": pass
                elif d == "vcc": pass
                else: self.sdefs = expand(regs_in(d))
                for o in ops[1:]: self.uses |= expand(regs_in(o))
            return
        self.kind = "other"
    @staticmethod
    def _split(rest):
        out = []; depth = 0; cur = ""
        for ch in rest:
            if ch == "[": depth += 1
            if ch == "]": depth -= 1
            if ch == "," and depth == 0:
                out.append(cur); cur = ""
            else: cur += ch
        if cur.strip(): out.append(cur)
        return out

VALUISH = ("valu", "trans", "readlane", "permlane")

def need(prev, cur):
    n = 0
    pv = prev.kind in VALUISH
    cv = cur.kind in VALUISH
    vec = lambda st: {r for r in st if r[0] in "va"}
    if pv and prev.kind != "readlane":
        d = vec(prev.defs)
        if cur.kind == "mfma" and d & (cur.uses | cur.srcc): n = max(n, 2)
        if cur.kind == "readlane" and d & cur.uses: n = max(n, 1)
        if cur.kind == "permlane" and d & cur.uses: n = max(n, 2)
        if cur.dpp and d & cur.uses: n = max(n, 2)
        if prev.kind == "trans" and cv and cur.kind != "trans" and d & cur.uses: n = max(n, 1)
        if prev.kind == "trans" and cur.kind == "trans" and d & cur.uses: n = max(n, 1)
    if pv:
        sd = prev.sdefs
        if sd:
            if cur.kind == "vmem" and sd & cur.uses: n = max(n, 5)
            if cv and sd & cur.uses: n = max(n, 4 if cur.kind == "readlane" else 2)
            if cur.kind in ("salu", "branch") and sd & cur.uses: n = max(n, 4)
            if cur.kind == "mfma" and sd & cur.uses: n = max(n, 2)
        if prev.vccdef and cv and cur.vccuse: n = max(n, 2)
        if prev.vccdef and cur.kind in ("salu", "branch") and ("vcc" in cur.raw): n = max(n, 5)
        if prev.execdef and (cv or cur.kind == "mfma"): n = max(n, 5)
    if prev.op.startswith("v_dot"):
        d = vec(prev.defs)
        if d & (cur.uses | cur.defs | cur.srcc):
            same_acc = cur.op == prev.op and cur.defs == prev.defs and cur.raw.split(",")[-1].strip() == prev.raw.split(None,1)[1].split(",")[0].strip() \
                       and not (d & (expand(regs_in(cur.raw.split(",")[1])) | expand(regs_in(cur.raw.split(",")[2]))))
            if not same_acc: n = max(n, 3)
    if prev.kind == "mfma":
        big = "32x32" in prev.op
        d = prev.defs
        if cur.kind == "mfma":
            if d & cur.uses: n = max(n, 12 if big else 8)
            if d & cur.srcc and d != cur.srcc: n = max(n, 10 if big else 6)
            if d & cur.defs and d != cur.srcc: n = max(n, 12 if big else 8)
        elif cv or cur.kind in ("vmem", "ds"):
            if d & (cur.uses | cur.defs): n = max(n, 12 if big else 8)
        if cv and prev.srcc & vec(cur.defs): n = max(n, 7 if big else 3)
    if prev.m0def and cur.m0use: n = max(n, 1)
    if prev.wide_store and (cv or cur.kind in ("ds", "vmem", "mfma")) and prev.wide_store & vec(cur.defs):
        n = max(n, 2)
    return n

MAXD = 13

def check_smem_races(lines):
    pend = set()
    for l in lines:
        x = Ins(l)
        if x.kind in ("label", "dir"): continue
        if x.op.startswith("s_load") or x.op.startswith("s_memtime") or x.op.startswith("s_memrealtime"):
            ops = Ins._split(x.raw.split(None, 1)[1])
            pend |= expand(regs_in(ops[0])); continue
        if x.op == "s_waitcnt" and "lgkmcnt(0)" in x.raw: pend = set(); continue
        touched = {r for r in (x.uses | x.sdefs | x.defs) if r[0] == "s"}
        if touched & pend: raise AssertionError(f"register of an in-flight scalar load touched: {x.raw}")

def pad_hazards(lines, verbose=False):
    check_smem_races(lines)
    ins = [Ins(l) for l in lines]
    labels = {x.label: i for i, x in enumerate(ins) if x.kind == "label"}
    inserted = 0
    out = []
    def required(hist, cur):
        dist = 0; worst = 0
        for p in reversed(hist):
            if p.states == 0: continue
            r = need(p, cur) - dist
            if r > worst: worst = r
            dist += p.states
            if dist >= MAXD: break
        return worst
    def mk_nop(k):
        res = []
        while k > 0:
            t = min(k, 16); res.append(Ins(f"  s_nop {t-1}")); k -= t
        return res
    for i, x in enumerate(ins):
        if x.states:
            r = required(out, x)
            if r > 0:
                if verbose: print(f"pad {r} before: {x.raw}")
                out += mk_nop(r); inserted += r
        if x.kind == "branch" and x.target in labels:
            j = labels[x.target]; dist_pad = 0
            fake = out + [x]
            worst = 0; k = j; walked = []
            cnt = 0
            while k < len(ins) and cnt < MAXD:
                y = ins[k]
                if y.states:
                    r = required(fake + walked, y)
                    worst = max(worst, r)
                    walked.append(y); cnt += y.states
                    if y.kind == "branch" and y.op == "s_branch": break
                    if y.op == "s_endpgm": break
                k += 1
            if worst > 0:
                if verbose: print(f"pad {worst} before branch: {x.raw}")
                out += mk_nop(worst); inserted += worst
        out.append(x)
    return [o.text for o in out], inserted

DIAG = {}
DBGT = {}
class Kern:
    def __init__(self, name, vgpr=256, agpr=0, sgpr=102):
        self.name = name; self.L = []; self.vgpr = vgpr; self.agpr = agpr; self.sgpr = sgpr
        if name in DBGT:
            self.dbgidx = DBGT[name]; self.sgpr = 102
        if name in DIAG:
            self.diag = DIAG[name]; self.sgpr = 102
        self._n = 0
    def __call__(self, t):
        for ln in t.split("\n"):
            ln = ln.strip()
            if not ln: continue
            self.L.append(ln if (ln.endswith(":") and " " not in ln) else "  " + ln)
    def lab(self, n): return f"{self.name}_{n}"
    def label(self, n): self.L.append(self.lab(n) + ":")
    def uniq(self, base):
        self._n += 1; return f"{base}{self._n}"
    diag = None
    nst = 0
    only = None
    def stamp(self, name=""):
        if self.diag is None: return
        if self.only is not None and name not in self.only: return
        self("s_memtime s[98:99]")
        self("s_waitcnt lgkmcnt(0)")
        self(f"s_mov_b32 s{86 + self.nst}, s98")
        self.names = getattr(self, "names", []) + [name]
        self.nst += 1
        assert self.nst <= 12
    def stamp_nowait(self, name):
        if self.diag is None: return
        if self.only is not None and name not in self.only: return
        r = 86 + self.nst
        if r % 2: self.nst += 1; self.names.append("pad"); r += 1
        self(f"s_memtime s[{r}:{r+1}]")
        self.names += [name, "pad"]; self.nst += 2
        assert self.nst <= 12
    def stamp_begin(self):
        self.dbg_begin()
        if self.diag is None: return
        self("s_memrealtime s[100:101]")
        self.stamp("begin")
    def stamp_flush(self, ws_lo, base):
        self.dbg_end()
        if self.diag is None: return
        self.stamp("end")
        self("s_memrealtime s[98:99]")
        self("s_waitcnt vmcnt(0) lgkmcnt(0)")
        self(f"s_load_dwordx2 s[60:61], s[0:1], 104")
        self("s_waitcnt lgkmcnt(0)")
        self(f"s_add_u32 s60, s60, {base}"); self("s_addc_u32 s61, s61, 0"); self("s_mov_b32 s62, 0x1000000"); self("s_mov_b32 s63, 0x20000")
        self(f"s_add_u32 s64, s2, {self.diag*512}"); self("s_lshl_b32 s64, s64, 2")
        self("v_lshrrev_b32 v1, 6, v0"); self("s_nop 1"); self("v_readfirstlane_b32 s65, v1"); self("s_nop 4"); self("s_add_u32 s64, s64, s65"); self("s_lshl_b32 s64, s64, 7")
        self("v_mov_b32 v1, 0")
        for i in range(self.nst):
            self(f"v_mov_b32 v2, s{86+i}")
            self(f"buffer_store_dword v2, v1, s[60:63], s64 offen offset:{4*i}")
            self("s_nop 1")
        self("v_mov_b32 v2, s100"); self("buffer_store_dword v2, v1, s[60:63], s64 offen offset:120"); self("s_nop 1")
        self("v_mov_b32 v2, s98"); self("buffer_store_dword v2, v1, s[60:63], s64 offen offset:124")
    dbgidx = None
    def dbg_begin(self):
        if self.dbgidx is None: return
        self("s_memrealtime s[100:101]")
    def dbg_end(self):
        if self.dbgidx is None: return
        i = self.dbgidx
        self("s_waitcnt vmcnt(0) lgkmcnt(0)")
        self("s_memrealtime s[98:99]")
        self("s_load_dwordx2 s[76:77], s[0:1], 96")
        self("s_waitcnt lgkmcnt(0)")
        self(f"s_add_u32 s76, s76, {512*(5-i)}"); self("s_addc_u32 s77, s77, 0"); self("s_mov_b32 s78, 256"); self("s_mov_b32 s79, 0x20000")
        self("v_mov_b32 v1, 0"); self("v_mov_b32 v2, s98"); self("v_not_b32 v3, s100")
        lab = self.lab(self.uniq("nodbg"))
        self("s_and_b32 s75, s2, 15"); self("s_cmp_lg_u32 s75, 0"); self(f"s_cbranch_scc1 {lab}")
        self("v_cmp_eq_u32 vcc, 0, v0")
        self("s_and_saveexec_b64 s[72:73], vcc")
        self(f"s_cbranch_execz {lab}")
        self(f"buffer_atomic_umax v2, v1, s[76:79], 0 offen offset:{8*i+4}")
        self(f"buffer_atomic_umax v3, v1, s[76:79], 0 offen offset:{8*i}")
        self("s_waitcnt vmcnt(0)")
        self.L.append(lab + ":")
    def srd(self, sreg, ptr_lo, nbytes, add=0):
        if add:
            self(f"s_add_u32 s{sreg}, s{ptr_lo}, {add}")
            self(f"s_addc_u32 s{sreg+1}, s{ptr_lo+1}, 0")
        else:
            self(f"s_mov_b32 s{sreg}, s{ptr_lo}")
            self(f"s_mov_b32 s{sreg+1}, s{ptr_lo+1}")
        self(f"s_mov_b32 s{sreg+2}, {nbytes}")
        self(f"s_mov_b32 s{sreg+3}, 0x20000")
    def text(self, verbose=False):
        body, n = pad_hazards(self.L, verbose)
        hdr = f".globl {self.name}\n.p2align 8\n.type {self.name},@function\n{self.name}:\n"
        return hdr + "\n".join(body) + "\n", n
    def desc(self):
        tot = self.vgpr + self.agpr if self.agpr else self.vgpr
        acc = (self.vgpr + 3) // 4 * 4
        return f""".amdhsa_kernel {self.name}
  .amdhsa_next_free_vgpr {tot}
  .amdhsa_next_free_sgpr {self.sgpr}
  .amdhsa_accum_offset {acc}
  .amdhsa_group_segment_fixed_size 0
  .amdhsa_kernarg_size 112
  .amdhsa_user_sgpr_count 2
  .amdhsa_user_sgpr_kernarg_segment_ptr 1
  .amdhsa_system_sgpr_workgroup_id_x 1
  .amdhsa_float_denorm_mode_32 3
.end_amdhsa_kernel
"""

def build_file(kernels, launches, header_comments=""):
    t = ""
    for n, g, b, l in launches:
        t += f"; @launch kernel={n} grid=({g},1,1) block=({b},1,1) lds={l}\n"
    t += header_comments
    t += '.amdgcn_target "amdgcn-amd-amdhsa--gfx950"\n.text\n'
    for k in kernels:
        body, n = k.text()
        t += body
    t += "text_end:\n"
    t += '.section .rodata,"a"\n'
    for k in kernels:
        t += ".p2align 6\n" + k.desc()
    return t
```

```python
from ph_common import *
import ph_common as pc

CSL = 143360
P4_LDS = CSL + 512
T128, COL, NP, ODD, P0, TH, TBG = 24, 25, 26, 27, 28, 29, 30
WAIT2 = True
FOLLOW_KB = 8
CARRY = 24
CSV = 192

def p4_setup(k):
    k("s_and_b32 s36, s2, 7"); k("s_lshr_b32 s37, s2, 3")
    k(f"s_and_b32 s{T128}, s36, 3"); k("s_and_b32 s38, s37, 3"); k("s_lshl_b32 s38, s38, 2"); k(f"s_add_u32 s{T128}, s{T128}, s38")
    k(f"s_lshr_b32 s{COL}, s36, 2"); k(f"s_lshl_b32 s{COL}, s{COL}, 3"); k("s_lshr_b32 s38, s37, 2"); k(f"s_add_u32 s{COL}, s{COL}, s38")
    k(f"s_mul_i32 s38, s{COL}, 7")
    k(f"s_cmp_eq_u32 s{COL}, 15"); k("s_cselect_b32 s38, 103, s38")
    k(f"s_cmp_ge_u32 s{COL}, 14"); k(f"s_cselect_b32 s{NP}, 2, 3")
    k(f"s_and_b32 s{ODD}, s{COL}, 1")
    k(f"s_add_u32 s{P0}, s38, s{ODD}")
    k(f"s_lshl_b32 s{TH}, s{NP}, 1"); k(f"s_add_u32 s{TH}, s{TH}, s38")
    k(f"s_cmp_eq_u32 s{ODD}, 1"); k(f"s_cselect_b32 s{TH}, s38, s{TH}")
    k(f"s_lshl_b32 s{TBG}, s{T128}, 3"); k("s_lshl_b32 s38, s10, 1"); k(f"s_add_u32 s{TBG}, s{TBG}, s38")

def p4_pre_setup(k):
    k(f"s_mul_i32 s40, s{P0}, 20480"); k("s_mul_i32 s41, s10, 5120"); k("s_add_u32 s40, s40, s41"); k(f"s_add_u32 s40, s40, {W3T}")
    k(f"s_mul_i32 s42, s{TH}, 20480"); k("s_add_u32 s42, s42, s41"); k(f"s_add_u32 s42, s42, {W3T}")

def p4_tile_groups(l):
    src = f"s_add_u32 s44, s40, {l*20480}" if l < 6 else "s_mov_b32 s44, s42"
    src2 = f"s_add_u32 s44, s40, {l*20480 + 4096}" if l < 6 else "s_add_u32 s44, s42, 4096"
    G = []
    for i in range(5):
        pre = []
        if i == 0: pre = [f"s_add_u32 m0, s41, {l*20480}", src]
        if i == 4: pre = [f"s_add_u32 m0, s41, {l*20480 + 4096}", src2]
        G.append(pre + [f"buffer_load_dwordx4 v4, s[12:15], s44 offen offset:{1024*(i%4)} sc1 lds"])
    return G

def p4_pre_early(k):
    c = CSV
    G = [[f"v_lshrrev_b32 v{c}, 4, v0", f"v_add_u32 v{c+1}, s{P0}, v{c}", f"v_cmp_eq_u32 vcc, 6, v{c}", f"v_mov_b32 v{c+2}, s{TH}",
          f"v_cndmask_b32 v{c+1}, v{c+1}, v{c+2}, vcc", f"v_lshlrev_b32 v{c+1}, 6, v{c+1}", f"v_lshl_add_u32 v{c+1}, v2, 2, v{c+1}",
          f"s_mov_b32 s45, {CS3}", f"buffer_load_dword v{c+3}, v{c+1}, s[12:15], s45 offen sc1"]]
    for j in range(1, 5):
        G.append([f"s_mov_b32 s45, {CS3 + j*F*4}", f"buffer_load_dword v{c+3+j}, v{c+1}, s[12:15], s45 offen sc1"])
    return G + p4_tile_groups(5) + p4_tile_groups(6)

def p4_pre_late(k):
    G = []
    for l in range(5): G += p4_tile_groups(l)
    return G

def p4_cs_table(k):
    c = CSV
    k(f"v_add_f32 v{c+3}, v{c+3}, v{c+4}"); k(f"v_add_f32 v{c+5}, v{c+5}, v{c+6}")
    k(f"v_add_f32 v{c+3}, v{c+3}, v{c+7}"); k(f"v_add_f32 v{c+3}, v{c+3}, v{c+5}")
    k(f"v_lshlrev_b32 v{c+4}, 2, v0"); k(f"v_add_u32 v{c+4}, {CSL}, v{c+4}")
    k("v_cmp_gt_u32 vcc, 112, v0")
    k("s_and_saveexec_b64 s[56:57], vcc")
    k(f"s_cbranch_execz {k.lab('nocs')}")
    k(f"ds_write_b32 v{c+4}, v{c+3}")
    k.label("nocs")
    k("s_mov_b64 exec, s[56:57]")
    k("s_waitcnt lgkmcnt(0)")

def p4_main(k, tail, after_gemm, early=None, follow=None, nfollow=0):
    sc = pc.SC; ss = pc.SS
    vm = VM(k)
    k(f"s_mul_i32 s47, s{TBG}, 20480"); k(f"s_add_u32 s47, s47, {X1}"); k("s_add_u32 s48, s47, 20480")
    xl = []
    for kb in range(20):
        for tb in range(2):
            pre = ["s_add_u32 s47, s47, 4096", "s_add_u32 s48, s48, 4096"] if (tb == 0 and kb and kb % 4 == 0) else []
            xl.append((pre + [f"buffer_load_dwordx4 {a((kb*2+tb)*4,4)}, v4, s[12:15], s{47+tb} offen offset:{1024*(kb%4)}{sc}"], ("X", kb)))
    k("v_lshlrev_b32 v6, 8, v3"); k("v_lshl_add_u32 v6, v2, 3, v6")
    k(f"s_lshl_b32 s37, s{TBG}, 10"); k(f"s_add_u32 s37, s37, {ST2}")
    stl = [([f"buffer_load_dwordx2 {v(8 + 4*tb + 2*h_, 2)}, v6, s[12:15], s37 offen offset:{1024*tb + 128*h_}{sc}"], "ST") for tb in range(2) for h_ in range(2)]
    q = TQ(vm, xl[:4] + stl + xl[4:] + (early or []) + tail); q.pop(14)
    k(f"s_mov_b32 s50, {f2u(GELU_C0)}"); k(f"s_mov_b32 s51, {f2u(GELU_C1)}")
    k(f"s_mov_b32 s54, {f2u(1.0/640)}"); k(f"s_mov_b32 s55, {f2u(1e-5)}")
    st = []
    for tb in range(2):
        b = 8 + 4*tb; o = 16 + 2*tb
        st += [f"v_add_f32 v{o}, v{b}, v{b+2}", f"v_add_f32 v{o+1}, v{b+1}, v{b+3}"]
    for tb in range(2):
        for o in (16 + 2*tb, 17 + 2*tb):
            t_ = 8 + (o - 16)
            st += [f"v_mov_b32 v{t_}, v{o}", f"v_permlane32_swap_b32 v{o}, v{t_}", f"v_add_f32 v{o}, v{o}, v{t_}",
                   f"v_mov_b32 v{t_}, v{o}", f"v_permlane16_swap_b32 v{o}, v{t_}", f"v_add_f32 v{o}, v{o}, v{t_}"]
    for tb in range(2):
        o = 16 + 2*tb
        st += [f"v_mul_f32 v{o}, s54, v{o}", f"v_mul_f32 v{o+1}, s54, v{o+1}", f"v_fma_f32 v{o+1}, -v{o}, v{o}, v{o+1}",
               f"v_max_f32 v{o+1}, 0, v{o+1}", f"v_add_f32 v{o+1}, s55, v{o+1}", f"v_rsq_f32 v{o+1}, v{o+1}"]
        st += gelu_scale_consts(o+1, 168 + 2*tb, 172 + tb, 50, 51)
    sq = Queue(k, [[x] for x in st])
    fq = TQ(vm, follow or [])
    ACC = 32; AF = 176; CS = 120; T = 24; PK = 148; NR = 14
    k("v_lshlrev_b32 v5, 4, v3"); k(f"v_add_u32 v5, {CSL}, v5")
    for l in range(7): k(f"ds_read_b128 {v(CS+4*l,4)}, v5 offset:{64*l}")
    k("v_add_u32 v6, 0x10000, v4"); k("v_add_u32 v7, 0x20000, v4")
    def accr(l, tb): return ACC + 16*(l//2) + 8*tb + 4*(l % 2) if l < 6 else ACC + 48 + 4*tb
    def gemm(tiles):
        seq = [(kb, l) for kb in range(20) for l in tiles]
        PRE = 11
        def rd(i):
            kb, l = seq[i]; off = l*20480 + kb*1024
            reg = "v4" if off < 65536 else ("v6" if off < 131072 else "v7")
            return f"ds_read_b128 {v(AF + 4*(i % NR),4)}, {reg} offset:{off % 65536}"
        k("s_waitcnt lgkmcnt(0)")
        for i in range(PRE): k(rd(i))
        for i, (kb, l) in enumerate(seq):
            if l == tiles[0]: vm.wait(lambda t: t == ("X", kb) or (kb >= 2 and t == "ST"))
            if l == tiles[0] and len(tiles) == 7 and kb in (2, 8, 14): k.stamp_nowait("kb%d" % kb)
            if WAIT2 and i % 2 == 0:
                left = min(len(seq), i + PRE) - min(len(seq), i + 2)
                k(f"s_waitcnt lgkmcnt({left})")
            elif not WAIT2:
                left = min(len(seq), i + PRE) - i - 1
                k(f"s_waitcnt lgkmcnt({left})")
            for tb in range(2):
                c = v(accr(l, tb), 4)
                k(f"v_mfma_f32_16x16x32_bf16 {c}, {v(AF + 4*(i % NR),4)}, {a((kb*2+tb)*4,4)}, {c if kb else 0}")
                if tb == 0 and i + PRE < len(seq): k(rd(i + PRE))
            if l in (tiles[0], tiles[3]) or (kb >= 3 and l == tiles[1]) or (kb >= 16 and l == tiles[2]): q.pop()
            if kb >= 2: sq.pop()
            if l == tiles[2] and kb >= FOLLOW_KB and len(fq) and ((nfollow - len(fq)) >> 1) < kb: fq.pop(2 if kb >= 16 else 1)
        q.flush(); sq.flush(); fq.flush()
    k(f"s_cmp_eq_u32 s{NP}, 2"); k(f"s_cbranch_scc1 {k.lab('g5')}")
    save = (list(q.items), list(vm.ops), list(sq.g), list(fq.items))
    gemm([0, 1, 2, 3, 4, 5, 6])
    ops_after = list(vm.ops)
    k(f"s_branch {k.lab('gdone')}")
    k.label("g5")
    q.items, vm.ops, sq.g, fq.items = save
    gemm([0, 1, 2, 3, 6])
    assert vm.ops == ops_after
    k.label("gdone")
    k.stamp("gemm4")
    nq = TQ(vm, [(g, "N") for g in after_gemm(k)[nfollow:]])
    k(f"s_mul_i32 s58, s{TBG}, 55296"); k(f"s_lshr_b32 s59, s{P0}, 1"); k("s_lshl_b32 s59, s59, 10")
    k("s_add_u32 s58, s58, s59"); k(f"s_add_u32 s58, s58, {GG}"); k("s_add_u32 s59, s58, 55296")
    def epi(j, carry):
        streams = []
        for tb in range(2):
            for s_ in (range(2) if j < 3 else [0]):
                L = []; l = 2*j + s_
                for hf in range(2):
                    z = accr(l, tb) + 2*hf; t = T + 2*len(streams); st_ = 16 + 2*tb; cs = CS + 4*l + 2*hf
                    first = [f"v_pk_fma_f32 {v(z,2)}, {v(cs,2)}, {v(st_,2)}, {v(z,2)} op_sel:[0,0,0] op_sel_hi:[1,0,1] neg_lo:[1,0,0] neg_hi:[1,0,0]"]
                    L += gelu_fold(z, t, PK + 8*(j % 2) + 4*tb + 2*s_ + hf if j < 3 else PK + 2*tb + hf, 168 + 2*tb, 172 + tb, first)
                streams.append(L)
        for n, ln in enumerate(interleave(*streams)):
            k(ln)
            if carry and n % CARRY == CARRY - 1: nq.pop()
        if j < 3:
            p = PK + 8*(j % 2)
            vm.issue([f"buffer_store_dwordx4 {v(p,4)}, v4, s[12:15], s58 offen offset:{1024*j}{ss}"], "S")
            vm.issue([f"buffer_store_dwordx4 {v(p+4,4)}, v4, s[12:15], s59 offen offset:{1024*j}{ss}"], "S")
    epi(0, True); epi(1, True)
    k(f"s_cmp_eq_u32 s{NP}, 2"); k(f"s_cbranch_scc1 {k.lab('noe2')}")
    before = len(vm.ops)
    epi(2, False)
    del vm.ops[before:]
    k.label("noe2")
    epi(3, True)
    k(f"s_add_u32 s58, s{TBG}, s{ODD}"); k("s_mul_i32 s58, s58, 55296"); k(f"s_lshr_b32 s59, s{TH}, 1"); k("s_lshl_b32 s59, s59, 10")
    k("s_add_u32 s58, s58, s59"); k(f"s_add_u32 s58, s58, {GG}")
    vm.issue([f"buffer_store_dwordx4 {v(PK,4)}, v4, s[12:15], s58 offen{ss}"], "S")
    return vm, nq

def w4_l2_items(k, sbase=82):
    k(f"s_bfe_u32 s{sbase}, s2, 0x10002"); k(f"s_mul_i32 s{sbase}, s{sbase}, {20*55296}")
    k(f"s_lshr_b32 s{sbase+1}, s2, 3"); k(f"s_lshl_b32 s{sbase+1}, s{sbase+1}, 2"); k(f"s_add_u32 s{sbase+1}, s{sbase+1}, s10")
    k(f"s_mul_i32 s{sbase+1}, s{sbase+1}, 9216"); k(f"s_add_u32 s{sbase}, s{sbase}, s{sbase+1}"); k(f"s_add_u32 s{sbase}, s{sbase}, {W4T}")
    G = []
    for i in range(9):
        pre = [f"s_add_u32 s{sbase}, s{sbase}, 4096"] if (i and i % 4 == 0) else []
        G.append((pre + [f"buffer_load_dwordx4 v[164:167], v4, s[12:15], s{sbase} offen offset:{1024*(i%4)}"], "pf"))
    return G
```

```python
from ph_common import *
import ph_common as pc
from p3 import T64, FC, ODD, TBG, FB, SA, SH, WB, LB, TMP

P5_LDS = 61440
OUTSC = " sc1"
RSLOOP = 0
NWA = 64
WV = 232

def wreg(i, l):
    f = i*5 + l
    return a(4*f, 4) if f < NWA else v(WV + 4*(f - NWA), 4)

def p5_pre_setup(k):
    k(f"s_mul_i32 s{TMP}, s10, 14336")
    for l in range(5):
        k(f"s_mul_i32 s{WB+l}, s{FB+l}, 55296"); k(f"s_add_u32 s{WB+l}, s{WB+l}, s{TMP}"); k(f"s_add_u32 s{WB+l}, s{WB+l}, {W4T}")
    k("s_cmp_eq_u32 s10, 3"); k(f"s_cselect_b32 s{LB}, 0x40000000, 0")

def p5_w_group(i, l):
    hi = (i // 4) * 4096
    pre = [f"s_add_u32 s{TMP+1}, s{WB+l}, {hi}"] if hi else [f"s_mov_b32 s{TMP+1}, s{WB+l}"]
    if i >= 12: pre.append(f"s_add_u32 s{TMP+1}, s{TMP+1}, s{LB}")
    return pre + [f"buffer_load_dwordx4 {wreg(i,l)}, v4, s[12:15], s{TMP+1} offen offset:{1024*(i%4)} sc1"]

def p5_pre_early(k):
    return [p5_w_group(f // 5, f % 5) for f in range(40, 70)]

def p5_pre_late(k):
    return [p5_w_group(f // 5, f % 5) for f in range(0, 40)]

def p5_main(k):
    sc = pc.SC
    R = 100
    vm = VM(k)
    k("s_mul_i32 s36, s10, 14336")
    for j in range(4):
        k(f"s_add_u32 s37, s10, {j}"); k("s_and_b32 s37, s37, 3")
        k(f"s_lshl_b32 s38, s{T64}, 2"); k("s_add_u32 s37, s37, s38")
        k(f"s_mul_i32 s{46+j}, s37, 55296"); k(f"s_add_u32 s{46+j}, s{46+j}, s36"); k(f"s_add_u32 s{46+j}, s{46+j}, {GG}")
    k("s_cmp_eq_u32 s10, 3"); k("s_cselect_b32 s45, 0x40000000, 4096")
    XR = 124; NS = 4
    xl = []
    for i in range(14):
        for j in range(4):
            pre = [f"s_add_u32 s{46+j}, s{46+j}, {'s45' if i == 12 else 4096}"] if (i and i % 4 == 0) else []
            xl.append((pre + [f"buffer_load_dwordx4 {v(XR + 16*(i % NS) + 4*j,4)}, v4, s[12:15], s{46+j} offen offset:{1024*(i%4)}{sc}"], ("X", i)))
    res = []
    for base, reg in ((HT, R), (X1, R + 10)):
        res.append(([f"s_add_u32 s36, s{SA}, {base}", f"buffer_load_dwordx4 {v(reg,4)}, v4, s[12:15], s36 offen{sc}"], "R"))
        res.append(([f"buffer_load_dwordx4 {v(reg+4,4)}, v4, s[12:15], s36 offen offset:1024{sc}"], "R"))
        res.append(([f"s_add_u32 s37, s{SH}, {base}", f"buffer_load_dwordx2 {v(reg+8,2)}, v4, s[12:15], s37 offen{sc}"], "R"))
    q = TQ(vm, xl); q.pop(12)
    rq = TQ(vm, res)
    ACC = 16; U = 8; RS = 188
    rs = []
    for l in range(5):
        for hf in range(2):
            z = RS + 4*l + 2*hf
            rs += [f"v_lshlrev_b32 v{z}, 16, v{resid_src(R,l,hf)}", f"v_and_b32 v{z+1}, s36, v{resid_src(R,l,hf)}",
                   f"v_lshlrev_b32 v{U+2}, 16, v{resid_src(R+10,l,hf)}", f"v_and_b32 v{U+3}, s36, v{resid_src(R+10,l,hf)}",
                   f"v_add_f32 v{z}, v{z}, v{U+2}", f"v_add_f32 v{z+1}, v{z+1}, v{U+3}"]
    sq = Queue(k, [[x] for x in rs])
    nx = lambda: sum(1 for t in vm.ops if isinstance(t, tuple))
    for i in range(14):
        vm.wait(lambda t: t == ("X", i))
        if RSLOOP and i == RSLOOP + 7: k("s_mov_b32 s36, 0xffff0000")
        if i == 0: k.stamp("step0")
        if i in (3, 9, 10):
            xr = lambda j, r: XR + 16*(i % NS) + 4*j + r
            def swaps(pairs):
                for e, o in pairs:
                    k(f"v_swap_b32 v{xr(e,2)}, v{xr(o,0)}"); k(f"v_swap_b32 v{xr(e,3)}, v{xr(o,1)}")
            lo, ld = k.lab("sw%do" % i), k.lab("sw%dd" % i)
            if i == 9:
                k("s_cmp_lg_u32 s10, 3"); k(f"s_cbranch_scc1 {ld}")
                swaps([(1, 2), (3, 0)])
            else:
                if i == 10: k("s_cmp_eq_u32 s10, 3"); k(f"s_cbranch_scc1 {ld}")
                k("s_bitcmp1_b32 s10, 0"); k(f"s_cbranch_scc1 {lo}")
                swaps([(0, 1), (2, 3)])
                k(f"s_branch {ld}")
                k.L.append(lo + ":")
                swaps([(1, 2), (3, 0)])
            k.L.append(ld + ":")
        n = 0
        for j in range(4):
            for l in range(5):
                c = v(ACC + 20*j + 4*l, 4)
                k(f"v_mfma_f32_16x16x32_bf16 {c}, {wreg(i,l)}, {v(XR + 16*(i % NS) + 4*j,4)}, {c if i else 0}")
                n += 1
                if n % 5 == 3 and len(q) and nx() < 4*(i + NS): q.pop()
                if RSLOOP:
                    if n == 10 and RSLOOP <= i <= RSLOOP + 5: rq.pop()
                    if i >= RSLOOP + 8 and n % 4 != 0: sq.pop()
                elif n % 5 == 3 and not len(q): rq.pop()
    k.stamp("main5")
    for j in range(1, 4):
        k(f"s_add_u32 s37, s10, {j}"); k("s_and_b32 s37, s37, 3"); k("s_mul_i32 s37, s37, 15360")
        k(f"s_add_u32 s37, s37, {(j-1)*5120}")
        k(f"v_add_u32 v{5+j}, s37, v4")
    for j in range(1, 4):
        for l in range(5):
            k(f"ds_write_b128 v{5+j}, {v(ACC + 20*j + 4*l,4)} offset:{1024*l}")
    k("s_mul_i32 s37, s10, 15360")
    k("v_add_u32 v9, s37, v4")
    if not RSLOOP:
        rq.flush(); vm.wait(lambda t: t == "R"); k("s_mov_b32 s36, 0xffff0000")
    sq.flush()
    for i in range(10): k(f"v_pk_add_f32 {v(ACC+2*i,2)}, {v(ACC+2*i,2)}, {v(RS+2*i,2)}")
    k(f"s_lshl_b32 s37, s{TBG}, 4")
    k("v_add_u32 v6, s37, v2"); k("v_mul_u32_u24 v6, 1280, v6"); k("v_lshl_add_u32 v6, v3, 4, v6")
    k(f"s_lshr_b32 s37, s{FB}, 1"); k("s_lshl_b32 s37, s37, 6")
    k(f"s_lshr_b32 s38, s{FB+4}, 1"); k("s_lshl_b32 s38, s38, 6"); k(f"s_lshl_b32 s39, s{ODD}, 3"); k("s_add_u32 s38, s38, s39")
    k("s_waitcnt lgkmcnt(0)")
    k("s_barrier")
    P = 36; PK = 100
    for j in range(3):
        for l in range(5):
            k(f"ds_read_b128 {v(P + 20*j + 4*l,4)}, v9 offset:{j*5120 + 1024*l}")
    for j in range(3):
        k(f"s_waitcnt lgkmcnt({10 - 5*j})")
        for i in range(10): k(f"v_pk_add_f32 {v(ACC+2*i,2)}, {v(ACC+2*i,2)}, {v(P+20*j+2*i,2)}")
    for i in range(10): k(f"v_cvt_pk_bf16_f32 v{PK+i}, v{ACC+2*i}, v{ACC+2*i+1}")
    k(f"buffer_store_dwordx4 {v(PK,4)}, v6, s[20:23], s37 offen{OUTSC}")
    k(f"buffer_store_dwordx4 {v(PK+4,4)}, v6, s[20:23], s37 offen offset:64{OUTSC}")
    k(f"buffer_store_dwordx2 {v(PK+8,2)}, v6, s[20:23], s38 offen{OUTSC}")
```

```python
from ph_common import *
import ph_common as pc

NFIRST = 8
QL = 0; YL = 40960; STL = 81920; XL = 0
P2_LDS = 82944
TT, FQ = 24, 25

def p2_setup(k):
    k(f"s_and_b32 s{TT}, s2, 63"); k(f"s_lshr_b32 s{FQ}, s2, 6")

def p2_w_items(k):
    k(f"s_mul_i32 s26, s{FQ}, 10"); k("s_lshl_b32 s27, s10, 1"); k("s_add_u32 s26, s26, s27"); k("s_mul_i32 s26, s26, 20480")
    k(f"s_add_u32 s26, s26, {W1T}")
    k(f"s_mul_i32 s27, s{FQ}, 10"); k("s_lshr_b32 s28, s10, 1"); k("s_add_u32 s27, s27, s28"); k("s_add_u32 s27, s27, 8")
    k("s_mul_i32 s27, s27, 20480"); k(f"s_add_u32 s27, s27, {W1T}")
    k("s_add_u32 s28, s26, 20480")
    items = []
    for kb in range(20):
        for t in range(3):
            base = (26, 28, 27)[t]
            pre = [f"s_add_u32 s{base}, s{base}, 4096"] if (kb and kb % 4 == 0) else []
            items.append((pre + [f"buffer_load_dwordx4 {a((t*20+kb)*4,4)}, v4, s[12:15], s{base} offen offset:{1024*(kb%4)} sc1"], ("W", kb)))
    return items

QA = 212

def p2_pre_setup(k):
    k("s_lshl_b32 s34, s10, 3")
    k("v_add_u32 v8, s34, v3"); k("v_and_b32 v9, 15, v8"); k("v_xor_b32 v9, v9, v2")
    k(f"s_lshl_b32 s29, s{TT}, 5")
    k("v_add_u32 v10, s29, v8"); k("v_mul_u32_u24 v10, 1280, v10")
    k("v_xor_b32 v11, 4, v9")
    k(f"v_lshl_add_u32 v{QA}, v9, 4, v10"); k(f"v_lshl_add_u32 v{QA+1}, v11, 4, v10"); k(f"v_add_u32 v{QA+1}, 5120, v{QA+1}")

def p2_pre_items(k):
    items = []
    for a_ in range(2):
        for m in range(5):
            items.append(([f"s_mul_i32 s84, s10, 10240", f"s_add_u32 m0, s84, {QL + a_*5120 + 768*m}", "s_nop 0",
                           f"buffer_load_dwordx4 v{QA+a_}, s[16:19], 0 offen offset:{256*m} lds"], "q"))
    return items, p2_w_items(k)

QREG = 32

def stats_exchange(k, T):
    k("v_lshlrev_b32 v10, 4, v2"); k("v_lshl_add_u32 v11, v3, 2, v10"); k("s_lshl_b32 s37, s10, 8"); k(f"s_add_u32 s37, s37, {STL}")
    k("v_permlane32_swap_b32 v22, v26"); k("v_permlane32_swap_b32 v24, v28")
    k("v_add_u32 v11, s37, v11"); k(f"v_add_u32 v10, {STL}, v10")
    k("v_add_f32 v22, v22, v26"); k("v_add_f32 v24, v24, v28")
    k("v_permlane16_swap_b32 v22, v24")
    k("v_add_f32 v22, v22, v24")
    k("ds_write_b32 v11, v22")
    k("s_waitcnt lgkmcnt(0)")
    k("s_barrier")
    for w in range(4): k(f"ds_read_b128 {v(T+4*w,4)}, v10 offset:{256*w}")
    k("s_waitcnt lgkmcnt(0)")
    k(f"v_pk_add_f32 {v(T,2)}, {v(T,2)}, {v(T+4,2)}"); k(f"v_pk_add_f32 {v(T+2,2)}, {v(T+2,2)}, {v(T+6,2)}")
    k(f"v_pk_add_f32 {v(T+8,2)}, {v(T+8,2)}, {v(T+12,2)}"); k(f"v_pk_add_f32 {v(T+10,2)}, {v(T+10,2)}, {v(T+14,2)}")
    k(f"v_pk_add_f32 {v(T,2)}, {v(T,2)}, {v(T+8,2)}"); k(f"v_pk_add_f32 {v(T+2,2)}, {v(T+2,2)}, {v(T+10,2)}")

def p2_q_addresses(k):
    k("v_lshrrev_b32 v10, 2, v2"); k("v_mul_u32_u24 v10, 5120, v10")
    k("v_and_b32 v11, 3, v2"); k("v_lshl_add_u32 v10, v11, 8, v10")
    k("v_xor_b32 v11, v3, v2")
    k("s_mul_i32 s36, s10, 5")
    for i in range(5):
        k(f"s_add_u32 s37, s36, {i}")
        k("s_and_b32 s38, s37, 3"); k("s_lshl_b32 s38, s38, 2")
        k("s_lshr_b32 s37, s37, 2"); k("s_lshl_b32 s37, s37, 10")
        k(f"v_xor_b32 v{16+i}, s38, v11"); k(f"v_lshlrev_b32 v{16+i}, 4, v{16+i}"); k(f"v_add3_u32 v{16+i}, v{16+i}, v10, s37")

def p2_qstats(k, wait_q):
    p2_q_addresses(k)
    wait_q()
    k("s_barrier")
    for tb in range(2):
        for i in range(5): k(f"ds_read_b128 {v(QREG+4*(tb*5+i),4)}, v{16+i} offset:{QL + tb*20480}")
    for r in (22, 24, 26, 28): k(f"v_mov_b32 v{r}, 0")
    k("s_mov_b32 s38, 0x3f803f80")
    for tb in range(2):
        k(f"s_waitcnt lgkmcnt({5 - 5*tb})")
        for r in range(20):
            x = QREG + 20*tb + r
            k(f"v_dot2_f32_bf16 v{22+4*tb}, v{x}, s38, v{22+4*tb}"); k(f"v_dot2_f32_bf16 v{24+4*tb}, v{x}, v{x}, v{24+4*tb}")
    T = 192
    stats_exchange(k, T)
    k(f"s_mov_b32 s52, {f2u(1.0/640)}"); k(f"s_mov_b32 s53, {f2u(1e-5)}")
    L = [[], []]
    for tb in range(2):
        t = T + 2*tb; o = QA + 2 + 2*tb
        L[tb] = [f"v_mul_f32 v{t}, s52, v{t}", f"v_mul_f32 v{t+1}, s52, v{t+1}", f"v_fma_f32 v{t+1}, -v{t}, v{t}, v{t+1}",
                 f"v_max_f32 v{t+1}, 0, v{t+1}", f"v_add_f32 v{t+1}, s53, v{t+1}", f"v_rsq_f32 v{o}, v{t+1}", f"v_mul_f32 v{o+1}, -v{t}, v{o}"]
    for ln in interleave(*L): k(ln)

def p2_y_loads(k, vm):
    k("s_mul_i32 s32, s10, 10240"); k(f"s_add_u32 s33, s32, {YL}")
    k(f"s_mul_i32 s31, s{TT}, 40960"); k("s_add_u32 s31, s31, s32"); k(f"s_add_u32 s31, s31, {YT}")
    for grp in range(3):
        for i in range(4 if grp < 2 else 2):
            pre = [f"s_add_u32 m0, s33, {4096*grp}", "s_add_u32 s31, s31, 4096" if grp else "s_nop 0"] if i == 0 else []
            vm.issue(pre + [f"buffer_load_dwordx4 v4, s[12:15], s31 offen offset:{1024*i} sc1 lds"], "y")

def p2_main(k, wrest, tail, after_gemm, early=None):
    sc = pc.SC; ss = pc.SS
    vm = VM(k)
    p2_y_loads(k, vm)
    wq = TQ(vm, wrest)
    k(f"s_lshl_b32 s29, s{TT}, 5")
    k("v_bfe_u32 v10, v1, 2, 2"); k("v_lshl_add_u32 v10, v3, 3, v10"); k("v_lshlrev_b32 v10, 6, v10")
    k("v_and_b32 v11, 3, v1"); k("v_lshl_add_u32 v10, v11, 3, v10")
    k("v_add_u32 v21, s33, v10")
    k(f"s_and_b32 s37, s{FQ}, 1"); k("s_lshl_b32 s37, s37, 1"); k("s_sub_u32 s37, 1, s37")
    k(f"s_lshr_b32 s38, s{FQ}, 1"); k("s_lshl_b32 s37, s37, s38"); k("s_add_u32 s37, s37, s29")
    k(f"s_mul_i32 s39, s{FQ}, 5")
    k("v_lshlrev_b32 v11, 8, v3")
    k("s_add_u32 s46, s39, s10"); k("s_lshl_b32 s46, s46, 10"); k(f"s_add_u32 s46, s46, {HS}")
    k("s_add_u32 s47, s39, 4"); k("s_lshl_b32 s47, s47, 10"); k(f"s_add_u32 s47, s47, {HS}")
    k("s_lshr_b32 s38, s10, 1"); k("s_lshl_b32 s38, s38, 3"); k("s_add_u32 s47, s47, s38")
    k("s_and_b32 s38, s10, 1"); k("s_lshl_b32 s38, s38, 4")
    for dst, add, base, mask in ((240, "0", "s46", 40), (241, "16", "s46", 42), (242, "s38", "s47", 44)):
        k("v_add_u32 v10, s37, v2")
        if add != "0": k(f"v_add_u32 v10, {add}, v10")
        k(f"v_cmp_le_u32 s[{mask}:{mask+1}], s48, v10") if False else None
        k("v_cmp_le_u32 vcc, 0x800, v10"); k(f"s_mov_b64 s[{mask}:{mask+1}], vcc")
        k("v_and_b32 v10, 0x7ff, v10"); k("v_lshrrev_b32 v22, 4, v10"); k("v_mul_u32_u24 v22, 20480, v22")
        k("v_and_b32 v10, 15, v10"); k("v_lshl_add_u32 v10, v10, 4, v11")
        k(f"v_add3_u32 v{dst}, v10, v22, {base}")
    k(f"s_mov_b32 s50, {f2u(GELU_C0)}"); k(f"s_mov_b32 s51, {f2u(GELU_C1)}")
    k(f"s_mov_b32 s52, {f2u(1.0/640)}"); k(f"s_mov_b32 s53, {f2u(1e-5)}"); k("s_mov_b32 s54, 0xffff0000")
    k.stamp("issued")
    vm.wait(lambda t: t == "y")
    k("s_barrier")
    k.stamp("loaded")
    Q = 32; Y = 72; H = 112; T = 192
    def reads(tb, i):
        f = tb*5 + i
        return [f"ds_read_b64_tr_b16 {v(Y+4*f,2)}, v21 offset:{2048*i + 32*tb}",
                f"ds_read_b64_tr_b16 {v(Y+4*f+2,2)}, v21 offset:{2048*i + 256 + 32*tb}"]
    frs = [(tb, i) for tb in range(2) for i in range(5)]
    for fr in frs[:4]:
        for ln in reads(*fr): k(ln)
    for r in range(22, 30): k(f"v_mov_b32 v{r}, 0")
    step = 0
    for fi, (tb, i) in enumerate(frs):
        f = tb*5 + i
        k(f"s_waitcnt lgkmcnt({2*(min(len(frs), fi + 4) - fi - 1)})")
        if fi + 4 < len(frs):
            for ln in reads(*frs[fi + 4]): k(ln)
        ab = QA + 2 + 2*tb
        for r in range(4):
            h = H + 8*f + 2*r; qq = T + 4*(r % 2); yy = qq + 2
            k(f"v_lshlrev_b32 v{qq}, 16, v{Q+4*f+r}"); k(f"v_and_b32 v{qq+1}, s54, v{Q+4*f+r}")
            k(f"v_lshlrev_b32 v{yy}, 16, v{Y+4*f+r}"); k(f"v_and_b32 v{yy+1}, s54, v{Y+4*f+r}")
            k(f"v_pk_fma_f32 {v(h,2)}, {v(qq,2)}, {v(ab,2)}, {v(ab,2)} op_sel:[0,0,1] op_sel_hi:[1,0,1]")
            k(f"v_pk_fma_f32 {v(h,2)}, {v(h,2)}, {v(yy,2)}, {v(qq,2)}")
            k(f"v_pk_add_f32 {v(22+4*tb,2)}, {v(22+4*tb,2)}, {v(h,2)}")
            k(f"v_pk_fma_f32 {v(24+4*tb,2)}, {v(h,2)}, {v(h,2)}, {v(24+4*tb,2)}")
            step += 1
            if step % 2 == 0: wq.pop()
    pass
    k.stamp("p15")
    for b in (22, 24, 26, 28): k(f"v_add_f32 v{b}, v{b}, v{b+1}")
    stats_exchange(k, T)
    L = [[], []]
    for tb in range(2):
        t = T + 2*tb; b = 22 + 4*tb; x = T + 8 + 4*tb
        L[tb] = [f"v_mul_f32 v{t}, s52, v{t}", f"v_mul_f32 v{t+1}, s52, v{t+1}", f"v_fma_f32 v{t+1}, -v{t}, v{t}, v{t+1}",
                 f"v_max_f32 v{t+1}, 0, v{t+1}", f"v_add_f32 v{x}, s53, v{t+1}", f"v_rsq_f32 v{b}, v{x}",
                 f"v_mul_f32 v{b+1}, -v{t}, v{b}", f"v_mul_f32 v{x}, v{b}, v{b}", f"v_fma_f32 v{x}, v{x}, v{t+1}, s53",
                 f"v_rsq_f32 v{b+2}, v{x}"] + gelu_scale_consts(b+2, 244 + 2*tb, 248 + tb, 50, 51)
    for ln in interleave(*L): k(ln)
    pass
    k.stamp("stats")
    k("s_mul_i32 s37, s10, 5120"); k("v_add_u32 v11, s37, v4")
    n = 0
    for fi, (tb, i) in enumerate(frs):
        f = tb*5 + i; b = 22 + 4*tb
        for r in range(4):
            h = H + 8*f + 2*r; t = T + 2*(r % 2)
            k(f"v_pk_fma_f32 {v(t,2)}, {v(h,2)}, {v(b,2)}, {v(b,2)} op_sel:[0,0,1] op_sel_hi:[1,0,1]")
            k(f"v_cvt_pk_bf16_f32 v{Q+4*f+r}, v{t}, v{t+1}")
        k(f"ds_write_b128 v11, {v(Q+4*f,4)} offset:{XL + tb*20480 + 1024*i}")
        wq.pop()
    k(f"s_lshl_b32 s37, s{TT}, 1"); k("s_mul_i32 s37, s37, 20"); k("s_mul_i32 s38, s10, 5"); k("s_add_u32 s37, s37, s38"); k("s_lshl_b32 s37, s37, 10")
    for q4 in range(4):
        tb = q4 & 1
        if q4 < 3: k(f"s_cmp_lg_u32 s{FQ}, {q4}"); k(f"s_cbranch_scc1 {k.lab('st%d' % (q4+1))}")
        k(f"s_add_u32 s38, s37, {(XB if q4 < 2 else HT) + tb*20480}"); k("s_add_u32 s39, s38, 4096")
        for i in range(5):
            f = tb*5 + i; src = Q + 4*f
            if q4 >= 2:
                src = Y + 4*i
                for r in range(4): k(f"v_cvt_pk_bf16_f32 v{src+r}, v{H+8*f+2*r}, v{H+8*f+2*r+1}")
            k(f"buffer_store_dwordx4 {v(src,4)}, v4, s[12:15], s{39 if i==4 else 38} offen offset:{1024*i if i<4 else 0}{ss}")
        if q4 < 3: k(f"s_branch {k.lab('stdone')}"); k.label('st%d' % (q4+1))
    k.label("stdone")
    vm.ops += ["S"] * 5
    k("s_waitcnt lgkmcnt(0)")
    k("s_barrier")
    pass
    k.stamp("xchg")
    ACC = 112; BF = 192
    k("s_and_b32 s37, s10, 1"); k("s_mul_i32 s37, s37, 20480"); k("v_add_u32 v10, s37, v4")
    def breads(kb):
        b = BF + 12*(kb % 4)
        return [f"ds_read_b128 {v(b,4)}, v4 offset:{XL + 1024*kb}", f"ds_read_b128 {v(b+4,4)}, v4 offset:{XL + 20480 + 1024*kb}",
                f"ds_read_b128 {v(b+8,4)}, v10 offset:{XL + 1024*kb}"]
    for kb in range(3):
        for ln in breads(kb): k(ln)
    wq.flush()
    tq = TQ(vm, (early or []) + (tail or []))
    for kb in range(20):
        b = BF + 12*(kb % 4); nb = min(20, kb + 3) - kb - 1
        if any(t == ("W", kb) for t in vm.ops): vm.wait(lambda t: t == ("W", kb), f" lgkmcnt({3*nb})")
        else: k(f"s_waitcnt lgkmcnt({3*nb})")
        nx = breads(kb + 3) if kb + 3 < 20 else []
        def mf(tile, t, breg):
            c = v(ACC + 4*tile, 4)
            k(f"v_mfma_f32_16x16x32_bf16 {c}, {a((t*20+kb)*4,4)}, {v(breg,4)}, {c if kb else 0}")
        mf(0, 0, b)
        if nx: k(nx[0])
        mf(1, 1, b)
        if nx: k(nx[1])
        mf(2, 0, b + 4)
        if nx: k(nx[2])
        mf(3, 1, b + 4)
        tq.pop()
        mf(4, 2, b + 8)
    tq.flush()
    k.stamp("gemm2")
    k("s_barrier")
    nq = TQ(vm, [(g, "N") for g in after_gemm(k)])
    k("s_bitcmp1_b32 s10, 0"); k("s_cselect_b64 s[56:57], -1, 0")
    k("v_cndmask_b32 v250, v244, v246, s[56:57]"); k("v_cndmask_b32 v251, v245, v247, s[56:57]"); k("v_cndmask_b32 v252, v248, v249, s[56:57]")
    PK = 40
    streams = []
    for tile in range(5):
        ab = (244, 244, 246, 246, 250)[tile]; ir = (248, 248, 249, 249, 252)[tile]; L = []
        for hf in range(2):
            L += gelu_fold(ACC + 4*tile + 2*hf, 64 + 2*tile, PK + 2*tile + hf, ab, ir)
        streams.append(L)
    for n, ln in enumerate(interleave(*streams)):
        k(ln)
    if pc.HS_MERGE:
        l0, l1 = k.lab("hsx0"), k.lab("hsx1")
        k("v_lshlrev_b32 v50, 3, v1"); k("s_and_b32 s37, s10, 1"); k("s_lshl_b32 s37, s37, 9"); k(f"s_add_u32 s37, s37, {pc.EXL}"); k("v_add_u32 v50, s37, v50")
        k("s_cmp_lt_u32 s10, 2"); k(f"s_cbranch_scc1 {l0}")
        k(f"ds_write_b64 v50, {v(PK+8,2)}")
        k.L.append(l0 + ":")
        k("s_waitcnt lgkmcnt(0)")
        k("s_barrier")
        k(f"ds_read_b64 {v(PK+10,2)}, v50")
    for tb in range(2):
        t0 = PK + 4*tb
        for r in range(4): k(f"v_cndmask_b32_e64 v{t0+r}, v{t0+r}, 0, s[{40+2*tb}:{41+2*tb}]")
        vm.issue([f"buffer_store_dwordx4 {v(t0,4)}, v{240+tb}, s[12:15], 0 offen{ss}"], "S")
    if pc.HS_MERGE:
        k("s_waitcnt lgkmcnt(0)")
        k("s_cmp_ge_u32 s10, 2"); k(f"s_cbranch_scc1 {l1}")
        for r in range(4): k(f"v_cndmask_b32_e64 v{PK+8+r}, v{PK+8+r}, 0, s[44:45]")
        k(f"buffer_store_dwordx4 {v(PK+8,4)}, v242, s[12:15], 0 offen{ss}")
        k.L.append(l1 + ":")
    else:
        for r in range(2): k(f"v_cndmask_b32_e64 v{PK+8+r}, v{PK+8+r}, 0, s[44:45]")
        vm.issue([f"buffer_store_dwordx2 {v(PK+8,2)}, v242, s[12:15], 0 offen{ss}"], "S")
    return vm, nq

def w2_l2_items(k, sbase=82):
    k(f"s_bfe_u32 s{sbase}, s2, 0x10002"); k(f"s_mul_i32 s{sbase}, s{sbase}, {20*20480}")
    k(f"s_lshr_b32 s{sbase+1}, s2, 3"); k(f"s_lshl_b32 s{sbase+1}, s{sbase+1}, 2"); k(f"s_add_u32 s{sbase+1}, s{sbase+1}, s10")
    k(f"s_lshl_b32 s{sbase+1}, s{sbase+1}, 12"); k(f"s_add_u32 s{sbase}, s{sbase}, s{sbase+1}"); k(f"s_add_u32 s{sbase}, s{sbase}, {W2T}")
    return [([f"buffer_load_dwordx4 v[132:135], v4, s[12:15], s{sbase} offen offset:{1024*i}"], "pf") for i in range(4)]
```

```python
from ph_common import *
import ph_common as pc

P3_LDS = 102400
T64, FC, ODD, TBG, FB, SA, SH = 60, 61, 62, 63, 64, 70, 71
WB, LB = 72, 77
TMP = 78
M0_, M1_ = 80, 81

def p35_setup(k, tmp=TMP):
    map_t64_fc(k, T64, FC, tmp, tmp+1)
    col5(k, FC, ODD, FB)
    k(f"s_lshl_b32 s{TBG}, s{T64}, 2"); k(f"s_add_u32 s{TBG}, s{TBG}, s10")
    resid_offsets(k, TBG, FB, ODD, SA, SH, tmp)

def p3_pre_setup(k):
    k(f"s_lshl_b32 s{TMP}, s10, 10")
    for l in range(5):
        k(f"s_mul_i32 s{WB+l}, s{FB+l}, 20480"); k(f"s_add_u32 s{WB+l}, s{WB+l}, s{TMP}"); k(f"s_add_u32 s{WB+l}, s{WB+l}, {W2T}")
    k(f"s_mul_i32 s{LB}, s10, 5120")

def p3_chunk_groups(chunks):
    G = []
    for c in chunks:
        for l in range(5):
            G.append([f"s_add_u32 m0, s{LB}, {c*20480 + l*1024}", f"s_add_u32 s{TMP+1}, s{WB+l}, {4096*c}",
                      f"buffer_load_dwordx4 v4, s[12:15], s{TMP+1} offen sc1 lds"])
    return G

EARLY_CHUNKS = []
def p3_pre_early(k): return p3_chunk_groups(EARLY_CHUNKS)
def p3_pre_late(k): return p3_chunk_groups([c for c in range(5) if c not in EARLY_CHUNKS])

def p3_main(k, tail, after_gemm, early=None):
    sc = pc.SC; ss = pc.SS
    X = 32; R = 112; ACC = 8; AF = 124; NR = 14
    vm = VM(k)
    k(f"s_mul_i32 s{M0_}, s{TBG}, 20480"); k(f"s_add_u32 s{M0_}, s{M0_}, {HS}")
    xl = []
    for kb in range(20):
        pre = [f"s_add_u32 s{M0_}, s{M0_}, 4096"] if (kb and kb % 4 == 0) else []
        xl.append((pre + [f"buffer_load_dwordx4 {v(X+4*kb,4)}, v4, s[12:15], s{M0_} offen offset:{1024*(kb%4)}{sc}"], ("X", kb)))
    res = [([f"s_add_u32 s{M1_}, s{SA}, {XB}", f"buffer_load_dwordx4 {v(R,4)}, v4, s[12:15], s{M1_} offen{sc}"], "R"),
           ([f"buffer_load_dwordx4 {v(R+4,4)}, v4, s[12:15], s{M1_} offen offset:1024{sc}"], "R"),
           ([f"s_add_u32 s{M1_}, s{SH}, {XB}", f"buffer_load_dwordx2 {v(R+8,2)}, v4, s[12:15], s{M1_} offen{sc}"], "R")]
    q = TQ(vm, xl + res + (early or []) + tail); q.pop(10)
    k("v_add_u32 v6, 0x10000, v4")
    def aread(slot, dst):
        off = slot * 1024
        return f"ds_read_b128 {v(dst,4)}, {'v6' if off >= 65536 else 'v4'} offset:{off % 65536}"
    seq = [(kb, l) for kb in range(20) for l in range(5)]
    PRE = 11
    for i in range(PRE): k(aread(seq[i][0]*5 + seq[i][1], AF + 4*(i % NR)))
    for i, (kb, l) in enumerate(seq):
        if l == 0: vm.wait(lambda t: t == ("X", kb))
        left = min(len(seq), i + PRE) - i - 1
        k(f"s_waitcnt lgkmcnt({left})")
        c = v(ACC + 4*l, 4)
        k(f"v_mfma_f32_16x16x32_bf16 {c}, {v(AF + 4*(i % NR),4)}, {v(X+4*kb,4)}, {c if kb else 0}")
        if i + PRE < len(seq):
            j = i + PRE; k(aread(seq[j][0]*5 + seq[j][1], AF + 4*(j % NR)))
        if l == 2 or (l == 4 and kb >= 5): q.pop()
    q.flush()
    k.stamp("gemm3")
    k("s_barrier")
    nq = TQ(vm, [(g, "N") for g in after_gemm(k)])
    vm.wait(lambda t: t == "R")
    k(f"s_mov_b32 s{M0_}, 0xffff0000")
    U = 32
    for l in range(5):
        for hf in range(2):
            src = resid_src(R, l, hf); u = U + 4*l + 2*hf; z = ACC + 4*l + 2*hf
            k(f"v_lshlrev_b32 v{u}, 16, v{src}"); k(f"v_and_b32 v{u+1}, s{M0_}, v{src}")
            k(f"v_pk_add_f32 {v(z,2)}, {v(z,2)}, {v(u,2)}")
    PK = 60
    for i in range(10): k(f"v_cvt_pk_bf16_f32 v{PK+i}, v{ACC+2*i}, v{ACC+2*i+1}")
    k(f"s_add_u32 s{M0_}, s{SA}, {X1}"); k(f"s_add_u32 s{M1_}, s{SH}, {X1}")
    vm.issue([f"buffer_store_dwordx4 {v(PK,4)}, v4, s[12:15], s{M0_} offen{ss}"], "S")
    vm.issue([f"buffer_store_dwordx4 {v(PK+4,4)}, v4, s[12:15], s{M0_} offen offset:1024{ss}"], "S")
    if pc.X1_MERGE:
        l0 = k.lab("x1x0")
        k("v_lshlrev_b32 v80, 3, v1"); k(f"s_lshr_b32 s{M0_}, s10, 1"); k(f"s_lshl_b32 s{M0_}, s{M0_}, 9"); k(f"s_add_u32 s{M0_}, s{M0_}, {pc.EXL}"); k(f"v_add_u32 v80, s{M0_}, v80")
        k("s_bitcmp0_b32 s10, 0"); k(f"s_cbranch_scc1 {l0}")
        k(f"ds_write_b64 v80, {v(PK+8,2)}")
        k.L.append(l0 + ":")
    else:
        vm.issue([f"buffer_store_dwordx2 {v(PK+8,2)}, v4, s[12:15], s{M1_} offen{ss}"], "S")
    k(f"v_pk_mul_f32 v[72:73], {v(ACC,2)}, {v(ACC,2)}")
    k(f"v_pk_add_f32 v[74:75], {v(ACC,2)}, {v(ACC+2,2)}")
    k(f"v_pk_fma_f32 v[72:73], {v(ACC+2,2)}, {v(ACC+2,2)}, v[72:73]")
    for i in range(2, 10):
        z = ACC + 2*i
        k(f"v_pk_add_f32 v[74:75], v[74:75], {v(z,2)}")
        k(f"v_pk_fma_f32 v[72:73], {v(z,2)}, {v(z,2)}, v[72:73]")
    k("v_add_f32 v74, v74, v75"); k("v_add_f32 v72, v72, v73")
    k(f"s_lshl_b32 s{M0_}, s{TBG}, 3"); k(f"s_add_u32 s{M0_}, s{M0_}, s{FC}"); k(f"s_lshl_b32 s{M0_}, s{M0_}, 7"); k(f"s_add_u32 s{M0_}, s{M0_}, {ST2}")
    k("v_permlane32_swap_b32 v74, v72")
    k("v_add_f32 v74, v74, v72")
    k("v_mov_b32 v75, v74")
    k("v_permlane16_swap_b32 v74, v75")
    k("v_add_f32 v74, v74, v75")
    k("v_mov_b32 v75, v74")
    k("v_lshlrev_b32 v6, 3, v2")
    k("v_permlane32_swap_b32 v74, v75")
    k("s_mov_b64 exec, 0xffff")
    vm.issue([f"buffer_store_dwordx2 v[74:75], v6, s[12:15], s{M0_} offen{ss}"], "S")
    k("s_mov_b64 exec, -1")
    if pc.X1_MERGE:
        l1 = k.lab("x1x1")
        k("s_waitcnt lgkmcnt(0)")
        k("s_barrier")
        k("s_bitcmp1_b32 s10, 0"); k(f"s_cbranch_scc1 {l1}")
        k(f"ds_read_b64 {v(PK+10,2)}, v80")
        k(f"s_add_u32 s{M0_}, s{TBG}, s{ODD}"); k(f"s_mul_i32 s{M0_}, s{M0_}, 20480"); k(f"s_lshr_b32 s{M1_}, s{FB+4}, 1"); k(f"s_lshl_b32 s{M1_}, s{M1_}, 10")
        k(f"s_add_u32 s{M0_}, s{M0_}, s{M1_}"); k(f"s_add_u32 s{M0_}, s{M0_}, {X1}")
        k("s_waitcnt lgkmcnt(0)")
        k(f"buffer_store_dwordx4 {v(PK+8,4)}, v4, s[12:15], s{M0_} offen{ss}")
        k.L.append(l1 + ":")
    return vm, nq

def w3_l2_items(k, sbase=82):
    k(f"s_bfe_u32 s{sbase}, s2, 0x10002"); k(f"s_mul_i32 s{sbase}, s{sbase}, {56*20480}")
    k(f"s_lshr_b32 s{sbase+1}, s2, 3"); k(f"s_lshl_b32 s{sbase+1}, s{sbase+1}, 2"); k(f"s_add_u32 s{sbase+1}, s{sbase+1}, s10")
    k(f"s_mul_i32 s{sbase+1}, s{sbase+1}, 9216"); k(f"s_add_u32 s{sbase}, s{sbase}, s{sbase+1}"); k(f"s_add_u32 s{sbase}, s{sbase}, {W3T}")
    G = []
    for i in range(9):
        pre = [f"s_add_u32 s{sbase}, s{sbase}, 4096"] if (i and i % 4 == 0) else []
        G.append((pre + [f"buffer_load_dwordx4 v[28:31], v4, s[12:15], s{sbase} offen offset:{1024*(i%4)}"], "pf"))
    return G
```

```python
from ph_common import *
import ph_common as pc

CSL = 143360
P4_LDS = CSL + 512
T128, COL, NP, ODD, P0, TH, TBG = 24, 25, 26, 27, 28, 29, 30
WAIT2 = True
FOLLOW_KB = 8
CARRY = 24
CSV = 192

def p4_setup(k):
    k("s_and_b32 s36, s2, 7"); k("s_lshr_b32 s37, s2, 3")
    k(f"s_and_b32 s{T128}, s36, 3"); k("s_and_b32 s38, s37, 3"); k("s_lshl_b32 s38, s38, 2"); k(f"s_add_u32 s{T128}, s{T128}, s38")
    k(f"s_lshr_b32 s{COL}, s36, 2"); k(f"s_lshl_b32 s{COL}, s{COL}, 3"); k("s_lshr_b32 s38, s37, 2"); k(f"s_add_u32 s{COL}, s{COL}, s38")
    k(f"s_mul_i32 s38, s{COL}, 7")
    k(f"s_cmp_eq_u32 s{COL}, 15"); k("s_cselect_b32 s38, 103, s38")
    k(f"s_cmp_ge_u32 s{COL}, 14"); k(f"s_cselect_b32 s{NP}, 2, 3")
    k(f"s_and_b32 s{ODD}, s{COL}, 1")
    k(f"s_add_u32 s{P0}, s38, s{ODD}")
    k(f"s_lshl_b32 s{TH}, s{NP}, 1"); k(f"s_add_u32 s{TH}, s{TH}, s38")
    k(f"s_cmp_eq_u32 s{ODD}, 1"); k(f"s_cselect_b32 s{TH}, s38, s{TH}")
    k(f"s_lshl_b32 s{TBG}, s{T128}, 3"); k("s_lshl_b32 s38, s10, 1"); k(f"s_add_u32 s{TBG}, s{TBG}, s38")

def p4_pre_setup(k):
    k(f"s_mul_i32 s40, s{P0}, 20480"); k("s_mul_i32 s41, s10, 5120"); k("s_add_u32 s40, s40, s41"); k(f"s_add_u32 s40, s40, {W3T}")
    k(f"s_mul_i32 s42, s{TH}, 20480"); k("s_add_u32 s42, s42, s41"); k(f"s_add_u32 s42, s42, {W3T}")

def p4_tile_groups(l):
    src = f"s_add_u32 s44, s40, {l*20480}" if l < 6 else "s_mov_b32 s44, s42"
    src2 = f"s_add_u32 s44, s40, {l*20480 + 4096}" if l < 6 else "s_add_u32 s44, s42, 4096"
    G = []
    for i in range(5):
        pre = []
        if i == 0: pre = [f"s_add_u32 m0, s41, {l*20480}", src]
        if i == 4: pre = [f"s_add_u32 m0, s41, {l*20480 + 4096}", src2]
        G.append(pre + [f"buffer_load_dwordx4 v4, s[12:15], s44 offen offset:{1024*(i%4)} sc1 lds"])
    return G

def p4_pre_early(k):
    c = CSV
    G = [[f"v_lshrrev_b32 v{c}, 4, v0", f"v_add_u32 v{c+1}, s{P0}, v{c}", f"v_cmp_eq_u32 vcc, 6, v{c}", f"v_mov_b32 v{c+2}, s{TH}",
          f"v_cndmask_b32 v{c+1}, v{c+1}, v{c+2}, vcc", f"v_lshlrev_b32 v{c+1}, 6, v{c+1}", f"v_lshl_add_u32 v{c+1}, v2, 2, v{c+1}",
          f"s_mov_b32 s45, {CS3}", f"buffer_load_dword v{c+3}, v{c+1}, s[12:15], s45 offen sc1"]]
    for j in range(1, 5):
        G.append([f"s_mov_b32 s45, {CS3 + j*F*4}", f"buffer_load_dword v{c+3+j}, v{c+1}, s[12:15], s45 offen sc1"])
    return G + p4_tile_groups(5) + p4_tile_groups(6)

def p4_pre_late(k):
    G = []
    for l in range(5): G += p4_tile_groups(l)
    return G

def p4_cs_table(k):
    c = CSV
    k(f"v_add_f32 v{c+3}, v{c+3}, v{c+4}"); k(f"v_add_f32 v{c+5}, v{c+5}, v{c+6}")
    k(f"v_add_f32 v{c+3}, v{c+3}, v{c+7}"); k(f"v_add_f32 v{c+3}, v{c+3}, v{c+5}")
    k(f"v_lshlrev_b32 v{c+4}, 2, v0"); k(f"v_add_u32 v{c+4}, {CSL}, v{c+4}")
    k("v_cmp_gt_u32 vcc, 112, v0")
    k("s_and_saveexec_b64 s[56:57], vcc")
    k(f"s_cbranch_execz {k.lab('nocs')}")
    k(f"ds_write_b32 v{c+4}, v{c+3}")
    k.label("nocs")
    k("s_mov_b64 exec, s[56:57]")
    k("s_waitcnt lgkmcnt(0)")

SPLIT_KB = (2, 7, 12, 17)
XS = 88
def xreg(kb, tb):
    if pc.X1_MERGE and kb in SPLIT_KB: return v(XS + 8*SPLIT_KB.index(kb) + 4*tb, 4)
    return a((kb*2+tb)*4, 4)

def p4_main(k, tail, after_gemm, early=None, follow=None, nfollow=0):
    sc = pc.SC; ss = pc.SS
    vm = VM(k)
    k(f"s_mul_i32 s47, s{TBG}, 20480"); k(f"s_add_u32 s47, s47, {X1}"); k("s_add_u32 s48, s47, 20480")
    xl = []
    for kb in range(20):
        for tb in range(2):
            pre = ["s_add_u32 s47, s47, 4096", "s_add_u32 s48, s48, 4096"] if (tb == 0 and kb and kb % 4 == 0) else []
            xl.append((pre + [f"buffer_load_dwordx4 {xreg(kb, tb)}, v4, s[12:15], s{47+tb} offen offset:{1024*(kb%4)}{sc}"], ("X", kb)))
    k("v_lshlrev_b32 v6, 8, v3"); k("v_lshl_add_u32 v6, v2, 3, v6")
    k(f"s_lshl_b32 s37, s{TBG}, 10"); k(f"s_add_u32 s37, s37, {ST2}")
    stl = [([f"buffer_load_dwordx2 {v(8 + 4*tb + 2*h_, 2)}, v6, s[12:15], s37 offen offset:{1024*tb + 128*h_}{sc}"], "ST") for tb in range(2) for h_ in range(2)]
    q = TQ(vm, xl[:4] + stl + xl[4:] + (early or []) + tail); q.pop(14)
    k(f"s_mov_b32 s50, {f2u(GELU_C0)}"); k(f"s_mov_b32 s51, {f2u(GELU_C1)}")
    k(f"s_mov_b32 s54, {f2u(1.0/640)}"); k(f"s_mov_b32 s55, {f2u(1e-5)}")
    st = []
    for tb in range(2):
        b = 8 + 4*tb; o = 16 + 2*tb
        st += [f"v_add_f32 v{o}, v{b}, v{b+2}", f"v_add_f32 v{o+1}, v{b+1}, v{b+3}"]
    for tb in range(2):
        for o in (16 + 2*tb, 17 + 2*tb):
            t_ = 8 + (o - 16)
            st += [f"v_mov_b32 v{t_}, v{o}", f"v_permlane32_swap_b32 v{o}, v{t_}", f"v_add_f32 v{o}, v{o}, v{t_}",
                   f"v_mov_b32 v{t_}, v{o}", f"v_permlane16_swap_b32 v{o}, v{t_}", f"v_add_f32 v{o}, v{o}, v{t_}"]
    for tb in range(2):
        o = 16 + 2*tb
        st += [f"v_mul_f32 v{o}, s54, v{o}", f"v_mul_f32 v{o+1}, s54, v{o+1}", f"v_fma_f32 v{o+1}, -v{o}, v{o}, v{o+1}",
               f"v_max_f32 v{o+1}, 0, v{o+1}", f"v_add_f32 v{o+1}, s55, v{o+1}", f"v_rsq_f32 v{o+1}, v{o+1}"]
        st += gelu_scale_consts(o+1, 168 + 2*tb, 172 + tb, 50, 51)
    sq = Queue(k, [[x] for x in st])
    fq = TQ(vm, follow or [])
    ACC = 32; AF = 176; CS = 120; T = 24; PK = 148; NR = 14
    k("v_lshlrev_b32 v5, 4, v3"); k(f"v_add_u32 v5, {CSL}, v5")
    for l in range(7): k(f"ds_read_b128 {v(CS+4*l,4)}, v5 offset:{64*l}")
    k("v_add_u32 v6, 0x10000, v4"); k("v_add_u32 v7, 0x20000, v4")
    def accr(l, tb): return ACC + 16*(l//2) + 8*tb + 4*(l % 2) if l < 6 else ACC + 48 + 4*tb
    def gemm(tiles):
        seq = [(kb, l) for kb in range(20) for l in tiles]
        PRE = 11
        def rd(i):
            kb, l = seq[i]; off = l*20480 + kb*1024
            reg = "v4" if off < 65536 else ("v6" if off < 131072 else "v7")
            return f"ds_read_b128 {v(AF + 4*(i % NR),4)}, {reg} offset:{off % 65536}"
        k("s_waitcnt lgkmcnt(0)")
        for i in range(PRE): k(rd(i))
        for i, (kb, l) in enumerate(seq):
            if l == tiles[0]: vm.wait(lambda t: t == ("X", kb) or (kb >= 2 and t == "ST"))
            if l == tiles[0] and pc.X1_MERGE and kb in SPLIT_KB:
                e_ = XS + 8*SPLIT_KB.index(kb)
                k(f"v_swap_b32 v{e_+2}, v{e_+4}"); k(f"v_swap_b32 v{e_+3}, v{e_+5}")
            if WAIT2 and i % 2 == 0:
                left = min(len(seq), i + PRE) - min(len(seq), i + 2)
                k(f"s_waitcnt lgkmcnt({left})")
            elif not WAIT2:
                left = min(len(seq), i + PRE) - i - 1
                k(f"s_waitcnt lgkmcnt({left})")
            for tb in range(2):
                c = v(accr(l, tb), 4)
                k(f"v_mfma_f32_16x16x32_bf16 {c}, {v(AF + 4*(i % NR),4)}, {xreg(kb, tb)}, {c if kb else 0}")
                if tb == 0 and i + PRE < len(seq): k(rd(i + PRE))
            if l in (tiles[0], tiles[3]) or (kb >= 3 and l == tiles[1]) or (kb >= 16 and l == tiles[2]): q.pop()
            if kb >= 2: sq.pop()
            if l == tiles[2] and kb >= FOLLOW_KB and len(fq) and ((nfollow - len(fq)) >> 1) < kb: fq.pop(2 if kb >= 16 else 1)
        q.flush(); sq.flush(); fq.flush()
    k(f"s_cmp_eq_u32 s{NP}, 2"); k(f"s_cbranch_scc1 {k.lab('g5')}")
    save = (list(q.items), list(vm.ops), list(sq.g), list(fq.items))
    gemm([0, 1, 2, 3, 4, 5, 6])
    ops_after = list(vm.ops)
    k(f"s_branch {k.lab('gdone')}")
    k.label("g5")
    q.items, vm.ops, sq.g, fq.items = save
    gemm([0, 1, 2, 3, 6])
    assert vm.ops == ops_after
    k.label("gdone")
    k.stamp("gemm4")
    nq = TQ(vm, [(g, "N") for g in after_gemm(k)[nfollow:]])
    k(f"s_mul_i32 s58, s{TBG}, 55296"); k(f"s_lshr_b32 s59, s{P0}, 1"); k("s_lshl_b32 s59, s59, 10")
    k("s_add_u32 s58, s58, s59"); k(f"s_add_u32 s58, s58, {GG}"); k("s_add_u32 s59, s58, 55296")
    def epi(j, carry):
        streams = []
        for tb in range(2):
            for s_ in (range(2) if j < 3 else [0]):
                L = []; l = 2*j + s_
                for hf in range(2):
                    z = accr(l, tb) + 2*hf; t = T + 2*len(streams); st_ = 16 + 2*tb; cs = CS + 4*l + 2*hf
                    first = [f"v_pk_fma_f32 {v(z,2)}, {v(cs,2)}, {v(st_,2)}, {v(z,2)} op_sel:[0,0,0] op_sel_hi:[1,0,1] neg_lo:[1,0,0] neg_hi:[1,0,0]"]
                    L += gelu_fold(z, t, PK + 8*(j % 2) + 4*tb + 2*s_ + hf if j < 3 else PK + 2*tb + hf, 168 + 2*tb, 172 + tb, first)
                streams.append(L)
        for n, ln in enumerate(interleave(*streams)):
            k(ln)
            if carry and n % CARRY == CARRY - 1: nq.pop()
        if j < 3:
            p = PK + 8*(j % 2)
            vm.issue([f"buffer_store_dwordx4 {v(p,4)}, v4, s[12:15], s58 offen offset:{1024*j}{ss}"], "S")
            vm.issue([f"buffer_store_dwordx4 {v(p+4,4)}, v4, s[12:15], s59 offen offset:{1024*j}{ss}"], "S")
    epi(0, True); epi(1, True)
    k(f"s_cmp_eq_u32 s{NP}, 2"); k(f"s_cbranch_scc1 {k.lab('noe2')}")
    before = len(vm.ops)
    epi(2, False)
    del vm.ops[before:]
    k.label("noe2")
    epi(3, True)
    k(f"s_add_u32 s58, s{TBG}, s{ODD}"); k("s_mul_i32 s58, s58, 55296"); k(f"s_lshr_b32 s59, s{TH}, 1"); k("s_lshl_b32 s59, s59, 10")
    k("s_add_u32 s58, s58, s59"); k(f"s_add_u32 s58, s58, {GG}")
    vm.issue([f"buffer_store_dwordx4 {v(PK,4)}, v4, s[12:15], s58 offen{ss}"], "S")
    return vm, nq

def w4_l2_items(k, sbase=82):
    k(f"s_bfe_u32 s{sbase}, s2, 0x10002"); k(f"s_mul_i32 s{sbase}, s{sbase}, {20*55296}")
    k(f"s_lshr_b32 s{sbase+1}, s2, 3"); k(f"s_lshl_b32 s{sbase+1}, s{sbase+1}, 2"); k(f"s_add_u32 s{sbase+1}, s{sbase+1}, s10")
    k(f"s_mul_i32 s{sbase+1}, s{sbase+1}, 9216"); k(f"s_add_u32 s{sbase}, s{sbase}, s{sbase+1}"); k(f"s_add_u32 s{sbase}, s{sbase}, {W4T}")
    G = []
    for i in range(9):
        pre = [f"s_add_u32 s{sbase}, s{sbase}, 4096"] if (i and i % 4 == 0) else []
        G.append((pre + [f"buffer_load_dwordx4 v[164:167], v4, s[12:15], s{sbase} offen offset:{1024*(i%4)}"], "pf"))
    return G
```

```python
from ph_common import *
import ph_common as pc
from p3 import T64, FC, ODD, TBG, FB, SA, SH, WB, LB, TMP

P5_LDS = 61440
OUTSC = " sc1"
RSLOOP = 0
NWA = 64
WV = 232

def wreg(i, l):
    f = i*5 + l
    return a(4*f, 4) if f < NWA else v(WV + 4*(f - NWA), 4)

def p5_pre_setup(k):
    k(f"s_mul_i32 s{TMP}, s10, 14336")
    for l in range(5):
        k(f"s_mul_i32 s{WB+l}, s{FB+l}, 55296"); k(f"s_add_u32 s{WB+l}, s{WB+l}, s{TMP}"); k(f"s_add_u32 s{WB+l}, s{WB+l}, {W4T}")
    k("s_cmp_eq_u32 s10, 3"); k(f"s_cselect_b32 s{LB}, 0x40000000, 0")

def p5_w_group(i, l):
    hi = (i // 4) * 4096
    pre = [f"s_add_u32 s{TMP+1}, s{WB+l}, {hi}"] if hi else [f"s_mov_b32 s{TMP+1}, s{WB+l}"]
    if i >= 12: pre.append(f"s_add_u32 s{TMP+1}, s{TMP+1}, s{LB}")
    return pre + [f"buffer_load_dwordx4 {wreg(i,l)}, v4, s[12:15], s{TMP+1} offen offset:{1024*(i%4)} sc1"]

def p5_pre_early(k):
    return [p5_w_group(f // 5, f % 5) for f in range(40, 70)]

def p5_pre_late(k):
    return [p5_w_group(f // 5, f % 5) for f in range(0, 40)]

def p5_main(k):
    sc = pc.SC
    R = 100
    vm = VM(k)
    k("s_mul_i32 s36, s10, 14336")
    for j in range(4):
        k(f"s_add_u32 s37, s10, {j}"); k("s_and_b32 s37, s37, 3")
        k(f"s_lshl_b32 s38, s{T64}, 2"); k("s_add_u32 s37, s37, s38")
        k(f"s_mul_i32 s{46+j}, s37, 55296"); k(f"s_add_u32 s{46+j}, s{46+j}, s36"); k(f"s_add_u32 s{46+j}, s{46+j}, {GG}")
    k("s_cmp_eq_u32 s10, 3"); k("s_cselect_b32 s45, 0x40000000, 4096")
    XR = 124; NS = 4
    xl = []
    for i in range(14):
        for j in range(4):
            pre = [f"s_add_u32 s{46+j}, s{46+j}, {'s45' if i == 12 else 4096}"] if (i and i % 4 == 0) else []
            xl.append((pre + [f"buffer_load_dwordx4 {v(XR + 16*(i % NS) + 4*j,4)}, v4, s[12:15], s{46+j} offen offset:{1024*(i%4)}{sc}"], ("X", i)))
    res = []
    for base, reg in ((HT, R), (X1, R + 10)):
        res.append(([f"s_add_u32 s36, s{SA}, {base}", f"buffer_load_dwordx4 {v(reg,4)}, v4, s[12:15], s36 offen{sc}"], "R"))
        res.append(([f"buffer_load_dwordx4 {v(reg+4,4)}, v4, s[12:15], s36 offen offset:1024{sc}"], "R"))
        if base == X1 and pc.X1_MERGE:
            res.append(([f"s_and_b32 s37, s{TBG}, 0xfffffffe", f"s_add_u32 s37, s37, s{ODD}", "s_mul_i32 s37, s37, 20480",
                         f"s_lshr_b32 s38, s{FB+4}, 1", "s_lshl_b32 s38, s38, 10", "s_add_u32 s37, s37, s38",
                         f"s_and_b32 s38, s{TBG}, 1", "s_lshl_b32 s38, s38, 3", "s_add_u32 s37, s37, s38", f"s_add_u32 s37, s37, {X1}",
                         f"buffer_load_dwordx2 {v(reg+8,2)}, v4, s[12:15], s37 offen{sc}"], "R"))
        else:
            res.append(([f"s_add_u32 s37, s{SH}, {base}", f"buffer_load_dwordx2 {v(reg+8,2)}, v4, s[12:15], s37 offen{sc}"], "R"))
    q = TQ(vm, xl); q.pop(12)
    rq = TQ(vm, res)
    ACC = 16; U = 8; RS = 188
    rs = []
    for l in range(5):
        for hf in range(2):
            z = RS + 4*l + 2*hf
            rs += [f"v_lshlrev_b32 v{z}, 16, v{resid_src(R,l,hf)}", f"v_and_b32 v{z+1}, s36, v{resid_src(R,l,hf)}",
                   f"v_lshlrev_b32 v{U+2}, 16, v{resid_src(R+10,l,hf)}", f"v_and_b32 v{U+3}, s36, v{resid_src(R+10,l,hf)}",
                   f"v_add_f32 v{z}, v{z}, v{U+2}", f"v_add_f32 v{z+1}, v{z+1}, v{U+3}"]
    sq = Queue(k, [[x] for x in rs])
    nx = lambda: sum(1 for t in vm.ops if isinstance(t, tuple))
    for i in range(14):
        vm.wait(lambda t: t == ("X", i))
        if RSLOOP and i == RSLOOP + 7: k("s_mov_b32 s36, 0xffff0000")
        if i == 0: k.stamp("step0")
        if i in (3, 9, 10):
            xr = lambda j, r: XR + 16*(i % NS) + 4*j + r
            def swaps(pairs):
                for e, o in pairs:
                    k(f"v_swap_b32 v{xr(e,2)}, v{xr(o,0)}"); k(f"v_swap_b32 v{xr(e,3)}, v{xr(o,1)}")
            lo, ld = k.lab("sw%do" % i), k.lab("sw%dd" % i)
            if i == 9:
                k("s_cmp_lg_u32 s10, 3"); k(f"s_cbranch_scc1 {ld}")
                swaps([(1, 2), (3, 0)])
            else:
                if i == 10: k("s_cmp_eq_u32 s10, 3"); k(f"s_cbranch_scc1 {ld}")
                k("s_bitcmp1_b32 s10, 0"); k(f"s_cbranch_scc1 {lo}")
                swaps([(0, 1), (2, 3)])
                k(f"s_branch {ld}")
                k.L.append(lo + ":")
                swaps([(1, 2), (3, 0)])
            k.L.append(ld + ":")
        n = 0
        for j in range(4):
            for l in range(5):
                c = v(ACC + 20*j + 4*l, 4)
                k(f"v_mfma_f32_16x16x32_bf16 {c}, {wreg(i,l)}, {v(XR + 16*(i % NS) + 4*j,4)}, {c if i else 0}")
                n += 1
                if n % 5 == 3 and len(q) and nx() < 4*(i + NS): q.pop()
                if RSLOOP:
                    if n == 10 and RSLOOP <= i <= RSLOOP + 5: rq.pop()
                    if i >= RSLOOP + 8 and n % 4 != 0: sq.pop()
                elif n % 5 == 3 and not len(q): rq.pop()
    k.stamp("main5")
    for j in range(1, 4):
        k(f"s_add_u32 s37, s10, {j}"); k("s_and_b32 s37, s37, 3"); k("s_mul_i32 s37, s37, 15360")
        k(f"s_add_u32 s37, s37, {(j-1)*5120}")
        k(f"v_add_u32 v{5+j}, s37, v4")
    for j in range(1, 4):
        for l in range(5):
            k(f"ds_write_b128 v{5+j}, {v(ACC + 20*j + 4*l,4)} offset:{1024*l}")
    k("s_mul_i32 s37, s10, 15360")
    k("v_add_u32 v9, s37, v4")
    if not RSLOOP:
        rq.flush(); vm.wait(lambda t: t == "R"); k("s_mov_b32 s36, 0xffff0000")
    sq.flush()
    for i in range(10): k(f"v_pk_add_f32 {v(ACC+2*i,2)}, {v(ACC+2*i,2)}, {v(RS+2*i,2)}")
    k(f"s_lshl_b32 s37, s{TBG}, 4")
    k("v_add_u32 v6, s37, v2"); k("v_mul_u32_u24 v6, 1280, v6"); k("v_lshl_add_u32 v6, v3, 4, v6")
    k(f"s_lshr_b32 s37, s{FB}, 1"); k("s_lshl_b32 s37, s37, 6")
    k(f"s_lshr_b32 s38, s{FB+4}, 1"); k("s_lshl_b32 s38, s38, 6"); k(f"s_lshl_b32 s39, s{ODD}, 3"); k("s_add_u32 s38, s38, s39")
    k("s_waitcnt lgkmcnt(0)")
    k("s_barrier")
    P = 36; PK = 100
    for j in range(3):
        for l in range(5):
            k(f"ds_read_b128 {v(P + 20*j + 4*l,4)}, v9 offset:{j*5120 + 1024*l}")
    for j in range(3):
        k(f"s_waitcnt lgkmcnt({10 - 5*j})")
        for i in range(10): k(f"v_pk_add_f32 {v(ACC+2*i,2)}, {v(ACC+2*i,2)}, {v(P+20*j+2*i,2)}")
    for i in range(10): k(f"v_cvt_pk_bf16_f32 v{PK+i}, v{ACC+2*i}, v{ACC+2*i+1}")
    k(f"buffer_store_dwordx4 {v(PK,4)}, v6, s[20:23], s37 offen{OUTSC}")
    k(f"buffer_store_dwordx4 {v(PK+4,4)}, v6, s[20:23], s37 offen offset:64{OUTSC}")
    k(f"buffer_store_dwordx2 {v(PK+8,2)}, v6, s[20:23], s38 offen{OUTSC}")
```

```python
from asmlib import *
from layout import *
from common import *

def prologue(k):
    k(f"s_load_dwordx2 s[4:5], s[0:1], {WS}")
    k(f"s_load_dwordx2 s[6:7], s[0:1], {OUT}")
    k(f"s_load_dwordx2 s[8:9], s[0:1], {A_Q}")
    k("v_lshrrev_b32 v5, 6, v0")
    k("v_and_b32 v1, 63, v0")
    k("v_readfirstlane_b32 s10, v5")
    k("v_and_b32 v2, 15, v1"); k("v_lshrrev_b32 v3, 4, v1"); k("v_lshlrev_b32 v4, 4, v1")

def prologue_srd(k):
    k("s_waitcnt lgkmcnt(0)")
    k.srd(12, 4, WS_END); k.srd(16, 8, MB); k.srd(20, 6, MB)

def map_t64_fc(k, st, sf, t0, t1):
    k(f"s_and_b32 s{t0}, s2, 3"); k(f"s_lshl_b32 s{t0}, s{t0}, 3"); k(f"s_lshr_b32 s{t1}, s2, 3")
    k(f"s_and_b32 s{st}, s{t1}, 7"); k(f"s_add_u32 s{st}, s{st}, s{t0}")
    k(f"s_bfe_u32 s{t0}, s2, 0x10002"); k(f"s_lshl_b32 s{t0}, s{t0}, 2"); k(f"s_lshr_b32 s{sf}, s{t1}, 3"); k(f"s_add_u32 s{sf}, s{sf}, s{t0}")

def col5(k, sfc, sodd, sb):
    k(f"s_and_b32 s{sodd}, s{sfc}, 1")
    k(f"s_mul_i32 s{sb+5}, s{sfc}, 5")
    for l in range(4):
        k(f"s_add_u32 s{sb+l}, s{sb+5}, s{sodd}")
        if l: k(f"s_add_u32 s{sb+l}, s{sb+l}, {l}")
    k(f"s_cmp_eq_u32 s{sodd}, 0")
    k(f"s_cselect_b32 s{sb+4}, 4, 0")
    k(f"s_add_u32 s{sb+4}, s{sb+4}, s{sb+5}")

def resid_offsets(k, stb, sfb, sodd, sA, sH, tmp):
    k(f"s_mul_i32 s{tmp}, s{stb}, 20480")
    k(f"s_lshr_b32 s{sA}, s{sfb}, 1"); k(f"s_lshl_b32 s{sA}, s{sA}, 10"); k(f"s_add_u32 s{sA}, s{sA}, s{tmp}")
    k(f"s_lshr_b32 s{sH}, s{sfb+4}, 1"); k(f"s_lshl_b32 s{sH}, s{sH}, 10"); k(f"s_add_u32 s{sH}, s{sH}, s{tmp}")
    k(f"s_lshl_b32 s{tmp}, s{sodd}, 3"); k(f"s_add_u32 s{sH}, s{sH}, s{tmp}")

def resid_src(R, l, hf):
    return (R + 4*(l//2) + 2*(l % 2) + hf) if l < 4 else (R + 8 + hf)

class Queue:
    def __init__(self, k, groups): self.k = k; self.g = list(groups); self.n = 0
    def pop(self, cnt=1):
        for _ in range(cnt):
            if not self.g: return
            grp = self.g.pop(0)
            u = self.k.uniq("u") if any("@U@" in ln for ln in grp) else ""
            for ln in grp: self.k(ln.replace("@U@", u))
            self.n += 1
    def flush(self): self.pop(len(self.g))
    def __len__(self): return len(self.g)

SC = ""
SS = ""


def code_prefetch_group(k, first, last, tag, dummy, sreg=56):
    lab = k.lab("pc" + tag + "@U@")
    if first is None: first = lab
    return [f"s_getpc_b64 s[{sreg}:{sreg+1}]", lab + ":",
            f"s_add_u32 s{sreg}, s{sreg}, {first} - {lab}", f"s_addc_u32 s{sreg+1}, s{sreg+1}, 0",
            f"s_lshr_b32 s{sreg+2}, s2, 3", f"s_lshl_b32 s{sreg+2}, s{sreg+2}, 12",
            f"v_lshlrev_b32 v{dummy}, 4, v0", f"v_add_u32 v{dummy}, s{sreg+2}, v{dummy}",
            f"v_min_u32 v{dummy}, {last} - {first} - 16, v{dummy}",
            f"v_mov_b32 v{dummy+1}, s{sreg+1}", f"v_add_co_u32 v{dummy}, vcc, s{sreg}, v{dummy}",
            f"v_addc_co_u32 v{dummy+1}, vcc, 0, v{dummy+1}, vcc",
            f"global_load_dwordx4 {v(dummy+2,4)}, {v(dummy,2)}, off"]

class VM:
    def __init__(self, k): self.k = k; self.ops = []
    def issue(self, group, tag):
        u = self.k.uniq("u") if any("@U@" in ln for ln in group) else ""
        for ln in group: self.k(ln.replace("@U@", u))
        self.ops.append(tag)
    def count_after(self, pred):
        last = max(i for i, t in enumerate(self.ops) if pred(t))
        return len(self.ops) - 1 - last
    def wait(self, pred, extra=""):
        self.k(f"s_waitcnt vmcnt({min(63, self.count_after(pred))}){extra}")

class TQ:
    def __init__(self, vm, items): self.vm = vm; self.items = list(items)
    def pop(self, n=1):
        for _ in range(n):
            if not self.items: return
            g, t = self.items.pop(0); self.vm.issue(g, t)
    def flush(self): self.pop(len(self.items))
    def __len__(self): return len(self.items)

EXL = 143872
HS_MERGE = True
X1_MERGE = True
HS_REGROUP = False
OUT_T = True
```

```python
from ph_common import *
import ph_common as pc

NFIRST = 8
QL = 0; YL = 40960; STL = 81920; XL = 0
P2_LDS = 82944
TT, FQ = 24, 25

def p2_setup(k):
    k(f"s_and_b32 s{TT}, s2, 63"); k(f"s_lshr_b32 s{FQ}, s2, 6")

def p2_w_items(k):
    k(f"s_mul_i32 s26, s{FQ}, 10"); k("s_lshl_b32 s27, s10, 1"); k("s_add_u32 s26, s26, s27"); k("s_mul_i32 s26, s26, 20480")
    k(f"s_add_u32 s26, s26, {W1T}")
    k(f"s_mul_i32 s27, s{FQ}, 10"); k("s_lshr_b32 s28, s10, 1"); k("s_add_u32 s27, s27, s28"); k("s_add_u32 s27, s27, 8")
    k("s_mul_i32 s27, s27, 20480"); k(f"s_add_u32 s27, s27, {W1T}")
    k("s_add_u32 s28, s26, 20480")
    items = []
    for kb in range(20):
        for t in range(3):
            base = (26, 28, 27)[t]
            pre = [f"s_add_u32 s{base}, s{base}, 4096"] if (kb and kb % 4 == 0) else []
            items.append((pre + [f"buffer_load_dwordx4 {a((t*20+kb)*4,4)}, v4, s[12:15], s{base} offen offset:{1024*(kb%4)} sc1"], ("W", kb)))
    return items

QA = 212

def p2_pre_setup(k):
    k("s_lshl_b32 s34, s10, 3")
    k("v_add_u32 v8, s34, v3"); k("v_and_b32 v9, 15, v8"); k("v_xor_b32 v9, v9, v2")
    k(f"s_lshl_b32 s29, s{TT}, 5")
    k("v_add_u32 v10, s29, v8"); k("v_mul_u32_u24 v10, 1280, v10")
    k("v_xor_b32 v11, 4, v9")
    k(f"v_lshl_add_u32 v{QA}, v9, 4, v10"); k(f"v_lshl_add_u32 v{QA+1}, v11, 4, v10"); k(f"v_add_u32 v{QA+1}, 5120, v{QA+1}")

def p2_pre_items(k):
    items = []
    for a_ in range(2):
        for m in range(5):
            items.append(([f"s_mul_i32 s84, s10, 10240", f"s_add_u32 m0, s84, {QL + a_*5120 + 768*m}", "s_nop 0",
                           f"buffer_load_dwordx4 v{QA+a_}, s[16:19], 0 offen offset:{256*m} lds"], "q"))
    return items, p2_w_items(k)

QREG = 32

def stats_exchange(k, T):
    k("v_lshlrev_b32 v10, 4, v2"); k("v_lshl_add_u32 v11, v3, 2, v10"); k("s_lshl_b32 s37, s10, 8"); k(f"s_add_u32 s37, s37, {STL}")
    k("v_permlane32_swap_b32 v22, v26"); k("v_permlane32_swap_b32 v24, v28")
    k("v_add_u32 v11, s37, v11"); k(f"v_add_u32 v10, {STL}, v10")
    k("v_add_f32 v22, v22, v26"); k("v_add_f32 v24, v24, v28")
    k("v_permlane16_swap_b32 v22, v24")
    k("v_add_f32 v22, v22, v24")
    k("ds_write_b32 v11, v22")
    k("s_waitcnt lgkmcnt(0)")
    k("s_barrier")
    for w in range(4): k(f"ds_read_b128 {v(T+4*w,4)}, v10 offset:{256*w}")
    k("s_waitcnt lgkmcnt(0)")
    k(f"v_pk_add_f32 {v(T,2)}, {v(T,2)}, {v(T+4,2)}"); k(f"v_pk_add_f32 {v(T+2,2)}, {v(T+2,2)}, {v(T+6,2)}")
    k(f"v_pk_add_f32 {v(T+8,2)}, {v(T+8,2)}, {v(T+12,2)}"); k(f"v_pk_add_f32 {v(T+10,2)}, {v(T+10,2)}, {v(T+14,2)}")
    k(f"v_pk_add_f32 {v(T,2)}, {v(T,2)}, {v(T+8,2)}"); k(f"v_pk_add_f32 {v(T+2,2)}, {v(T+2,2)}, {v(T+10,2)}")

def p2_q_addresses(k):
    k("v_lshrrev_b32 v10, 2, v2"); k("v_mul_u32_u24 v10, 5120, v10")
    k("v_and_b32 v11, 3, v2"); k("v_lshl_add_u32 v10, v11, 8, v10")
    k("v_xor_b32 v11, v3, v2")
    k("s_mul_i32 s36, s10, 5")
    for i in range(5):
        k(f"s_add_u32 s37, s36, {i}")
        k("s_and_b32 s38, s37, 3"); k("s_lshl_b32 s38, s38, 2")
        k("s_lshr_b32 s37, s37, 2"); k("s_lshl_b32 s37, s37, 10")
        k(f"v_xor_b32 v{16+i}, s38, v11"); k(f"v_lshlrev_b32 v{16+i}, 4, v{16+i}"); k(f"v_add3_u32 v{16+i}, v{16+i}, v10, s37")

def p2_qstats(k, wait_q):
    p2_q_addresses(k)
    wait_q()
    k("s_barrier")
    for tb in range(2):
        for i in range(5): k(f"ds_read_b128 {v(QREG+4*(tb*5+i),4)}, v{16+i} offset:{QL + tb*20480}")
    for r in (22, 24, 26, 28): k(f"v_mov_b32 v{r}, 0")
    k("s_mov_b32 s38, 0x3f803f80")
    for tb in range(2):
        k(f"s_waitcnt lgkmcnt({5 - 5*tb})")
        for r in range(20):
            x = QREG + 20*tb + r
            k(f"v_dot2_f32_bf16 v{22+4*tb}, v{x}, s38, v{22+4*tb}"); k(f"v_dot2_f32_bf16 v{24+4*tb}, v{x}, v{x}, v{24+4*tb}")
    T = 192
    stats_exchange(k, T)
    k(f"s_mov_b32 s52, {f2u(1.0/640)}"); k(f"s_mov_b32 s53, {f2u(1e-5)}")
    L = [[], []]
    for tb in range(2):
        t = T + 2*tb; o = QA + 2 + 2*tb
        L[tb] = [f"v_mul_f32 v{t}, s52, v{t}", f"v_mul_f32 v{t+1}, s52, v{t+1}", f"v_fma_f32 v{t+1}, -v{t}, v{t}, v{t+1}",
                 f"v_max_f32 v{t+1}, 0, v{t+1}", f"v_add_f32 v{t+1}, s53, v{t+1}", f"v_rsq_f32 v{o}, v{t+1}", f"v_mul_f32 v{o+1}, -v{t}, v{o}"]
    for ln in interleave(*L): k(ln)

def p2_y_loads(k, vm):
    k("s_mul_i32 s32, s10, 10240"); k(f"s_add_u32 s33, s32, {YL}")
    k(f"s_mul_i32 s31, s{TT}, 40960"); k("s_add_u32 s31, s31, s32"); k(f"s_add_u32 s31, s31, {YT}")
    for grp in range(3):
        for i in range(4 if grp < 2 else 2):
            pre = [f"s_add_u32 m0, s33, {4096*grp}", "s_add_u32 s31, s31, 4096" if grp else "s_nop 0"] if i == 0 else []
            vm.issue(pre + [f"buffer_load_dwordx4 v4, s[12:15], s31 offen offset:{1024*i} sc1 lds"], "y")

def p2_main(k, wrest, tail, after_gemm, early=None):
    sc = pc.SC; ss = pc.SS
    vm = VM(k)
    p2_y_loads(k, vm)
    wq = TQ(vm, wrest)
    k(f"s_lshl_b32 s29, s{TT}, 5")
    k("v_bfe_u32 v10, v1, 2, 2"); k("v_lshl_add_u32 v10, v3, 3, v10"); k("v_lshlrev_b32 v10, 6, v10")
    k("v_and_b32 v11, 3, v1"); k("v_lshl_add_u32 v10, v11, 3, v10")
    k("v_add_u32 v21, s33, v10")
    k(f"s_and_b32 s37, s{FQ}, 1"); k("s_lshl_b32 s37, s37, 1"); k("s_sub_u32 s37, 1, s37")
    k(f"s_lshr_b32 s38, s{FQ}, 1"); k("s_lshl_b32 s37, s37, s38"); k("s_add_u32 s37, s37, s29")
    k(f"s_mul_i32 s39, s{FQ}, 5")
    k("v_lshlrev_b32 v11, 8, v3")
    k("s_add_u32 s46, s39, s10"); k("s_lshl_b32 s46, s46, 10"); k(f"s_add_u32 s46, s46, {HS}")
    k("s_add_u32 s47, s39, 4"); k("s_lshl_b32 s47, s47, 10"); k(f"s_add_u32 s47, s47, {HS}")
    k("s_lshr_b32 s38, s10, 1"); k("s_lshl_b32 s38, s38, 3"); k("s_add_u32 s47, s47, s38")
    k("s_and_b32 s38, s10, 1"); k("s_lshl_b32 s38, s38, 4")
    if pc.HS_REGROUP:
        k("v_and_b32 v10, 1, v3"); k("v_lshlrev_b32 v10, 4, v10"); k("v_add3_u32 v10, v10, v2, s37")
        k("v_cmp_le_u32 vcc, 0x800, v10"); k("s_mov_b64 s[40:41], vcc")
        k("v_and_b32 v10, 0x7ff, v10"); k("v_lshrrev_b32 v22, 4, v10"); k("v_mul_u32_u24 v22, 20480, v22")
        k("v_and_b32 v10, 15, v10"); k("v_lshlrev_b32 v10, 4, v10"); k("v_lshrrev_b32 v23, 1, v3"); k("v_lshl_add_u32 v10, v23, 8, v10")
        k("v_add3_u32 v240, v10, v22, s46")
    for dst, add, base, mask in (((242, "s38", "s47", 44),) if pc.HS_REGROUP else ((240, "0", "s46", 40), (241, "16", "s46", 42), (242, "s38", "s47", 44))):
        k("v_add_u32 v10, s37, v2")
        if add != "0": k(f"v_add_u32 v10, {add}, v10")
        k(f"v_cmp_le_u32 s[{mask}:{mask+1}], s48, v10") if False else None
        k("v_cmp_le_u32 vcc, 0x800, v10"); k(f"s_mov_b64 s[{mask}:{mask+1}], vcc")
        k("v_and_b32 v10, 0x7ff, v10"); k("v_lshrrev_b32 v22, 4, v10"); k("v_mul_u32_u24 v22, 20480, v22")
        k("v_and_b32 v10, 15, v10"); k("v_lshl_add_u32 v10, v10, 4, v11")
        k(f"v_add3_u32 v{dst}, v10, v22, {base}")
    k(f"s_mov_b32 s50, {f2u(GELU_C0)}"); k(f"s_mov_b32 s51, {f2u(GELU_C1)}")
    k(f"s_mov_b32 s52, {f2u(1.0/640)}"); k(f"s_mov_b32 s53, {f2u(1e-5)}"); k("s_mov_b32 s54, 0xffff0000")
    k.stamp("issued")
    vm.wait(lambda t: t == "y")
    k("s_barrier")
    k.stamp("loaded")
    Q = 32; Y = 72; H = 112; T = 192
    def reads(tb, i):
        f = tb*5 + i
        return [f"ds_read_b64_tr_b16 {v(Y+4*f,2)}, v21 offset:{2048*i + 32*tb}",
                f"ds_read_b64_tr_b16 {v(Y+4*f+2,2)}, v21 offset:{2048*i + 256 + 32*tb}"]
    frs = [(tb, i) for tb in range(2) for i in range(5)]
    for fr in frs[:4]:
        for ln in reads(*fr): k(ln)
    for r in range(22, 30): k(f"v_mov_b32 v{r}, 0")
    step = 0
    for fi, (tb, i) in enumerate(frs):
        f = tb*5 + i
        k(f"s_waitcnt lgkmcnt({2*(min(len(frs), fi + 4) - fi - 1)})")
        if fi + 4 < len(frs):
            for ln in reads(*frs[fi + 4]): k(ln)
        ab = QA + 2 + 2*tb
        for r in range(4):
            h = H + 8*f + 2*r; qq = T + 4*(r % 2); yy = qq + 2
            k(f"v_lshlrev_b32 v{qq}, 16, v{Q+4*f+r}"); k(f"v_and_b32 v{qq+1}, s54, v{Q+4*f+r}")
            k(f"v_lshlrev_b32 v{yy}, 16, v{Y+4*f+r}"); k(f"v_and_b32 v{yy+1}, s54, v{Y+4*f+r}")
            k(f"v_pk_fma_f32 {v(h,2)}, {v(qq,2)}, {v(ab,2)}, {v(ab,2)} op_sel:[0,0,1] op_sel_hi:[1,0,1]")
            k(f"v_pk_fma_f32 {v(h,2)}, {v(h,2)}, {v(yy,2)}, {v(qq,2)}")
            k(f"v_pk_add_f32 {v(22+4*tb,2)}, {v(22+4*tb,2)}, {v(h,2)}")
            k(f"v_pk_fma_f32 {v(24+4*tb,2)}, {v(h,2)}, {v(h,2)}, {v(24+4*tb,2)}")
            step += 1
            if step % 2 == 0: wq.pop()
    pass
    k.stamp("p15")
    for b in (22, 24, 26, 28): k(f"v_add_f32 v{b}, v{b}, v{b+1}")
    stats_exchange(k, T)
    L = [[], []]
    for tb in range(2):
        t = T + 2*tb; b = 22 + 4*tb; x = T + 8 + 4*tb
        L[tb] = [f"v_mul_f32 v{t}, s52, v{t}", f"v_mul_f32 v{t+1}, s52, v{t+1}", f"v_fma_f32 v{t+1}, -v{t}, v{t}, v{t+1}",
                 f"v_max_f32 v{t+1}, 0, v{t+1}", f"v_add_f32 v{x}, s53, v{t+1}", f"v_rsq_f32 v{b}, v{x}",
                 f"v_mul_f32 v{b+1}, -v{t}, v{b}", f"v_mul_f32 v{x}, v{b}, v{b}", f"v_fma_f32 v{x}, v{x}, v{t+1}, s53",
                 f"v_rsq_f32 v{b+2}, v{x}"] + gelu_scale_consts(b+2, 244 + 2*tb, 248 + tb, 50, 51)
    for ln in interleave(*L): k(ln)
    pass
    k.stamp("stats")
    k("s_mul_i32 s37, s10, 5120"); k("v_add_u32 v11, s37, v4")
    n = 0
    for fi, (tb, i) in enumerate(frs):
        f = tb*5 + i; b = 22 + 4*tb
        for r in range(4):
            h = H + 8*f + 2*r; t = T + 2*(r % 2)
            k(f"v_pk_fma_f32 {v(t,2)}, {v(h,2)}, {v(b,2)}, {v(b,2)} op_sel:[0,0,1] op_sel_hi:[1,0,1]")
            k(f"v_cvt_pk_bf16_f32 v{Q+4*f+r}, v{t}, v{t+1}")
        k(f"ds_write_b128 v11, {v(Q+4*f,4)} offset:{XL + tb*20480 + 1024*i}")
        wq.pop()
    k(f"s_lshl_b32 s37, s{TT}, 1"); k("s_mul_i32 s37, s37, 20"); k("s_mul_i32 s38, s10, 5"); k("s_add_u32 s37, s37, s38"); k("s_lshl_b32 s37, s37, 10")
    for q4 in range(4):
        tb = q4 & 1
        if q4 < 3: k(f"s_cmp_lg_u32 s{FQ}, {q4}"); k(f"s_cbranch_scc1 {k.lab('st%d' % (q4+1))}")
        k(f"s_add_u32 s38, s37, {(XB if q4 < 2 else HT) + tb*20480}"); k("s_add_u32 s39, s38, 4096")
        for i in range(5):
            f = tb*5 + i; src = Q + 4*f
            if q4 >= 2:
                src = Y + 4*i
                for r in range(4): k(f"v_cvt_pk_bf16_f32 v{src+r}, v{H+8*f+2*r}, v{H+8*f+2*r+1}")
            k(f"buffer_store_dwordx4 {v(src,4)}, v4, s[12:15], s{39 if i==4 else 38} offen offset:{1024*i if i<4 else 0}{ss}")
        if q4 < 3: k(f"s_branch {k.lab('stdone')}"); k.label('st%d' % (q4+1))
    k.label("stdone")
    vm.ops += ["S"] * 5
    k("s_waitcnt lgkmcnt(0)")
    k("s_barrier")
    pass
    k.stamp("xchg")
    ACC = 112; BF = 192
    k("s_and_b32 s37, s10, 1"); k("s_mul_i32 s37, s37, 20480"); k("v_add_u32 v10, s37, v4")
    def breads(kb):
        b = BF + 12*(kb % 4)
        return [f"ds_read_b128 {v(b,4)}, v4 offset:{XL + 1024*kb}", f"ds_read_b128 {v(b+4,4)}, v4 offset:{XL + 20480 + 1024*kb}",
                f"ds_read_b128 {v(b+8,4)}, v10 offset:{XL + 1024*kb}"]
    for kb in range(3):
        for ln in breads(kb): k(ln)
    wq.flush()
    tq = TQ(vm, (early or []) + (tail or []))
    for kb in range(20):
        b = BF + 12*(kb % 4); nb = min(20, kb + 3) - kb - 1
        if any(t == ("W", kb) for t in vm.ops): vm.wait(lambda t: t == ("W", kb), f" lgkmcnt({3*nb})")
        else: k(f"s_waitcnt lgkmcnt({3*nb})")
        nx = breads(kb + 3) if kb + 3 < 20 else []
        def mf(tile, t, breg):
            c = v(ACC + 4*tile, 4)
            k(f"v_mfma_f32_16x16x32_bf16 {c}, {a((t*20+kb)*4,4)}, {v(breg,4)}, {c if kb else 0}")
        mf(0, 0, b)
        if nx: k(nx[0])
        mf(1, 1, b)
        if nx: k(nx[1])
        mf(2, 0, b + 4)
        if nx: k(nx[2])
        mf(3, 1, b + 4)
        tq.pop()
        mf(4, 2, b + 8)
    tq.flush()
    k.stamp("gemm2")
    k("s_barrier")
    nq = TQ(vm, [(g, "N") for g in after_gemm(k)])
    k("s_bitcmp1_b32 s10, 0"); k("s_cselect_b64 s[56:57], -1, 0")
    k("v_cndmask_b32 v250, v244, v246, s[56:57]"); k("v_cndmask_b32 v251, v245, v247, s[56:57]"); k("v_cndmask_b32 v252, v248, v249, s[56:57]")
    PK = 40
    streams = []
    for tile in range(5):
        ab = (244, 244, 246, 246, 250)[tile]; ir = (248, 248, 249, 249, 252)[tile]; L = []
        for hf in range(2):
            L += gelu_fold(ACC + 4*tile + 2*hf, 64 + 2*tile, PK + 2*tile + hf, ab, ir)
        streams.append(L)
    for n, ln in enumerate(interleave(*streams)):
        k(ln)
    if pc.HS_MERGE:
        l0, l1 = k.lab("hsx0"), k.lab("hsx1")
        k("v_lshlrev_b32 v50, 3, v1"); k("s_and_b32 s37, s10, 1"); k("s_lshl_b32 s37, s37, 9"); k(f"s_add_u32 s37, s37, {pc.EXL}"); k("v_add_u32 v50, s37, v50")
        k("s_cmp_lt_u32 s10, 2"); k(f"s_cbranch_scc1 {l0}")
        k(f"ds_write_b64 v50, {v(PK+8,2)}")
        k.L.append(l0 + ":")
        k("s_waitcnt lgkmcnt(0)")
        k("s_barrier")
        k(f"ds_read_b64 {v(PK+10,2)}, v50")
    if pc.HS_REGROUP:
        for r in range(4): k(f"v_permlane16_swap_b32 v{PK+r}, v{PK+4+r}")
        for r in range(4): k(f"v_permlane32_swap_b32 v{PK+r}, v{PK+4+r}")
        for j in range(2):
            t0 = PK + 4*j
            for r in range(4): k(f"v_cndmask_b32_e64 v{t0+r}, v{t0+r}, 0, s[40:41]")
            vm.issue([f"buffer_store_dwordx4 {v(t0,4)}, v240, s[12:15], 0 offen offset:{512*j}{ss}"], "S")
    else:
      for tb in range(2):
        t0 = PK + 4*tb
        for r in range(4): k(f"v_cndmask_b32_e64 v{t0+r}, v{t0+r}, 0, s[{40+2*tb}:{41+2*tb}]")
        vm.issue([f"buffer_store_dwordx4 {v(t0,4)}, v{240+tb}, s[12:15], 0 offen{ss}"], "S")
    if pc.HS_MERGE:
        k("s_waitcnt lgkmcnt(0)")
        k("s_cmp_ge_u32 s10, 2"); k(f"s_cbranch_scc1 {l1}")
        for r in range(4): k(f"v_cndmask_b32_e64 v{PK+8+r}, v{PK+8+r}, 0, s[44:45]")
        k(f"buffer_store_dwordx4 {v(PK+8,4)}, v242, s[12:15], 0 offen{ss}")
        k.L.append(l1 + ":")
    else:
        for r in range(2): k(f"v_cndmask_b32_e64 v{PK+8+r}, v{PK+8+r}, 0, s[44:45]")
        vm.issue([f"buffer_store_dwordx2 {v(PK+8,2)}, v242, s[12:15], 0 offen{ss}"], "S")
    return vm, nq

def w2_l2_items(k, sbase=82):
    k(f"s_bfe_u32 s{sbase}, s2, 0x10002"); k(f"s_mul_i32 s{sbase}, s{sbase}, {20*20480}")
    k(f"s_lshr_b32 s{sbase+1}, s2, 3"); k(f"s_lshl_b32 s{sbase+1}, s{sbase+1}, 2"); k(f"s_add_u32 s{sbase+1}, s{sbase+1}, s10")
    k(f"s_lshl_b32 s{sbase+1}, s{sbase+1}, 12"); k(f"s_add_u32 s{sbase}, s{sbase}, s{sbase+1}"); k(f"s_add_u32 s{sbase}, s{sbase}, {W2T}")
    return [([f"buffer_load_dwordx4 v[132:135], v4, s[12:15], s{sbase} offen offset:{1024*i}"], "pf") for i in range(4)]
```

```python
from ph_common import *
import ph_common as pc
from p3 import T64, FC, ODD, TBG, FB, SA, SH, WB, LB, TMP

P5_LDS = 61440
OUTSC = " sc1"
RSLOOP = 0
NWA = 64
WV = 232

def wreg(i, l):
    f = i*5 + l
    return a(4*f, 4) if f < NWA else v(WV + 4*(f - NWA), 4)

def p5_pre_setup(k):
    k(f"s_mul_i32 s{TMP}, s10, 14336")
    for l in range(5):
        k(f"s_mul_i32 s{WB+l}, s{FB+l}, 55296"); k(f"s_add_u32 s{WB+l}, s{WB+l}, s{TMP}"); k(f"s_add_u32 s{WB+l}, s{WB+l}, {W4T}")
    k("s_cmp_eq_u32 s10, 3"); k(f"s_cselect_b32 s{LB}, 0x40000000, 0")

def p5_w_group(i, l):
    hi = (i // 4) * 4096
    pre = [f"s_add_u32 s{TMP+1}, s{WB+l}, {hi}"] if hi else [f"s_mov_b32 s{TMP+1}, s{WB+l}"]
    if i >= 12: pre.append(f"s_add_u32 s{TMP+1}, s{TMP+1}, s{LB}")
    return pre + [f"buffer_load_dwordx4 {wreg(i,l)}, v4, s[12:15], s{TMP+1} offen offset:{1024*(i%4)} sc1"]

def p5_pre_early(k):
    return [p5_w_group(f // 5, f % 5) for f in range(40, 70)]

def p5_pre_late(k):
    return [p5_w_group(f // 5, f % 5) for f in range(0, 40)]

def p5_main(k):
    sc = pc.SC
    R = 100
    vm = VM(k)
    k("s_mul_i32 s36, s10, 14336")
    for j in range(4):
        k(f"s_add_u32 s37, s10, {j}"); k("s_and_b32 s37, s37, 3")
        k(f"s_lshl_b32 s38, s{T64}, 2"); k("s_add_u32 s37, s37, s38")
        k(f"s_mul_i32 s{46+j}, s37, 55296"); k(f"s_add_u32 s{46+j}, s{46+j}, s36"); k(f"s_add_u32 s{46+j}, s{46+j}, {GG}")
    k("s_cmp_eq_u32 s10, 3"); k("s_cselect_b32 s45, 0x40000000, 4096")
    XR = 124; NS = 4
    xl = []
    for i in range(14):
        for j in range(4):
            pre = [f"s_add_u32 s{46+j}, s{46+j}, {'s45' if i == 12 else 4096}"] if (i and i % 4 == 0) else []
            xl.append((pre + [f"buffer_load_dwordx4 {v(XR + 16*(i % NS) + 4*j,4)}, v4, s[12:15], s{46+j} offen offset:{1024*(i%4)}{sc}"], ("X", i)))
    res = []
    for base, reg in ((HT, R), (X1, R + 10)):
        res.append(([f"s_add_u32 s36, s{SA}, {base}", f"buffer_load_dwordx4 {v(reg,4)}, v4, s[12:15], s36 offen{sc}"], "R"))
        res.append(([f"buffer_load_dwordx4 {v(reg+4,4)}, v4, s[12:15], s36 offen offset:1024{sc}"], "R"))
        if base == X1 and pc.X1_MERGE:
            res.append(([f"s_and_b32 s37, s{TBG}, 0xfffffffe", f"s_add_u32 s37, s37, s{ODD}", "s_mul_i32 s37, s37, 20480",
                         f"s_lshr_b32 s38, s{FB+4}, 1", "s_lshl_b32 s38, s38, 10", "s_add_u32 s37, s37, s38",
                         f"s_and_b32 s38, s{TBG}, 1", "s_lshl_b32 s38, s38, 3", "s_add_u32 s37, s37, s38", f"s_add_u32 s37, s37, {X1}",
                         f"buffer_load_dwordx2 {v(reg+8,2)}, v4, s[12:15], s37 offen{sc}"], "R"))
        else:
            res.append(([f"s_add_u32 s37, s{SH}, {base}", f"buffer_load_dwordx2 {v(reg+8,2)}, v4, s[12:15], s37 offen{sc}"], "R"))
    q = TQ(vm, xl); q.pop(12)
    rq = TQ(vm, res)
    ACC = 16; U = 8; RS = 188
    rs = []
    for l in range(5):
        for hf in range(2):
            z = RS + 4*l + 2*hf
            rs += [f"v_lshlrev_b32 v{z}, 16, v{resid_src(R,l,hf)}", f"v_and_b32 v{z+1}, s36, v{resid_src(R,l,hf)}",
                   f"v_lshlrev_b32 v{U+2}, 16, v{resid_src(R+10,l,hf)}", f"v_and_b32 v{U+3}, s36, v{resid_src(R+10,l,hf)}",
                   f"v_add_f32 v{z}, v{z}, v{U+2}", f"v_add_f32 v{z+1}, v{z+1}, v{U+3}"]
    sq = Queue(k, [[x] for x in rs])
    nx = lambda: sum(1 for t in vm.ops if isinstance(t, tuple))
    for i in range(14):
        vm.wait(lambda t: t == ("X", i))
        if RSLOOP and i == RSLOOP + 7: k("s_mov_b32 s36, 0xffff0000")
        if i == 0: k.stamp("step0")
        if i in (3, 9, 10):
            xr = lambda j, r: XR + 16*(i % NS) + 4*j + r
            def swaps(pairs):
                for e, o in pairs:
                    k(f"v_swap_b32 v{xr(e,2)}, v{xr(o,0)}"); k(f"v_swap_b32 v{xr(e,3)}, v{xr(o,1)}")
            lo, ld = k.lab("sw%do" % i), k.lab("sw%dd" % i)
            if i == 9:
                k("s_cmp_lg_u32 s10, 3"); k(f"s_cbranch_scc1 {ld}")
                swaps([(1, 2), (3, 0)])
            else:
                if i == 10: k("s_cmp_eq_u32 s10, 3"); k(f"s_cbranch_scc1 {ld}")
                k("s_bitcmp1_b32 s10, 0"); k(f"s_cbranch_scc1 {lo}")
                swaps([(0, 1), (2, 3)])
                k(f"s_branch {ld}")
                k.L.append(lo + ":")
                swaps([(1, 2), (3, 0)])
            k.L.append(ld + ":")
        n = 0
        for j in range(4):
            for l in range(5):
                c = v(ACC + 20*j + 4*l, 4)
                k(f"v_mfma_f32_16x16x32_bf16 {c}, {wreg(i,l)}, {v(XR + 16*(i % NS) + 4*j,4)}, {c if i else 0}")
                n += 1
                if n % 5 == 3 and len(q) and nx() < 4*(i + NS): q.pop()
                if RSLOOP:
                    if n == 10 and RSLOOP <= i <= RSLOOP + 5: rq.pop()
                    if i >= RSLOOP + 8 and n % 4 != 0: sq.pop()
                elif n % 5 == 3 and not len(q): rq.pop()
    k.stamp("main5")
    for j in range(1, 4):
        k(f"s_add_u32 s37, s10, {j}"); k("s_and_b32 s37, s37, 3"); k("s_mul_i32 s37, s37, 15360")
        k(f"s_add_u32 s37, s37, {(j-1)*5120}")
        k(f"v_add_u32 v{5+j}, s37, v4")
    for j in range(1, 4):
        for l in range(5):
            k(f"ds_write_b128 v{5+j}, {v(ACC + 20*j + 4*l,4)} offset:{1024*l}")
    k("s_mul_i32 s37, s10, 15360")
    k("v_add_u32 v9, s37, v4")
    if not RSLOOP:
        rq.flush(); vm.wait(lambda t: t == "R"); k("s_mov_b32 s36, 0xffff0000")
    sq.flush()
    for i in range(10): k(f"v_pk_add_f32 {v(ACC+2*i,2)}, {v(ACC+2*i,2)}, {v(RS+2*i,2)}")
    k(f"s_lshl_b32 s37, s{TBG}, 4")
    k("v_add_u32 v6, s37, v2"); k("v_mul_u32_u24 v6, 1280, v6"); k("v_lshl_add_u32 v6, v3, 4, v6")
    k(f"s_lshr_b32 s37, s{FB}, 1"); k("s_lshl_b32 s37, s37, 6")
    k(f"s_lshr_b32 s38, s{FB+4}, 1"); k("s_lshl_b32 s38, s38, 6"); k(f"s_lshl_b32 s39, s{ODD}, 3"); k("s_add_u32 s38, s38, s39")
    k("s_waitcnt lgkmcnt(0)")
    k("s_barrier")
    P = 36; PK = 100
    for j in range(3):
        for l in range(5):
            k(f"ds_read_b128 {v(P + 20*j + 4*l,4)}, v9 offset:{j*5120 + 1024*l}")
    for j in range(3):
        k(f"s_waitcnt lgkmcnt({10 - 5*j})")
        for i in range(10): k(f"v_pk_add_f32 {v(ACC+2*i,2)}, {v(ACC+2*i,2)}, {v(P+20*j+2*i,2)}")
    for i in range(10): k(f"v_cvt_pk_bf16_f32 v{PK+i}, v{ACC+2*i}, v{ACC+2*i+1}")
    k(f"buffer_store_dwordx2 {v(PK+8,2)}, v6, s[20:23], s38 offen{OUTSC}") if pc.OUT_T else None
    if pc.OUT_T:
        k("s_mul_i32 s39, s10, 2304"); k("s_add_u32 s39, s39, 61440")
        k("v_mul_u32_u24 v7, 144, v2"); k("v_lshl_add_u32 v7, v3, 4, v7"); k("v_add_u32 v7, s39, v7")
        k(f"ds_write_b128 v7, {v(PK,4)}"); k(f"ds_write_b128 v7, {v(PK+4,4)} offset:64")
        k("v_lshrrev_b32 v8, 3, v1"); k("v_and_b32 v9, 7, v1"); k("v_lshlrev_b32 v9, 4, v9")
        k("v_mul_u32_u24 v10, 144, v8"); k("v_add3_u32 v10, v10, v9, s39")
        k(f"s_lshl_b32 s39, s{TBG}, 4"); k("v_add_u32 v8, s39, v8"); k("v_mul_u32_u24 v8, 1280, v8"); k("v_add_u32 v8, v8, v9")
        k("s_waitcnt lgkmcnt(0)")
        k(f"ds_read_b128 {v(PK,4)}, v10"); k(f"ds_read_b128 {v(PK+4,4)}, v10 offset:{8*144}")
        k("s_add_u32 s39, s37, 10240")
        k("s_waitcnt lgkmcnt(1)")
        k(f"buffer_store_dwordx4 {v(PK,4)}, v8, s[20:23], s37 offen{OUTSC}")
        k("s_waitcnt lgkmcnt(0)")
        k(f"buffer_store_dwordx4 {v(PK+4,4)}, v8, s[20:23], s39 offen{OUTSC}")
    else:
        k(f"buffer_store_dwordx4 {v(PK,4)}, v6, s[20:23], s37 offen{OUTSC}")
        k(f"buffer_store_dwordx4 {v(PK+4,4)}, v6, s[20:23], s37 offen offset:64{OUTSC}")
        k(f"buffer_store_dwordx2 {v(PK+8,2)}, v6, s[20:23], s38 offen{OUTSC}")
```

```python
from ph_common import *
import ph_common as pc
import p2, p3, p4, p5

LDS = p4.P4_LDS + 1024
C2, C3, C4 = CNT, CNT + 64*128, CNT + 128*128
C0, C1, CPA, CPB = CNT + 192*128, CNT + 232*128, CNT + 240*128, CNT + 241*128
FLG = None
FALL = CNT + 242*128
C1D = CNT + 256*128
S1DIRECT = False
W4L2 = True
TOUCH = 0
PF_ALL = True
PF_JIT = False
CODEFIRST = False
SPIN_LIMIT = 200000
SG, SG2 = 84, 85
NFOLLOW = 0
WGAP = 6
BGATE = False
HEARLY = False
NPRE = [0]
PREFALL = 0
HLATE = False
QEARLY = True
QWARM = False
WSTART = 2
NWLOOP = 36
NWA = 48
PFSTART = 1
PFGAP = 6
DRAIN_LOADS = 10
MID = (99, 99, 16)
ONLY = None
CPY = 4160
WREG = 4608 + 2*CPY
CONVL = 92160
KVL = 17408
YOL = 45056
KVO = 2*KVL

def atomic_signal(k, offset_code, lab, target, flag_code=None, first=False):
    if target is None:
        k("s_cmp_lg_u32 s10, 0"); k(f"s_cbranch_scc1 {lab}")
        if first: wait_init(k)
        for ln in offset_code: k(ln)
        k("v_mov_b32 v5, 0"); k("v_mov_b32 v6, 1")
        k("s_mov_b64 exec, 1")
        k(f"buffer_atomic_add v6, v5, s[12:15], s{SG} offen sc1")
        k("s_mov_b64 exec, -1")
        k.L.append(lab + ":")
        return
    k("s_cmp_lg_u32 s10, 0"); k(f"s_cbranch_scc1 {lab}")
    if first: wait_init(k)
    for ln in offset_code: k(ln)
    k("v_mov_b32 v5, 0"); k("v_mov_b32 v6, 1")
    k("s_mov_b64 exec, 1")
    k(f"buffer_atomic_add v6, v5, s[12:15], s{SG} offen sc0 sc1")
    for ln in (flag_code or [f"s_add_u32 s{SG}, s{SG}, {FLG}"]): k(ln)
    k("s_waitcnt vmcnt(0)")
    k.stamp("atom%d" % target + lab[-2:])
    k(f"v_cmp_eq_u32 vcc, {target - 1}, v6")
    k("v_mov_b32 v6, 1")
    k("s_and_b64 exec, exec, vcc")
    k(f"s_cbranch_execz {lab}_x")
    k(f"buffer_store_dword v6, v5, s[12:15], s{SG} offen sc1")
    k.L.append(lab + "_x:")
    k("s_mov_b64 exec, -1")
    k.L.append(lab + ":")

def signal(k, vm, nq, offset_code, target, flag_code=None, first=False):
    lab = k.lab(k.uniq("sig"))
    if nq: nq.pop(DRAIN_LOADS)
    if vm: vm.wait(lambda t: t == "S")
    else: k("s_waitcnt vmcnt(0)")
    k.stamp("drained%d" % k._n)
    if first:
        l2 = k.lab(k.uniq("fi"))
        k("s_cmp_lg_u32 s10, 0"); k(f"s_cbranch_scc1 {l2}")
        wait_init(k)
        k.L.append(l2 + ":")
    k("s_barrier")
    atomic_signal(k, offset_code, lab, target, flag_code, False)

def poll(k, addr_code, target_reg_code, va=5, vd=6, vt=7):
    lab = k.lab(k.uniq("pl")); loop = lab + "_l"
    for ln in addr_code + target_reg_code: k(ln)
    k(f"s_mov_b32 s{SG2}, 0")
    k.L.append(loop + ":")
    k(f"buffer_load_dword v{vd}, v{va}, s[12:15], 0 offen sc1")
    k(f"s_add_u32 s{SG2}, s{SG2}, 1")
    k("s_waitcnt vmcnt(0)")
    k(f"v_cmp_gt_u32 vcc, v{vt}, v{vd}")
    k(f"s_cmp_gt_u32 s{SG2}, {SPIN_LIMIT}"); k(f"s_cbranch_scc1 {lab}")
    k(f"s_cbranch_vccnz {loop}")
    k.L.append(lab + ":")

def wait_counters(k, nq, addr_code, target_code, all_waves_drain, before_barrier=None, mid=0, idle_loads=None):
    lab = k.lab(k.uniq("wt"))
    if nq: nq.pop(mid)
    k("s_cmp_lg_u32 s10, 0"); k(f"s_cbranch_scc1 {lab}")
    k.stamp("prepoll" + lab[-2:])
    poll(k, addr_code, target_code)
    k.stamp("polled" + lab[-2:])
    k.L.append(lab + ":")
    if nq: nq.flush()
    if all_waves_drain and idle_loads:
        l1, l2 = k.lab(k.uniq("il")), k.lab(k.uniq("il"))
        k("s_cmp_eq_u32 s10, 0"); k(f"s_cbranch_scc1 {l1}")
        for g in idle_loads:
            for ln in g: k(ln)
        k(f"s_waitcnt vmcnt({sum(1 for g in idle_loads if any('buffer_load' in x for x in g))})"); k(f"s_branch {l2}")
        k.L.append(l1 + ":")
        k("s_waitcnt vmcnt(0)")
        k.L.append(l2 + ":")
    elif all_waves_drain: k("s_waitcnt vmcnt(0)")
    if before_barrier: before_barrier(k)
    k("s_barrier")

def cpa_sample(): return [f"v_mov_b32 v220, {FALL + 8*128}", "buffer_load_dword v219, v220, s[12:15], 0 offen sc1"]
def cpa_check(k):
    ok = k.lab(k.uniq("cpaok"))
    k("v_cmp_eq_u32 vcc, 0, v219"); k(f"s_cbranch_vccz {ok}")
    poll(k, [f"v_mov_b32 v5, {FALL + 8*128}"], ["v_mov_b32 v7, 1"])
    k.L.append(ok + ":")

def shard_addr(base): return ["v_and_b32 v5, 7, v1", "v_lshlrev_b32 v5, 7, v5", f"v_add_u32 v5, {base}, v5"]
def own_shard(base): return [f"s_and_b32 s{SG}, s2, 7", f"s_lshl_b32 s{SG}, s{SG}, 7", f"s_add_u32 s{SG}, s{SG}, {base}"]

def init_srd(k):
    k("s_mov_b32 s74, 256"); k("s_mov_b32 s75, 0x20000")

def wait_init(k):
    lab = k.lab(k.uniq("in")); loop = lab + "_l"
    k("v_mov_b32 v5, 0"); k(f"s_mov_b32 s{SG2}, 0")
    k.L.append(loop + ":")
    k("buffer_load_dword v6, v5, s[72:75], 0 offen sc1")
    k(f"s_add_u32 s{SG2}, s{SG2}, 1")
    k("s_waitcnt vmcnt(0)")
    k("v_cmp_eq_u32 vcc, 0, v6")
    k(f"s_cmp_gt_u32 s{SG2}, {SPIN_LIMIT}"); k(f"s_cbranch_scc1 {lab}")
    k(f"s_cbranch_vccnz {loop}")
    k.L.append(lab + ":")

def vm_after(vm):
    return vm

def kv_wait_touch(k):
    a_, b_, c_ = k.lab("kvt0"), k.lab("kvt1"), k.lab("kvt2")
    k("s_cmp_lt_u32 s2, 8"); k(f"s_cbranch_scc1 {a_}")
    k("s_waitcnt vmcnt(1)"); k(f"s_branch {c_}")
    k.L.append(a_ + ":")
    k("s_cmp_eq_u32 s10, 3"); k(f"s_cbranch_scc1 {b_}")
    k("s_waitcnt vmcnt(4)"); k(f"s_branch {c_}")
    k.L.append(b_ + ":")
    k("s_waitcnt vmcnt(8)")
    k.L.append(c_ + ":")

def page_touch(k):
    lab = k.lab("notouch")
    k("s_cmp_ge_u32 s2, 8"); k(f"s_cbranch_scc1 {lab}")
    k(f"s_mov_b32 s26, {TOUCH}"); k("v_mul_lo_u32 v179, v1, s26")
    k("s_cmp_eq_u32 s10, 3"); k(f"s_cbranch_scc1 {k.lab('touch3')}")
    k(f"s_mul_i32 s27, s10, {192*TOUCH}")
    for j in range(3):
        k("buffer_load_dword v186, v179, s[12:15], s27 offen"); k(f"s_add_u32 s27, s27, {64*TOUCH}")
    k(f"s_branch {lab}")
    k.label("touch3")
    k("buffer_load_dword v186, v179, s[16:19], 0 offen"); k("buffer_load_dword v186, v179, s[20:23], 0 offen")
    k("s_mov_b32 s87x, 0".replace("s87x", "s27"))
    for lo, n in ((42, MB), (76, D*D*2), (78, D*D*2), (80, D*F*2), (82, D*F*2)):
        k(f"s_mov_b32 s48, s{lo}"); k(f"s_mov_b32 s49, s{lo+1}"); k(f"s_mov_b32 s50, {n}"); k("s_mov_b32 s51, 0x20000")
        k("buffer_load_dword v186, v179, s[48:51], 0 offen")
    k.L.append(lab + ":")

def w4_l2_groups():
    G = [["s_bfe_u32 s82, s2, 0x10002", f"s_mul_i32 s82, s82, {20*55296}", "s_lshr_b32 s83, s2, 3", "s_mul_i32 s83, s83, 3", "s_add_u32 s83, s83, s10",
          "s_sub_u32 s83, s83, 1", "s_mul_i32 s83, s83, 12288", "s_add_u32 s82, s82, s83", f"s_add_u32 s82, s82, {W4T}"]]
    for i in range(12):
        pre = ["s_add_u32 s82, s82, 4096"] if (i and i % 4 == 0) else []
        G.append(pre + [f"buffer_load_dwordx4 v[164:167], v4, s[12:15], s82 offen offset:{1024*(i%4)}"])
    return G

def kv_issue(k, vm):
    k("s_sub_u32 s29, s2, 160"); k("s_cmp_lt_u32 s29, 78"); k("s_cselect_b32 s29, 2, 1")
    for j in range(2):
        k(f"s_add_u32 s26, s2, {82*j}")
        k("s_mul_hi_u32 s27, s26, 0x1999999a"); k("s_mul_i32 s28, s27, 10"); k("s_sub_u32 s28, s26, s28")
        k(f"s_lshl_b32 s{30+2*j}, s27, 6"); k(f"s_lshl_b32 s{31+2*j}, s28, 6")
    k("v_lshrrev_b32 v5, 3, v0"); k("v_and_b32 v6, 7, v0"); k("v_lshlrev_b32 v6, 4, v6")
    k("s_waitcnt lgkmcnt(0)")
    k.srd(48, 36, MB); k.srd(52, 38, MB); k.srd(56, 40, D*8)
    k("s_lshl_b32 s26, s10, 10"); k("s_mov_b32 s27, 40960")
    for j in range(2):
        b = j*KVL
        if j == 1: k("s_cmp_lt_u32 s29, 2"); k(f"s_cbranch_scc1 {k.lab('kv1')}")
        k(f"v_add_u32 v{8+j}, s{30+2*j}, v5"); k(f"v_mul_u32_u24 v{8+j}, 1280, v{8+j}")
        k(f"s_lshl_b32 s28, s{31+2*j}, 1"); k(f"v_add3_u32 v{8+j}, v{8+j}, v6, s28")
        k(f"v_subrev_u32 v{10+j}, 3840, v{8+j}")
        G = [[f"s_add_u32 m0, s26, {b}", "s_nop 0", f"buffer_load_dwordx4 v{10+j}, s[48:51], 0 offen lds"],
             [f"s_add_u32 m0, s26, {b + 4096}", f"v_add_u32 v7, 40960, v{10+j}", "buffer_load_dwordx4 v7, s[48:51], 0 offen lds"],
             [f"s_add_u32 m0, s26, {b + 9216}", "s_nop 0", f"buffer_load_dwordx4 v{8+j}, s[52:55], 0 offen lds"],
             [f"s_add_u32 m0, s26, {b + 13312}", "s_nop 0", f"buffer_load_dwordx4 v{8+j}, s[52:55], s27 offen lds"],
             [f"s_mov_b32 m0, {b + 8192}", "v_lshrrev_b32 v7, 3, v1", f"v_add_u32 v7, s{30+2*j}, v7", "v_mul_u32_u24 v7, 1280, v7",
              "v_and_b32 v18, 7, v1", "v_lshlrev_b32 v18, 4, v18", f"s_lshl_b32 s28, s{31+2*j}, 1", "v_add3_u32 v7, v7, v18, s28",
              "v_add_u32 v7, 78080, v7", "buffer_load_dwordx4 v7, s[48:51], 0 offen lds"],
             [f"v_add_u32 v{16+j}, s{31+2*j}, v1", f"v_lshlrev_b32 v{16+j}, 3, v{16+j}", f"buffer_load_dwordx2 {v(12+2*j,2)}, v{16+j}, s[56:59], 0 offen"]]
        for g in G:
            if j == 0: vm.issue(g, "kv")
            else:
                for ln in g: k(ln)
    k.label("kv1")

def kv_compute(k):
    k("v_and_b32 v10, 15, v1"); k("v_lshrrev_b32 v11, 2, v10"); k("s_lshl_b32 s42, s10, 4"); k("v_add_u32 v11, s42, v11")
    k("v_lshlrev_b32 v11, 7, v11"); k("v_and_b32 v10, 3, v10"); k("v_lshlrev_b32 v10, 3, v10"); k("v_lshlrev_b32 v16, 5, v3")
    k("v_add3_u32 v11, v11, v10, v16")
    k("s_mov_b32 s45, 0"); k("s_mov_b32 s46, 0xffff0000"); k(f"s_mov_b32 s47, {KVO}")
    k(".p2align 3")
    k.label("kvloop")
    k("v_mul_u32_u24 v9, 144, v1"); k("s_lshl_b32 s43, s10, 5"); k(f"s_sub_u32 s43, {KVO + 96}, s43"); k("v_add_u32 v9, s43, v9")
    KR = 16; VR = 26; KF = 38
    for i in range(5): k(f"ds_read_b64_tr_b16 {v(KR+2*i,2)}, v11 offset:{512*i}")
    for i in range(4): k(f"ds_read_b64_tr_b16 {v(VR+2*i,2)}, v11 offset:{9216+512*i}")
    k("v_lshlrev_b32 v34, 16, v12"); k("v_and_b32 v35, s46, v12"); k("v_lshlrev_b32 v36, 16, v13"); k("v_and_b32 v37, s46, v13")
    k("s_waitcnt lgkmcnt(4)")
    for i in range(10):
        k(f"v_lshlrev_b32 v{KF+2*i}, 16, v{KR+i}"); k(f"v_and_b32 v{KF+2*i+1}, s46, v{KR+i}")
    k("s_waitcnt lgkmcnt(0)")
    OUTR = 58
    for half in (1, 0):
        for pr in range(4):
            es = (8*half + 7 - 2*pr, 8*half + 6 - 2*pr)
            for j, e in enumerate(es):
                t = 16 + j
                k(f"v_mul_f32 v{t}, v34, v{KF+e+3}"); k(f"v_fmac_f32 v{t}, v35, v{KF+e+2}")
                k(f"v_fmac_f32 v{t}, v36, v{KF+e+1}"); k(f"v_fmac_f32 v{t}, v37, v{KF+e}")
                vr = VR + e//2
                if e % 2 == 0: k(f"v_lshlrev_b32 v{18+j}, 16, v{vr}")
                else: k(f"v_and_b32 v{18+j}, s46, v{vr}")
                k(f"v_mul_f32 v{t}, v{t}, v{18+j}")
            k(f"v_cvt_pk_bf16_f32 v{OUTR+pr}, v16, v17")
        k(f"ds_write_b128 v9, {v(OUTR,4)} offset:{16*(1-half)}")
        OUTR = 20
    k("v_lshrrev_b32 v5, 3, v1"); k("v_add_u32 v5, s42, v5"); k("v_and_b32 v6, 7, v1"); k("v_lshlrev_b32 v6, 4, v6")
    k("v_mul_u32_u24 v7, 144, v5"); k(f"v_add3_u32 v7, v7, v6, s47")
    k("v_add_u32 v5, s31, v5"); k("v_lshlrev_b32 v5, 12, v5"); k("v_add_u32 v5, v5, v6")
    k("s_sub_u32 s43, 1984, s30"); k("s_lshl_b32 s43, s43, 1"); k(f"s_add_u32 s43, s43, {UR}"); k("s_add_u32 s44, s43, 32768")
    k("s_waitcnt lgkmcnt(0)")
    k("s_barrier")
    k("ds_read_b128 v[16:19], v7"); k("ds_read_b128 v[20:23], v7 offset:1152")
    k("s_waitcnt lgkmcnt(1)")
    k("buffer_store_dwordx4 v[16:19], v5, s[12:15], s43 offen sc1")
    k("s_waitcnt lgkmcnt(0)")
    k("buffer_store_dwordx4 v[20:23], v5, s[12:15], s44 offen sc1")
    k("s_add_u32 s45, s45, 1"); k("s_cmp_ge_u32 s45, s29"); k(f"s_cbranch_scc1 {k.lab('kvexit')}")
    k(f"s_waitcnt vmcnt({(3 if CODEFIRST else 4) + NPRE[0]})")
    k("s_barrier")
    k("s_mov_b32 s30, s32"); k("s_mov_b32 s31, s33")
    k("v_mov_b32 v12, v14"); k("v_mov_b32 v13, v15"); k(f"v_add_u32 v11, {KVL}, v11")
    k(f"s_branch {k.lab('kvloop')}")
    k.label("kvexit")

HB = 128; E = 168
def conv_h_issue(k, vm):
    k("s_lshl_b32 s83, s2, 2"); k("s_add_u32 s83, s83, s10")
    k("s_lshl_b32 s35, s83, 12")
    k(f"s_mul_i32 s82, s10, {WREG}"); k(f"s_add_u32 s82, s82, {CONVL}")
    k("v_subrev_u32 v5, 32, v4"); k("v_add_u32 v6, 16, v5")
    k("s_lshl_b32 s28, s83, 1"); k("v_mov_b32 v19, s28")
    k("s_add_u32 s76, s76, s35"); k("s_addc_u32 s77, s77, 0")
    k("s_mov_b32 s78, 4096"); k("s_mov_b32 s79, 0x20000")
    for q in range(5):
        vm.issue([f"buffer_load_dwordx4 {v(HB+8*q,4)}, v5, s[76:79], 0 offen"], ("h", q))
        vm.issue([f"buffer_load_dword v{HB+8*q+4}, v6, s[76:79], 0 offen"] + (["v_add_u32 v5, 1024, v5", "v_add_u32 v6, 1024, v6"] if q < 4 else []), ("h", q))
    k("v_subrev_u32 v5, 32, v4")
    vm.issue(["s_add_u32 m0, s82, 4608", "s_nop 0", "buffer_load_dwordx4 v5, s[76:79], 0 offen lds"], "h0")
    k("s_add_u32 m0, s82, %d" % (4608 + 1024)); k("v_add_u32 v5, 1024, v5")
    for q in range(3): vm.issue([f"buffer_load_dwordx4 v5, s[76:79], 0 offen offset:{1024*q} lds"], "h0")
    k("s_add_u32 m0, s82, %d" % (4608 + 4096)); k("v_add_u32 v5, 3072, v5")
    vm.issue(["s_mov_b64 exec, 15", "buffer_load_dwordx4 v5, s[76:79], 0 offen lds", "s_mov_b64 exec, -1"], "h0")
    k("s_mov_b32 s44, s80"); k("s_mov_b32 s45, s81"); k(f"s_mov_b32 s46, {D*2}"); k("s_mov_b32 s47, 0x20000")
    vm.issue(["buffer_load_ushort v176, v19, s[44:47], 0 offen"], "D")

def conv_h_copy1(k):
    k("s_add_u32 s42, s82, %d" % (4608 + CPY)); k("v_add_u32 v5, s42, v4")
    for q in range(5):
        x = HB + 8*q
        if q == 4: k("s_mov_b64 exec, 15")
        for i in range(4): k(f"v_alignbit_b32 v{E+4*(q%2)+i}, v{x+i+1}, v{x+i}, 16")
        k(f"ds_write_b128 v5, {v(E+4*(q%2),4)} offset:{1024*q}")
    k("s_mov_b64 exec, -1")

def conv_main(k, prefetch_items, wloop, q0):
    vm = VM(k)
    k(f"s_lshl_b32 s35, s83, 12"); k(f"s_add_u32 s36, s35, {UR}")
    k("s_mov_b32 m0, s82"); k("s_nop 0")
    for j in range(4): vm.issue([f"buffer_load_dwordx4 v4, s[12:15], s36 offen offset:{1024*j} sc1 lds"], "ur")
    k("v_mov_b32 v8, 0"); k("v_mov_b32 v9, 0"); k("v_lshlrev_b32 v7, 3, v1"); k("v_add_u32 v7, s82, v7")
    k("ds_write_b64 v7, v[8:9] offset:4096")
    k("v_add_u32 v13, 1, v2"); k("v_and_b32 v14, 1, v13"); k(f"v_mul_u32_u24 v12, {CPY}, v14")
    k("v_sub_u32 v13, v13, v14"); k("v_lshlrev_b32 v13, 1, v13"); k("v_lshl_add_u32 v13, v3, 4, v13")
    k("s_add_u32 s38, s82, 4608"); k("v_add3_u32 v12, v12, v13, s38")
    for j in range(1, 4): k(f"v_add_u32 v{103+j}, {1024*j}, v12")
    k("v_lshlrev_b32 v13, 5, v2"); k("v_lshlrev_b32 v14, 4, v3"); k("v_sub_u32 v13, v14, v13")
    k("s_add_u32 s39, s82, 480"); k("v_add_u32 v13, s39, v13")
    AP = 100
    k("v_sub_u32 v16, 15, v2"); k("v_lshrrev_b32 v17, 3, v16"); k("v_and_b32 v16, 7, v16")
    k("v_and_b32 v18, 1, v16"); k("v_lshlrev_b32 v18, 4, v18"); k("v_lshlrev_b32 v18, v18, v176")
    k("v_cmp_eq_u32 vcc, v17, v3"); k("v_cndmask_b32 v18, 0, v18, vcc"); k("v_lshrrev_b32 v16, 1, v16")
    for r in range(4):
        k(f"v_cmp_eq_u32 vcc, {r}, v16"); k(f"v_cndmask_b32 v{AP+r}, 0, v18, vcc")
    ACC = 16; A0 = 48; A1 = 112; B0 = 144; B1 = 176
    AR = (12, 104, 105, 106)
    def loads(A, B, rho):
        L = []
        for d in range(8): L.append(f"ds_read_b128 {v(B+4*d,4)}, v13 offset:{64*rho + 512*(7-d)}")
        for m in range(8):
            o = 128*(m % 2) + 16*rho
            L.append(f"ds_read2_b32 {v(A+4*m,2)}, v{AR[m//2]} offset0:{o} offset1:{o+1}")
            L.append(f"ds_read2_b32 {v(A+4*m+2,2)}, v{AR[m//2]} offset0:{o+2} offset1:{o+3}")
        return L
    pq = TQ(vm, prefetch_items)
    if q0:
        l0, l1 = k.lab("q0a"), k.lab("q0b")
        k("s_cmp_lg_u32 s10, 0"); k(f"s_cbranch_scc1 {l0}")
        for g, t in q0:
            for ln in g: k(ln)
        k(f"s_waitcnt vmcnt({len(q0)}) lgkmcnt(0)"); k(f"s_branch {l1}")
        k.L.append(l0 + ":")
        k("s_waitcnt vmcnt(0) lgkmcnt(0)")
        k.L.append(l1 + ":")
    else:
        vm.wait(lambda t: t == "ur", " lgkmcnt(0)")
    k.stamp("ur")
    for ln in loads(A0, B0, 0): k(ln)
    k("s_waitcnt lgkmcnt(0)")
    for t in range(8): k(f"v_mfma_f32_16x16x32_bf16 {v(ACC+4*t,4)}, {v(AP,4)}, {v(B0+4*t,4)}, 0")
    pairs = [(m, d) for m in range(8) for d in range(8 - m)]
    for rho in range(8):
        A, B = (A0, B0) if rho % 2 == 0 else (A1, B1)
        An, Bn = (A1, B1) if rho % 2 == 0 else (A0, B0)
        nxt = loads(An, Bn, rho + 1) if rho < 7 else []
        if wloop:
            if rho == WSTART - 1: vm.issue(cpa_sample(), "cpa")
            if rho == WSTART:
                pq.flush(); vm.wait(lambda t: t == "cpa"); cpa_check(k); pq.items = list(wloop)
        elif rho == 7: pq.flush(); vm.issue(cpa_sample(), "cpa")
        for idx, (m, d) in enumerate(pairs):
            k(f"v_mfma_f32_16x16x32_bf16 {v(ACC+4*(m+d),4)}, {v(A+4*m,4)}, {v(B+4*d,4)}, {v(ACC+4*(m+d),4)}")
            if idx < len(nxt): k(nxt[idx])
            if rho >= PFSTART and idx % (PFGAP if (rho < WSTART or not wloop) else WGAP) == 1: pq.pop()
        k("s_waitcnt lgkmcnt(0)")
    pq.flush()
    k.stamp("loop")
    k("v_lshrrev_b32 v14, 1, v2"); k("v_mul_u32_u24 v14, 272, v14"); k("v_and_b32 v15, 1, v2"); k("v_lshl_add_u32 v14, v15, 5, v14")
    k("v_lshl_add_u32 v14, v3, 3, v14"); k("s_lshl_b32 s36, s10, 6"); k(f"s_add_u32 s36, s36, {YOL}"); k("v_add_u32 v14, s36, v14")
    for t in range(8):
        k(f"v_cvt_pk_bf16_f32 v{A0+2*t}, v{ACC+4*t}, v{ACC+4*t+1}"); k(f"v_cvt_pk_bf16_f32 v{A0+2*t+1}, v{ACC+4*t+2}, v{ACC+4*t+3}")
        k(f"ds_write_b64 v14, {v(A0+2*t,2)} offset:{8*272*t}")
    k("s_lshl_b32 s36, s10, 4"); k("v_add_u32 v15, s36, v3")
    k("v_mul_u32_u24 v16, 272, v15"); k("v_lshl_add_u32 v16, v2, 4, v16"); k(f"v_add_u32 v16, {YOL}, v16")
    k("v_mul_u32_u24 v15, 40960, v15"); k("v_lshl_add_u32 v15, v2, 4, v15")
    k("s_lshl_b32 s36, s2, 8"); k(f"s_add_u32 s36, s36, {YT}")
    k("s_waitcnt lgkmcnt(0)")
    k("s_barrier")
    for j in range(4): k(f"ds_read_b128 {v(B0+4*j,4)}, v16 offset:{4*272*j}")
    for j in range(4):
        k(f"s_waitcnt lgkmcnt({3-j})")
        vm.issue([f"buffer_store_dwordx4 {v(B0+4*j,4)}, v15, s[12:15], s36 offen sc1"] + (["s_add_u32 s36, s36, 163840"] if j < 3 else []), "S")
    return vm, pq

def wtask_issue(k, tag, ldsbase):
    k("s_mov_b32 s51, 0x20000")
    k("s_lshl_b32 s34, s10, 14"); k(f"s_add_u32 s34, s34, {ldsbase}")
    k("v_lshrrev_b32 v5, 3, v1"); k("v_and_b32 v6, 7, v1"); k("v_lshlrev_b32 v6, 4, v6")
    k("s_lshl_b32 s47, s41, 5"); k("v_add_u32 v5, s47, v5"); k("v_mul_lo_u32 v5, v5, s40")
    k("s_lshl_b32 s47, s42, 7"); k("v_add3_u32 v5, v5, v6, s47")
    k("s_lshl_b32 s52, s40, 3"); k("s_lshl_b32 s53, s43, 2"); k("s_mov_b32 s54, s34")
    k.label("wld" + tag)
    k("s_mov_b32 m0, s54"); k("s_sub_u32 s53, s53, 1")
    k("buffer_load_dwordx4 v5, s[48:51], 0 offen lds")
    k("v_add_u32 v5, s52, v5"); k("s_add_u32 s54, s54, 1024")
    k("s_cmp_lg_u32 s53, 0"); k(f"s_cbranch_scc1 {k.lab('wld' + tag)}")

def wtask_finish(k, tag, nxt):
    k("v_lshlrev_b32 v5, 10, v3"); k("v_bfe_u32 v6, v1, 2, 2"); k("v_lshl_add_u32 v5, v6, 7, v5")
    k("v_and_b32 v6, 3, v1"); k("v_lshl_add_u32 v5, v6, 4, v5"); k("v_add_u32 v5, s34, v5")
    k("s_lshl_b32 s47, s42, 2"); k("s_mul_i32 s47, s47, s45"); k("s_add_u32 s47, s47, s41"); k("s_lshl_b32 s47, s47, 10")
    k("s_add_u32 s47, s47, s44"); k("s_lshl_b32 s55, s45, 10")
    for r in range(4): k(f"v_mov_b32 v{24+r}, 0")
    k("s_mov_b32 s52, 0x3f803f80"); k("s_mov_b32 s53, 0")
    k.stamp("wiss" + tag)
    k("s_waitcnt vmcnt(0)")
    k.stamp("wld" + tag)
    k.label("wtr" + tag)
    for t in range(4):
        o = 64*(t//2) + 8*(t % 2)
        k(f"ds_read_b64_tr_b16 {v(8+4*t,2)}, v5 offset:{o}"); k(f"ds_read_b64_tr_b16 {v(10+4*t,2)}, v5 offset:{o+512}")
    k("v_add_u32 v5, 4096, v5"); k("s_add_u32 s53, s53, 1")
    k("s_mov_b32 s54, s47")
    for t in range(4):
        k(f"s_waitcnt lgkmcnt({6 - 2*t})")
        k(f"buffer_store_dwordx4 {v(8+4*t,4)}, v4, s[12:15], s54 offen sc1")
        if t < 3: k("s_add_u32 s54, s54, s55")
    for r in range(4):
        for t in range(4): k(f"v_dot2_f32_bf16 v{24+t}, v{8+4*t+r}, s52, v{24+t}")
    k("s_add_u32 s47, s47, 1024")
    k("s_cmp_lt_u32 s53, s43"); k(f"s_cbranch_scc1 {k.lab('wtr' + tag)}")
    k("s_cmp_ge_u32 s46, 5"); k(f"s_cbranch_scc1 {nxt}")
    for t in range(4): k(f"v_mov_b32 v{28+t}, v{24+t}")
    for t in range(4): k(f"v_permlane32_swap_b32 v{24+t}, v{28+t}")
    for t in range(4): k(f"v_add_f32 v{24+t}, v{24+t}, v{28+t}")
    for t in range(4): k(f"v_mov_b32 v{28+t}, v{24+t}")
    for t in range(4): k(f"v_permlane16_swap_b32 v{24+t}, v{28+t}")
    for t in range(4): k(f"v_add_f32 v{24+t}, v{24+t}, v{28+t}")
    k(f"s_mul_i32 s47, s46, {F*4}"); k("s_lshl_b32 s52, s42, 8"); k("s_add_u32 s47, s47, s52"); k(f"s_add_u32 s47, s47, {CS3}")
    k("v_lshlrev_b32 v6, 2, v2")
    k("s_mov_b64 exec, 0xffff")
    for t in range(4): k(f"buffer_store_dword v{24+t}, v6, s[12:15], s47 offen offset:{64*t} sc1")
    k("s_mov_b64 exec, -1")
    k(f"s_branch {nxt}")

def w1_params(k):
    k("s_sub_u32 s35, s2, 242"); k("s_lshl_b32 s35, s35, 2"); k("s_add_u32 s35, s35, s10")
    k("s_mov_b32 s48, s76"); k("s_mov_b32 s49, s77")
    k(f"s_mov_b32 s50, {D*D*2}"); k("s_mov_b32 s40, 1280"); k(f"s_mov_b32 s44, {W1T}"); k("s_mov_b32 s45, 20"); k("s_mov_b32 s46, 5")
    k("s_mul_hi_u32 s41, s35, 0x1999999a"); k("s_mul_i32 s42, s41, 10"); k("s_sub_u32 s42, s35, s42"); k("s_mov_b32 s43, 4"); k("s_lshl_b32 s41, s41, 2")

def prep_part(k, pre_items_setup):
    if QWARM:
        k("s_sub_u32 s33, s2, 160"); k("s_cmp_ge_u32 s33, 64"); k(f"s_cbranch_scc1 {k.lab('noq')}")
        k("s_cmp_eq_u32 s10, 0"); k(f"s_cbranch_scc1 {k.lab('noq')}")
        k("s_mul_i32 s33, s33, 3"); k("s_add_u32 s33, s33, s10"); k("s_sub_u32 s33, s33, 1"); k("s_mul_i32 s33, s33, 14336")
        for i in range(14):
            k(f"buffer_load_dwordx4 v[32:35], v4, s[16:19], s33 offen offset:{1024*(i%4)}")
            if i % 4 == 3: k("s_add_u32 s33, s33, 4096")
    k.label("noq")
    k.label("roundB")
    if BGATE:
        wait_counters(k, None, ["s_mul_hi_u32 s84, s2, 0x1999999a", "s_mul_i32 s84, s84, 10", "s_sub_u32 s84, s2, s84", "s_lshl_b32 s84, s84, 9",
                                f"s_add_u32 s84, s84, {C0}", "v_and_b32 v5, 3, v1", "v_lshlrev_b32 v5, 7, v5", "v_add_u32 v5, s84, v5"], ["v_mov_b32 v7, 8"], False)
    qitems, witems = pre_items_setup()
    k("s_sub_u32 s33, s2, 160"); k("s_lshl_b32 s33, s33, 2"); k("s_add_u32 s33, s33, s10")
    k("s_mov_b32 s43, 0")
    k("s_cmp_ge_u32 s33, 325"); k(f"s_cbranch_scc1 {k.lab('noB')}")
    k("s_mov_b32 s46, 5"); k("s_mov_b32 s43, 4")
    k("s_cmp_ge_u32 s33, 50"); k(f"s_cbranch_scc1 {k.lab('pw3')}")
    k("s_mov_b32 s48, s78"); k("s_mov_b32 s49, s79"); k(f"s_mov_b32 s50, {D*D*2}"); k("s_mov_b32 s40, 1280"); k(f"s_mov_b32 s44, {W2T}"); k("s_mov_b32 s45, 20")
    k("s_mul_hi_u32 s41, s33, 0x1999999a"); k("s_mul_i32 s42, s41, 10"); k("s_sub_u32 s42, s33, s42"); k("s_lshl_b32 s41, s41, 2")
    k(f"s_branch {k.lab('wtB')}")
    k.label("pw3")
    k("s_cmp_ge_u32 s33, 185"); k(f"s_cbranch_scc1 {k.lab('pw4')}")
    k("s_sub_u32 s35, s33, 50")
    k("s_mov_b32 s48, s80"); k("s_mov_b32 s49, s81"); k(f"s_mov_b32 s50, {D*F*2}"); k(f"s_mov_b32 s40, {F*2}"); k(f"s_mov_b32 s44, {W3T}"); k("s_mov_b32 s45, 20")
    k("s_mul_hi_u32 s46, s35, 0x97b425f"); k("s_mul_i32 s42, s46, 27"); k("s_sub_u32 s42, s35, s42"); k("s_lshl_b32 s41, s46, 2")
    k(f"s_branch {k.lab('wtB')}")
    k.label("pw4")
    k("s_sub_u32 s35, s33, 185")
    k("s_mov_b32 s48, s82"); k("s_mov_b32 s49, s83"); k(f"s_mov_b32 s50, {D*F*2}"); k("s_mov_b32 s40, 1280"); k(f"s_mov_b32 s44, {W4T}"); k("s_mov_b32 s45, 54")
    k("s_mul_hi_u32 s41, s35, 0x1999999a"); k("s_mul_i32 s42, s41, 10"); k("s_sub_u32 s42, s35, s42")
    k("s_cmp_eq_u32 s41, 13"); k("s_cselect_b32 s43, 2, 4"); k("s_lshl_b32 s41, s41, 2")
    k.label("wtB")
    wtask_issue(k, "B", 45056)
    k.label("noB")
    for g, t in qitems:
        for ln in g: k(ln)
    for ln in cpa_sample(): k(ln)
    doneB = k.lab("doneB")
    k("s_cmp_eq_u32 s43, 0"); k(f"s_cbranch_scc1 {doneB}")
    wtask_finish(k, "B", doneB)
    k.L.append(doneB + ":")
    k.stamp("doneB")
    signal(k, None, None, [f"s_mov_b32 s{SG}, {CPB}"], 96, [f"s_mov_b32 s{SG}, {FALL + 9*128}"])
    p2.p2_qstats(k, lambda: None)
    cpa_check(k)
    return witems

def mega():
    pc.SC = " sc1"; pc.SS = " sc1"
    k = Kern("block_kernel", vgpr=256, agpr=256, sgpr=96)
    k.only = ONLY
    k("s_cmp_ge_u32 s2, 256"); k(f"s_cbranch_scc1 {k.lab('end')}")
    k.stamp_begin()
    if CODEFIRST:
        for ln in code_prefetch_group(k, None, k.lab("end"), "z", 180, sreg=26): k(ln.replace("@U@", "0"))
    k(f"s_load_dwordx8 s[36:43], s[0:1], {A_K}")
    k(f"s_load_dwordx2 s[44:45], s[0:1], {A_D}")
    k(f"s_load_dwordx8 s[76:83], s[0:1], {B_W1}")
    k(f"s_load_dwordx2 s[72:73], s[0:1], {DBG}")
    prologue(k)
    pre_items_setup = lambda: (p2.p2_pre_setup(k), p2.p2_pre_items(k))[1]
    def common_setup():
        p2.p2_setup(k); p3.p35_setup(k, 26)
        k.srd(12, 4, WS_END); k.srd(16, 8, MB); k.srd(20, 6, MB)
        init_srd(k)
    k("s_cmp_ge_u32 s2, 242"); k(f"s_cbranch_scc1 {k.lab('special')}")
    vm = VM(k)
    kv_issue(k, vm)
    common_setup()
    if TOUCH: page_touch(k)
    npre = 0
    if PREFALL:
        k("s_lshl_b32 s26, s2, 2"); k("s_add_u32 s26, s26, s10")
        for ptr, nbytes, conv_only in (((42, MB, 0)), ((8, MB, 0)), ((78, D*D*2, 0)), ((80, D*F*2, 0)), ((82, D*F*2, 0))):
            per = -(-nbytes // 968 // 1024 * 1024 // 1024) if False else (nbytes // 968 + 1023) // 1024
            k(f"s_mul_i32 s27, s26, {per*1024}")
            k(f"s_mov_b32 s48, s{ptr}"); k(f"s_mov_b32 s49, s{ptr+1}"); k(f"s_mov_b32 s50, {nbytes}"); k("s_mov_b32 s51, 0x20000")
            for j in range(per):
                k(f"buffer_load_dwordx4 v[184:187], v4, s[48:51], s27 offen offset:{1024*j}"); npre += 1
    k("s_cmp_ge_u32 s2, 160"); k(f"s_cbranch_scc1 {k.lab('keepw')}")
    k("s_mov_b32 s76, s42"); k("s_mov_b32 s77, s43"); k("s_mov_b32 s80, s44"); k("s_mov_b32 s81, s45")
    k.label("keepw")
    if not CODEFIRST:
        if PF_ALL: vm.issue(code_prefetch_group(k, k.lab("code0"), k.lab("end"), "z", 180, sreg=26), "pf")
        else: vm.issue(["v_mov_b32 v180, 0", "buffer_load_dword v182, v180, s[16:19], 0 offen"], "pf")
        k.label("code0")
    nh = 0
    if HEARLY:
        k("s_cmp_ge_u32 s2, 160"); k(f"s_cbranch_scc1 {k.lab('noh0')}")
        conv_h_issue(k, VM(k))
        k.label("noh0")
        nh = 17
    k.stamp("kvissued")
    k("s_cmp_lt_u32 s29, 2"); k(f"s_cbranch_scc1 {k.lab('kvw1')}")
    k(f"s_waitcnt vmcnt({(6 if CODEFIRST else 7) + npre})")
    k(f"s_branch {k.lab('kvw2')}")
    k.label("kvw1")
    if TOUCH: k("s_waitcnt vmcnt(8)") if False else kv_wait_touch(k)
    elif CODEFIRST: k("s_waitcnt vmcnt(0)")
    elif HEARLY:
        k("s_cmp_ge_u32 s2, 160"); k(f"s_cbranch_scc1 {k.lab('kvw3')}")
        k(f"s_waitcnt vmcnt({1 + npre + nh})"); k(f"s_branch {k.lab('kvw2')}")
        k.label("kvw3")
        k(f"s_waitcnt vmcnt({1 + npre})")
    else: k(f"s_waitcnt vmcnt({1 + npre})")
    k.label("kvw2")
    k("s_barrier")
    k.stamp("kvin")
    k("v_mov_b32 v178, 0")
    k("buffer_load_dword v177, v178, s[72:75], 0 offen sc1")
    vmh = VM(k)
    if not HLATE and not HEARLY:
        k("s_cmp_ge_u32 s2, 160"); k(f"s_cbranch_scc1 {k.lab('noh')}")
        conv_h_issue(k, vmh)
        k.label("noh")
    NPRE[0] = npre
    kv_compute(k)
    k.stamp("kvdone")
    k("s_waitcnt vmcnt(0)")
    k.stamp("kvdrain")
    ok = k.lab("initok")
    k("v_cmp_eq_u32 vcc, 0, v177"); k(f"s_cbranch_vccz {ok}")
    wait_init(k)
    k.L.append(ok + ":")
    k("s_barrier")
    tile_cnt = lambda add: [f"s_add_u32 s84, s2, {add}", "s_mul_hi_u32 s85, s84, 0x1999999a", "s_mul_i32 s28, s85, 10", "s_sub_u32 s84, s84, s28",
                            "s_lshl_b32 s84, s84, 2", "s_and_b32 s85, s85, 3", "s_add_u32 s84, s84, s85", "s_lshl_b32 s84, s84, 7", f"s_add_u32 s84, s84, {C0}"]
    atomic_signal(k, tile_cnt(0), k.lab("sigc0"), None)
    k("s_cmp_lt_u32 s29, 2"); k(f"s_cbranch_scc1 {k.lab('sigc0b')}")
    atomic_signal(k, tile_cnt(82), k.lab("sigc0c"), None)
    k.label("sigc0b")
    k.stamp("kvsig")
    k("s_cmp_ge_u32 s2, 160"); k(f"s_cbranch_scc1 {k.lab('prep')}")
    if HLATE: conv_h_issue(k, vmh)
    qitems, witems = pre_items_setup()
    q0 = []
    if QEARLY:
        k("s_cmp_eq_u32 s10, 0"); k(f"s_cbranch_scc1 {k.lab('noq0')}")
        k("s_sub_u32 s36, s10, 1"); k("s_mul_i32 s36, s36, 3")
        k("s_add_u32 s37, s36, 3"); k("s_min_u32 s37, s37, 8")
        k(f"s_lshl_b32 s38, s{p2.TT}, 5")
        k.label("qgrp")
        k("s_lshl_b32 s39, s36, 2"); k("v_add_u32 v8, s39, v3")
        k("v_and_b32 v9, 15, v8"); k("v_xor_b32 v9, v9, v2")
        k("v_add_u32 v8, s38, v8"); k("v_mul_u32_u24 v8, 1280, v8"); k("v_lshl_add_u32 v8, v9, 4, v8")
        k("s_mul_i32 s39, s36, 5120")
        for m in range(5):
            k(f"s_add_u32 m0, s39, {p2.QL + 768*m}"); k("s_nop 0")
            k(f"buffer_load_dwordx4 v8, s[16:19], 0 offen offset:{256*m} lds")
        k("s_add_u32 s36, s36, 1"); k("s_cmp_lt_u32 s36, s37"); k(f"s_cbranch_scc1 {k.lab('qgrp')}")
        k.label("noq0")
        qitems = []
    if HLATE: k("s_waitcnt vmcnt(0)")
    conv_h_copy1(k)
    wait_counters(k, None, ["s_lshr_b32 s84, s2, 4", "s_lshl_b32 s84, s84, 9", f"s_add_u32 s84, s84, {C0}", "v_and_b32 v5, 3, v1", "v_lshlrev_b32 v5, 7, v5", "v_add_u32 v5, s84, v5"],
                  ["v_mov_b32 v7, 8"], False)
    k.stamp("s0")
    vm, pq = conv_main(k, qitems, witems[:NWLOOP], q0)
    k.stamp("convdone")
    lab = k.lab("sigc1")
    p2.p2_qstats(k, (lambda: None) if QEARLY else (lambda: vm.wait(lambda t: t == "q")))
    vm.wait(lambda t: t == "S"); k("s_barrier")
    cpa_check(k)
    if S1DIRECT:
        atomic_signal(k, [f"s_lshr_b32 s{SG}, s2, 3", f"s_lshl_b32 s{SG}, s{SG}, 7", f"s_add_u32 s{SG}, s{SG}, {C1D}"], lab, None)
        l2 = k.lab("sigc1g")
        k("s_cmp_lg_u32 s2, 0"); k(f"s_cbranch_scc1 {l2}"); k("s_cmp_lg_u32 s10, 0"); k(f"s_cbranch_scc1 {l2}")
        k(f"v_mov_b32 v5, {FALL}"); k("v_mov_b32 v6, 1"); k("s_mov_b64 exec, 1")
        k("buffer_store_dword v6, v5, s[12:15], 0 offen sc1"); k("s_mov_b64 exec, -1")
        k.L.append(l2 + ":")
    else:
        atomic_signal(k, own_shard(C1), lab, 20, [f"s_and_b32 s{SG}, s2, 7", f"s_lshl_b32 s{SG}, s{SG}, 7", f"s_add_u32 s{SG}, s{SG}, {FALL}"])
    k(f"s_branch {k.lab('wconv') if NWLOOP else k.lab('wfirst')}")
    k.label("special")
    k("s_waitcnt lgkmcnt(0)")
    common_setup()
    k("s_cmp_eq_u32 s2, 255"); k(f"s_cbranch_scc1 {k.lab('zero')}")
    k.label("w1only")
    w1_params(k)
    doneA = k.lab("doneA")
    k("s_cmp_ge_u32 s35, 50"); k(f"s_cbranch_scc1 {doneA}")
    wtask_issue(k, "A", 0)
    wtask_finish(k, "A", doneA)
    k.L.append(doneA + ":")
    k.stamp("doneA")
    signal(k, None, None, [f"s_mov_b32 s{SG}, {CPA}"], 13, [f"s_mov_b32 s{SG}, {FALL + 8*128}"], first=True)
    k(f"s_branch {k.lab('prep')}")
    k.label("zero")
    k("v_mov_b32 v8, 0"); k("v_mov_b32 v9, 0"); k("v_mov_b32 v10, 0"); k("v_mov_b32 v11, 0")
    k("v_lshlrev_b32 v5, 4, v0"); k(f"s_mov_b32 s35, {CNT}")
    for j in range(9):
        k("buffer_store_dwordx4 v[8:11], v5, s[12:15], s35 offen sc1"); k("s_add_u32 s35, s35, 4096")
    k("s_waitcnt vmcnt(0)")
    k("s_barrier")
    k("v_mov_b32 v5, 0"); k("v_mov_b32 v6, 1")
    k("s_cmp_lg_u32 s10, 0"); k(f"s_cbranch_scc1 {k.lab('prep')}")
    k("s_mov_b64 exec, 1")
    k("buffer_store_dword v6, v5, s[72:75], 0 offen sc1")
    k("s_mov_b64 exec, -1")
    k.label("prep")
    witems = prep_part(k, pre_items_setup)
    k.label("wfirst")
    k.stamp("cpa")
    for g, t in witems[:NWLOOP]:
        for ln in g: k(ln)
    k.label("wconv")
    for g, t in witems[NWLOOP:max(NWA, NWLOOP)]:
        for ln in g: k(ln)
    p3.p3_pre_setup(k)
    if S1DIRECT:
        l3 = k.lab("pgate")
        k("s_cmp_lt_u32 s2, 160"); k(f"s_cbranch_scc1 {l3}"); k("s_cmp_lg_u32 s10, 0"); k(f"s_cbranch_scc1 {l3}")
        poll(k, [f"v_mov_b32 v5, {FALL}"], ["v_mov_b32 v7, 1"])
        k.L.append(l3 + ":")
        wait_counters(k, None, ["v_min_u32 v5, 19, v1", "v_lshlrev_b32 v5, 7, v5", f"v_add_u32 v5, {C1D}, v5", f"v_mov_b32 v6, {FALL + 9*128}",
                                "v_cmp_lt_u32 vcc, 19, v1", "v_cndmask_b32 v5, v5, v6, vcc"], ["v_mov_b32 v7, 8", "v_cndmask_b32 v7, v7, 1, vcc"], False)
    else:
        wait_counters(k, None, ["v_min_u32 v5, 9, v1", "v_lshlrev_b32 v5, 7, v5", f"v_add_u32 v5, {FALL}, v5"], ["v_mov_b32 v7, 1"], False)
    k.stamp("s1")
    early = [(g, "E") for g in p3.p3_pre_early(k)]
    vm, nq = p2.p2_main(k, witems[max(NWA, NWLOOP):], ([(code_prefetch_group(k, k.lab('ph3'), k.lab('ph4'), 'a', 136), "pf")] if PF_JIT else []), p3.p3_pre_late, early)
    k.stamp("p2done")
    signal(k, vm, nq, [f"s_lshl_b32 s{SG}, s{p2.TT}, 7", f"s_add_u32 s{SG}, s{SG}, {C2}"], None)
    k.label("ph3")
    p4.p4_setup(k); p4.p4_pre_setup(k)
    wait_counters(k, nq, [f"s_lshl_b32 s{SG}, s{p3.T64}, 1", f"s_sub_u32 s{SG}, s{SG}, 1", "v_and_b32 v5, 3, v1", f"v_add_u32 v5, s{SG}, v5",
                          "v_and_b32 v5, 63, v5", "v_lshlrev_b32 v5, 7, v5", f"v_add_u32 v5, {C2}, v5"], ["v_mov_b32 v7, 4"], True, mid=MID[0])
    k.stamp("s2")
    early = [(g, "E") for g in p4.p4_pre_early(k)]
    vm, nq = p3.p3_main(k, ([(code_prefetch_group(k, k.lab('ph4'), k.lab('ph5'), 'b', 184), "pf")] if PF_JIT else []), p4.p4_pre_late, early)
    k.stamp("p3done")
    signal(k, vm, nq, [f"s_lshr_b32 s{SG}, s{p3.T64}, 1", f"s_lshl_b32 s{SG}, s{SG}, 2", f"s_lshr_b32 s{SG2}, s{p3.FC}, 1", f"s_add_u32 s{SG}, s{SG}, s{SG2}",
                          f"s_lshl_b32 s{SG}, s{SG}, 7", f"s_add_u32 s{SG}, s{SG}, {C3}"], None)
    k.label("ph4")
    p5.p5_pre_setup(k)
    wait_counters(k, nq, [f"s_lshl_b32 s{SG}, s{p4.T128}, 9", f"s_add_u32 s{SG}, s{SG}, {C3}", "v_and_b32 v5, 3, v1", "v_lshlrev_b32 v5, 7, v5", f"v_add_u32 v5, s{SG}, v5"], ["v_mov_b32 v7, 4"],
                  True, p4.p4_cs_table, mid=MID[1], idle_loads=(w4_l2_groups() if W4L2 else None))
    k.stamp("s3")
    early = [(g, "E") for g in p5.p5_pre_early(k)]
    vm, nq = p4.p4_main(k, ([(code_prefetch_group(k, k.lab('ph5'), k.lab('end'), 'c', 88), "pf")] if PF_JIT else []), p5.p5_pre_late, early,
                        follow=[(g, "F") for g in p5.p5_pre_late(k)[:NFOLLOW]], nfollow=NFOLLOW)
    k.stamp("p4done")
    signal(k, vm, nq, [f"s_lshl_b32 s{SG}, s{p4.T128}, 2", f"s_lshr_b32 s{SG2}, s{p4.COL}, 2", f"s_add_u32 s{SG}, s{SG}, s{SG2}",
                          f"s_lshl_b32 s{SG}, s{SG}, 7", f"s_add_u32 s{SG}, s{SG}, {C4}"], None)
    k.label("ph5")
    wait_counters(k, nq, [f"s_lshr_b32 s{SG}, s{p3.T64}, 1", f"s_lshl_b32 s{SG}, s{SG}, 9", f"s_add_u32 s{SG}, s{SG}, {C4}", "v_and_b32 v5, 3, v1", "v_lshlrev_b32 v5, 7, v5", f"v_add_u32 v5, s{SG}, v5"],
                  ["v_mov_b32 v7, 4"], False, mid=MID[2])
    k.stamp("s4")
    p5.p5_main(k)
    k.stamp_flush(4, STAMP)
    k.label("end"); k("s_endpgm")
    pc.SC = ""; pc.SS = ""
    return k
```

```python
from ph_common import *
import ph_common as pc

CSL = 143360
P4_LDS = CSL + 512
T128, COL, NP, ODD, P0, TH, TBG = 24, 25, 26, 27, 28, 29, 30
WAIT2 = True
WAITN = 2
PREN = 11
FOLLOW_KB = 8
CARRY = 24
CSV = 192

def p4_setup(k):
    k("s_and_b32 s36, s2, 7"); k("s_lshr_b32 s37, s2, 3")
    k(f"s_and_b32 s{T128}, s36, 3"); k("s_and_b32 s38, s37, 3"); k("s_lshl_b32 s38, s38, 2"); k(f"s_add_u32 s{T128}, s{T128}, s38")
    k(f"s_lshr_b32 s{COL}, s36, 2"); k(f"s_lshl_b32 s{COL}, s{COL}, 3"); k("s_lshr_b32 s38, s37, 2"); k(f"s_add_u32 s{COL}, s{COL}, s38")
    k(f"s_mul_i32 s38, s{COL}, 7")
    k(f"s_cmp_eq_u32 s{COL}, 15"); k("s_cselect_b32 s38, 103, s38")
    k(f"s_cmp_ge_u32 s{COL}, 14"); k(f"s_cselect_b32 s{NP}, 2, 3")
    k(f"s_and_b32 s{ODD}, s{COL}, 1")
    k(f"s_add_u32 s{P0}, s38, s{ODD}")
    k(f"s_lshl_b32 s{TH}, s{NP}, 1"); k(f"s_add_u32 s{TH}, s{TH}, s38")
    k(f"s_cmp_eq_u32 s{ODD}, 1"); k(f"s_cselect_b32 s{TH}, s38, s{TH}")
    k(f"s_lshl_b32 s{TBG}, s{T128}, 3"); k("s_lshl_b32 s38, s10, 1"); k(f"s_add_u32 s{TBG}, s{TBG}, s38")

def p4_pre_setup(k):
    k(f"s_mul_i32 s40, s{P0}, 20480"); k("s_mul_i32 s41, s10, 5120"); k("s_add_u32 s40, s40, s41"); k(f"s_add_u32 s40, s40, {W3T}")
    k(f"s_mul_i32 s42, s{TH}, 20480"); k("s_add_u32 s42, s42, s41"); k(f"s_add_u32 s42, s42, {W3T}")

def p4_tile_groups(l):
    src = f"s_add_u32 s44, s40, {l*20480}" if l < 6 else "s_mov_b32 s44, s42"
    src2 = f"s_add_u32 s44, s40, {l*20480 + 4096}" if l < 6 else "s_add_u32 s44, s42, 4096"
    G = []
    for i in range(5):
        pre = []
        if i == 0: pre = [f"s_add_u32 m0, s41, {l*20480}", src]
        if i == 4: pre = [f"s_add_u32 m0, s41, {l*20480 + 4096}", src2]
        G.append(pre + [f"buffer_load_dwordx4 v4, s[12:15], s44 offen offset:{1024*(i%4)} sc1 lds"])
    return G

def p4_pre_early(k):
    c = CSV
    G = [[f"v_lshrrev_b32 v{c}, 4, v0", f"v_add_u32 v{c+1}, s{P0}, v{c}", f"v_cmp_eq_u32 vcc, 6, v{c}", f"v_mov_b32 v{c+2}, s{TH}",
          f"v_cndmask_b32 v{c+1}, v{c+1}, v{c+2}, vcc", f"v_lshlrev_b32 v{c+1}, 6, v{c+1}", f"v_lshl_add_u32 v{c+1}, v2, 2, v{c+1}",
          f"s_mov_b32 s45, {CS3}", f"buffer_load_dword v{c+3}, v{c+1}, s[12:15], s45 offen sc1"]]
    for j in range(1, 5):
        G.append([f"s_mov_b32 s45, {CS3 + j*F*4}", f"buffer_load_dword v{c+3+j}, v{c+1}, s[12:15], s45 offen sc1"])
    return G + p4_tile_groups(5) + p4_tile_groups(6)

def p4_pre_late(k):
    G = []
    for l in range(5): G += p4_tile_groups(l)
    return G

def p4_cs_table(k):
    c = CSV
    k(f"v_add_f32 v{c+3}, v{c+3}, v{c+4}"); k(f"v_add_f32 v{c+5}, v{c+5}, v{c+6}")
    k(f"v_add_f32 v{c+3}, v{c+3}, v{c+7}"); k(f"v_add_f32 v{c+3}, v{c+3}, v{c+5}")
    k(f"v_lshlrev_b32 v{c+4}, 2, v0"); k(f"v_add_u32 v{c+4}, {CSL}, v{c+4}")
    k("v_cmp_gt_u32 vcc, 112, v0")
    k("s_and_saveexec_b64 s[56:57], vcc")
    k(f"s_cbranch_execz {k.lab('nocs')}")
    k(f"ds_write_b32 v{c+4}, v{c+3}")
    k.label("nocs")
    k("s_mov_b64 exec, s[56:57]")
    k("s_waitcnt lgkmcnt(0)")

SPLIT_KB = (2, 7, 12, 17)
XS = 88
def xreg(kb, tb):
    if pc.X1_MERGE and kb in SPLIT_KB: return v(XS + 8*SPLIT_KB.index(kb) + 4*tb, 4)
    return a((kb*2+tb)*4, 4)

def p4_main(k, tail, after_gemm, early=None, follow=None, nfollow=0):
    sc = pc.SC; ss = pc.SS
    vm = VM(k)
    k(f"s_mul_i32 s47, s{TBG}, 20480"); k(f"s_add_u32 s47, s47, {X1}"); k("s_add_u32 s48, s47, 20480")
    xl = []
    for kb in range(20):
        for tb in range(2):
            pre = ["s_add_u32 s47, s47, 4096", "s_add_u32 s48, s48, 4096"] if (tb == 0 and kb and kb % 4 == 0) else []
            xl.append((pre + [f"buffer_load_dwordx4 {xreg(kb, tb)}, v4, s[12:15], s{47+tb} offen offset:{1024*(kb%4)}{sc}"], ("X", kb)))
    k("v_lshlrev_b32 v6, 8, v3"); k("v_lshl_add_u32 v6, v2, 3, v6")
    k(f"s_lshl_b32 s37, s{TBG}, 10"); k(f"s_add_u32 s37, s37, {ST2}")
    stl = [([f"buffer_load_dwordx2 {v(8 + 4*tb + 2*h_, 2)}, v6, s[12:15], s37 offen offset:{1024*tb + 128*h_}{sc}"], "ST") for tb in range(2) for h_ in range(2)]
    q = TQ(vm, xl[:4] + stl + xl[4:] + (early or []) + tail); q.pop(14)
    k(f"s_mov_b32 s50, {f2u(GELU_C0)}"); k(f"s_mov_b32 s51, {f2u(GELU_C1)}")
    k(f"s_mov_b32 s54, {f2u(1.0/640)}"); k(f"s_mov_b32 s55, {f2u(1e-5)}")
    st = []
    for tb in range(2):
        b = 8 + 4*tb; o = 16 + 2*tb
        st += [f"v_add_f32 v{o}, v{b}, v{b+2}", f"v_add_f32 v{o+1}, v{b+1}, v{b+3}"]
    for tb in range(2):
        for o in (16 + 2*tb, 17 + 2*tb):
            t_ = 8 + (o - 16)
            st += [f"v_mov_b32 v{t_}, v{o}", f"v_permlane32_swap_b32 v{o}, v{t_}", f"v_add_f32 v{o}, v{o}, v{t_}",
                   f"v_mov_b32 v{t_}, v{o}", f"v_permlane16_swap_b32 v{o}, v{t_}", f"v_add_f32 v{o}, v{o}, v{t_}"]
    for tb in range(2):
        o = 16 + 2*tb
        st += [f"v_mul_f32 v{o}, s54, v{o}", f"v_mul_f32 v{o+1}, s54, v{o+1}", f"v_fma_f32 v{o+1}, -v{o}, v{o}, v{o+1}",
               f"v_max_f32 v{o+1}, 0, v{o+1}", f"v_add_f32 v{o+1}, s55, v{o+1}", f"v_rsq_f32 v{o+1}, v{o+1}"]
        st += gelu_scale_consts(o+1, 168 + 2*tb, 172 + tb, 50, 51)
    sq = Queue(k, [[x] for x in st])
    fq = TQ(vm, follow or [])
    ACC = 32; AF = 176; CS = 120; T = 24; PK = 148; NR = 14
    k("v_lshlrev_b32 v5, 4, v3"); k(f"v_add_u32 v5, {CSL}, v5")
    for l in range(7): k(f"ds_read_b128 {v(CS+4*l,4)}, v5 offset:{64*l}")
    k("v_add_u32 v6, 0x10000, v4"); k("v_add_u32 v7, 0x20000, v4")
    def accr(l, tb): return ACC + 16*(l//2) + 8*tb + 4*(l % 2) if l < 6 else ACC + 48 + 4*tb
    def gemm(tiles):
        seq = [(kb, l) for kb in range(20) for l in tiles]
        PRE = PREN
        def rd(i):
            kb, l = seq[i]; off = l*20480 + kb*1024
            reg = "v4" if off < 65536 else ("v6" if off < 131072 else "v7")
            return f"ds_read_b128 {v(AF + 4*(i % NR),4)}, {reg} offset:{off % 65536}"
        k("s_waitcnt lgkmcnt(0)")
        for i in range(PRE): k(rd(i))
        for i, (kb, l) in enumerate(seq):
            if l == tiles[0]: vm.wait(lambda t: t == ("X", kb) or (kb >= 2 and t == "ST"))
            if l == tiles[0] and pc.X1_MERGE and kb in SPLIT_KB:
                e_ = XS + 8*SPLIT_KB.index(kb)
                k(f"v_swap_b32 v{e_+2}, v{e_+4}"); k(f"v_swap_b32 v{e_+3}, v{e_+5}")
            if WAIT2 and i % WAITN == 0:
                left = min(len(seq), i + PRE) - min(len(seq), i + WAITN)
                k(f"s_waitcnt lgkmcnt({left})")
            elif WAIT2: pass
            elif not WAIT2:
                left = min(len(seq), i + PRE) - i - 1
                k(f"s_waitcnt lgkmcnt({left})")
            for tb in range(2):
                c = v(accr(l, tb), 4)
                k(f"v_mfma_f32_16x16x32_bf16 {c}, {v(AF + 4*(i % NR),4)}, {xreg(kb, tb)}, {c if kb else 0}")
                if tb == 0 and i + PRE < len(seq): k(rd(i + PRE))
            if l in (tiles[0], tiles[3]) or (kb >= 3 and l == tiles[1]) or (kb >= 16 and l == tiles[2]): q.pop()
            if kb >= 2: sq.pop()
            if l == tiles[2] and kb >= FOLLOW_KB and len(fq) and ((nfollow - len(fq)) >> 1) < kb: fq.pop(2 if kb >= 16 else 1)
        q.flush(); sq.flush(); fq.flush()
    k(f"s_cmp_eq_u32 s{NP}, 2"); k(f"s_cbranch_scc1 {k.lab('g5')}")
    save = (list(q.items), list(vm.ops), list(sq.g), list(fq.items))
    gemm([0, 1, 2, 3, 4, 5, 6])
    ops_after = list(vm.ops)
    k(f"s_branch {k.lab('gdone')}")
    k.label("g5")
    q.items, vm.ops, sq.g, fq.items = save
    gemm([0, 1, 2, 3, 6])
    assert vm.ops == ops_after
    k.label("gdone")
    k.stamp("gemm4")
    nq = TQ(vm, [(g, "N") for g in after_gemm(k)[nfollow:]])
    k(f"s_mul_i32 s58, s{TBG}, 55296"); k(f"s_lshr_b32 s59, s{P0}, 1"); k("s_lshl_b32 s59, s59, 10")
    k("s_add_u32 s58, s58, s59"); k(f"s_add_u32 s58, s58, {GG}"); k("s_add_u32 s59, s58, 55296")
    def epi(j, carry):
        streams = []
        for tb in range(2):
            for s_ in (range(2) if j < 3 else [0]):
                L = []; l = 2*j + s_
                for hf in range(2):
                    z = accr(l, tb) + 2*hf; t = T + 2*len(streams); st_ = 16 + 2*tb; cs = CS + 4*l + 2*hf
                    first = [f"v_pk_fma_f32 {v(z,2)}, {v(cs,2)}, {v(st_,2)}, {v(z,2)} op_sel:[0,0,0] op_sel_hi:[1,0,1] neg_lo:[1,0,0] neg_hi:[1,0,0]"]
                    L += gelu_fold(z, t, PK + 8*(j % 2) + 4*tb + 2*s_ + hf if j < 3 else PK + 2*tb + hf, 168 + 2*tb, 172 + tb, first)
                streams.append(L)
        for n, ln in enumerate(interleave(*streams)):
            k(ln)
            if carry and n % CARRY == CARRY - 1: nq.pop()
        if j < 3:
            p = PK + 8*(j % 2)
            vm.issue([f"buffer_store_dwordx4 {v(p,4)}, v4, s[12:15], s58 offen offset:{1024*j}{ss}"], "S")
            vm.issue([f"buffer_store_dwordx4 {v(p+4,4)}, v4, s[12:15], s59 offen offset:{1024*j}{ss}"], "S")
    epi(0, True); epi(1, True)
    k(f"s_cmp_eq_u32 s{NP}, 2"); k(f"s_cbranch_scc1 {k.lab('noe2')}")
    before = len(vm.ops)
    epi(2, False)
    del vm.ops[before:]
    k.label("noe2")
    epi(3, True)
    k(f"s_add_u32 s58, s{TBG}, s{ODD}"); k("s_mul_i32 s58, s58, 55296"); k(f"s_lshr_b32 s59, s{TH}, 1"); k("s_lshl_b32 s59, s59, 10")
    k("s_add_u32 s58, s58, s59"); k(f"s_add_u32 s58, s58, {GG}")
    vm.issue([f"buffer_store_dwordx4 {v(PK,4)}, v4, s[12:15], s58 offen{ss}"], "S")
    return vm, nq

def w4_l2_items(k, sbase=82):
    k(f"s_bfe_u32 s{sbase}, s2, 0x10002"); k(f"s_mul_i32 s{sbase}, s{sbase}, {20*55296}")
    k(f"s_lshr_b32 s{sbase+1}, s2, 3"); k(f"s_lshl_b32 s{sbase+1}, s{sbase+1}, 2"); k(f"s_add_u32 s{sbase+1}, s{sbase+1}, s10")
    k(f"s_mul_i32 s{sbase+1}, s{sbase+1}, 9216"); k(f"s_add_u32 s{sbase}, s{sbase}, s{sbase+1}"); k(f"s_add_u32 s{sbase}, s{sbase}, {W4T}")
    G = []
    for i in range(9):
        pre = [f"s_add_u32 s{sbase}, s{sbase}, 4096"] if (i and i % 4 == 0) else []
        G.append((pre + [f"buffer_load_dwordx4 v[164:167], v4, s[12:15], s{sbase} offen offset:{1024*(i%4)}"], "pf"))
    return G
```
